```python
import torch

def _softmax(x, axis=-1):
    return torch.softmax(x, dim=axis)
def _gelu(x):
    return torch.nn.functional.gelu(x, approximate="tanh")
def _silu(x):
    return torch.nn.functional.silu(x)
def _sigmoid(x):
    return torch.sigmoid(x)
def _layernorm(x, axis=-1, eps=1e-5):
    m = x.mean(dim=axis, keepdim=True)
    v = x.var(dim=axis, keepdim=True, unbiased=False)
    return (x - m) / torch.sqrt(v + eps)
def _scatter_add(tgt, idx, src, axis=0):
    return tgt.clone().index_add_(axis, idx, src)
def _segment_sum(src, seg, n):
    out = torch.zeros((n,) + src.shape[1:], dtype=src.dtype)
    return out.index_add_(0, seg, src)
def _pad(x, pw):
    flat = tuple(v for pair in reversed(pw) for v in pair)
    return torch.nn.functional.pad(x, flat)

kernel_name = 'parallel_sum__linear_attn_block__mixer_channel_mlp__prompt'

def setup_inputs():

    _w = (lambda a: (lambda t: t.to(torch.bfloat16) if t.is_floating_point() else t)(torch.as_tensor(a)))
    def _A_setup():
        B, S, D = 1, 2048, 640
        return {
            "x": _w((lambda *s: torch.randn(*s, dtype=torch.bfloat16) * 0.05)(B, S, D)),
            "wqkv": _w((lambda *s: torch.randn(*s, dtype=torch.bfloat16) * 0.1)(D, 3 * D)),
            "wo": _w((lambda *s: torch.randn(*s, dtype=torch.bfloat16) * 0.05)(D, D)),
        }
    _A_in = _A_setup()

    def _B_setup():
        B, S, D, F = 1, 2048, 640, 1728
        return {
            "x": _w((lambda *s: torch.randn(*s, dtype=torch.bfloat16) * 0.05)(B, S, D)),
            "w1": _w((lambda *s: torch.randn(*s, dtype=torch.bfloat16) * 1.6)(D, F) * (D ** -0.5)),
            "b1": _w((lambda *s: torch.randn(*s, dtype=torch.bfloat16) * 0.8)(F)),
            "w2": _w((lambda *s: torch.randn(*s, dtype=torch.bfloat16) * 0.05)(F, D) * (F ** -0.5)),
            "b2": _w((lambda *s: torch.randn(*s, dtype=torch.bfloat16) * 0.05)(D)),
        }
    _B_in = _B_setup()

    return {
        "A_x": _A_in["x"],
        "A_wqkv": _A_in["wqkv"],
        "A_wo": _A_in["wo"],
        "B_x": _B_in["x"],
        "B_w1": _B_in["w1"],
        "B_b1": _B_in["b1"],
        "B_w2": _B_in["w2"],
        "B_b2": _B_in["b2"],
    }

def reference(A_x, A_wqkv, A_wo, B_x, B_w1, B_b1, B_w2, B_b2):
    def _A_ref(x, wqkv, wo):
        B, S, D = x.shape
        H = 32; Dh = D // H
        qkv = (lambda x, *d: x.permute(*d))((x @ wqkv).reshape(B, S, 3, H, Dh), 2, 0, 3, 1, 4)
        q, k, v = qkv[0], qkv[1], qkv[2]
        phi = lambda t: torch.where(t > 0, t + 1, torch.exp(t)) + 1e-6
        pq, pk = phi(q), phi(k)
        kv = torch.einsum("bhsd,bhse->bhde", pk, v)
        z = torch.einsum("bhsd->bhd", pk)
        num = torch.einsum("bhqd,bhde->bhqe", pq, kv)
        den = torch.einsum("bhqd,bhd->bhq", pq, z)[..., None] + 1e-6
        o = num / den
        return (lambda x, *d: x.permute(*d))(o, 0, 2, 1, 3).reshape(B, S, D) @ wo

    def _B_ref(x, w1, b1, w2, b2):
        y = _layernorm(x, axis=-1)
        h = _gelu(torch.einsum("bsd,df->bsf", y, w1) + b1)
        return torch.einsum("bsf,fd->bsd", h, w2) + b2

    x = A_x
    xn = _layernorm(x, axis=-1)
    return x + _A_ref(xn, A_wqkv, A_wo) + _B_ref(xn, B_w1, B_b1, B_w2, B_b2)
```

```python
import re

TRANS = ("v_exp_f32", "v_log_f32", "v_rcp_f32", "v_rsq_f32", "v_sqrt_f32", "v_sin_f32", "v_cos_f32", "v_rcp_iflag_f32")


def regs_of(op):
    op = op.strip()
    op = re.sub(r"^-|^\|(.*)\|$", r"\1" if op.startswith("|") else "", op)
    m = re.fullmatch(r"abs\((.*)\)", op)
    if m:
        op = m.group(1)
    m = re.fullmatch(r"([vsa])\[(\d+):(\d+)\]", op)
    if m:
        return {f"{m.group(1)}{i}" for i in range(int(m.group(2)), int(m.group(3)) + 1)}
    m = re.fullmatch(r"([vsa])(\d+)", op)
    if m:
        return {op}
    if op in ("vcc", "vcc_lo", "vcc_hi"):
        return {"vcc"}
    if op in ("exec", "exec_lo", "exec_hi"):
        return {"exec"}
    if op == "m0":
        return {"m0"}
    return set()


class Ins:
    def __init__(self, text):
        self.text = text
        t = text.split(";")[0].strip()
        self.label = None
        self.mn = ""
        self.ops = []
        if t.endswith(":"):
            self.label = t[:-1]
            self.kind = "label"
            return
        if t.startswith(".") or not t:
            self.kind = "dir"
            return
        parts = t.split(None, 1)
        self.mn = re.sub(r"_(e32|e64|dpp|sdwa)$", "", parts[0])
        self.dpp = parts[0].endswith("_dpp") or ("row_" in t or "quad_perm" in t)
        rest = parts[1] if len(parts) > 1 else ""
        ops, depth, cur = [], 0, ""
        for ch in rest:
            if ch in "[(":
                depth += 1
            if ch in "])":
                depth -= 1
            if ch == "," and depth == 0:
                ops.append(cur.strip())
                cur = ""
            else:
                cur += ch
        if cur.strip():
            ops.append(cur.strip())
        mods = ""
        if ops:
            sp = ops[-1].split(None, 1)
            ops[-1] = sp[0]
            mods = sp[1] if len(sp) > 1 else ""
        self.ops = ops
        self.mods = mods
        mn = self.mn
        self.w = set()
        self.r = set()
        self.passes = 0
        R = [regs_of(o) for o in ops]
        if mn.startswith("v_mfma") or mn.startswith("v_smfmac"):
            self.kind = "mfma"
            self.w = R[0]
            self.A, self.B = R[1], R[2]
            self.C = R[3] if mn.startswith("v_mfma") else R[0]
            self.r = R[1] | R[2] | R[3] | (R[0] if mn.startswith("v_smfmac") else set())
            self.passes = 8 if "32x32" in mn else (4 if "16x16" in mn else 2)
        elif mn.startswith("v_"):
            self.kind = "valu"
            self.trans = mn in TRANS
            if mn.startswith("v_cmp"):
                self.w = R[0] | ({"exec"} if mn.startswith("v_cmpx") else set())
                self.r = set().union(*R[1:])
            elif mn.startswith("v_permlane"):
                self.w = R[0] | R[1]
                self.r = R[0] | R[1]
            elif "_co_" in mn:
                self.w = R[0] | R[1]
                self.r = set().union(*R[2:])
            elif mn == "v_nop":
                pass
            else:
                self.w = R[0]
                self.r = set().union(*R[1:]) if len(R) > 1 else set()
                if mn.startswith(("v_fmac", "v_dot2c", "v_writelane", "v_pk_fmac")):
                    self.r |= R[0]
                if mn.startswith("v_cndmask") and len(ops) == 3:
                    self.r |= {"vcc"}
        elif mn.startswith("ds_"):
            self.kind = "ds"
            if mn.startswith("ds_read") or "_rtn" in mn or mn.startswith(("ds_bpermute", "ds_permute", "ds_swizzle")):
                self.w = R[0]
                self.r = set().union(*R[1:]) if len(R) > 1 else set()
            else:
                self.r = set().union(*R)
            if "addtid" in mn:
                self.r |= {"m0"}
        elif mn.startswith(("buffer_", "global_", "flat_")):
            self.kind = "vmem"
            self.lds = bool(re.search(r"\blds\b", mods)) or "load_lds" in mn
            self.wide_store = False
            if mn in ("buffer_wbl2", "buffer_inv"):
                pass
            elif self.lds:
                self.r = set().union(*R) | {"m0"}
            elif "load" in mn:
                self.w = R[0]
                self.r = set().union(*R[1:])
            elif "atomic" in mn:
                ret = bool(re.search(r"\bsc0\b", mods))
                if mn.startswith("global") and ret:
                    self.w = R[0]
                    self.r = set().union(*R[1:])
                else:
                    self.r = set().union(*R)
                    if ret:
                        self.w = R[0]
            else:
                self.r = set().union(*R)
                self.data = R[0] if mn.startswith("buffer") else R[1]
                self.wide_store = mn.endswith(("x3", "x4"))
        elif mn.startswith("s_"):
            self.kind = "salu"
            if mn.startswith(("s_cmp", "s_waitcnt", "s_barrier", "s_nop", "s_sleep", "s_setprio", "s_endpgm", "s_branch", "s_cbranch", "s_bitcmp")):
                self.r = set().union(*R) if R else set()
            else:
                self.w = R[0] if R else set()
                self.r = set().union(*R[1:]) if len(R) > 1 else set()
                if "saveexec" in mn:
                    self.w |= {"exec"}
                    self.r |= {"exec"}
        else:
            raise ValueError("unknown instr: " + text)

    def states(self):
        if self.kind in ("label", "dir"):
            return 0
        if self.mn == "s_nop":
            return int(self.ops[0], 0) + 1
        return 1


def isv(s):
    return {x for x in s if x[0] in "va" and x != "vcc"}


def iss(s):
    return {x for x in s if x[0] == "s" or x == "vcc"}


def need(p, c):
    n = 0
    if p.kind == "valu":
        pv = isv(p.w)
        ps = iss(p.w)
        if c.kind == "mfma" and pv & c.r:
            n = max(n, 2)
        if c.kind == "mfma" and "exec" in p.w:
            n = max(n, 4)
        if c.kind == "valu":
            if c.mn.startswith("v_permlane") and pv & c.r:
                n = max(n, 2)
            if c.dpp and pv & c.r:
                n = max(n, 2)
            if c.dpp and "exec" in p.w:
                n = max(n, 5)
            if c.mn in ("v_readlane_b32", "v_readfirstlane_b32") and pv & c.r:
                n = max(n, 1)
            if c.mn in ("v_readlane_b32", "v_writelane_b32") and ps & c.r:
                n = max(n, 4)
            if ps & c.r:
                n = max(n, 2)
            if getattr(p, "trans", False) and pv & c.r and not c.trans:
                n = max(n, 1)
            if "exec" in p.w and c.mn in ("v_readlane_b32", "v_readfirstlane_b32", "v_writelane_b32"):
                n = max(n, 4)
            if "exec" in p.w and c.mn.startswith("v_permlane"):
                n = max(n, 4)
        if getattr(p, "trans", False) and c.kind in ("ds", "vmem") and pv & c.r:
            n = max(n, 1)
        if c.kind == "vmem" and ps & c.r:
            n = max(n, 5)
        if c.kind == "salu" and ps & c.r:
            n = max(n, 1)
    if p.kind == "salu":
        if "m0" in p.w and c.kind in ("vmem", "ds") and "m0" in c.r:
            n = max(n, 1)
    if p.kind == "vmem" and getattr(p, "wide_store", False):
        if c.kind == "valu" and p.data & c.w:
            n = max(n, 2)
        elif c.kind in ("mfma", "ds", "vmem") and p.data & c.w:
            n = max(n, 1)
    if p.kind == "mfma":
        i = {2: 0, 4: 1, 8: 2}[p.passes]
        if c.kind == "mfma":
            if p.w & (c.A | c.B):
                n = max(n, (5, 8, 12)[i])
            if p.w & c.C:
                if p.w == c.C and p.passes == c.passes:
                    n = max(n, (2, 0, 0)[i])
                else:
                    n = max(n, (4, 6, 10)[i])
            elif p.w & c.w:
                n = max(n, (4, 6, 10)[i])
        elif c.kind in ("valu", "ds", "vmem"):
            if p.w & (c.r | c.w):
                n = max(n, (5, 8, 12)[i])
            if c.kind == "valu" and p.C & c.w:
                n = max(n, (1, 3, 7)[i])
    return n


def fix_hazards(lines, verbose=False):
    ins = [Ins(l) for l in lines]
    labels = {x.label: i for i, x in enumerate(ins) if x.kind == "label"}
    preds = [[] for _ in ins]
    for i, x in enumerate(ins):
        if i + 1 < len(ins) and x.mn not in ("s_branch", "s_endpgm", "s_setpc_b64"):
            preds[i + 1].append(i)
        if x.mn == "s_branch" or x.mn.startswith("s_cbranch"):
            t = x.ops[0]
            if t in labels:
                preds[labels[t]].append(i)
    pad = [0] * len(ins)
    for i, c in enumerate(ins):
        if c.kind in ("label", "dir") or c.mn == "s_nop":
            continue
        worst = 0
        who = None
        stack = [(p, 0) for p in preds[i]]
        seen = {}
        while stack:
            j, d = stack.pop()
            if d >= 12 or seen.get(j, 99) <= d:
                continue
            seen[j] = d
            p = ins[j]
            if p.kind not in ("label", "dir"):
                n = need(p, c) - d
                if n > worst:
                    worst, who = n, p
            for q in preds[j]:
                stack.append((q, d + p.states() + pad[j]))
        if worst > 0:
            if verbose:
                print(f"hazard: +{worst} before '{c.text.strip()}' after '{who.text.strip()}'")
            pad[i] = worst
    out = []
    for i, x in enumerate(ins):
        if pad[i]:
            out.append(f"s_nop {pad[i]-1}")
        out.append(x.text)
    return out, sum(1 for p in pad if p)


class Asm:
    uid = 0

    def __init__(self):
        self.L = []

    def __call__(self, s):
        for l in s.strip("\n").split("\n"):
            l = l.strip()
            if l:
                self.L.append(l)

    def label(self, name):
        self.L.append(name + ":")

    def newlabel(self, base):
        Asm.uid += 1
        return f"{base}_{Asm.uid}"


def vr(base, n=1):
    return f"v{base}" if n == 1 else f"v[{base}:{base+n-1}]"


def sr(base, n=1):
    return f"s{base}" if n == 1 else f"s[{base}:{base+n-1}]"


class RegAlloc:
    def __init__(self, start, end):
        self.cur = start
        self.end = end
        self.names = {}

    def alloc(self, name, n=1, align=1):
        self.cur = (self.cur + align - 1) // align * align
        r = self.cur
        self.cur += n
        assert self.cur <= self.end, f"out of registers allocating {name}"
        self.names[name] = (r, n)
        return r
```

```python
import sys, struct
from asmlib import Asm, fix_hazards, vr, sr, RegAlloc

NAME = "parallel_sum__linear_attn_block__mixer_channel_mlp__prompt"

A2_OFF = 0
A2_RB = 74 * 4096
B2_OFF = 32 * A2_RB
B2_C = 74 * 5120
KV_OFF = B2_OFF + 8 * B2_C
FLAG_OFF = KV_OFF + 8 * 8192
WS_SIZE = FLAG_OFF + 8192
F_KV, F_H, F_O, F_W2 = 0, 8, 24, 40

SLOT = 49152
MISC = 3 * SLOT
ST_M, ST_RS, ST_IRS, CSP = MISC, MISC + 512, MISC + 1024, MISC + 2048
RELAY = MISC
KVX, ONES, CMP, CDUM, FRG = 0, 40960, 41984, 41984 + 6720, 49408
LDS1 = 163840

LOG2E = 1.4426950408889634
GC1 = -2.0 * 0.7978845608028654 * LOG2E
GC2 = GC1 * 0.044715


def f2u(x):
    return struct.unpack("<I", struct.pack("<f", x))[0]


def hx(x):
    return "0x%08x" % f2u(x)


class Cfg:
    st_sc1 = True
    stamps = False
    prefetch_code = True


STAMP_OFF = WS_SIZE + 65536


def emit_common_prologue(a, end_label, start_label):
    a("""
    s_cmp_ge_u32 s2, 256
    s_cbranch_scc1 %s
    s_load_dwordx16 s[4:19], s[0:1], 0
    s_load_dwordx4 s[20:23], s[0:1], 64
    s_load_dwordx2 s[24:25], s[0:1], 80
    """ % end_label)


def srd(a, base, ptr, size):
    a(f"""
    s_mov_b32 s{base}, s{ptr}
    s_mov_b32 s{base+1}, s{ptr+1}
    s_mov_b32 s{base+2}, {size}
    s_mov_b32 s{base+3}, 0x20000
    """)


def code_prefetch(a, start_label, end_label, vtmp, vdst):
    here = a.newlabel("PC")
    a(f"""
    s_getpc_b64 s[26:27]
    {here}:
    s_sub_u32 s26, s26, {here}-{start_label}
    s_subb_u32 s27, s27, 0
    v_lshlrev_b32 v{vtmp}, 7, v0
    v_min_u32 v{vtmp}, {end_label}-{start_label}-4, v{vtmp}
    v_mov_b32 v{vtmp+1}, s27
    v_add_co_u32 v{vtmp}, vcc, s26, v{vtmp}
    v_addc_co_u32 v{vtmp+1}, vcc, 0, v{vtmp+1}, vcc
    global_load_dword v{vdst}, v[{vtmp}:{vtmp+1}], off
    """)


def stamp(a, idx, S, vt):
    if not Cfg.stamps:
        return
    if idx == 0:
        for i in range(12):
            a(f"s_mov_b32 s{S['stamp']+i}, 0")
    a(f"""
    s_memtime s[{S['t0']}:{S['t0']+1}]
    s_waitcnt lgkmcnt(0)
    s_mov_b32 s{S['stamp']+idx}, s{S['t0']}
    """)


def stamp_flush(a, S, vt, n, kern):
    if not Cfg.stamps:
        return
    a(f"""
    s_lshl_b32 s{S['t0']}, s2, 3
    s_add_u32 s{S['t0']}, s{S['t0']}, s{S['w']}
    s_lshl_b32 s{S['t0']}, s{S['t0']}, 6
    s_add_u32 s{S['t0']}, s{S['t0']}, {STAMP_OFF + kern * 0x40000}
    v_mov_b32 v{vt}, s{S['t0']}
    """)
    for i in range(n):
        a(f"""
        v_mov_b32 v{vt+1}, s{S['stamp']+i}
        global_store_dword v{vt}, v{vt+1}, s[24:25] offset:{i*4}
        """)
    a(f"""
    s_memrealtime s[{S['t0']}:{S['t0']+1}]
    s_waitcnt lgkmcnt(0)
    v_mov_b32 v{vt+1}, s{S['t0']}
    global_store_dword v{vt}, v{vt+1}, s[24:25] offset:60
    """)


def poll(a, S, vz, vt, base_pair, off, target, err):
    lp, dn = a.newlabel("POLL"), a.newlabel("POLLD")
    c = S["pc"]
    t = S["pt"]
    a(f"""
    s_mov_b32 s{c}, 0
    {lp}:
    global_load_dword v{vt}, v{vz}, s[{base_pair}:{base_pair+1}] offset:{off} sc1
    s_waitcnt vmcnt(0)
    v_readfirstlane_b32 s{t}, v{vt}
    s_cmp_ge_u32 s{t}, {target}
    s_cbranch_scc1 {dn}
    s_sleep 1
    s_add_u32 s{c}, s{c}, 1
    s_cmp_lt_u32 s{c}, 0x40000
    s_cbranch_scc1 {lp}
    v_mov_b32 v{vt}, {err}
    v_mov_b32 v{vt+1}, 0
    global_store_dword v{vt+1}, v{vt}, s[22:23] offset:32
    {dn}:
    """)


def gen_k1(fused=False):
    a = Asm()
    K = "k1_kernel"
    SC = " sc1" if Cfg.st_sc1 else ""
    S = {}
    sa = RegAlloc(44, 96)
    for n in ("w", "rg", "rb", "j", "typ", "it", "rd", "wr", "soA", "soA2", "soB", "t", "t1", "t2", "t3", "pc", "pt", "u", "ustep"):
        S[n] = sa.alloc(n)
    S["offA"] = sa.alloc("offA", 2)
    S["offB"] = sa.alloc("offB", 4)
    S["uo"] = sa.alloc("uo", 4)
    S["t0"] = sa.alloc("t0", 2, 2)
    S["ex"] = sa.alloc("ex", 2, 2)
    S["m1"] = sa.alloc("m1", 2, 2)
    S["m2"] = sa.alloc("m2", 2, 2)
    S["fl"] = sa.alloc("fl", 2, 2)
    S["stamp"] = sa.alloc("stamp", 12)
    SX, SW, SWS, SR = 28, 32, 36, 40

    va = RegAlloc(1, 256)
    V = {}
    V["l"] = va.alloc("l")
    V["zero"] = va.alloc("zero")
    V["dA"] = va.alloc("dA")
    V["dB"] = va.alloc("dB", 4)
    V["rA"] = va.alloc("rA", 4)
    V["rA0"] = va.alloc("rA0")
    V["rB"] = va.alloc("rB")
    V["rB0"] = va.alloc("rB0")
    V["bias"] = va.alloc("bias", 5)
    V["cmpa"] = va.alloc("cmpa", 4)
    V["sca"] = va.alloc("sca", 8)
    V["rly"] = va.alloc("rly", 2)
    V["sel"] = va.alloc("sel", 4, 2)
    V["one"] = va.alloc("one", 2, 2)
    V["sq"] = va.alloc("sq", 4, 2)
    V["sm"] = va.alloc("sm", 4, 2)
    V["cs"] = va.alloc("cs", 20, 2)
    V["fa"] = va.alloc("fa", 8, 2)
    V["fb"] = va.alloc("fb", 40, 2)
    V["acc"] = va.alloc("acc", 80, 2)
    V["t"] = va.alloc("t", 48, 2)
    T = V["t"]
    l = V["l"]

    a.label(K)
    emit_common_prologue(a, "K1_END", K)
    a(f"""
    v_and_b32 v{l}, 63, v0
    v_lshrrev_b32 v{T}, 6, v0
    v_mov_b32 v{V['zero']}, 0
    v_readfirstlane_b32 s{S['w']}, v{T}
    """)
    if Cfg.prefetch_code:
        code_prefetch(a, K, "K1_CODE_END", T + 2, T + 4)
    a(f"""
    s_and_b32 s{S['rg']}, s{S['w']}, 3
    s_and_b32 s{S['t']}, s2, 3
    s_lshl_b32 s{S['t']}, s{S['t']}, 2
    s_bfe_u32 s{S['t1']}, s2, 0x20003
    s_add_u32 s{S['rb']}, s{S['t']}, s{S['t1']}
    s_bfe_u32 s{S['typ']}, s2, 0x10005
    s_bfe_u32 s{S['t']}, s2, 0x10002
    s_lshl_b32 s{S['t']}, s{S['t']}, 2
    s_bfe_u32 s{S['t1']}, s2, 0x20006
    s_add_u32 s{S['j']}, s{S['t']}, s{S['t1']}
    s_waitcnt lgkmcnt(0)
    """)
    stamp(a, 0, S, T)
    srd(a, SX, 4, 2048 * 1280)
    srd(a, SWS, 24, WS_SIZE)
    a(f"""
    s_cmp_eq_u32 s{S['typ']}, 0
    s_cselect_b32 s{SW}, s6, s12
    s_cselect_b32 s{SW+1}, s7, s13
    s_mov_b32 s{SW+2}, {640*3456}
    s_cselect_b32 s{SW+2}, {640*3840}, s{SW+2}
    s_mov_b32 s{SW+3}, 0x20000
    s_add_u32 s{S['fl']}, s24, {FLAG_OFF}
    s_addc_u32 s{S['fl']+1}, s25, 0
    """)
    a(f"""
    s_or_b32 s{S['t']}, s{S['typ']}, s{S['rb']}
    s_cmp_lg_u32 s{S['t']}, 0
    s_cbranch_scc1 K1_NOINIT
    v_mov_b32 v{T+8}, 0
    v_mov_b32 v{T+9}, 0
    v_mov_b32 v{T+10}, 0
    v_mov_b32 v{T+11}, 0
    v_lshlrev_b32 v{T+6}, 4, v0
    s_lshl_b32 s{S['t']}, s{S['j']}, 13
    s_add_u32 s{S['t']}, s{S['t']}, {KV_OFF}
    buffer_store_dwordx4 v[{T+8}:{T+11}], v{T+6}, s[{SWS}:{SWS+3}], s{S['t']} offen sc1
    s_cmp_lg_u32 s{S['w']}, 0
    s_cbranch_scc1 K1_NOINIT
    s_lshl_b32 s{S['t']}, s{S['j']}, 10
    s_add_u32 s{S['t']}, s{S['t']}, {FLAG_OFF}
    buffer_store_dwordx4 v[{T+8}:{T+11}], v{T+6}, s[{SWS}:{SWS+3}], s{S['t']} offen sc1
    K1_NOINIT:
    """)
    a(f"""
    v_lshrrev_b32 v{T}, 3, v{l}
    s_lshl_b32 s{S['t']}, s{S['w']}, 3
    s_lshl_b32 s{S['t1']}, s{S['rb']}, 7
    s_add_u32 s{S['t']}, s{S['t']}, s{S['t1']}
    v_add_u32 v{T}, s{S['t']}, v{T}
    v_mul_u32_u24 v{V['dA']}, 1280, v{T}
    v_lshrrev_b32 v{T}, 1, v{T}
    v_xor_b32 v{T}, v{T}, v{l}
    v_and_b32 v{T}, 7, v{T}
    v_lshl_add_u32 v{V['dA']}, v{T}, 4, v{V['dA']}
    s_lshl_b32 s{S['offA']}, s{S['w']}, 10
    s_add_u32 s{S['offA']+1}, s{S['offA']}, 8192
    s_mov_b32 s{S['soA']}, 0
    s_mov_b32 s{S['soA2']}, {64*1280}
    s_mov_b32 s{S['soB']}, 0
    """)
    a(f"""
    v_and_b32 v{T}, 31, v{l}
    s_lshl_b32 s{S['t']}, s{S['rg']}, 5
    v_add_u32 v{T}, s{S['t']}, v{T}
    v_bfe_u32 v{T+1}, v{T}, 1, 3
    v_lshrrev_b32 v{T+2}, 5, v{l}
    v_xor_b32 v{T+1}, v{T+1}, v{T+2}
    v_lshlrev_b32 v{T+1}, 4, v{T+1}
    v_lshl_add_u32 v{V['rA0']}, v{T}, 7, v{T+1}
    """)
    a(f"""
    v_mov_b32 v{V['one']}, 0x3f803f80
    v_mov_b32 v{V['one']+1}, 0x3f803f80
    s_mov_b32 s{S['m1']}, 0x00020001
    s_mov_b32 s{S['m1']+1}, 0x00020001
    v_cndmask_b32 v{V['sel']}, 0, v{V['one']}, s[{S['m1']}:{S['m1']+1}]
    v_cndmask_b32 v{V['sel']+1}, 0, v{V['one']}, s[{S['m1']}:{S['m1']+1}]
    v_cndmask_b32 v{V['sel']+2}, 0, v{V['one']}, s[{S['m1']}:{S['m1']+1}]
    v_cndmask_b32 v{V['sel']+3}, 0, v{V['one']}, s[{S['m1']}:{S['m1']+1}]
    """)
    a(f"""
    s_lshl_b32 s{S['t']}, s{S['w']}, 8
    s_add_u32 s{S['u']}, s{S['t']}, s2
    s_mul_i32 s{S['ustep']}, s{S['u']}, 6554
    s_lshr_b32 s{S['ustep']}, s{S['ustep']}, 16
    s_mul_i32 s{S['t']}, s{S['ustep']}, 10
    s_sub_u32 s{S['t1']}, s{S['u']}, s{S['t']}
    s_cmp_lt_u32 s{S['ustep']}, 54
    s_cselect_b32 s{SR}, s16, s8
    s_cselect_b32 s{SR+1}, s17, s9
    s_mov_b32 s{SR+2}, {640*1280}
    s_cselect_b32 s{SR+2}, {1728*1280}, s{SR+2}
    s_mov_b32 s{SR+3}, 0x20000
    s_cselect_b32 s{S['t']}, 0, 54
    s_sub_u32 s{S['t']}, s{S['ustep']}, s{S['t']}
    s_mul_i32 s{S['t']}, s{S['t']}, {32*1280}
    s_lshl_b32 s{S['t2']}, s{S['t1']}, 7
    s_add_u32 s{S['t']}, s{S['t']}, s{S['t2']}
    v_lshrrev_b32 v{T}, 3, v{l}
    v_mul_u32_u24 v{T}, 1280, v{T}
    v_and_b32 v{T+1}, 7, v{l}
    v_lshl_add_u32 v{T}, v{T+1}, 4, v{T}
    v_add_u32 v{V['rly']}, s{S['t']}, v{T}
    """)
    for ct in range(4):
        a(f"""
        s_lshl_b32 s{S['t']}, s{S['t1']}, 2
        s_add_u32 s{S['t']}, s{S['t']}, {ct}
        s_mul_i32 s{S['t2']}, s{S['t']}, 52
        s_lshr_b32 s{S['t2']}, s{S['t2']}, 8
        s_mul_i32 s{S['t3']}, s{S['t2']}, 5
        s_sub_u32 s{S['t']}, s{S['t']}, s{S['t3']}
        s_lshl_b32 s{S['t']}, s{S['t']}, 10
        s_mul_i32 s{S['t2']}, s{S['t2']}, {B2_C}
        s_add_u32 s{S['t']}, s{S['t']}, s{S['t2']}
        s_mul_i32 s{S['t2']}, s{S['ustep']}, 5120
        s_add_u32 s{S['t']}, s{S['t']}, s{S['t2']}
        s_add_u32 s{S['uo']+ct}, s{S['t']}, {B2_OFF}
        """)
    a(f"""
    v_lshrrev_b32 v{T}, 5, v{l}
    v_lshlrev_b32 v{T}, 4, v{T}
    v_bfe_u32 v{T+1}, v{l}, 4, 1
    v_lshl_add_u32 v{T}, v{T+1}, 2, v{T}
    v_bfe_u32 v{T+1}, v{l}, 2, 2
    v_add_u32 v{T}, v{T}, v{T+1}
    v_lshlrev_b32 v{T}, 7, v{T}
    v_and_b32 v{T+1}, 3, v{l}
    v_lshl_add_u32 v{T}, v{T+1}, 3, v{T}
    s_lshl_b32 s{S['t']}, s{S['w']}, 12
    s_add_u32 s{S['t']}, s{S['t']}, {RELAY}
    v_add_u32 v{V['rly']+1}, s{S['t']}, v{T}
    """)
    a(f"""
    s_lshr_b32 s{S['t']}, s{S['w']}, 2
    s_lshl_b32 s{S['t1']}, s{S['typ']}, 1
    s_add_u32 s{S['t']}, s{S['t']}, s{S['t1']}
    s_cmp_eq_u32 s{S['t']}, 1
    s_cbranch_scc1 ROLE_KV
    s_cmp_eq_u32 s{S['t']}, 2
    s_cbranch_scc1 ROLE_H0
    s_cmp_eq_u32 s{S['t']}, 3
    s_cbranch_scc1 ROLE_H1
    """)

    roles = {
        "Q": dict(NT=8, t0=0, nt=3, transposed=True, nB=4, m0=0, mstep=8, bywave=True, stats=True, relay=True, stride=3840),
        "KV": dict(NT=8, t0=3, nt=5, transposed=False, nB=4, m0=0, mstep=8, bywave=True, stats=False, relay=False, stride=3840),
        "H0": dict(NT=7, t0=0, nt=4, transposed=True, nB=3, m0=0, mstep=4, bywave=False, stats=False, relay=True, stride=3456),
        "H1": dict(NT=7, t0=4, nt=3, transposed=True, nB=4, m0=12, mstep=4, bywave=False, stats=True, relay=False, stride=3456),
    }

    def role_setup(R, name):
        NT, PITCH = R["NT"], R["NT"] * 256
        sid = S["w"] if R["bywave"] else S["rg"]
        for i in range(R["nB"]):
            d = V["dB"] + i
            a(f"""
            s_add_u32 s{S['t']}, s{sid}, {R['m0'] + R['mstep']*i}
            s_lshl_b32 s{S['t1']}, s{S['t']}, 10
            s_add_u32 s{S['offB']+i}, s{S['t1']}, 16384
            s_lshl_b32 s{S['t']}, s{S['t']}, 2
            v_lshrrev_b32 v{T}, 4, v{l}
            v_add_u32 v{T}, s{S['t']}, v{T}
            v_mul_u32_u24 v{T+1}, {(65536 + NT - 1)//NT}, v{T}
            v_lshrrev_b32 v{T+1}, 16, v{T+1}
            v_mul_u32_u24 v{T+2}, {NT}, v{T+1}
            v_sub_u32 v{T+2}, v{T}, v{T+2}
            v_bfe_u32 v{T+3}, v{l}, 2, 2
            v_lshl_add_u32 v{T+1}, v{T+1}, 2, v{T+3}
            v_mul_u32_u24 v{d}, {R['stride']}, v{T+1}
            v_and_b32 v{T+3}, 3, v{l}
            v_lshl_add_u32 v{T+2}, v{T+2}, 2, v{T+3}
            """)
            if NT == 8:
                a(f"""
                v_mov_b32 v{T+3}, 0
                v_cmp_le_u32 vcc, 10, v{T+2}
                v_cndmask_b32 v{T+3}, v{T+3}, v{T+5}, vcc
                v_cmp_le_u32 vcc, 12, v{T+2}
                v_cndmask_b32 v{T+3}, v{T+3}, v{T+6}, vcc
                v_cmp_le_u32 vcc, 22, v{T+2}
                v_cndmask_b32 v{T+3}, v{T+3}, v{T+7}, vcc
                v_lshl_add_u32 v{T+2}, v{T+2}, 4, v{T+3}
                s_mul_i32 s{S['t']}, s{S['j']}, 160
                v_add3_u32 v{d}, v{d}, v{T+2}, s{S['t']}
                """)
            else:
                a(f"""
                s_mul_i32 s{S['t']}, s{S['j']}, 7
                s_min_u32 s{S['t']}, s{S['t']}, 47
                s_lshl_b32 s{S['t']}, s{S['t']}, 6
                v_lshlrev_b32 v{T+2}, 4, v{T+2}
                v_add3_u32 v{d}, v{d}, v{T+2}, s{S['t']}
                """)

    def issue_stage(R, part):
        lst = [("A", 0), ("A", 1)] + [("B", i) for i in range(R["nB"])]
        out = []
        for k in part:
            if k >= len(lst):
                continue
            kind, i = lst[k]
            if kind == "A":
                out.append(f"s_add_u32 m0, s{S['wr']}, s{S['offA']+i}\n"
                           f"buffer_load_dwordx4 v{V['dA']}, s[{SX}:{SX+3}], s{S['soA'] if i == 0 else S['soA2']} offen lds")
            else:
                out.append(f"s_add_u32 m0, s{S['wr']}, s{S['offB']+i}\n"
                           f"buffer_load_dwordx4 v{V['dB']+i}, s[{SW}:{SW+3}], s{S['soB']} offen lds")
        return out

    def advance_src(R):
        a(f"""
        s_add_u32 s{S['soA']}, s{S['soA']}, 128
        s_add_u32 s{S['soA2']}, s{S['soA2']}, 128
        s_add_u32 s{S['soB']}, s{S['soB']}, {64*R['stride']}
        """)

    def reads(R, ks):
        PITCH = R["NT"] * 256
        b = ks & 1
        out = [f"ds_read_b128 v[{V['fa']+4*b}:{V['fa']+4*b+3}], v{V['rA']+ks}"]
        for t in range(R["nt"]):
            f = V["fb"] + 20 * b + 4 * t
            for i in range(2):
                out.append(f"ds_read_b64_tr_b16 v[{f+2*i}:{f+2*i+1}], v{V['rB']} offset:{(4*ks+i)*PITCH + t*256}")
        return out

    def mfmas(R, ks):
        b = ks & 1
        fa = V["fa"] + 4 * b
        out = []
        for t in range(R["nt"]):
            f = V["fb"] + 20 * b + 4 * t
            acc = V["acc"] + 16 * t
            x, y = (f, fa) if R["transposed"] else (fa, f)
            out.append(f"v_mfma_f32_32x32x16_bf16 v[{acc}:{acc+15}], v[{x}:{x+3}], v[{y}:{y+3}], v[{acc}:{acc+15}]")
        if R["stats"]:
            sq, sm, one = V["sq"], V["sm"], V["one"]
            for h in range(2):
                out.insert(1 + 3 * h, f"v_mfma_f32_4x4x4_16b_bf16 v[{sq}:{sq+3}], v[{fa+2*h}:{fa+2*h+1}], v[{fa+2*h}:{fa+2*h+1}], v[{sq}:{sq+3}]")
                out.insert(2 + 3 * h, f"v_mfma_f32_4x4x4_16b_bf16 v[{sm}:{sm+3}], v[{one}:{one+1}], v[{fa+2*h}:{fa+2*h+1}], v[{sm}:{sm+3}]")
        return out

    def colsum(R, ks, name):
        b = ks & 1
        lab = a.newlabel("CS")
        a(f"s_cmp_lg_u32 s{S['rg']}, {ks}\ns_cbranch_scc1 {lab}")
        for t in range(R["nt"]):
            f = V["fb"] + 20 * b + 4 * t
            c = V["cs"] + 4 * t
            a(f"v_mfma_f32_16x16x32_bf16 v[{c}:{c+3}], v[{V['sel']}:{V['sel']+3}], v[{f}:{f+3}], v[{c}:{c+3}]")
        a.label(lab)

    def set_read_addrs():
        a(f"""
        v_add_u32 v{V['rA']}, s{S['rd']}, v{V['rA0']}
        v_add_u32 v{V['rB']}, s{S['rd']}, v{V['rB0']}
        v_xor_b32 v{V['rA']+1}, 32, v{V['rA']}
        v_xor_b32 v{V['rA']+2}, 64, v{V['rA']}
        v_xor_b32 v{V['rA']+3}, 0x60, v{V['rA']}
        """)

    def interleave(main, fill):
        n = len(main)
        k = 0
        for i, m in enumerate(main):
            a(m)
            tgt = (len(fill) * (i + 1)) // n
            while k < tgt:
                a(fill[k])
                k += 1

    def kloop(R, name):
        PITCH = R["NT"] * 256
        n = 2 + R["nB"]
        nrd = 1 + 2 * R["nt"]
        if R["NT"] == 8:
            a(f"""
            v_mov_b32 v{T+5}, -32
            v_mov_b32 v{T+6}, {1280 - 192}
            v_mov_b32 v{T+7}, {2560 - 352}
            """)
        role_setup(R, name)
        a(f"s_mov_b32 s{S['wr']}, 0")
        for x in issue_stage(R, range(n)):
            a(x)
        advance_src(R)
        a(f"s_mov_b32 s{S['wr']}, {SLOT}")
        for x in issue_stage(R, range(n)):
            a(x)
        advance_src(R)
        a(f"""
        v_lshrrev_b32 v{T}, 5, v{l}
        v_mul_u32_u24 v{T}, {2*PITCH}, v{T}
        v_bfe_u32 v{T+1}, v{l}, 2, 2
        v_lshl_add_u32 v{T}, v{T+1}, 6, v{T}
        v_bfe_u32 v{T+1}, v{l}, 4, 1
        v_lshl_add_u32 v{T}, v{T+1}, 5, v{T}
        v_and_b32 v{T+1}, 3, v{l}
        v_lshl_add_u32 v{T}, v{T+1}, 3, v{T}
        v_add_u32 v{V['rB0']}, {16384 + R['t0']*256}, v{T}
        """)
        for r in range(16 * R["nt"]):
            a(f"v_mov_b32 v{V['acc']+r}, 0")
        for r in range(4 * R["nt"]):
            a(f"v_mov_b32 v{V['cs']+r}, 0")
        if R["stats"]:
            for r in range(4):
                a(f"v_mov_b32 v{V['sq']+r}, 0\nv_mov_b32 v{V['sm']+r}, 0")
        extra_setup(R, name)
        a(f"""
        s_mov_b32 s{S['rd']}, 0
        s_mov_b32 s{S['wr']}, {2*SLOT}
        s_mov_b32 s{S['it']}, 0
        """)
        set_read_addrs()
        a(f"s_waitcnt vmcnt({n + (R['nt'] if name[0] == 'H' else 0)})\ns_barrier")
        stamp(a, 1, S, T)
        if name == "Q":
            lab = a.newlabel("NI")
            a(f"""
            s_or_b32 s{S['t']}, s{S['rb']}, s{S['w']}
            s_cmp_lg_u32 s{S['t']}, 0
            s_cbranch_scc1 {lab}
            v_mov_b32 v{T}, 1
            s_mov_b64 exec, 1
            global_atomic_add v{V['zero']}, v{T}, s[22:23]
            s_mov_b64 exec, -1
            {lab}:
            """)
        for x in reads(R, 0):
            a(x)
        LP = f"LOOP_{name}"
        a(".p2align 3")
        a.label(LP)
        for ks in range(3):
            for x in reads(R, ks + 1):
                a(x)
            if ks < 2:
                lab = a.newlabel("ND")
                a(f"s_cmp_ge_u32 s{S['it']}, 8\ns_cbranch_scc1 {lab}")
                part = range(0, 3) if ks == 0 else range(3, n)
                for x in issue_stage(R, part):
                    a(x)
                if ks == 1:
                    advance_src(R)
                a.label(lab)
            a(f"s_waitcnt lgkmcnt({nrd})")
            for x in mfmas(R, ks):
                a(x)
            colsum(R, ks, name)
        if R["relay"]:
            l1, l2 = a.newlabel("RL"), a.newlabel("RL")
            a(f"""
            s_cmp_ge_u32 s{S['u']}, 740
            s_cbranch_scc1 {l2}
            s_cmp_lg_u32 s{S['it']}, 2
            s_cbranch_scc1 {l1}
            s_lshl_b32 s{S['t']}, s{S['w']}, 12
            s_add_u32 s{S['t']}, s{S['t']}, {RELAY}
            """)
            for i in range(4):
                a(f"""
                s_add_u32 m0, s{S['t']}, {i*1024}
                s_mov_b32 s{S['t1']}, {i*8*1280}
                buffer_load_dwordx4 v{V['rly']}, s[{SR}:{SR+3}], s{S['t1']} offen lds
                """)
            a(f"""
            {l1}:
            s_cmp_lg_u32 s{S['it']}, 5
            s_cbranch_scc1 {l2}
            """)
            for ct in range(4):
                a(f"""
                ds_read_b64_tr_b16 v[{T+4*ct}:{T+4*ct+1}], v{V['rly']+1} offset:{ct*32}
                ds_read_b64_tr_b16 v[{T+4*ct+2}:{T+4*ct+3}], v{V['rly']+1} offset:{ct*32 + 1024}
                """)
            a(f"v_lshlrev_b32 v{T+16}, 4, v{l}\ns_waitcnt lgkmcnt(0)")
            for ct in range(4):
                a(f"buffer_store_dwordx4 v[{T+4*ct}:{T+4*ct+3}], v{T+16}, s[{SWS}:{SWS+3}], s{S['uo']+ct} offen{SC}")
            a.label(l2)
        l1, l2, l3 = a.newlabel("BW"), a.newlabel("BW"), a.newlabel("BW")
        a(f"""
        s_mov_b32 s{S['wr']}, s{S['rd']}
        s_add_u32 s{S['rd']}, s{S['rd']}, {SLOT}
        s_cmp_eq_u32 s{S['rd']}, {3*SLOT}
        s_cselect_b32 s{S['rd']}, 0, s{S['rd']}
        """)
        set_read_addrs()
        a(f"""
        s_cmp_ge_u32 s{S['it']}, 8
        s_cbranch_scc1 {l1}
        s_waitcnt vmcnt({n}) lgkmcnt(0)
        s_branch {l2}
        {l1}:
        s_waitcnt vmcnt(0) lgkmcnt(0)
        {l2}:
        s_barrier
        s_cmp_eq_u32 s{S['it']}, 9
        s_cbranch_scc1 {l3}
        """)
        for x in reads(R, 0):
            a(x)
        a.label(l3)
        for x in mfmas(R, 3):
            a(x)
        colsum(R, 3, name)
        a(f"""
        s_add_u32 s{S['it']}, s{S['it']}, 1
        s_cmp_lt_u32 s{S['it']}, 10
        s_cbranch_scc1 {LP}
        """)
        stamp(a, 2, S, T)

    def extra_setup(R, name):
        if name in ("H0", "H1"):
            srd(a, SR + 0 if False else 96, 14, 3456)
            a(f"""
            s_mul_i32 s{S['t']}, s{S['j']}, 7
            s_min_u32 s{S['t']}, s{S['t']}, 47
            s_add_u32 s{S['t']}, s{S['t']}, {R['t0']}
            s_lshl_b32 s{S['t']}, s{S['t']}, 6
            v_and_b32 v{T}, 31, v{l}
            v_lshlrev_b32 v{T}, 1, v{T}
            """)
            for t in range(R["nt"]):
                a(f"buffer_load_ushort v{V['bias']+t}, v{T}, s[96:99], s{S['t']} offen offset:{t*64}")
        else:
            e6 = 0x3586
            if name == "Q":
                for t in range(3):
                    a(f"v_mov_b32 v{V['bias']+t}, {e6}")
            else:
                a(f"""
                v_mov_b32 v{V['bias']}, {e6}
                v_mov_b32 v{V['bias']+1}, {e6}
                s_mov_b32 s{S['m2']}, 0x0000ffff
                s_mov_b32 s{S['m2']+1}, 0x0000ffff
                v_cndmask_b32 v{V['bias']+2}, 0, v{V['bias']}, s[{S['m2']}:{S['m2']+1}]
                v_mov_b32 v{V['bias']+3}, 0
                v_mov_b32 v{V['bias']+4}, 0
                """)
            a(f"""
            s_lshl_b32 s{S['t']}, s{S['w']}, 2
            s_lshr_b32 s{S['t1']}, 0x21021100, s{S['t']}
            s_and_b32 s{S['t1']}, s{S['t1']}, 15
            s_lshr_b32 s{S['t2']}, 0x00044332, s{S['t']}
            s_and_b32 s{S['t2']}, s{S['t2']}, 15
            """)
            a(f"""
            v_and_b32 v{T}, 31, v{l}
            s_lshl_b32 s{S['t3']}, s{S['t2']}, 5
            s_sub_u32 s{S['t3']}, s{S['t3']}, 80
            v_add_u32 v{T+1}, s{S['t3']}, v{T}
            v_mul_u32_u24 v{T+2}, 3277, v{T+1}
            v_lshrrev_b32 v{T+2}, 16, v{T+2}
            v_mul_u32_u24 v{T+3}, 20, v{T+2}
            v_sub_u32 v{T+3}, v{T+1}, v{T+3}
            v_cmp_gt_u32 vcc, 80, v{T+1}
            s_mov_b64 s[{S['m1']}:{S['m1']+1}], vcc
            """)
            for q in range(4):
                c = V["cmpa"] + q
                a(f"""
                v_lshrrev_b32 v{T+8}, 5, v{l}
                v_lshlrev_b32 v{T+8}, 2, v{T+8}
                s_lshl_b32 s{S['t3']}, s{S['t1']}, 5
                s_add_u32 s{S['t3']}, s{S['t3']}, {8*q}
                v_add_u32 v{T+8}, s{S['t3']}, v{T+8}
                v_mul_u32_u24 v{T+9}, 3277, v{T+8}
                v_lshrrev_b32 v{T+9}, 16, v{T+9}
                v_mul_u32_u24 v{T+10}, 84, v{T+8}
                v_cmp_gt_u32 vcc, 80, v{T+8}
                s_mov_b64 s[{S['m2']}:{S['m2']+1}], vcc
                v_cmp_eq_u32 vcc, v{T+9}, v{T+2}
                s_and_b64 vcc, vcc, s[{S['m1']}:{S['m1']+1}]
                v_cmp_eq_u32 s[{S['ex']}:{S['ex']+1}], 0, v{T}
                s_cmp_ge_u32 s{S['w']}, 5
                s_cselect_b64 vcc, s[{S['ex']}:{S['ex']+1}], vcc
                s_and_b64 vcc, vcc, s[{S['m2']}:{S['m2']+1}]
                s_cselect_b32 s{S['t3']}, 0, 0
                s_cmp_ge_u32 s{S['w']}, 5
                s_cselect_b64 s[{S['ex']}:{S['ex']+1}], -1, 0
                v_mov_b32 v{T+11}, 20
                v_cndmask_b32 v{T+11}, v{T+3}, v{T+11}, s[{S['ex']}:{S['ex']+1}]
                v_lshl_add_u32 v{T+10}, v{T+11}, 2, v{T+10}
                v_add_u32 v{T+10}, {CMP}, v{T+10}
                v_mov_b32 v{T+11}, {CDUM}
                v_cndmask_b32 v{c}, v{T+11}, v{T+10}, vcc
                """)
            a(f"""
            s_lshl_b32 s{S['t3']}, s{S['t1']}, 11
            s_mov_b32 s98, s{S['t3']}
            s_lshl_b32 s{S['t3']}, s{S['t2']}, 11
            s_cmp_ge_u32 s{S['w']}, 5
            s_cselect_b32 s99, {ONES}, s{S['t3']}
            """)
            for i in range(4):
                d1, d2 = V["sca"] + 2 * i, V["sca"] + 2 * i + 1
                a(f"""
                v_add_u32 v{T}, {512*i}, v0
                v_mul_u32_u24 v{T+1}, 3121, v{T}
                v_lshrrev_b32 v{T+1}, 16, v{T+1}
                v_mul_u32_u24 v{T+2}, 21, v{T+1}
                v_sub_u32 v{T+2}, v{T}, v{T+2}
                v_mul_u32_u24 v{T+3}, 3277, v{T+1}
                v_lshrrev_b32 v{T+3}, 16, v{T+3}
                v_mad_u32_u24 v{T+8}, v{T+3}, 20, v{T+2}
                v_lshrrev_b32 v{T+9}, 5, v{T+8}
                v_lshlrev_b32 v{T+9}, 1, v{T+9}
                v_and_b32 v{T+8}, 31, v{T+8}
                v_cmp_eq_u32 vcc, 20, v{T+2}
                v_mov_b32 v{T+10}, 9
                v_cndmask_b32 v{T+9}, v{T+9}, v{T+10}, vcc
                v_cndmask_b32 v{T+8}, v{T+8}, v{T+3}, vcc
                v_lshrrev_b32 v{T+10}, 4, v{T+1}
                v_add_u32 v{T+9}, v{T+9}, v{T+10}
                v_lshlrev_b32 v{T+9}, 10, v{T+9}
                v_bfe_u32 v{T+10}, v{T+1}, 2, 1
                v_lshl_add_u32 v{T+8}, v{T+10}, 5, v{T+8}
                v_lshl_add_u32 v{T+9}, v{T+8}, 4, v{T+9}
                v_bfe_u32 v{T+10}, v{T+1}, 3, 1
                v_and_b32 v{T+8}, 3, v{T+1}
                v_lshl_add_u32 v{T+8}, v{T+10}, 2, v{T+8}
                v_lshl_add_u32 v{T+9}, v{T+8}, 1, v{T+9}
                v_add_u32 v{T+9}, {FRG}, v{T+9}
                v_add_u32 v{T+10}, 64, v{T+9}
                v_cndmask_b32 v{T+10}, v{T+9}, v{T+10}, vcc
                v_mov_b32 v{T+8}, {CDUM}
                v_cmp_gt_u32 vcc, 1680, v{T}
                v_cndmask_b32 v{d1}, v{T+8}, v{T+9}, vcc
                v_cndmask_b32 v{d2}, v{T+8}, v{T+10}, vcc
                """)

    def e1(R, name):
        if R["stats"]:
            sq, sm = V["sq"], V["sm"]
            a(f"""
            s_mov_b32 s{S['m1']}, 0xaaaaaaaa
            s_mov_b32 s{S['m1']+1}, 0xaaaaaaaa
            s_mov_b32 s{S['m2']}, 0xcccccccc
            s_mov_b32 s{S['m2']+1}, 0xcccccccc
            v_cndmask_b32 v{T}, v{sq}, v{sq+1}, s[{S['m1']}:{S['m1']+1}]
            v_cndmask_b32 v{T+1}, v{sq+2}, v{sq+3}, s[{S['m1']}:{S['m1']+1}]
            v_cndmask_b32 v{T}, v{T}, v{T+1}, s[{S['m2']}:{S['m2']+1}]
            v_mov_b32 v{T+1}, v{T}
            v_mov_b32 v{T+2}, v{sm}
            v_mov_b32 v{T+3}, v{sm}
            v_permlane32_swap_b32 v{T}, v{T+1}
            v_permlane32_swap_b32 v{T+2}, v{T+3}
            v_add_f32 v{T}, v{T}, v{T+1}
            v_add_f32 v{T+2}, v{T+2}, v{T+3}
            v_mul_f32 v{T}, {hx(1/640)}, v{T}
            v_mul_f32 v{T+2}, {hx(1/640)}, v{T+2}
            v_fma_f32 v{T}, -v{T+2}, v{T+2}, v{T}
            v_max_f32 v{T}, 0, v{T}
            v_add_f32 v{T+1}, {hx(1e-5)}, v{T}
            """)
            if name == "H1":
                a(f"""
                v_mov_b32 v{T+3}, {hx(1e-5)}
                v_fma_f32 v{T+1}, v{T+1}, v{T+3}, v{T}
                """)
            a(f"""
            v_sqrt_f32 v{T+3}, v{T+1}
            v_rsq_f32 v{T+4}, v{T+1}
            v_and_b32 v{T+5}, 31, v{l}
            s_lshl_b32 s{S['t']}, s{S['rg']}, 5
            v_add_lshl_u32 v{T+5}, v{T+5}, s{S['t']}, 2
            v_add_u32 v{T+5}, {MISC}, v{T+5}
            ds_write_b32 v{T+5}, v{T+2} offset:{ST_M-MISC}
            ds_write_b32 v{T+5}, v{T+4} offset:{ST_RS-MISC}
            ds_write_b32 v{T+5}, v{T+3} offset:{ST_IRS-MISC}
            """)
        a(f"""
        s_lshl_b32 s{S['t']}, s{S['rg']}, 2
        s_add_u32 s{S['t']}, s{S['t']}, {CSP + R['t0']*512}
        v_lshl_add_u32 v{T+6}, v{l}, 4, s{S['t']}
        s_mov_b64 exec, 0xffff
        """)
        for t in range(R["nt"]):
            c = V["cs"] + 4 * t
            a(f"ds_write_b32 v{T+6}, v{c} offset:{t*512}\nds_write_b32 v{T+6}, v{c+1} offset:{t*512+256}")
        a("s_mov_b64 exec, -1")
        if name == "Q":
            a(f"""
            v_mov_b32 v{T+8}, 0
            v_mov_b32 v{T+9}, 0
            v_mov_b32 v{T+10}, 0
            v_mov_b32 v{T+11}, 0
            v_lshlrev_b32 v{T+7}, 4, v0
            v_add_u32 v{T+7}, {FRG}, v{T+7}
            ds_write_b128 v{T+7}, v[{T+8}:{T+11}]
            ds_write_b128 v{T+7}, v[{T+8}:{T+11}] offset:4096
            ds_write_b128 v{T+7}, v[{T+8}:{T+11}] offset:8192
            ds_write_b128 v{T+7}, v[{T+8}:{T+11}] offset:12288
            v_lshlrev_b32 v{T+7}, 2, v0
            ds_write_b32 v{T+7}, v{V['one']} offset:{ONES}
            """)
        a("s_waitcnt vmcnt(0) lgkmcnt(0)\ns_barrier")

    def e2_ext(R, name):
        XE = V["fa"]
        a(f"""
        v_and_b32 v{T+5}, 31, v{l}
        s_lshl_b32 s{S['t']}, s{S['rg']}, 5
        v_add_lshl_u32 v{T+6}, v{T+5}, s{S['t']}, 2
        v_add_u32 v{T+6}, {MISC}, v{T+6}
        ds_read_b32 v{T+2}, v{T+6} offset:{ST_M-MISC}
        ds_read_b32 v{T+4}, v{T+6} offset:{ST_RS-MISC}
        ds_read_b32 v{T+3}, v{T+6} offset:{ST_IRS-MISC}
        v_lshlrev_b32 v{T+6}, 4, v{T+5}
        v_add_u32 v{T+6}, {CSP + R['t0']*512}, v{T+6}
        """)
        for t in range(R["nt"]):
            f = V["fb"] + 20 + 4 * t
            a(f"ds_read_b128 v[{f}:{f+3}], v{T+6} offset:{t*512}")
        a(f"""
        s_mov_b32 s{S['m1']}, -1
        s_mov_b32 s{S['m1']+1}, 0
        s_waitcnt lgkmcnt({R['nt']})
        v_sub_f32 v{T+7}, 0, v{T+2}
        v_cvt_pk_bf16_f32 v{T+8}, v{T+7}, v{T+3}
        v_lshlrev_b32 v{T+9}, 16, v{T+8}
        v_and_b32 v{T+10}, 0xffff0000, v{T+8}
        v_sub_f32 v{T+9}, v{T+7}, v{T+9}
        v_sub_f32 v{T+10}, v{T+3}, v{T+10}
        v_cvt_pk_bf16_f32 v{T+9}, v{T+7}, v{T+9}
        v_cvt_pk_bf16_f32 v{T+10}, v{T+10}, v{V['zero']}
        v_cndmask_b32 v{XE}, 0, v{T+9}, s[{S['m1']}:{S['m1']+1}]
        v_cndmask_b32 v{XE+1}, 0, v{T+8}, s[{S['m1']}:{S['m1']+1}]
        v_cndmask_b32 v{XE+2}, 0, v{T+10}, s[{S['m1']}:{S['m1']+1}]
        v_mov_b32 v{XE+3}, 0
        s_waitcnt lgkmcnt(0)
        """)
        for t in range(R["nt"]):
            f = V["fb"] + 20 + 4 * t
            w = V["fb"] + 4 * t
            b = V["bias"] + t
            a(f"""
            v_add_f32 v{f}, v{f}, v{f+1}
            v_add_f32 v{f+2}, v{f+2}, v{f+3}
            v_add_f32 v{f}, v{f}, v{f+2}
            v_cvt_pk_bf16_f32 v{w}, v{f}, v{f}
            v_and_b32 v{f+1}, 0xffff0000, v{w}
            v_sub_f32 v{f+1}, v{f}, v{f+1}
            v_cvt_pk_bf16_f32 v{f+1}, v{f+1}, v{V['zero']}
            v_lshl_or_b32 v{w+1}, v{b}, 16, v{f+1}
            v_mov_b32 v{w+2}, v{b}
            v_mov_b32 v{w+3}, 0
            """)
        for t in range(R["nt"]):
            w = V["fb"] + 4 * t
            acc = V["acc"] + 16 * t
            x, y = (w, XE) if R["transposed"] else (XE, w)
            a(f"v_mfma_f32_32x32x16_bf16 v[{acc}:{acc+15}], v[{x}:{x+3}], v[{y}:{y+3}], v[{acc}:{acc+15}]")

    def a2_addr(dst):
        a(f"""
        s_lshl_b32 s{S['t']}, s{S['rb']}, 1
        s_lshr_b32 s{S['t1']}, s{S['rg']}, 1
        s_add_u32 s{S['t']}, s{S['t']}, s{S['t1']}
        s_mul_i32 s{S['t']}, s{S['t']}, {A2_RB}
        s_and_b32 s{S['t1']}, s{S['rg']}, 1
        s_lshl_b32 s{S['t1']}, s{S['t1']}, 11
        s_add_u32 s{S['t']}, s{S['t']}, s{S['t1']}
        v_bfe_u32 v{dst}, v{l}, 4, 1
        v_lshlrev_b32 v{dst}, 10, v{dst}
        v_lshrrev_b32 v{dst+1}, 5, v{l}
        v_lshl_add_u32 v{dst}, v{dst+1}, 8, v{dst}
        v_and_b32 v{dst+1}, 15, v{l}
        v_lshl_add_u32 v{dst}, v{dst+1}, 4, v{dst}
        v_add_u32 v{dst}, s{S['t']}, v{dst}
        """)

    def h_epilogue(R, name):
        e1(R, name)
        stamp(a, 3, S, T)
        e2_ext(R, name)
        C = T + 12
        a(f"""
        v_mul_f32 v{C}, {hx(GC1)}, v{T+4}
        v_mul_f32 v{C+2}, v{T+4}, v{T+4}
        v_mul_f32 v{C+2}, v{C+2}, v{T+4}
        v_mul_f32 v{C+2}, {hx(GC2)}, v{C+2}
        v_mov_b32 v{C+4}, v{T+3}
        """)
        AD = T + 18
        a2_addr(AD)
        a(f"""
        s_mul_i32 s{S['t']}, s{S['j']}, 7
        s_min_u32 s{S['t']}, s{S['t']}, 47
        s_add_u32 s{S['t']}, s{S['t']}, {R['t0']}
        s_lshl_b32 s{S['t']}, s{S['t']}, 12
        """)
        W0 = T + 20
        for t in range(R["nt"]):
            acc = V["acc"] + 16 * t
            for c in range(2):
                o = V["fb"] + 4 * ((2 * t + c) % 4)
                ps = [acc + 8 * c + 2 * k for k in range(4)]
                ws = [W0 + 2 * k for k in range(4)]
                for p, w in zip(ps, ws):
                    a(f"v_pk_mul_f32 v[{w}:{w+1}], v[{p}:{p+1}], v[{p}:{p+1}]")
                for p, w in zip(ps, ws):
                    a(f"v_pk_fma_f32 v[{w}:{w+1}], v[{w}:{w+1}], v[{C+2}:{C+3}], v[{C}:{C+1}] op_sel_hi:[1,0,0]")
                for p, w in zip(ps, ws):
                    a(f"v_pk_mul_f32 v[{w}:{w+1}], v[{w}:{w+1}], v[{p}:{p+1}]")
                for w in ws:
                    a(f"v_exp_f32 v{w}, v{w}\nv_exp_f32 v{w+1}, v{w+1}")
                for w in ws:
                    a(f"v_pk_fma_f32 v[{w}:{w+1}], v[{w}:{w+1}], v[{C+4}:{C+5}], v[{C+4}:{C+5}] op_sel_hi:[1,0,0]")
                for w in ws:
                    a(f"v_rcp_f32 v{w}, v{w}\nv_rcp_f32 v{w+1}, v{w+1}")
                for p, w in zip(ps, ws):
                    a(f"v_pk_mul_f32 v[{w}:{w+1}], v[{w}:{w+1}], v[{p}:{p+1}]")
                for k, w in enumerate(ws):
                    a(f"v_cvt_pk_bf16_f32 v{o+k}, v{w}, v{w+1}")
                a(f"buffer_store_dwordx4 v[{o}:{o+3}], v{AD}, s[{SWS}:{SWS+3}], s{S['t']} offen offset:{c*512}{SC}")
            a(f"s_add_u32 s{S['t']}, s{S['t']}, 4096")
        stamp(a, 4, S, T)
        a("s_waitcnt vmcnt(0)")
        stamp(a, 5, S, T)

    def products_and_atomics(name):
        PA, PB, D = V["fb"], V["fb"] + 8, V["cs"]
        a(f"""
        v_lshlrev_b32 v{T+30}, 4, v{l}
        v_add_u32 v{T+31}, s99, v{T+30}
        v_add_u32 v{T+30}, s98, v{T+30}
        """)
        for r in range(16):
            a(f"v_mov_b32 v{D+r}, 0")
        lz, ld = a.newlabel("PZ"), a.newlabel("PD")
        a(f"s_cmp_ge_u32 s{S['w']}, 5\ns_cbranch_scc1 {lz}")
        FA = T + 32
        for z in (False, True):
            if z:
                a.label(lz)
                a(f"ds_read_b128 v[{PB}:{PB+3}], v{T+31}")
            for s in range(8):
                off = (s >> 1) * 10240 + (s & 1) * 1024
                fa_ = V["fb"] + 16 + 4 * (s % 4) if False else None
            for s in range(8):
                off = (s >> 1) * 10240 + (s & 1) * 1024
                if z:
                    a(f"ds_read_b128 v[{FA+4*(s&1)}:{FA+4*(s&1)+3}], v{T+30} offset:{off}")
                    a("s_waitcnt lgkmcnt(0)")
                    a(f"v_mfma_f32_32x32x16_bf16 v[{D}:{D+15}], v[{FA+4*(s&1)}:{FA+4*(s&1)+3}], v[{PB}:{PB+3}], v[{D}:{D+15}]")
                else:
                    a(f"ds_read_b128 v[{FA+4*(s&1)}:{FA+4*(s&1)+3}], v{T+30} offset:{off}")
                    a(f"ds_read_b128 v[{PB+4*(s&1)}:{PB+4*(s&1)+3}], v{T+31} offset:{off}")
                    a("s_waitcnt lgkmcnt(0)")
                    a(f"v_mfma_f32_32x32x16_bf16 v[{D}:{D+15}], v[{FA+4*(s&1)}:{FA+4*(s&1)+3}], v[{PB+4*(s&1)}:{PB+4*(s&1)+3}], v[{D}:{D+15}]")
            if not z:
                a(f"s_branch {ld}")
        a.label(ld)
        for r in range(16):
            a(f"ds_write_b32 v{V['cmpa'] + (r >> 2)}, v{D+r} offset:{(r & 3)*84}")
        a("s_waitcnt lgkmcnt(0)\ns_barrier")
        a(f"v_lshlrev_b32 v{T+30}, 2, v0")
        for i in range(4):
            a(f"ds_read_b32 v{T+32+i}, v{T+30} offset:{CMP + i*2048}")
        poll(a, S, V["zero"], T + 36, 22, 0, 8, 0x101)
        a(f"""
        s_lshl_b32 s{S['t']}, s{S['j']}, 13
        s_add_u32 s96, s24, s{S['t']}
        s_addc_u32 s97, s25, 0
        s_add_u32 s96, s96, {KV_OFF}
        s_addc_u32 s97, s97, 0
        s_waitcnt lgkmcnt(0)
        global_atomic_add_f32 v{T+30}, v{T+32}, s[96:97]
        global_atomic_add_f32 v{T+30}, v{T+33}, s[96:97] offset:2048
        v_add_u32 v{T+31}, 4096, v{T+30}
        global_atomic_add_f32 v{T+31}, v{T+34}, s[96:97]
        v_cmp_gt_u32 vcc, 144, v0
        s_and_saveexec_b64 s[{S['ex']}:{S['ex']+1}], vcc
        """)
        lab = a.newlabel("AT")
        a(f"""
        s_cbranch_execz {lab}
        global_atomic_add_f32 v{T+31}, v{T+35}, s[96:97] offset:2048
        {lab}:
        s_mov_b64 exec, -1
        s_waitcnt vmcnt(0)
        s_barrier
        """)
        stamp(a, 5, S, T)

    def kv_gather(name):
        a("s_barrier")
        stamp(a, 6, S, T)
        a(f"""
        global_load_dword v{T+32}, v{T+30}, s[96:97] sc1
        global_load_dword v{T+33}, v{T+30}, s[96:97] offset:2048 sc1
        global_load_dword v{T+34}, v{T+31}, s[96:97] sc1
        global_load_dword v{T+35}, v{T+31}, s[96:97] offset:2048 sc1
        """)
        for i in range(4):
            a(f"""
            s_waitcnt vmcnt({3-i})
            v_cvt_pk_bf16_f32 v{T+32+i}, v{T+32+i}, v{T+32+i}
            ds_write_b16 v{V['sca']+2*i}, v{T+32+i}
            ds_write_b16 v{V['sca']+2*i+1}, v{T+32+i}
            """)
        a("s_waitcnt lgkmcnt(0)\ns_barrier")

    R = roles["Q"]
    kloop(R, "Q")
    e1(R, "Q")
    stamp(a, 3, S, T)
    e2_ext(R, "Q")
    a(f"v_mov_b32 v{T+40}, v{T+4}\nv_mov_b32 v{T+41}, v{T+3}")
    a("s_barrier")
    stamp(a, 4, S, T)
    products_and_atomics("Q")
    lab = a.newlabel("SG")
    a(f"""
    s_cmp_lg_u32 s{S['w']}, 0
    s_cbranch_scc1 {lab}
    s_lshl_b32 s{S['t']}, s{S['j']}, 7
    v_mov_b32 v{T}, s{S['t']}
    v_mov_b32 v{T+1}, 1
    s_mov_b64 exec, 1
    global_atomic_add v{T}, v{T+1}, s[{S['fl']}:{S['fl']+1}] offset:{F_KV*128}
    s_mov_b64 exec, -1
    {lab}:
    """)
    PQ = V["fb"] + 20
    a(f"""
    v_mul_f32 v{T+42}, {hx(LOG2E)}, v{T+40}
    v_mul_f32 v{T+43}, {hx(9.98377799987793e-07)}, v{T+41}
    """)
    for f in range(5):
        base = V["acc"] + 8 * f
        for k in range(8):
            a(f"v_mul_f32 v{T+k}, v{T+42}, v{base+k}")
        for k in range(8):
            a(f"v_exp_f32 v{T+k}, v{T+k} clamp")
        for k in range(8):
            a(f"v_max_f32 v{base+k}, v{base+k}, v{T+43}")
        for k in range(8):
            a(f"v_fma_f32 v{T+k}, v{base+k}, v{T+40}, v{T+k}")
        for k in range(4):
            a(f"v_cvt_pk_bf16_f32 v{PQ+4*f+k}, v{T+2*k}, v{T+2*k+1}")
    lab = a.newlabel("PW")
    a(f"s_cmp_lg_u32 s{S['w']}, 0\ns_cbranch_scc1 {lab}")
    a(f"s_lshl_b32 s{S['t']}, s{S['j']}, 7\nv_mov_b32 v{T+8}, s{S['t']}")
    poll(a, S, T + 8, T + 36, S["fl"], F_KV * 128, 16, 0x102)
    a.label(lab)
    kv_gather("Q")
    stamp(a, 7, S, T)
    NUM, DEN = V["acc"], V["acc"] + 48
    for r in range(64):
        a(f"v_mov_b32 v{NUM+r}, 0")
    a(f"v_lshlrev_b32 v{T+30}, 4, v{l}\nv_add_u32 v{T+30}, {FRG}, v{T+30}")
    prods = [(9 + ks, ks, DEN) for ks in range(5)] + [(ks + 2 * Tt, ks, NUM + 16 * Tt) for Tt, kss in ((0, (0, 1, 2)), (1, (1, 2, 3, 4)), (2, (3, 4))) for ks in kss]
    FR = T
    for g in range(2):
        grp = prods[7 * g:7 * g + 7]
        for i, (fi, ks, D) in enumerate(grp):
            a(f"ds_read_b128 v[{FR+4*i}:{FR+4*i+3}], v{T+30} offset:{fi*1024}")
        for i, (fi, ks, D) in enumerate(grp):
            a(f"s_waitcnt lgkmcnt({6-i})")
            a(f"v_mfma_f32_32x32x16_bf16 v[{D}:{D+15}], v[{FR+4*i}:{FR+4*i+3}], v[{PQ+4*ks}:{PQ+4*ks+3}], v[{D}:{D+15}]")
    AD = T + 32
    a2_addr(AD)
    a(f"s_mov_b32 s{S['m1']}, 0\ns_mov_b32 s{S['m1']+1}, -1")
    for h in range(4):
        a(f"v_add_f32 v{DEN+h}, {hx(1e-6)}, v{DEN+h}")
    for h in range(4):
        a(f"v_rcp_f32 v{DEN+h}, v{DEN+h}")
    a(f"""
    v_cndmask_b32 v{DEN+4}, v{DEN}, v{DEN+1}, s[{S['m1']}:{S['m1']+1}]
    v_cndmask_b32 v{DEN+5}, v{DEN+2}, v{DEN+3}, s[{S['m1']}:{S['m1']+1}]
    """)
    for p2 in range(5):
        for k in range(8):
            qd = 2 * p2 + (k >> 2)
            h0, h1 = (2 * qd) // 5, (2 * qd + 1) // 5
            dr = DEN + h0 if h0 == h1 else (DEN + 4 if h0 == 0 else DEN + 5)
            a(f"v_mul_f32 v{NUM+8*p2+k}, v{NUM+8*p2+k}, v{dr}")
        o = T + 4 * (p2 % 4)
        for k in range(4):
            a(f"v_cvt_pk_bf16_f32 v{o+k}, v{NUM+8*p2+2*k}, v{NUM+8*p2+2*k+1}")
        a(f"""
        s_mul_i32 s{S['t']}, s{S['j']}, 5
        s_add_u32 s{S['t']}, s{S['t']}, {p2}
        s_lshr_b32 s{S['t1']}, s{S['t']}, 1
        s_lshl_b32 s{S['t1']}, s{S['t1']}, 12
        s_and_b32 s{S['t']}, s{S['t']}, 1
        s_lshl_b32 s{S['t']}, s{S['t']}, 9
        s_add_u32 s{S['t']}, s{S['t']}, s{S['t1']}
        s_add_u32 s{S['t']}, s{S['t']}, {54*4096}
        buffer_store_dwordx4 v[{o}:{o+3}], v{AD}, s[{SWS}:{SWS+3}], s{S['t']} offen{SC}
        """)
    stamp(a, 8, S, T)
    a("s_waitcnt vmcnt(0)")
    stamp(a, 9, S, T)
    a("s_branch K1_FIN")

    a.label("ROLE_KV")
    R = roles["KV"]
    kloop(R, "KV")
    e1(R, "KV")
    stamp(a, 3, S, T)
    e2_ext(R, "KV")
    RS = T + 12
    a(f"""
    v_lshrrev_b32 v{T+5}, 5, v{l}
    v_lshlrev_b32 v{T+5}, 4, v{T+5}
    s_lshl_b32 s{S['t']}, s{S['rg']}, 7
    s_add_u32 s{S['t']}, s{S['t']}, {ST_RS}
    v_add_u32 v{T+5}, s{S['t']}, v{T+5}
    """)
    for i in range(4):
        a(f"ds_read_b128 v[{RS+4*i}:{RS+4*i+3}], v{T+5} offset:{i*32}")
    a(f"""
    s_mul_i32 s{S['t']}, s{S['rg']}, 10240
    v_lshl_add_u32 v{T+6}, v{l}, 4, s{S['t']}
    s_mov_b32 s{S['m2']}, 0x0000ffff
    s_mov_b32 s{S['m2']+1}, 0x0000ffff
    s_mov_b32 s{S['t1']}, {hx(LOG2E)}
    s_mov_b32 s{S['t2']}, {hx(9.98377799987793e-07)}
    s_waitcnt lgkmcnt(0)
    """)
    E = T + 28
    for t in (3, 4, 0, 1, 2):
        for hf in range(2):
            base = V["acc"] + 16 * t + 8 * hf
            o = V["fb"] + 4 * ((2 * t + hf) % 4)
            for k in range(4):
                a(f"v_pk_mul_f32 v[{base+2*k}:{base+2*k+1}], v[{base+2*k}:{base+2*k+1}], v[{RS+8*hf+2*k}:{RS+8*hf+2*k+1}]")
            if t <= 2:
                for k in range(8):
                    a(f"v_mul_f32 v{E+k}, s{S['t1']}, v{base+k}")
                for k in range(8):
                    a(f"v_exp_f32 v{E+k}, v{E+k} clamp")
                if t < 2:
                    for k in range(8):
                        a(f"v_max_f32 v{base+k}, s{S['t2']}, v{base+k}")
                    for k in range(4):
                        a(f"v_pk_add_f32 v[{base+2*k}:{base+2*k+1}], v[{base+2*k}:{base+2*k+1}], v[{E+2*k}:{E+2*k+1}]")
                else:
                    for k in range(8):
                        a(f"v_max_f32 v{T+36+k}, s{S['t2']}, v{base+k}")
                    for k in range(8):
                        a(f"v_add_f32 v{E+k}, v{E+k}, v{T+36+k}")
                    for k in range(8):
                        a(f"v_cndmask_b32 v{base+k}, v{base+k}, v{E+k}, s[{S['m2']}:{S['m2']+1}]")
            for k in range(4):
                a(f"v_cvt_pk_bf16_f32 v{o+k}, v{base+2*k}, v{base+2*k+1}")
            a(f"ds_write_b128 v{T+6}, v[{o}:{o+3}] offset:{KVX + t*2048 + hf*1024}")
    a("s_waitcnt lgkmcnt(0)\ns_barrier")
    stamp(a, 4, S, T)
    products_and_atomics("KV")
    kv_gather("KV")
    a("s_branch K1_FIN")

    for nm in ("H0", "H1"):
        a.label("ROLE_" + nm)
        kloop(roles[nm], nm)
        h_epilogue(roles[nm], nm)
        if nm == "H0":
            a("s_branch K1_FIN")
    a.label("K1_FIN")
    stamp_flush(a, S, T, 10, 0)
    a.label("K1_END")
    a("s_endpgm")
    a.label("K1_CODE_END")
    return a.L


def gen_k2():
    a = Asm()
    K = "k2_kernel"
    S = {}
    sa = RegAlloc(44, 100)
    for n in ("w", "rb", "c", "t", "t1", "t2", "soA", "soB", "pc", "pt"):
        S[n] = sa.alloc(n)
    S["t0"] = sa.alloc("t0", 2, 2)
    S["stamp"] = sa.alloc("stamp", 12)
    SX, SO, SWS, SB = 28, 32, 36, 40
    va = RegAlloc(1, 256)
    l = va.alloc("l")
    vo = va.alloc("vo")
    XR = va.alloc("xr", 6, 2)
    BR = va.alloc("br", 6, 2)
    OA = va.alloc("oa", 3)
    RA = va.alloc("ra", 3)
    WA = va.alloc("wa", 4)
    T = va.alloc("t", 16, 2)
    ACC = va.alloc("acc", 80, 2)
    F = va.alloc("f", 108, 2)

    a.label(K)
    emit_common_prologue(a, "K2_END", K)
    a(f"""
    v_and_b32 v{l}, 63, v0
    v_lshrrev_b32 v{T}, 6, v0
    v_lshlrev_b32 v{vo}, 4, v{l}
    v_readfirstlane_b32 s{S['w']}, v{T}
    """)
    if Cfg.prefetch_code:
        code_prefetch(a, K, "K2_CODE_END", T + 2, T + 4)
    a(f"""
    s_and_b32 s{S['t']}, s2, 3
    s_lshl_b32 s{S['t']}, s{S['t']}, 3
    s_bfe_u32 s{S['t1']}, s2, 0x30003
    s_add_u32 s{S['rb']}, s{S['t']}, s{S['t1']}
    s_bfe_u32 s{S['t']}, s2, 0x10002
    s_lshl_b32 s{S['t']}, s{S['t']}, 2
    s_lshr_b32 s{S['t1']}, s2, 6
    s_add_u32 s{S['c']}, s{S['t']}, s{S['t1']}
    s_mul_i32 s{S['t']}, s{S['w']}, 9
    s_min_u32 s{S['t1']}, s{S['w']}, 2
    s_add_u32 s{S['t']}, s{S['t']}, s{S['t1']}
    s_mul_i32 s{S['soA']}, s{S['rb']}, {A2_RB}
    s_lshl_b32 s{S['t1']}, s{S['t']}, 12
    s_add_u32 s{S['soA']}, s{S['soA']}, s{S['t1']}
    s_mul_i32 s{S['soB']}, s{S['c']}, {B2_C}
    s_mul_i32 s{S['t1']}, s{S['t']}, 5120
    s_add_u32 s{S['soB']}, s{S['soB']}, s{S['t1']}
    s_add_u32 s{S['soB']}, s{S['soB']}, {B2_OFF}
    s_waitcnt lgkmcnt(0)
    """)
    stamp(a, 0, S, T)
    srd(a, SWS, 24, WS_SIZE)

    def loads(i):
        f = F + 36 * (i % 3)
        out = []
        for tt in range(4):
            out.append(f"buffer_load_dwordx4 v[{f+4*tt}:{f+4*tt+3}], v{vo}, s[{SWS}:{SWS+3}], s{S['soA']} offen offset:{tt*1024}")
        for ct in range(4):
            out.append(f"buffer_load_dwordx4 v[{f+16+4*ct}:{f+16+4*ct+3}], v{vo}, s[{SWS}:{SWS+3}], s{S['soB']} offen offset:{ct*1024}")
        out.append(f"s_add_u32 s{S['soB']}, s{S['soB']}, 4096")
        out.append(f"buffer_load_dwordx4 v[{f+32}:{f+35}], v{vo}, s[{SWS}:{SWS+3}], s{S['soB']} offen")
        out.append(f"s_add_u32 s{S['soB']}, s{S['soB']}, 1024\ns_add_u32 s{S['soA']}, s{S['soA']}, 4096")
        return out

    def mf(i):
        f = F + 36 * (i % 3)
        out = []
        for tt in range(4):
            for ct in range(5):
                acc = ACC + 4 * (tt * 5 + ct)
                out.append(f"v_mfma_f32_16x16x32_bf16 v[{acc}:{acc+3}], v[{f+16+4*ct}:{f+16+4*ct+3}], v[{f+4*tt}:{f+4*tt+3}], v[{acc}:{acc+3}]")
        return out

    for i in range(2):
        for x in loads(i):
            a(x)
    srd(a, SX, 4, 2048 * 1280)
    srd(a, SO, 20, 2048 * 1280)
    srd(a, SB, 18, 1280)
    a(f"""
    s_lshl_b32 s{S['t']}, s{S['rb']}, 6
    s_mul_i32 s{S['t']}, s{S['t']}, 1280
    s_mul_i32 s{S['t1']}, s{S['c']}, 160
    s_add_u32 s{S['t']}, s{S['t']}, s{S['t1']}
    """)
    for i in range(3):
        a(f"""
        v_add_u32 v{T}, {512*i}, v0
        v_mul_u32_u24 v{T+1}, 3277, v{T}
        v_lshrrev_b32 v{T+1}, 16, v{T+1}
        v_mul_u32_u24 v{T+2}, 20, v{T+1}
        v_sub_u32 v{T+2}, v{T}, v{T+2}
        v_mul_u32_u24 v{T+3}, 1280, v{T+1}
        v_lshl_add_u32 v{T+3}, v{T+2}, 3, v{T+3}
        v_add_u32 v{T+3}, s{S['t']}, v{T+3}
        v_cmp_gt_u32 vcc, 1280, v{T}
        v_mov_b32 v{T+4}, 0x7ffffff0
        v_cndmask_b32 v{OA+i}, v{T+4}, v{T+3}, vcc
        v_bfe_u32 v{T+4}, v{T+1}, 1, 2
        v_xor_b32 v{T+4}, v{T+4}, v{T+2}
        v_mul_u32_u24 v{T+5}, 320, v{T+1}
        v_lshl_add_u32 v{T+5}, v{T+4}, 4, v{T+5}
        v_cndmask_b32 v{RA+i}, 0, v{T+5}, vcc
        v_lshlrev_b32 v{T+2}, 3, v{T+2}
        buffer_load_dwordx2 v[{XR+2*i}:{XR+2*i+1}], v{OA+i}, s[{SX}:{SX+3}], 0 offen
        buffer_load_dwordx2 v[{BR+2*i}:{BR+2*i+1}], v{T+2}, s[{SB}:{SB+3}], s{S['t1']} offen
        """)
    a(f"""
    v_and_b32 v{T}, 15, v{l}
    v_mul_u32_u24 v{T}, 320, v{T}
    v_lshrrev_b32 v{T+1}, 4, v{l}
    v_bfe_u32 v{T+2}, v{l}, 1, 2
    v_xor_b32 v{T+1}, v{T+1}, v{T+2}
    v_lshl_add_u32 v{T}, v{T+1}, 4, v{T}
    s_mul_i32 s{S['t']}, s{S['w']}, 20480
    v_add_u32 v{WA}, s{S['t']}, v{T}
    """)
    for r in range(80):
        a(f"v_mov_b32 v{ACC+r}, 0")

    def step(i, last):
        ld = loads(i + 2) if i + 2 <= last else []
        after = 9 * (min(last, i + 2) - i)
        if i == 0:
            after += 0
        if i < 1:
            for x in ld:
                a(x)
            a(f"s_waitcnt vmcnt({after + 6})")
            stamp(a, 1, S, T)
            for x in mf(i):
                a(x)
        else:
            for x in ld:
                a(x)
            w = after + (6 if i == 1 else 0)
            a(f"s_waitcnt vmcnt({w})")
            for x in mf(i):
                a(x)

    for i in range(7):
        step(i, 99)
    a(f"s_cmp_lt_u32 s{S['w']}, 2\ns_cbranch_scc1 K2_TAIL10")
    for i in range(7, 9):
        step(i, 8)
    a("s_branch K2_RED")
    a.label("K2_TAIL10")
    for i in range(7, 10):
        step(i, 9)
    a.label("K2_RED")
    stamp(a, 2, S, T)
    for tt in range(4):
        for ct in range(5):
            acc = ACC + 4 * (tt * 5 + ct)
            a(f"ds_write_b128 v{WA}, v[{acc}:{acc+3}] offset:{tt*5120 + ct*64}")
    a("s_waitcnt lgkmcnt(0)\ns_barrier")
    stamp(a, 3, S, T)
    for i in range(3):
        if i == 2:
            a(f"s_cmp_ge_u32 s{S['w']}, 4\ns_cbranch_scc1 K2_FIN")
        f = F + 32 * i
        a(f"v_add_u32 v{T+8}, {4*20480}, v{RA+i}")
        for w in range(8):
            src = RA + i if w < 3 else (T + 8)
            off = w * 20480 if w < 3 else (w - 4) * 20480
            if w == 3:
                src, off = RA + i, 3 * 20480
            a(f"ds_read_b128 v[{f+4*w}:{f+4*w+3}], v{src} offset:{off}")
        x, b = XR + 2 * i, BR + 2 * i
        a(f"""
        v_lshlrev_b32 v{T}, 16, v{x}
        v_and_b32 v{T+1}, 0xffff0000, v{x}
        v_lshlrev_b32 v{T+2}, 16, v{x+1}
        v_and_b32 v{T+3}, 0xffff0000, v{x+1}
        v_lshlrev_b32 v{T+4}, 16, v{b}
        v_and_b32 v{T+5}, 0xffff0000, v{b}
        v_lshlrev_b32 v{T+6}, 16, v{b+1}
        v_and_b32 v{T+7}, 0xffff0000, v{b+1}
        v_pk_add_f32 v[{T}:{T+1}], v[{T}:{T+1}], v[{T+4}:{T+5}]
        v_pk_add_f32 v[{T+2}:{T+3}], v[{T+2}:{T+3}], v[{T+6}:{T+7}]
        """)
        for w in range(8):
            a(f"""
            s_waitcnt lgkmcnt({7-w})
            v_pk_add_f32 v[{T}:{T+1}], v[{T}:{T+1}], v[{f+4*w}:{f+4*w+1}]
            v_pk_add_f32 v[{T+2}:{T+3}], v[{T+2}:{T+3}], v[{f+4*w+2}:{f+4*w+3}]
            """)
        a(f"""
        v_cvt_pk_bf16_f32 v{T+10+2*i}, v{T}, v{T+1}
        v_cvt_pk_bf16_f32 v{T+11+2*i}, v{T+2}, v{T+3}
        buffer_store_dwordx2 v[{T+10+2*i}:{T+11+2*i}], v{OA+i}, s[{SO}:{SO+3}], 0 offen
        """)
    a.label("K2_FIN")
    stamp(a, 4, S, T)
    stamp_flush(a, S, T, 5, 1)
    a.label("K2_END")
    a("s_endpgm")
    a.label("K2_CODE_END")
    return a.L


def kd(name, vgpr, sgpr=102):
    return f""".amdhsa_kernel {name}
  .amdhsa_next_free_vgpr {vgpr}
  .amdhsa_next_free_sgpr {sgpr}
  .amdhsa_accum_offset {vgpr}
  .amdhsa_group_segment_fixed_size 0
  .amdhsa_kernarg_size 88
  .amdhsa_user_sgpr_count 2
  .amdhsa_user_sgpr_kernarg_segment_ptr 1
  .amdhsa_system_sgpr_workgroup_id_x 1
  .amdhsa_float_denorm_mode_32 3
.end_amdhsa_kernel
"""


def build():
    head = open("cdna_kernels/%s.s.ref" % NAME).read().split("; Override launch")[0]
    out = head
    out += "; @launch kernel=k1_kernel grid=(256,1,1) block=(512,1,1) lds=163840\n"
    out += "; @launch kernel=k2_kernel grid=(256,1,1) block=(512,1,1) lds=163840\n"
    out += '.amdgcn_target "amdgcn-amd-amdhsa--gfx950"\n.text\n'
    for name, gen in (("k1_kernel", gen_k1), ("k2_kernel", gen_k2)):
        L, n = fix_hazards(gen())
        out += f".globl {name}\n.p2align 8\n.type {name},@function\n"
        out += "\n".join(x if x.endswith(":") else "    " + x for x in L) + "\n"
        print(name, "instrs", len(L), "nops inserted", n, file=sys.stderr)
    out += '.section .rodata,"a"\n.p2align 6\n' + kd("k1_kernel", 256) + ".p2align 6\n" + kd("k2_kernel", 256)
    return out


if __name__ == "__main__":
    for arg in sys.argv[2:]:
        k, v = arg.split("=")
        setattr(Cfg, k, int(v))
    open(sys.argv[1], "w").write(build())
```

```python
import sys, struct
from asmlib import Asm, fix_hazards, RegAlloc

NAME = "parallel_sum__linear_attn_block__mixer_channel_mlp__prompt"
KN = NAME + "_kernel"

A2_OFF = 0
A2_RB = 74 * 4096
B2_OFF = 32 * A2_RB
B2_C = 74 * 5120
KV_OFF = B2_OFF + 8 * B2_C
CS_OFF = KV_OFF + 8 * 8192
FLAG_OFF = CS_OFF + 16384
RS_OFF = FLAG_OFF + 8192
WS_SIZE = RS_OFF + 16384
F_KV, F_H, F_O, F_EARLY, F_B2 = 0, 8, 24, 40, 48
STAMP_OFF = WS_SIZE + 65536
OOB = 0x7f000000

SLOT = 36864
P2B0 = 3 * SLOT
MISC = P2B0 + 3 * 12288
RELAY = P2B0 + 2 * 12288
ST_M, ST_RS, ST_IRS, CSP = MISC + 12288, MISC + 12800, MISC + 13312, MISC + 14336
HSLOT = 45056
HRELAY = 3 * HSLOT
PW = 20480
GAP = 15360
KVX3 = MISC
ONES = MISC + 10240
SYN = MISC + 15360
W_GO, W_SC, W_H, W_O, W_PASS, W_P2, W_C1, W_C2, W_CQ, W_L1, W_L2 = range(0, 44, 4)
CMP = SLOT + 5 * 12288
CDUM = CMP + 6720
FRGA, FRGB, FRGC = GAP, SLOT + 5 * 12288, 6 * PW + GAP
SDUM = 35840


def frg(fi):
    return FRGA + fi * 1024 if fi < 5 else (FRGB + (fi - 5) * 1024 if fi < 9 else FRGC + (fi - 9) * 1024)


def p2buf(s, qkv):
    if s < 3:
        return P2B0 + s * 12288
    if qkv and s >= 8:
        return P2B0 + (s - 8) * 12288
    return SLOT + (s - 3) * 12288 if s < 9 else 0


LOG2E = 1.4426950408889634
GC1 = -2.0 * 0.7978845608028654 * LOG2E
GC2 = GC1 * 0.044715
EPS6 = 9.98377799987793e-07


def hx(x):
    return "0x%08x" % struct.unpack("<I", struct.pack("<f", x))[0]


class Cfg:
    stamps = 0
    prefetch_code = 1
    x_nodma = 0
    bpos = 1
    map1 = 2
    map2 = 0
    wnt = 1
    prio = 0
    prio2 = 1
    cprio = 1
    nfirst = 4
    poll_it = 7
    touch = 1
    fill = 2
    pf_h = 2
    pf_q1 = 20
    pf_k1 = 0
    pf_k0 = 0
    pf_l = 1
    hbar = 6
    hbar_chunk = 5
    gelu_pk0 = 0
    kv_pk = 1
    h_early = 1
    rot2 = 1
    o_at = 6
    o_try = 4
    qprio = 1
    hpass = 1
    rs_it = 0
    hpoll = 7
    hsig = 3
    touch_it = 8
    hfill = 3
    hprio = 1
    early_lds = 1
    dfirst = 1
    qb3 = 2
    qb4 = 5
    sig_it = 4
    eprio = 0


def typ_of(ids):
    return {0: (ids >> 5) & 1, 1: (ids >> 3) & 1, 2: ids >> 7}[Cfg.map1]


class Stream:
    def __init__(self, a):
        self.a = a
        self.q = {"ds": [], "vm": []}

    def emit(self, it):
        k = it[0]
        if k == "i":
            self.a(it[1])
        elif k in ("ds", "vm"):
            self.a(it[1])
            self.q[k].append(it[2])
        elif k == "vm0":
            self.a(it[1])
            self.q["vm"].append(("*", it[2]))
        elif k in ("wds", "wvm"):
            self.wait(k[1:], it[1])
        else:
            raise ValueError(it)

    def count(self, k, tags):
        q = self.q[k]
        def star(t):
            return isinstance(t, tuple) and t[0] == "*"
        idx = max([i for i, t in enumerate(q) if tags is None or t in tags or (star(t) and t[1] in tags)], default=-1)
        if idx < 0:
            return None
        left = sum(1 for t in q[idx + 1:] if not star(t))
        del q[:idx + 1]
        return min(left, 15 if k == "ds" else 63)

    def wait(self, k, tags):
        n = self.count(k, tags)
        if n is not None:
            self.a(f"s_waitcnt {'lgkmcnt' if k == 'ds' else 'vmcnt'}({n})")

    def wait2(self, dtags, vtags):
        nd, nv = self.count("ds", dtags), self.count("vm", vtags) if vtags != [] else None
        p = []
        if nv is not None:
            p.append(f"vmcnt({nv})")
        if nd is not None:
            p.append(f"lgkmcnt({nd})")
        if p:
            self.a("s_waitcnt " + " ".join(p))


def I(text):
    return [("i", x.strip()) for x in text.strip().split("\n") if x.strip()]


def group_scc(items):
    out, i = [], 0
    while i < len(items):
        it = items[i]
        if it[0] == "i" and it[1].startswith("s_cmp"):
            j = i + 1
            while j < len(items) and items[j][0] == "i" and items[j][1].startswith("s_cselect"):
                j += 1
            out.append(("atomic", items[i:j]))
            i = j
        else:
            out.append(it)
            i += 1
    return out


def gen():
    a = Asm()
    ool = []
    S = {}
    sa = RegAlloc(44, 96)
    for n in ("w", "rg", "rb", "j", "typ", "col0", "soA", "soB", "so2", "so", "ofA", "ofB", "of2", "t", "t1", "t2", "t3", "pc",
              "rlo", "rls", "hs", "jt", "jt1", "r2", "c2", "sH", "sO", "nH", "nO", "rH", "rO", "p2A", "p2B", "tp1", "tp2"):
        S[n] = sa.alloc(n)
    S["uo"] = sa.alloc("uo", 4)
    S["pa"] = sa.alloc("pa", 4)
    for n in ("ex", "m1", "m2"):
        S[n] = sa.alloc(n, 2, 2)
    S["fl"], S["t0"] = 10, 100
    SX, SW, SWS, SR, SAUX = 28, 32, 36, 40, 96

    l, Z, ITS, RS, IRS, L16, SMALL = 1, 2, 3, 4, 5, 6, 7
    ACC, T, BB = 24, 104, 152
    CMPA, SCA = SMALL, SMALL + 8
    vb = RegAlloc(BB, BB + 100)
    FA = vb.alloc("fa", 8, 2)
    FB = vb.alloc("fb", 40, 2)
    XE = vb.alloc("xe", 4, 2)
    WE = vb.alloc("we", 20, 2)
    RA = vb.alloc("rA", 4)
    RA0 = vb.alloc("rA0")
    RB = vb.alloc("rB")
    RB0 = vb.alloc("rB0")
    BIAS = vb.alloc("bias", 5)
    RLD = vb.alloc("rld")
    AST, FB2, LT = 72, 232, ACC
    DA, DB, LRA, LRA0 = 232, 233, 238, 242
    DB2, RB2, RB20, LBIAS, RLY, RCS = SMALL, SMALL + 3, SMALL + 4, SMALL + 5, SMALL + 8, SMALL + 9
    LXE, LWE, LBX = 136, 140, 120
    QSCA = SMALL + 10

    def ast(s_):
        return AST + 16 * (9 - s_)

    def srd(base, ptr, size):
        a(f"s_mov_b32 s{base}, s{ptr}\ns_mov_b32 s{base+1}, s{ptr+1}\ns_mov_b32 s{base+2}, {size}\ns_mov_b32 s{base+3}, 0x20000")

    def stamp(lane):
        if Cfg.stamps:
            a(f"{'s_memrealtime' if Cfg.stamps == 3 else 's_memtime'} s[{S['t0']}:{S['t0']+1}]\ns_waitcnt lgkmcnt(0)\nv_writelane_b32 v{ITS}, s{S['t0']}, {lane}")

    def poll_slow(check, err, sleep=8):
        lp, back = a.newlabel("PL"), a.newlabel("PB")
        a(f"s_cbranch_scc0 {lp}\n{back}:")

        def emit():
            l2 = a.newlabel("PL")
            a(f"{lp}:\ns_mov_b32 s{S['pc']}, 0\n{l2}:\ns_sleep {sleep}")
            check()
            a(f"""
            s_cbranch_scc1 {back}
            s_add_u32 s{S['pc']}, s{S['pc']}, 1
            s_cmp_lt_u32 s{S['pc']}, 0x20000
            s_cbranch_scc1 {l2}
            v_mov_b32 v{IRS}, {err}
            global_store_dword v{Z}, v{IRS}, s[22:23] offset:32
            s_branch {back}
            """)
        ool.append(emit)

    a.label(KN)
    a(f"""
    s_cmp_ge_u32 s2, 256
    s_cbranch_scc1 END
    s_load_dwordx16 s[4:19], s[0:1], 0
    s_load_dwordx4 s[20:23], s[0:1], 64
    s_load_dwordx2 s[24:25], s[0:1], 80
    v_lshrrev_b32 v{T}, 6, v0
    v_and_b32 v{l}, 63, v0
    v_readfirstlane_b32 s{S['w']}, v{T}
    """)
    if Cfg.stamps:
        a(f"v_mov_b32 v{ITS}, 0\ns_memtime s[{S['t0']}:{S['t0']+1}]\ns_memrealtime s[{S['ex']}:{S['ex']+1}]")
    if Cfg.prefetch_code:
        here = a.newlabel("PC")
        a(f"""
        s_getpc_b64 s[26:27]
        {here}:
        s_bfe_u32 s{S['t']}, s2, 0x20003
        s_lshl_b32 s{S['t']}, s{S['t']}, 14
        v_lshlrev_b32 v{T+2}, 5, v0
        v_add_u32 v{T+2}, s{S['t']}, v{T+2}
        v_min_u32 v{T+2}, CODE_END-{here}-4, v{T+2}
        v_mov_b32 v{T+3}, s27
        v_add_co_u32 v{T+2}, vcc, s26, v{T+2}
        v_addc_co_u32 v{T+3}, vcc, 0, v{T+3}, vcc
        s_mov_b32 exec_lo, 0x11111111
        s_mov_b32 exec_hi, 0x11111111
        global_load_dword v{RS}, v[{T+2}:{T+3}], off
        s_mov_b64 exec, -1
        """)
    if Cfg.map1 == 0:
        a(f"""
        s_and_b32 s{S['t']}, s2, 3
        s_lshl_b32 s{S['t']}, s{S['t']}, 2
        s_bfe_u32 s{S['t1']}, s2, 0x20003
        s_add_u32 s{S['rb']}, s{S['t']}, s{S['t1']}
        s_bfe_u32 s{S['typ']}, s2, 0x10005
        s_bfe_u32 s{S['t']}, s2, 0x10002
        s_lshl_b32 s{S['t']}, s{S['t']}, 2
        s_bfe_u32 s{S['t1']}, s2, 0x20006
        s_add_u32 s{S['j']}, s{S['t']}, s{S['t1']}
        """)
    else:
        if Cfg.map1 == 1:
            a(f"s_and_b32 s{S['j']}, s2, 7\ns_bfe_u32 s{S['typ']}, s2, 0x10003\ns_lshr_b32 s{S['rb']}, s2, 4")
        else:
            a(f"s_and_b32 s{S['j']}, s2, 7\ns_lshr_b32 s{S['typ']}, s2, 7\ns_bfe_u32 s{S['rb']}, s2, 0x40003")
    a(f"""
    v_mov_b32 v{Z}, 0
    v_lshlrev_b32 v{L16}, 4, v{l}
    s_and_b32 s{S['rg']}, s{S['w']}, 3
    s_mul_i32 s{S['t']}, s{S['j']}, 7
    s_min_u32 s{S['t']}, s{S['t']}, 47
    s_lshl_b32 s{S['t']}, s{S['t']}, 5
    s_mul_i32 s{S['t1']}, s{S['j']}, 80
    s_cmp_eq_u32 s{S['typ']}, 0
    s_cselect_b32 s{S['col0']}, s{S['t1']}, s{S['t']}
    s_cselect_b32 s{S['t1']}, 32, s{S['t']}
    s_bitcmp1_b32 s{S['t1']}, 5
    s_cselect_b32 s{S['tp1']}, 3, 0
    s_cselect_b32 s{S['tp2']}, 0, 4
    s_lshr_b32 s{S['t']}, s{S['w']}, 2
    s_lshl_b32 s{S['t1']}, s{S['typ']}, 1
    s_add_u32 s{S['t3']}, s{S['t']}, s{S['t1']}
    s_cmp_eq_u32 s{S['t3']}, 0
    s_cbranch_scc1 ROLE_KV
    s_cmp_eq_u32 s{S['t3']}, 2
    s_cbranch_scc1 ROLE_H0
    s_cmp_eq_u32 s{S['t3']}, 3
    s_cbranch_scc1 ROLE_H1
    """)

    TY = {0: dict(nt=5, stride=3840, wptr=6, qkv=True), 1: dict(nt=4, stride=3456, wptr=12, qkv=False)}
    JT, JT1 = S["jt"], S["jt1"]

    def after_kernarg():
        a("s_waitcnt lgkmcnt(0)")
        if Cfg.stamps:
            a(f"v_writelane_b32 v{ITS}, s{S['t0']}, 0\nv_writelane_b32 v{ITS}, s{S['ex']}, 62")
        srd(SX, 4, 2048 * 1280)
        srd(SWS, 24, WS_SIZE)
        a(f"s_add_u32 s{S['fl']}, s24, {FLAG_OFF}\ns_addc_u32 s{S['fl']+1}, s25, 0")

    def emit_item(st, it):
        if it[0] == "atomic":
            for x in it[1]:
                emit_item(st, x)
        elif it[0] == "call":
            it[1]()
        else:
            st.emit(it)

    def emit_all(st, items):
        for x in items:
            emit_item(st, x)

    def p2_params():
        if Cfg.map2 == 0:
            a(f"""
            s_and_b32 s{S['t']}, s2, 3
            s_lshl_b32 s{S['t']}, s{S['t']}, 3
            s_bfe_u32 s{S['t1']}, s2, 0x30003
            s_add_u32 s{S['r2']}, s{S['t']}, s{S['t1']}
            s_bfe_u32 s{S['t']}, s2, 0x10002
            s_lshl_b32 s{S['t']}, s{S['t']}, 2
            s_lshr_b32 s{S['t1']}, s2, 6
            s_add_u32 s{S['c2']}, s{S['t']}, s{S['t1']}
            """)
        else:
            a(f"""
            s_and_b32 s{S['t']}, s2, 7
            s_lshl_b32 s{S['t']}, s{S['t']}, 2
            s_bfe_u32 s{S['t1']}, s2, 0x20003
            s_add_u32 s{S['r2']}, s{S['t']}, s{S['t1']}
            s_lshr_b32 s{S['c2']}, s2, 5
            """)
        a(f"""
        s_mul_i32 s{S['t']}, s{S['w']}, 7
        s_mul_i32 s{S['t1']}, s{S['w']}, 6
        s_add_u32 s{S['t1']}, s{S['t1']}, 6
        s_cmp_lt_u32 s{S['w']}, 6
        s_cselect_b32 s{S['sH']}, s{S['t']}, s{S['t1']}
        s_cselect_b32 s{S['nH']}, 7, 6
        s_lshl_b32 s{S['t']}, s{S['w']}, 2
        s_lshr_b32 s{S['t1']}, 0x33222233, s{S['t']}
        s_and_b32 s{S['nO']}, s{S['t1']}, 15
        s_lshl_b32 s{S['t']}, s{S['w']}, 1
        s_min_u32 s{S['t1']}, s{S['w']}, 2
        s_add_u32 s{S['t']}, s{S['t']}, s{S['t1']}
        s_cmp_eq_u32 s{S['w']}, 7
        s_cselect_b32 s{S['t1']}, 55, 54
        s_add_u32 s{S['sO']}, s{S['t']}, s{S['t1']}
        s_and_b32 s{S['t']}, s{S['c2']}, 3
        s_mul_i32 s{S['rH']}, s{S['t']}, {2 * Cfg.rot2}
        s_mul_i32 s{S['rO']}, s{S['t']}, {Cfg.rot2}
        s_cmp_ge_u32 s{S['rH']}, s{S['nH']}
        s_cselect_b32 s{S['rH']}, 1, s{S['rH']}
        s_cmp_ge_u32 s{S['rO']}, s{S['nO']}
        s_cselect_b32 s{S['t']}, s{S['nO']}, 0
        s_sub_u32 s{S['rO']}, s{S['rO']}, s{S['t']}
        s_mul_i32 s{S['p2A']}, s{S['r2']}, {A2_RB}
        s_mul_i32 s{S['p2B']}, s{S['c2']}, {B2_C}
        s_add_u32 s{S['p2B']}, s{S['p2B']}, {B2_OFF}
        """)

    def relay_params(base):
        a(f"""
        s_lshl_b32 s{S['t']}, s{S['rg']}, 8
        s_add_u32 s{S['t3']}, s{S['t']}, s2
        s_mul_i32 s{S['t2']}, s{S['t3']}, 6554
        s_lshr_b32 s{S['t2']}, s{S['t2']}, 16
        s_mul_i32 s{S['t']}, s{S['t2']}, 10
        s_sub_u32 s{S['t1']}, s{S['t3']}, s{S['t']}
        s_min_u32 s{S['so']}, s{S['rg']}, 2
        s_lshl_b32 s{S['so']}, s{S['so']}, 12
        s_add_u32 s{S['rls']}, s{S['so']}, {base}
        """)

    def frag_addr_a(dst, X):
        a(f"""
        v_and_b32 v{X}, 31, v{l}
        s_lshl_b32 s{S['t']}, s{S['rg']}, 5
        v_add_u32 v{X}, s{S['t']}, v{X}
        v_bfe_u32 v{X+1}, v{X}, 1, 3
        v_lshrrev_b32 v{X+2}, 5, v{l}
        v_xor_b32 v{X+1}, v{X+1}, v{X+2}
        v_lshlrev_b32 v{X+1}, 4, v{X+1}
        v_lshl_add_u32 v{dst}, v{X}, 7, v{X+1}
        """)

    def frag_addr_b_low(dst, X):
        a(f"""
        v_bfe_u32 v{X}, v{l}, 2, 2
        v_lshlrev_b32 v{dst}, 6, v{X}
        v_bfe_u32 v{X}, v{l}, 4, 1
        v_lshl_add_u32 v{dst}, v{X}, 5, v{dst}
        v_and_b32 v{X}, 3, v{l}
        v_lshl_add_u32 v{dst}, v{X}, 3, v{dst}
        """)

    def bias_setup(R, regs, n, tp, second, st, X):
        if not R["qkv"]:
            srd(SAUX, 14, 3456)
            a(f"""
            s_lshl_b32 s{S['t']}, s{tp}, 5
            s_add_u32 s{S['t']}, s{S['t']}, s{S['col0']}
            s_lshl_b32 s{S['t']}, s{S['t']}, 1
            v_and_b32 v{X}, 31, v{l}
            v_lshlrev_b32 v{X}, 1, v{X}
            """)
            for t in range(n):
                st.emit(("vm", f"buffer_load_ushort v{regs+t}, v{X}, s[{SAUX}:{SAUX+3}], s{S['t']} offen offset:{t*64}", "bias"))
        elif second:
            for t in range(3):
                a(f"v_mov_b32 v{regs+t}, 0x3586")
        else:
            a(f"""
            v_mov_b32 v{regs}, 0x3586
            v_mov_b32 v{regs+1}, 0x3586
            s_mov_b32 s{S['m2']}, 0x0000ffff
            s_mov_b32 s{S['m2']+1}, 0x0000ffff
            v_cndmask_b32 v{regs+2}, 0, v{regs}, s[{S['m2']}:{S['m2']+1}]
            v_mov_b32 v{regs+3}, 0
            v_mov_b32 v{regs+4}, 0
            """)

    def vcol(reg, tmp):
        return I(f"""
        v_mov_b32 v{tmp}, 0
        v_mov_b32 v{tmp+1}, -16
        v_cmp_le_u32 vcc, 80, v{reg}
        v_cndmask_b32 v{tmp}, v{tmp}, v{tmp+1}, vcc
        v_mov_b32 v{tmp+1}, {640-96}
        v_cmp_le_u32 vcc, 96, v{reg}
        v_cndmask_b32 v{tmp}, v{tmp}, v{tmp+1}, vcc
        v_mov_b32 v{tmp+1}, {1280-176}
        v_cmp_le_u32 vcc, 176, v{reg}
        v_cndmask_b32 v{tmp}, v{tmp}, v{tmp+1}, vcc
        v_add_u32 v{reg}, v{reg}, v{tmp}
        """)

    def job_build_ext(nt, tp, xe, we, bias, X):
        it = I(f"""
        v_and_b32 v{X}, 31, v{l}
        s_lshl_b32 s{JT}, s{S['rg']}, 5
        v_add_lshl_u32 v{X+1}, v{X}, s{JT}, 2
        v_add_u32 v{X+1}, {MISC}, v{X+1}
        s_lshl_b32 s{JT}, s{tp}, 7
        s_add_u32 s{JT}, s{JT}, {CSP}
        v_lshl_add_u32 v{X}, v{X}, 2, s{JT}
        """)
        for r, off in ((X + 2, ST_M), (RS, ST_RS), (IRS, ST_IRS)):
            it.append(("ds", f"ds_read_b32 v{r}, v{X+1} offset:{off-MISC}", "bx"))
        for t in range(nt):
            it.append(("ds", f"ds_read_b32 v{we+4*t+3}, v{X} offset:{t*128}", "bx"))
        it += I(f"s_mov_b32 s{S['m1']}, -1\ns_mov_b32 s{S['m1']+1}, 0") + [("wds", ["bx"])] + I(f"""
        v_sub_f32 v{X+2}, 0, v{X+2}
        v_cvt_pk_bf16_f32 v{X+3}, v{X+2}, v{IRS}
        v_lshlrev_b32 v{X+4}, 16, v{X+3}
        v_and_b32 v{X+5}, 0xffff0000, v{X+3}
        v_sub_f32 v{X+4}, v{X+2}, v{X+4}
        v_sub_f32 v{X+5}, v{IRS}, v{X+5}
        v_cvt_pk_bf16_f32 v{X+4}, v{X+2}, v{X+4}
        v_cvt_pk_bf16_f32 v{X+5}, v{X+5}, v{Z}
        v_cndmask_b32 v{xe}, 0, v{X+4}, s[{S['m1']}:{S['m1']+1}]
        v_cndmask_b32 v{xe+1}, 0, v{X+3}, s[{S['m1']}:{S['m1']+1}]
        v_cndmask_b32 v{xe+2}, 0, v{X+5}, s[{S['m1']}:{S['m1']+1}]
        v_mov_b32 v{xe+3}, 0
        """)
        for t in range(nt):
            w, b = we + 4 * t, bias + t
            it += I(f"""
            v_cvt_pk_bf16_f32 v{w}, v{w+3}, v{w+3}
            v_and_b32 v{w+1}, 0xffff0000, v{w}
            v_sub_f32 v{w+1}, v{w+3}, v{w+1}
            v_cvt_pk_bf16_f32 v{w+1}, v{w+1}, v{Z}
            v_lshl_or_b32 v{w+1}, v{b}, 16, v{w+1}
            v_mov_b32 v{w+2}, v{b}
            v_mov_b32 v{w+3}, 0
            """)
        return it

    def ext_mfma(nt, xe, we, tr):
        for t in range(nt):
            w, acc = we + 4 * t, ACC + 16 * t
            x, y = (w, xe) if tr else (xe, w)
            a(f"v_mfma_f32_32x32x16_bf16 v[{acc}:{acc+15}], v[{x}:{x+3}], v[{y}:{y+3}], v[{acc}:{acc+15}]")

    def shard_flag_jobs(flag, V, err, who, lanes=8):
        sig = I(f"""
        s_and_b32 s{JT}, s2, 7
        s_lshl_b32 s{JT}, s{JT}, 7
        s_add_u32 s{JT}, s{JT}, {flag*128}
        v_mov_b32 v{V}, s{JT}
        v_mov_b32 v{V+1}, 1
        """) + [("atomic", I(f"s_cmp_eq_u32 s{S['w']}, {who}\ns_cselect_b32 exec_lo, 1, 0\ns_mov_b32 exec_hi, 0") +
                 [("vm0", f"global_atomic_add v{V}, v{V+1}, s[{S['fl']}:{S['fl']+1}]", "sg")] + I("s_mov_b64 exec, -1"))]
        ldj = I(f"""
        v_lshlrev_b32 v{V}, 7, v{l}
        v_add_u32 v{V}, {flag*128}, v{V}
        v_mov_b32 v{V+1}, 32
        """) + [("atomic", I(f"s_cmp_eq_u32 s{S['w']}, {who}\ns_cselect_b32 exec_lo, {hex((1 << lanes) - 1)}, 0\ns_mov_b32 exec_hi, 0") +
                 [("vm0", f"global_load_dword v{V+1}, v{V}, s[{S['fl']}:{S['fl']+1}] sc1", ("fl", flag))] + I("s_mov_b64 exec, -1"))]

        def chk():
            a(f"""
            s_mov_b64 exec, {hex((1 << lanes) - 1)}
            global_load_dword v{V+1}, v{V}, s[{S['fl']}:{S['fl']+1}] sc1
            s_mov_b64 exec, -1
            s_waitcnt vmcnt(0)
            v_cmp_gt_u32 vcc, 32, v{V+1}
            s_cmp_eq_u64 vcc, 0
            """)
        ck = [("wvm", [("fl", flag)]), ("atomic", I(f"v_cmp_gt_u32 vcc, 32, v{V+1}\ns_cmp_eq_u64 vcc, 0") + [("call", lambda: poll_slow(chk, err))])]
        return sig, ldj, ck

    def row_publish(SQ, SM, Y):
        it = I(f"""
        s_mov_b32 s{S['m1']}, 0xaaaaaaaa
        s_mov_b32 s{S['m1']+1}, 0xaaaaaaaa
        s_mov_b32 s{S['m2']}, 0xcccccccc
        s_mov_b32 s{S['m2']+1}, 0xcccccccc
        v_cndmask_b32 v{Y+2}, v{SQ}, v{SQ+1}, s[{S['m1']}:{S['m1']+1}]
        v_cndmask_b32 v{Y+3}, v{SQ+2}, v{SQ+3}, s[{S['m1']}:{S['m1']+1}]
        v_cndmask_b32 v{Y+2}, v{Y+2}, v{Y+3}, s[{S['m2']}:{S['m2']+1}]
        s_lshl_b32 s{JT}, s{S['rb']}, 2
        s_add_u32 s{JT}, s{JT}, s{S['rg']}
        s_lshl_b32 s{JT}, s{JT}, 7
        s_add_u32 s{JT}, s{JT}, {RS_OFF}
        s_lshl_b32 s{JT1}, s{S['j']}, 1
        s_add_u32 s{JT1}, s{JT1}, s{S['typ']}
        s_cmp_ge_u32 s{JT1}, 10
        s_cselect_b32 s{JT}, {OOB}, s{JT}
        v_and_b32 v{Y+4}, 31, v{l}
        v_lshrrev_b32 v{Y+5}, 5, v{l}
        v_lshlrev_b32 v{Y+5}, 13, v{Y+5}
        v_permlane32_swap_b32 v{SM}, v{Y+2}
        v_lshl_add_u32 v{Y+4}, v{Y+4}, 2, v{Y+5}
        v_add_f32 v{Y+2}, v{Y+2}, v{SM}
        """)
        it.append(("vm", f"buffer_atomic_add_f32 v{Y+2}, v{Y+4}, s[{SWS}:{SWS+3}], s{JT} offen", "stat"))
        return it


    def job_load_stats(qkv, Y):
        it = I(f"""
        v_and_b32 v{Y}, 31, v{l}
        s_lshl_b32 s{JT}, s{S['rb']}, 2
        s_add_u32 s{JT}, s{JT}, s{S['rg']}
        s_lshl_b32 s{JT}, s{JT}, 7
        s_add_u32 s{JT}, s{JT}, {RS_OFF}
        s_add_u32 s{JT1}, s{JT}, 8192
        v_lshlrev_b32 v{Y+1}, 2, v{Y}
        """)
        it.append(("vm", f"buffer_load_dword v{Y+2}, v{Y+1}, s[{SWS}:{SWS+3}], s{JT} offen sc1", "ls"))
        it.append(("vm", f"buffer_load_dword v{Y+3}, v{Y+1}, s[{SWS}:{SWS+3}], s{JT1} offen sc1", "ls"))
        it += I(f"s_lshl_b32 s{JT}, s{S['rg']}, 6\nv_add_u32 v{Y+1}, s{JT}, v{l}")
        if qkv:
            it += vcol(Y + 1, Y + 4) + I(f"s_lshl_b32 s{JT}, s{S['col0']}, 2\ns_add_u32 s{JT}, s{JT}, {CS_OFF}")
        else:
            it += I(f"s_lshl_b32 s{JT}, s{S['col0']}, 2\ns_add_u32 s{JT}, s{JT}, {CS_OFF + 1920*4}")
        it += I(f"v_lshlrev_b32 v{Y+1}, 2, v{Y+1}")
        it.append(("vm", f"buffer_load_dword v{Y+4}, v{Y+1}, s[{SWS}:{SWS+3}], s{JT} offen sc1", "ls"))
        return it

    def job_publish_stats(qkv, Y):
        it = I(f"""
        v_and_b32 v{Y+5}, 31, v{l}
        s_lshl_b32 s{JT}, s{S['rg']}, 5
        v_add_lshl_u32 v{Y+5}, v{Y+5}, s{JT}, 2
        v_add_u32 v{Y+5}, {MISC}, v{Y+5}
        s_lshl_b32 s{JT}, s{S['rg']}, 8
        s_add_u32 s{JT}, s{JT}, {CSP}
        v_lshl_add_u32 v{Y+6}, v{l}, 2, s{JT}
        """) + [("wvm", ["ls"])] + I(f"""
        v_mul_f32 v{Y+2}, {hx(1/640)}, v{Y+2}
        v_mul_f32 v{Y+3}, {hx(1/640)}, v{Y+3}
        v_fma_f32 v{Y+3}, -v{Y+2}, v{Y+2}, v{Y+3}
        v_max_f32 v{Y+3}, 0, v{Y+3}
        v_add_f32 v{Y}, {hx(1e-5)}, v{Y+3}
        """)
        if not qkv:
            it += I(f"v_mov_b32 v{Y+1}, {hx(1e-5)}\nv_fma_f32 v{Y}, v{Y}, v{Y+1}, v{Y+3}")
        it += I(f"v_sqrt_f32 v{Y+1}, v{Y}\nv_rsq_f32 v{Y}, v{Y}")
        for r, off in ((Y + 2, ST_M), (Y, ST_RS), (Y + 1, ST_IRS)):
            it.append(("ds", f"ds_write_b32 v{Y+5}, v{r} offset:{off-MISC}", "pub"))
        it.append(("ds", f"ds_write_b32 v{Y+6}, v{Y+4}", "pub"))
        return it

    def job_touch(V):
        it = I(f"""
        s_and_b32 s{JT}, s{S['r2']}, 7
        s_mul_i32 s{JT}, s{JT}, {370*128}
        s_mul_i32 s{JT1}, s{S['rg']}, {96*128}
        s_add_u32 s{JT}, s{JT}, s{JT1}
        s_add_u32 s{JT}, s{JT}, s{S['p2B']}
        v_lshlrev_b32 v{V+1}, 7, v{l}
        """)
        it.append(("vm", f"buffer_load_dword v{V}, v{V+1}, s[{SWS}:{SWS+3}], s{JT} offen sc1", "tc"))
        it += I(f"s_add_u32 s{JT}, s{JT}, 8192")
        it.append(("atomic", I("s_mov_b32 exec_hi, 0") + [("vm", f"buffer_load_dword v{V}, v{V+1}, s[{SWS}:{SWS+3}], s{JT} offen sc1", "tc")] + I("s_mov_b32 exec_hi, -1")))
        return it


    def zero_init():
        a(f"v_mov_b32 v{T+13}, {SYN}\nds_write_b128 v{T+13}, v[{T+8}:{T+11}]\nds_write_b128 v{T+13}, v[{T+8}:{T+11}] offset:16\nds_write_b128 v{T+13}, v[{T+8}:{T+11}] offset:32".replace("v_mov_b32", f"v_mov_b32 v{T+8}, 0\nv_mov_b32 v{T+9}, 0\nv_mov_b32 v{T+10}, 0\nv_mov_b32 v{T+11}, 0\nv_mov_b32", 1))
        lab = a.newlabel("NI")
        a(f"""
        s_cmp_lg_u32 s{S['rg']}, 3
        s_cbranch_scc1 {lab}
        s_cmp_ge_u32 s2, 32
        s_cbranch_scc1 {lab}
        v_mov_b32 v{T+8}, 0
        v_mov_b32 v{T+9}, 0
        v_mov_b32 v{T+10}, 0
        v_mov_b32 v{T+11}, 0
        s_mul_i32 s{S['t']}, s2, 3328
        s_add_u32 s{S['t']}, s{S['t']}, {KV_OFF}
        buffer_store_dwordx4 v[{T+8}:{T+11}], v{L16}, s[{SWS}:{SWS+3}], s{S['t']} offen sc1
        buffer_store_dwordx4 v[{T+8}:{T+11}], v{L16}, s[{SWS}:{SWS+3}], s{S['t']} offen offset:1024 sc1
        buffer_store_dwordx4 v[{T+8}:{T+11}], v{L16}, s[{SWS}:{SWS+3}], s{S['t']} offen offset:2048 sc1
        buffer_store_dwordx4 v[{T+8}:{T+11}], v{L16}, s[{SWS}:{SWS+3}], s{S['t']} offen offset:2304 sc1
        v_mov_b32 v{T+12}, 1
        s_waitcnt vmcnt(0)
        s_mov_b64 exec, 1
        global_atomic_add v{Z}, v{T+12}, s[22:23]
        s_mov_b64 exec, -1
        {lab}:
        """)

    def relay_issue(st, X, base):
        relay_params(base)
        a(f"""
        s_cmp_lt_u32 s{S['t2']}, 54
        s_cselect_b32 s{SR}, s16, s8
        s_cselect_b32 s{SR+1}, s17, s9
        s_mov_b32 s{SR+2}, {640*1280}
        s_cselect_b32 s{SR+2}, {1728*1280}, s{SR+2}
        s_mov_b32 s{SR+3}, 0x20000
        s_cselect_b32 s{S['t']}, 0, 54
        s_sub_u32 s{S['t']}, s{S['t2']}, s{S['t']}
        s_mul_i32 s{S['t']}, s{S['t']}, {32*1280}
        s_lshl_b32 s{S['so']}, s{S['t1']}, 7
        s_add_u32 s{S['rlo']}, s{S['t']}, s{S['so']}
        v_lshrrev_b32 v{X}, 3, v{l}
        v_mul_u32_u24 v{X}, 1280, v{X}
        v_and_b32 v{X+1}, 7, v{l}
        v_lshl_add_u32 v{RLD}, v{X+1}, 4, v{X}
        s_cmp_lt_u32 s{S['t3']}, 740
        s_cselect_b32 s{S['hs']}, -1, 0
        s_barrier
        s_mov_b32 exec_lo, s{S['hs']}
        s_mov_b32 exec_hi, s{S['hs']}
        """)
        for i in range(4):
            a(f"s_add_u32 m0, s{S['rls']}, {i*1024}\ns_add_u32 s{JT}, s{S['rlo']}, {i*8*1280}")
            st.emit(("vm0", f"buffer_load_dwordx4 v{RLD}, s[{SR}:{SR+3}], s{JT} offen nt lds", "rl"))
        a("s_mov_b64 exec, -1")

    def init_check():
        def chk():
            a(f"global_load_dword v{T+44}, v{Z}, s[22:23] sc1\ns_waitcnt vmcnt(0)\nv_readfirstlane_b32 s{JT}, v{T+44}\ns_cmp_ge_u32 s{JT}, 32")
        lab = a.newlabel("IC")
        a(f"s_cmp_lg_u32 s{S['rg']}, 3\ns_cbranch_scc1 {lab}")
        chk()
        poll_slow(chk, 0x101)
        a.label(lab)


    def loader(ty):
        R = TY[ty]
        st = Stream(a)
        nt1, stride, qkv = R["nt"], R["stride"], R["qkv"]
        P1, P2 = nt1 * 256, 768
        X = LT
        a(f"""
        v_lshrrev_b32 v{X}, 3, v{l}
        s_lshl_b32 s{S['t']}, s{S['rg']}, 3
        s_lshl_b32 s{S['t1']}, s{S['rb']}, 7
        s_add_u32 s{S['t']}, s{S['t']}, s{S['t1']}
        v_add_u32 v{X}, s{S['t']}, v{X}
        v_mul_u32_u24 v{DA}, 1280, v{X}
        v_lshrrev_b32 v{X}, 1, v{X}
        v_xor_b32 v{X}, v{X}, v{l}
        v_and_b32 v{X}, 7, v{X}
        v_lshl_add_u32 v{DA}, v{X}, 4, v{DA}
        s_lshl_b32 s{S['ofA']}, s{S['rg']}, 10
        s_mul_i32 s{S['ofB']}, s{S['rg']}, {nt1*1024}
        s_add_u32 s{S['ofB']}, s{S['ofB']}, 16384
        s_mul_i32 s{S['of2']}, s{S['rg']}, 3072
        s_lshl_b32 s{S['t']}, s{S['j']}, 1
        s_add_u32 s{S['t']}, s{S['t']}, s{S['typ']}
        s_add_u32 s{S['t']}, s{S['t']}, s{S['rb']}
        s_mul_i32 s{S['t1']}, s{S['t']}, 26
        s_lshr_b32 s{S['t1']}, s{S['t1']}, 8
        s_mul_i32 s{S['t1']}, s{S['t1']}, 10
        s_sub_u32 s{S['t']}, s{S['t']}, s{S['t1']}
        s_lshl_b32 s{S['soA']}, s{S['t']}, 7
        s_mul_i32 s{S['soB']}, s{S['t']}, {64*stride}
        s_mov_b32 s{S['so2']}, s{S['soB']}
        v_bfe_u32 v{X}, v{l}, 2, 2
        s_lshl_b32 s{S['t']}, s{S['rg']}, 4
        v_add_u32 v{X}, s{S['t']}, v{X}
        v_mul_u32_u24 v{X}, {stride}, v{X}
        s_lshl_b32 s{S['t']}, s{S['col0']}, 1
        v_add_u32 v{X}, s{S['t']}, v{X}
        v_lshrrev_b32 v{X+1}, 4, v{l}
        v_and_b32 v{X+2}, 3, v{l}
        """)

        def pattern(dst, i, NT, magic, second):
            a(f"""
            v_add_u32 v{X+3}, {4*i}, v{X+1}
            v_mul_u32_u24 v{X+4}, {magic}, v{X+3}
            v_lshrrev_b32 v{X+4}, 8, v{X+4}
            v_mul_u32_u24 v{X+5}, {NT}, v{X+4}
            v_sub_u32 v{X+3}, v{X+3}, v{X+5}
            v_lshl_add_u32 v{X+3}, v{X+3}, 2, v{X+2}
            v_mul_u32_u24 v{X+4}, {4*stride}, v{X+4}
            """)
            if qkv:
                lo, hi = (0, -32) if second else (1280, 2560 - 160)
                a(f"v_mov_b32 v{X+5}, {lo}\nv_mov_b32 v{X+6}, {hi}\nv_cmp_le_u32 vcc, 10, v{X+3}\nv_cndmask_b32 v{X+5}, v{X+5}, v{X+6}, vcc\n"
                  f"v_add_u32 v{X+4}, v{X+4}, v{X+5}")
            else:
                a(f"s_lshl_b32 s{S['t']}, s{S['tp2'] if second else S['tp1']}, 6\nv_add_u32 v{X+4}, s{S['t']}, v{X+4}")
            a(f"v_lshl_add_u32 v{X+3}, v{X+3}, 4, v{X+4}\nv_add_u32 v{dst}, v{X}, v{X+3}")

        def nt_mod(s):
            return " nt" if (Cfg.wnt == 1 and s == 0) else ""

        def dma1(s):
            if Cfg.x_nodma:
                return []
            slot = (s % 3) * SLOT
            A, B = [], []
            for m in range(4):
                A.append(I(f"s_add_u32 m0, s{S['ofA']}, {slot + m*4096}\ns_add_u32 s{S['so']}, s{S['soA']}, {m*32*1280}") +
                         [("vm", f"buffer_load_dwordx4 v{DA}, s[{SX}:{SX+3}], s{S['so']} offen lds", ("S", s))])
            for i in range(nt1):
                B.append(I(f"s_add_u32 m0, s{S['ofB']}, {slot + i*1024}") +
                         [("vm", f"buffer_load_dwordx4 v{DB+i}, s[{SW}:{SW+3}], s{S['soB']} offen{nt_mod(s)} lds", ("S", s))])
            res = []
            while A or B:
                if B: res.append(B.pop(0))
                if A: res.append(A.pop(0))
            if s > 0:
                res[0] = I(f"""
                s_add_u32 s{S['soA']}, s{S['soA']}, 128
                s_add_u32 s{S['soB']}, s{S['soB']}, {64*stride}
                s_cmp_eq_u32 s{S['soA']}, 1280
                s_cselect_b32 s{S['soA']}, 0, s{S['soA']}
                s_cselect_b32 s{S['soB']}, 0, s{S['soB']}
                """) + res[0]
            return [("atomic", p) for p in res]

        def dma2(s):
            if Cfg.x_nodma:
                return []
            res = []
            for i in range(3):
                res.append(I(f"s_add_u32 m0, s{S['of2']}, {p2buf(s, qkv) + i*1024}") +
                           [("vm", f"buffer_load_dwordx4 v{DB2+i}, s[{SW}:{SW+3}], s{S['so2']} offen{nt_mod(s)} lds", ("P", s))])
            if s > 0:
                res[0] = I(f"""
                s_add_u32 s{S['so2']}, s{S['so2']}, {64*stride}
                s_cmp_eq_u32 s{S['so2']}, {640*stride}
                s_cselect_b32 s{S['so2']}, 0, s{S['so2']}
                """) + res[0]
            return [("atomic", p) for p in res]

        mg1 = {5: 52, 4: 64}[nt1]
        pattern(DB, 0, nt1, mg1, False)
        after_kernarg()
        srd(SW, R["wptr"], 640 * stride)
        d0 = dma1(0)
        emit_all(st, d0[:2])
        for i in range(1, nt1):
            pattern(DB + i, i, nt1, mg1, False)
            emit_all(st, d0[2 * i:2 * i + 2])
        for i in range(3):
            pattern(DB2 + i, i, 3, 86, True)
        emit_all(st, dma2(0))
        stamp(1)
        a("s_barrier")
        emit_all(st, dma1(1)[:Cfg.nfirst])
        frag_addr_a(LRA0, X)
        frag_addr_b_low(RCS, X)
        a(f"v_lshrrev_b32 v{X}, 5, v{l}\nv_mul_u32_u24 v{X}, {2*P2}, v{X}\nv_add_u32 v{RB20}, v{RCS}, v{X}")
        p2_params()
        relay_params(RELAY)
        for ct in range(4):
            a(f"""
            s_lshl_b32 s{S['t']}, s{S['t1']}, 2
            s_add_u32 s{S['t']}, s{S['t']}, {ct}
            s_mul_i32 s{JT}, s{S['t']}, 52
            s_lshr_b32 s{JT}, s{JT}, 8
            s_mul_i32 s{JT}, s{JT}, {B2_C - 5*1024}
            s_lshl_b32 s{S['t']}, s{S['t']}, 10
            s_add_u32 s{S['t']}, s{S['t']}, s{JT}
            s_mul_i32 s{JT}, s{S['t2']}, 5120
            s_add_u32 s{S['t']}, s{S['t']}, s{JT}
            s_add_u32 s{S['t']}, s{S['t']}, {B2_OFF}
            s_cmp_lt_u32 s{S['t3']}, 740
            s_cselect_b32 s{S['uo']+ct}, s{S['t']}, {OOB}
            """)
        a(f"""
        v_lshrrev_b32 v{X}, 5, v{l}
        v_lshlrev_b32 v{X}, 4, v{X}
        v_bfe_u32 v{X+1}, v{l}, 4, 1
        v_lshl_add_u32 v{X}, v{X+1}, 2, v{X}
        v_bfe_u32 v{X+1}, v{l}, 2, 2
        v_add_u32 v{X}, v{X}, v{X+1}
        v_lshlrev_b32 v{X}, 7, v{X}
        v_and_b32 v{X+1}, 3, v{l}
        v_lshl_add_u32 v{X}, v{X+1}, 3, v{X}
        v_add_u32 v{RLY}, s{S['rls']}, v{X}
        """)
        bias_setup(R, LBIAS, 3, S["tp2"], True, st, X)

        CF, CSA, SQ, SM, ONE, SEL, Y = LT, LT + 16, LT + 24, LT + 28, LT + 32, LT + 34, LT + 38
        a(f"""
        v_mov_b32 v{ONE}, 0x3f803f80
        v_mov_b32 v{ONE+1}, 0x3f803f80
        s_mov_b32 s{S['m1']}, 0x00020001
        s_mov_b32 s{S['m1']+1}, 0x00020001
        """)
        for k in range(4):
            a(f"v_cndmask_b32 v{SEL+k}, 0, v{ONE}, s[{S['m1']}:{S['m1']+1}]")
        emit_all(st, dma1(1)[Cfg.nfirst:])
        stamp(2)

        def a_reads(s):
            sl = (s % 3) * SLOT
            it = I(f"""
            v_add_u32 v{LRA}, {sl}, v{LRA0}
            v_xor_b32 v{LRA+1}, 32, v{LRA}
            v_xor_b32 v{LRA+2}, 64, v{LRA}
            v_xor_b32 v{LRA+3}, 0x60, v{LRA}
            """)
            for ks in range(4):
                r = ast(s) + 4 * ks
                it.append(("ds", f"ds_read_b128 v[{r}:{r+3}], v{LRA+ks}", ("ast", s)))
            return it

        def job_stats0():
            it = []
            for h in range(2):
                if h == 0:
                    it += I(f"s_lshl_b32 s{JT}, s{S['rg']}, 8\ns_add_u32 s{JT}, s{JT}, 16384\ns_mov_b32 s{JT1}, {P1}")
                else:
                    it += I(f"""
                    s_lshl_b32 s{JT}, s{S['rg']}, 8
                    s_add_u32 s{JT}, s{JT}, {P2B0}
                    s_mov_b32 s{JT1}, {P2}
                    s_cmp_eq_u32 s{S['rg']}, 3
                    s_cselect_b32 s{JT}, {16384 + (1024 if qkv else 0)}, s{JT}
                    s_cselect_b32 s{JT1}, {P1}, s{JT1}
                    """)
                it += I(f"""
                v_lshrrev_b32 v{Y}, 4, v{l}
                v_and_b32 v{Y}, 2, v{Y}
                v_mul_u32_u24 v{Y}, s{JT1}, v{Y}
                v_add3_u32 v{Y}, v{Y}, v{RCS}, s{JT}
                """)
                for k in range(8):
                    it.append(("ds", f"ds_read_b64_tr_b16 v[{CF+2*k}:{CF+2*k+1}], v{Y}", ("cs", h, k >> 1)))
                    if k < 7:
                        it += I(f"v_add_u32 v{Y}, s{JT1}, v{Y}" + (f"\nv_add_u32 v{Y}, s{JT1}, v{Y}\nv_add_u32 v{Y}, s{JT1}, v{Y}" if k & 1 else ""))
                for ks in range(4):
                    it.append(("wds", [("cs", h, ks)]))
                    c = "0" if ks == 0 else f"v[{CSA+4*h}:{CSA+4*h+3}]"
                    it += I(f"v_mfma_f32_16x16x32_bf16 v[{CSA+4*h}:{CSA+4*h+3}], v[{SEL}:{SEL+3}], v[{CF+4*ks}:{CF+4*ks+3}], {c}")
            it.append(("wds", [("ast", 0)]))
            for k in range(8):
                c1 = "0" if k == 0 else f"v[{SQ}:{SQ+3}]"
                c2 = "0" if k == 0 else f"v[{SM}:{SM+3}]"
                it += I(f"v_mfma_f32_4x4x4_16b_bf16 v[{SQ}:{SQ+3}], v[{ast(0)+2*k}:{ast(0)+2*k+1}], v[{ast(0)+2*k}:{ast(0)+2*k+1}], {c1}\n"
                        f"v_mfma_f32_4x4x4_16b_bf16 v[{SM}:{SM+3}], v[{ONE}:{ONE+1}], v[{ast(0)+2*k}:{ast(0)+2*k+1}], {c2}")
            return it

        def job_stats_publish():
            it = []
            for h in range(2):
                c = CSA + 4 * h
                if h == 0:
                    it += I(f"s_add_u32 s{JT1}, s{S['tp1']}, s{S['rg']}")
                else:
                    it += I(f"""
                    s_add_u32 s{JT1}, s{S['tp2']}, s{S['rg']}
                    s_cmp_eq_u32 s{S['rg']}, 3
                    s_cselect_b32 s{JT1}, 7, s{JT1}
                    """)
                it += I(f"""
                s_lshl_b32 s{JT}, s{JT1}, 5
                v_add_u32 v{Y}, s{JT}, v{l}
                v_permlane16_swap_b32 v{c}, v{c+1}
                s_mov_b32 s{S['m2']}, -1
                s_mov_b32 s{S['m2']+1}, 0
                """)
                if qkv:
                    it += I(f"s_cmp_eq_u32 s{JT1}, 2\ns_cselect_b32 s{S['m2']}, 0xffff, s{S['m2']}") + vcol(Y, Y + 1)
                    it += I(f"s_lshl_b32 s{JT}, s{S['col0']}, 2\ns_add_u32 s{JT}, s{JT}, {CS_OFF}")
                else:
                    it += I(f"""
                    s_lshl_b32 s{JT}, s{S['col0']}, 2
                    s_add_u32 s{JT}, s{JT}, {CS_OFF + 1920*4}
                    s_cmp_eq_u32 s{JT1}, 7
                    s_cselect_b32 s{JT}, {OOB}, s{JT}
                    s_lshl_b32 s{S['so']}, s{S['j']}, 3
                    s_add_u32 s{JT1}, s{JT1}, s{S['so']}
                    s_sub_u32 s{JT1}, s{JT1}, 56
                    s_cmp_lt_u32 s{JT1}, 2
                    s_cselect_b32 s{JT}, {OOB}, s{JT}
                    """)
                it += I(f"""
                s_cmp_ge_u32 s{S['rb']}, 10
                s_cselect_b32 s{JT}, {OOB}, s{JT}
                v_lshlrev_b32 v{Y}, 2, v{Y}
                v_mov_b32 v{Y+1}, {OOB}
                v_cndmask_b32 v{Y}, v{Y+1}, v{Y}, s[{S['m2']}:{S['m2']+1}]
                """)
                it.append(("vm", f"buffer_atomic_add_f32 v{c}, v{Y}, s[{SWS}:{SWS+3}], s{JT} offen", "stat"))
            return it + row_publish(SQ, SM, Y)

        def job_relay_store():
            it = []
            for ct in range(4):
                it.append(("ds", f"ds_read_b64_tr_b16 v[{CF+4*ct}:{CF+4*ct+1}], v{RLY} offset:{ct*32}", ("rl", ct)))
                it.append(("ds", f"ds_read_b64_tr_b16 v[{CF+4*ct+2}:{CF+4*ct+3}], v{RLY} offset:{ct*32 + 1024}", ("rl", ct)))
            for ct in range(4):
                it.append(("wds", [("rl", ct)]))
                it.append(("vm", f"buffer_store_dwordx4 v[{CF+4*ct}:{CF+4*ct+3}], v{L16}, s[{SWS}:{SWS+3}], s{S['uo']+ct} offen sc1", "rs"))
            return it

        e_sig, e_ld, e_ck = shard_flag_jobs(F_EARLY, Y + 7, 0x104, 4)
        b_sig, b_ld, b_ck = shard_flag_jobs(F_B2, Y + 7, 0x108, 4)
        pi = Cfg.poll_it
        st.wait2(None, [("S", 0), ("P", 0)])
        a("s_barrier")
        stamp(3)
        for s in range(10):
            pre, post, extra = [], [], []
            if s == 0:
                pre = job_stats0()
            if s == 1:
                pre = job_stats_publish() + job_relay_store()
            if s == 2:
                post = dma2(1)
            if s == 3:
                post = dma2(2)
            if s == Cfg.sig_it - 1:
                extra = ["stat", "rs"]
            if s == Cfg.sig_it:
                pre = e_sig + b_sig
            if s == pi:
                pre, post = pre + e_ld, post + e_ck
            if s <= 1 and Cfg.dfirst:
                pre, post = [], pre + post
            if s == pi + 1:
                pre = pre + job_load_stats(qkv, Y)
            if s == min(8, pi + 2):
                post = post + job_publish_stats(qkv, Y)
            if s == 8:
                post = dma2(3) + dma2(4) + dma2(5) + post
            if s == 9:
                pre, post = pre + b_ld, dma2(6) + dma2(7) + ([] if qkv else dma2(8)) + b_ck
                extra = [("P", k) for k in range(1, 6)] + ["bias"]
            d = dma1(s + 2) if s + 2 <= 9 else []
            emit_all(st, pre + d[:3] + a_reads(s) + d[3:] + post)
            st.wait2(None, [("S", s + 1)] + extra)
            a("s_barrier")
            stamp(4 + s)
        if Cfg.prio2:
            a(f"s_setprio {Cfg.prio2}")
        bars = {} if qkv else {Cfg.hbar: [("P", k) for k in range(6, 10)]}
        pend = [] if qkv else dma2(9)
        if Cfg.touch:
            pend += group_scc(job_touch(LT + 46 if False else RLY))

        SV = SMALL + 10

        def arrive(w, vt):
            return [("wvm", vt), ("atomic", I("s_mov_b64 exec, 1") + [("ds", f"ds_add_u32 v{SV}, v{SV+1} offset:{w}", "ar")] + I("s_mov_b64 exec, -1"))]

        def peek(w):
            return [("ds", f"ds_read_b32 v{SV+2}, v{SV} offset:{w}", ("pk", w))]

        def check(w, err):
            def chk():
                a(f"ds_read_b32 v{SV+2}, v{SV} offset:{w}\ns_waitcnt lgkmcnt(0)\nv_readfirstlane_b32 s{S['t']}, v{SV+2}\ns_cmp_ge_u32 s{S['t']}, 4")
            return [("wds", [("pk", w)])] + I(f"v_readfirstlane_b32 s{S['t']}, v{SV+2}\ns_cmp_ge_u32 s{S['t']}, 4") + [("call", lambda: poll_slow(chk, err, sleep=0))]
        marks = {(3, 1): arrive(W_CQ, []), (4, 0): peek(W_CQ), (4, 1): check(W_CQ, 0x111) + dma2(8) + dma2(9),
                 (4, 2): arrive(W_L1, [("P", 6), ("P", 7)]), (5, 2): peek(W_L1), (5, 3): check(W_L1, 0x112),
                 (6, 3): arrive(W_L2, [("P", 8), ("P", 9)]), (7, 2): peek(W_L2), (7, 3): check(W_L2, 0x113)} if qkv else {}
        a(f"v_mov_b32 v{SV}, {SYN}\nv_mov_b32 v{SV+1}, 1")

        def reads2(s, ks):
            b = ks & 1
            out = I(f"v_add_u32 v{RB2}, {p2buf(s, qkv)}, v{RB20}") if ks == 0 else []
            for t in range(3):
                f = FB2 + 12 * b + 4 * t
                for i in range(2):
                    out.append(("ds", f"ds_read_b64_tr_b16 v[{f+2*i}:{f+2*i+1}], v{RB2} offset:{(4*ks+i)*P2 + t*256}", (t, s, ks)))
            return out
        emit_all(st, reads2(0, 0))
        if qkv:
            emit_all(st, pend)
            pend = []
            a("s_barrier")
        for s in range(10):
            if 2 <= s <= 5 and Cfg.pf_l:
                pend += [("atomic", p) for p in b_load(5 - s, BB + 20 * (5 - s))]
            if s == 7:
                pend += group_scc(job_build_ext(3, S["tp2"], LXE, LWE, LBIAS, LBX))
            for ks in range(4):
                last = ks == 3
                rd = reads2(s, ks + 1) if not last else (reads2(s + 1, 0) if s < 9 else [])
                bar = last and (s + 1) in bars
                g0 = 1 if bar else 0
                emit_all(st, marks.get((s, ks), []))
                for t in range(3):
                    if bar and t == g0:
                        st.wait2(None, bars[s + 1])
                        a("s_barrier")
                    fa, f, acc = ast(s) + 4 * ks, FB2 + 12 * (ks & 1) + 4 * t, ACC + 16 * t
                    st.wait("ds", [(t, s, ks)])
                    c = "0" if (s == 0 and ks == 0) else f"v[{acc}:{acc+15}]"
                    a(f"v_mfma_f32_32x32x16_bf16 v[{acc}:{acc+15}], v[{f}:{f+3}], v[{fa}:{fa+3}], {c}")
                    if t >= g0:
                        n = 3 - g0
                        emit_all(st, rd[(len(rd) * (t - g0)) // n:(len(rd) * (t - g0 + 1)) // n])
                    for _ in range(Cfg.fill):
                        if pend:
                            emit_item(st, pend.pop(0))
            if s in (4, 9):
                stamp(25 if s == 4 else 26)
        emit_all(st, pend)
        ext_mfma(3, LXE, LWE, True)
        st.wait2(None, ["tc"])
        a("s_setprio 0")
        return st

    def helper(ty):
        R = TY[ty]
        st = Stream(a)
        nt, qkv = R["nt"], R["qkv"]
        P1 = nt * 256
        X = T + 32
        after_kernarg()
        zero_init()
        relay_issue(st, X, RELAY)
        frag_addr_a(RA0, X)
        frag_addr_b_low(RB0, X)
        a(f"v_lshrrev_b32 v{X}, 5, v{l}\nv_mul_u32_u24 v{X}, {2*P1}, v{X}\nv_add3_u32 v{RB0}, v{RB0}, v{X}, v{Z}\nv_add_u32 v{RB0}, 16384, v{RB0}")
        p2_params()
        bias_setup(R, BIAS, nt, S["tp1"], False, st, X)
        if qkv:
            kv_addr_setup(X)
            scatter_setup(X)
        init_check()

        def addrs(s):
            sl = (s % 3) * SLOT
            return I(f"""
            v_add_u32 v{RA}, {sl}, v{RA0}
            v_add_u32 v{RB}, {sl}, v{RB0}
            v_xor_b32 v{RA+1}, 32, v{RA}
            v_xor_b32 v{RA+2}, 64, v{RA}
            v_xor_b32 v{RA+3}, 0x60, v{RA}
            """)

        def reads(s, ks):
            b = ks & 1
            out = [("ds", f"ds_read_b128 v[{FA+4*b}:{FA+4*b+3}], v{RA+ks}", ("A", s, ks))]
            for t in range(nt):
                f = FB + 20 * b + 4 * t
                for i in range(2):
                    out.append(("ds", f"ds_read_b64_tr_b16 v[{f+2*i}:{f+2*i+1}], v{RB} offset:{(4*ks+i)*P1 + t*256}", (t, s, ks)))
            return out
        emit_all(st, addrs(0))
        if Cfg.prio:
            a(f"s_setprio {Cfg.prio}")
        a("s_barrier")
        stamp(3)
        emit_all(st, reads(0, 0))
        pend = []
        for s in range(10):
            if s == 9:
                pend = group_scc(job_build_ext(nt, S["tp1"], XE, WE, BIAS, X))
            for ks in range(4):
                last = ks == 3
                rd = reads(s, ks + 1) if not last else (reads(s + 1, 0) if s < 9 else [])
                gaps = nt if not last else nt - Cfg.bpos
                for t in range(nt):
                    if last and t == Cfg.bpos:
                        st.wait2(None, ["rl", "bias"] if s == 0 else [])
                        a("s_barrier")
                    b = ks & 1
                    fa, f, acc = FA + 4 * b, FB + 20 * b + 4 * t, ACC + 16 * t
                    st.wait("ds", [("A", s, ks), (t, s, ks)])
                    x, y = (fa, f) if qkv else (f, fa)
                    c = "0" if (s == 0 and ks == 0) else f"v[{acc}:{acc+15}]"
                    a(f"v_mfma_f32_32x32x16_bf16 v[{acc}:{acc+15}], v[{x}:{x+3}], v[{y}:{y+3}], {c}")
                    g = t if not last else t - Cfg.bpos
                    if g >= 0:
                        emit_all(st, rd[(len(rd) * g) // gaps:(len(rd) * (g + 1)) // gaps])
                    if ks == 2 and t == nt - 1 and s < 9:
                        emit_all(st, addrs(s + 1))
                    for _ in range(Cfg.fill):
                        if pend:
                            emit_item(st, pend.pop(0))
            stamp(4 + s)
        emit_all(st, pend)
        ext_mfma(nt, XE, WE, not qkv)
        st.wait("ds", None)
        a("s_setprio 0")
        return st

    def hloop(ld):
        st = Stream(a)
        NT, stride, PITCH = 7, 3456, 7 * 256
        nt, t0 = (3, 4) if ld else (4, 0)
        hv = RegAlloc(RLD + 1, BB + 100)
        HDA, HDB, HRCS = hv.alloc("da"), hv.alloc("db", 7), hv.alloc("rcs")
        HRLY = HDA
        X = T + 32
        SQ, SM, ONE, CSA, CF = T + 20, T + 24, T + 28, T + 16, T
        a(f"s_mov_b32 s{S['tp1']}, {t0}")

        def dma(s_):
            if Cfg.x_nodma:
                return []
            slot = (s_ % 3) * HSLOT
            NTM = " nt" if (Cfg.wnt == 1 and s_ == 0) else ""
            A, B = [], []
            for m in range(4):
                A.append(I(f"s_add_u32 m0, s{S['ofA']}, {slot + m*4096}\ns_add_u32 s{S['so']}, s{S['soA']}, {m*32*1280}") +
                         [("vm", f"buffer_load_dwordx4 v{HDA}, s[{SX}:{SX+3}], s{S['so']} offen lds", ("S", s_))])
            for i in range(7):
                B.append(I(f"s_add_u32 m0, s{S['ofB']}, {slot + i*1024}") +
                         [("vm", f"buffer_load_dwordx4 v{HDB+i}, s[{SW}:{SW+3}], s{S['soB']} offen{NTM} lds", ("S", s_))])
            res = []
            while A or B:
                if B: res.append(B.pop(0))
                if A: res.append(A.pop(0))
                if B: res.append(B.pop(0))
            if s_ > 0:
                res[0] = I(f"""
                s_add_u32 s{S['soA']}, s{S['soA']}, 128
                s_add_u32 s{S['soB']}, s{S['soB']}, {64*stride}
                s_cmp_eq_u32 s{S['soA']}, 1280
                s_cselect_b32 s{S['soA']}, 0, s{S['soA']}
                s_cselect_b32 s{S['soB']}, 0, s{S['soB']}
                """) + res[0]
            return [("atomic", p) for p in res]

        def setup():
            frag_addr_a(RA0, X)
            frag_addr_b_low(RB0, X)
            a(f"""
            v_lshrrev_b32 v{X}, 5, v{l}
            v_mul_u32_u24 v{X}, {2*PITCH}, v{X}
            v_add_u32 v{X}, v{X}, v{RB0}
            v_add_u32 v{RB0}, {16384 + t0*256}, v{X}
            s_min_u32 s{S['t']}, s{S['w']}, 6
            s_lshl_b32 s{S['t']}, s{S['t']}, 8
            s_add_u32 s{S['t']}, s{S['t']}, 16384
            v_add_u32 v{HRCS}, s{S['t']}, v{X}
            v_mov_b32 v{ONE}, 0x3f803f80
            v_mov_b32 v{ONE+1}, 0x3f803f80
            s_mov_b32 s{S['m1']}, 0x00020001
            s_mov_b32 s{S['m1']+1}, 0x00020001
            """)
            for k in range(4):
                a(f"v_cndmask_b32 v{XE+k}, 0, v{ONE}, s[{S['m1']}:{S['m1']+1}]")
            p2_params()
            bias_setup(TY[1], BIAS, nt, S["tp1"], False, st, X)

        if ld:
            a(f"""
            v_lshrrev_b32 v{T}, 3, v{l}
            s_lshl_b32 s{S['t']}, s{S['rg']}, 3
            s_lshl_b32 s{S['t1']}, s{S['rb']}, 7
            s_add_u32 s{S['t']}, s{S['t']}, s{S['t1']}
            v_add_u32 v{T}, s{S['t']}, v{T}
            v_mul_u32_u24 v{HDA}, 1280, v{T}
            v_lshrrev_b32 v{T}, 1, v{T}
            v_xor_b32 v{T}, v{T}, v{l}
            v_and_b32 v{T}, 7, v{T}
            v_lshl_add_u32 v{HDA}, v{T}, 4, v{HDA}
            s_lshl_b32 s{S['ofA']}, s{S['rg']}, 10
            v_bfe_u32 v{T}, v{l}, 2, 2
            v_lshrrev_b32 v{T+1}, 4, v{l}
            v_and_b32 v{T+5}, 3, v{l}
            s_lshl_b32 s{S['t']}, s{S['j']}, 1
            s_add_u32 s{S['t']}, s{S['t']}, s{S['typ']}
            s_add_u32 s{S['t']}, s{S['t']}, s{S['rb']}
            s_mul_i32 s{S['t1']}, s{S['t']}, 26
            s_lshr_b32 s{S['t1']}, s{S['t1']}, 8
            s_mul_i32 s{S['t1']}, s{S['t1']}, 10
            s_sub_u32 s{S['t']}, s{S['t']}, s{S['t1']}
            s_lshl_b32 s{S['soA']}, s{S['t']}, 7
            s_mul_i32 s{S['soB']}, s{S['t']}, {64*stride}
            s_mul_i32 s{S['ofB']}, s{S['rg']}, 7168
            s_add_u32 s{S['ofB']}, s{S['ofB']}, 16384
            s_lshl_b32 s{S['t']}, s{S['rg']}, 4
            v_add_u32 v{T}, s{S['t']}, v{T}
            v_mul_u32_u24 v{T}, 3456, v{T}
            v_lshl_add_u32 v{T}, v{T+5}, 4, v{T}
            s_lshl_b32 s{S['t']}, s{S['col0']}, 1
            v_add_u32 v{T}, s{S['t']}, v{T}
            s_mov_b32 s{S['t']}, {4*3456 - 448}
            """)
            for i in range(7):
                a(f"""
                v_add_u32 v{T+5}, {4*i}, v{T+1}
                v_mul_u32_u24 v{T+6}, 37, v{T+5}
                v_lshrrev_b32 v{T+6}, 8, v{T+6}
                v_mad_u32_u24 v{T+6}, v{T+6}, s{S['t']}, v{T}
                v_lshl_add_u32 v{HDB+i}, v{T+5}, 6, v{T+6}
                """)
            after_kernarg()
            srd(SW, 12, 640 * stride)
            d0 = dma(0)
            emit_all(st, d0[:5])
            setup()
            emit_all(st, d0[5:])
            stamp(1)
            a("s_barrier")
            emit_all(st, dma(1))
            stamp(2)
        else:
            after_kernarg()
            zero_init()
            relay_issue(st, X, HRELAY)
            for ct in range(4):
                a(f"""
                s_lshl_b32 s{S['t']}, s{S['t1']}, 2
                s_add_u32 s{S['t']}, s{S['t']}, {ct}
                s_mul_i32 s{JT}, s{S['t']}, 52
                s_lshr_b32 s{JT}, s{JT}, 8
                s_mul_i32 s{JT}, s{JT}, {B2_C - 5*1024}
                s_lshl_b32 s{S['t']}, s{S['t']}, 10
                s_add_u32 s{S['t']}, s{S['t']}, s{JT}
                s_mul_i32 s{JT}, s{S['t2']}, 5120
                s_add_u32 s{S['t']}, s{S['t']}, s{JT}
                s_add_u32 s{S['t']}, s{S['t']}, {B2_OFF}
                s_cmp_lt_u32 s{S['t3']}, 740
                s_cselect_b32 s{S['uo']+ct}, s{S['t']}, {OOB}
                """)
            a(f"""
            v_lshrrev_b32 v{X}, 5, v{l}
            v_lshlrev_b32 v{X}, 4, v{X}
            v_bfe_u32 v{X+1}, v{l}, 4, 1
            v_lshl_add_u32 v{X}, v{X+1}, 2, v{X}
            v_bfe_u32 v{X+1}, v{l}, 2, 2
            v_add_u32 v{X}, v{X}, v{X+1}
            v_lshlrev_b32 v{X}, 7, v{X}
            v_and_b32 v{X+1}, 3, v{l}
            v_lshl_add_u32 v{X}, v{X+1}, 3, v{X}
            v_add_u32 v{HRLY}, s{S['rls']}, v{X}
            """)
            setup()
            init_check()

        def job_colsum():
            it = []
            for ks in range(4):
                for i in range(2):
                    it.append(("ds", f"ds_read_b64_tr_b16 v[{CF+4*ks+2*i}:{CF+4*ks+2*i+1}], v{HRCS} offset:{(4*ks+i)*PITCH}", ("cs", ks)))
            for ks in range(4):
                it.append(("wds", [("cs", ks)]))
                c = "0" if ks == 0 else f"v[{CSA}:{CSA+3}]"
                it += I(f"v_mfma_f32_16x16x32_bf16 v[{CSA}:{CSA+3}], v[{XE}:{XE+3}], v[{CF+4*ks}:{CF+4*ks+3}], {c}")
            return it

        def job_publish():
            it = I(f"""
            s_lshl_b32 s{JT}, s{S['w']}, 5
            v_add_u32 v{X}, s{JT}, v{l}
            v_permlane16_swap_b32 v{CSA}, v{CSA+1}
            s_mov_b32 s{S['m2']}, -1
            s_mov_b32 s{S['m2']+1}, 0
            s_lshl_b32 s{JT}, s{S['col0']}, 2
            s_add_u32 s{JT}, s{JT}, {CS_OFF + 1920*4}
            s_lshl_b32 s{JT1}, s{S['j']}, 3
            s_add_u32 s{JT1}, s{JT1}, s{S['w']}
            s_sub_u32 s{JT1}, s{JT1}, 56
            s_cmp_lt_u32 s{JT1}, 2
            s_cselect_b32 s{JT}, {OOB}, s{JT}
            s_cmp_eq_u32 s{S['w']}, 7
            s_cselect_b32 s{JT}, {OOB}, s{JT}
            s_cmp_ge_u32 s{S['rb']}, 10
            s_cselect_b32 s{JT}, {OOB}, s{JT}
            v_lshlrev_b32 v{X}, 2, v{X}
            v_mov_b32 v{X+1}, {OOB}
            v_cndmask_b32 v{X}, v{X+1}, v{X}, s[{S['m2']}:{S['m2']+1}]
            """)
            it.append(("vm", f"buffer_atomic_add_f32 v{CSA}, v{X}, s[{SWS}:{SWS+3}], s{JT} offen", "stat"))
            if not ld:
                it += row_publish(SQ, SM, X)
            return it

        def job_relay_store():
            it = [("wvm", ["rl"])]
            for ct in range(4):
                it.append(("ds", f"ds_read_b64_tr_b16 v[{T+4*ct}:{T+4*ct+1}], v{HRLY} offset:{ct*32}", ("rl", ct)))
                it.append(("ds", f"ds_read_b64_tr_b16 v[{T+4*ct+2}:{T+4*ct+3}], v{HRLY} offset:{ct*32 + 1024}", ("rl", ct)))
            for ct in range(4):
                it.append(("wds", [("rl", ct)]))
                it.append(("vm", f"buffer_store_dwordx4 v[{T+4*ct}:{T+4*ct+3}], v{L16}, s[{SWS}:{SWS+3}], s{S['uo']+ct} offen sc1", "rs"))
            return it

        e_sig, e_ld, e_ck = shard_flag_jobs(F_EARLY, T + 46, 0x104, 0, 16)
        b_sig, _, _ = shard_flag_jobs(F_B2, T + 46, 0x108, 0)
        pi = Cfg.hpoll
        J = [(0, 0, 0, job_colsum()), (1, 0, 1, job_publish())]
        if not ld:
            J.append((Cfg.rs_it, 2 if Cfg.rs_it == 0 else 1, Cfg.rs_it, job_relay_store()))
            J.append((Cfg.hsig - 1, 2, Cfg.hsig - 1, [("wvm", None)]))
            J.append((Cfg.hsig, 0, Cfg.hsig, e_sig + b_sig))
            J.append((pi, 0, pi, e_ld))
            J.append((pi, 2, pi, e_ck))
            J.append((pi + 1, 0, pi + 1, job_load_stats(False, T + 38)))
            J.append((8, 2 if pi == 7 else 0, 8, job_publish_stats(False, T + 38)))
            if Cfg.touch:
                J.append((max(Cfg.touch_it, pi + 1), 1, 10, job_touch(T + 46)))
        if ld and Cfg.early_lds:
            J.append((9, 0, 10, [("atomic", p) for p in b_prefetch_lds()]))
        J.append((9, 0, 10, job_build_ext(nt, S["tp1"], XE, WE, BIAS, X)))
        J.sort(key=lambda x: (x[0], x[1]))
        pend = []

        def drain(n=None, deadline=None):
            k = 0
            while pend and (n is None or k < n):
                if deadline is not None and not any(p[0] <= deadline for p in pend):
                    break
                emit_item(st, pend.pop(0)[1])
                k += 1

        def addrs(s_):
            sl = (s_ % 3) * HSLOT
            return I(f"""
            v_add_u32 v{RA}, {sl}, v{RA0}
            v_add_u32 v{RB}, {sl}, v{RB0}
            v_xor_b32 v{RA+1}, 32, v{RA}
            v_xor_b32 v{RA+2}, 64, v{RA}
            v_xor_b32 v{RA+3}, 0x60, v{RA}
            """)

        def reads(s_, ks):
            b = ks & 1
            out = [("ds", f"ds_read_b128 v[{FA+4*b}:{FA+4*b+3}], v{RA+ks}", ("A", s_, ks))]
            for t in range(nt):
                f = FB + 20 * b + 4 * t
                for i in range(2):
                    out.append(("ds", f"ds_read_b64_tr_b16 v[{f+2*i}:{f+2*i+1}], v{RB} offset:{(4*ks+i)*PITCH + t*256}", (t, s_, ks)))
            return out

        emit_all(st, addrs(0))
        if ld:
            st.wait("vm", [("S", 0)])
            if Cfg.hprio:
                a("s_setprio 1")
        a("s_barrier")
        stamp(3)
        emit_all(st, reads(0, 0))
        dq = dma(2) if ld else []
        gaps_left = 3 * nt + Cfg.bpos
        for s_ in range(10):
            for ks in range(4):
                while J and (J[0][0], J[0][1]) <= (s_, ks):
                    jb = J.pop(0)
                    pend.extend([jb[2], x] for x in group_scc(jb[3]))
                last = ks == 3
                rd = reads(s_, ks + 1) if not last else (reads(s_ + 1, 0) if s_ < 9 else [])
                gaps = nt if not last else nt - Cfg.bpos
                for t in range(nt):
                    if last and t == Cfg.bpos:
                        drain(deadline=s_)
                        assert not dq
                        st.wait2(None, [("S", s_ + 1)] + (["stat"] if s_ == Cfg.hsig - 1 else []) if ld else [])
                        a("s_barrier")
                        if ld:
                            dq = dma(s_ + 3) if s_ + 3 <= 9 else []
                            gaps_left = 4 * nt
                            if Cfg.hprio and s_ == 7:
                                a("s_setprio 0")
                    b = ks & 1
                    fa, f, acc = FA + 4 * b, FB + 20 * b + 4 * t, ACC + 16 * t
                    st.wait("ds", [("A", s_, ks), (t, s_, ks)])
                    c = "0" if (s_ == 0 and ks == 0) else f"v[{acc}:{acc+15}]"
                    a(f"v_mfma_f32_32x32x16_bf16 v[{acc}:{acc+15}], v[{f}:{f+3}], v[{fa}:{fa+3}], {c}")
                    if s_ == 0 and not ld and t < 2:
                        c1 = "0" if (ks == 0 and t == 0) else f"v[{SQ}:{SQ+3}]"
                        c2 = "0" if (ks == 0 and t == 0) else f"v[{SM}:{SM+3}]"
                        a(f"v_mfma_f32_4x4x4_16b_bf16 v[{SQ}:{SQ+3}], v[{fa+2*t}:{fa+2*t+1}], v[{fa+2*t}:{fa+2*t+1}], {c1}")
                        a(f"v_mfma_f32_4x4x4_16b_bf16 v[{SM}:{SM+3}], v[{ONE}:{ONE+1}], v[{fa+2*t}:{fa+2*t+1}], {c2}")
                    g = t if not last else t - Cfg.bpos
                    if g >= 0:
                        emit_all(st, rd[(len(rd) * g) // gaps:(len(rd) * (g + 1)) // gaps])
                    if dq:
                        k = -(-len(dq) // max(1, gaps_left - Cfg.bpos))
                        for _ in range(min(k, len(dq))):
                            emit_item(st, dq.pop(0))
                    gaps_left -= 1
                    if ks == 2 and t == nt - 1 and s_ < 9:
                        emit_all(st, addrs(s_ + 1))
                    drain(Cfg.hfill)
            stamp(4 + s_)
        drain()
        ext_mfma(nt, XE, WE, True)
        st.wait2(None, ["tc", "bias"])
        return st

    def kv_addr_setup(X):
        a(f"v_mov_b32 v{X+8}, {CDUM}")
        for h in range(2):
            a(f"""
            s_add_u32 s{JT}, s{S['rg']}, {4*h}
            s_lshl_b32 s{S['t']}, s{JT}, 2
            s_lshr_b32 s{S['t1']}, 0x21021100, s{S['t']}
            s_and_b32 s{S['t1']}, s{S['t1']}, 15
            s_lshr_b32 s{S['t2']}, 0x00044332, s{S['t']}
            s_and_b32 s{S['t2']}, s{S['t2']}, 15
            v_and_b32 v{X}, 31, v{l}
            s_lshl_b32 s{S['t3']}, s{S['t2']}, 5
            s_sub_u32 s{S['t3']}, s{S['t3']}, 80
            v_add_u32 v{X+1}, s{S['t3']}, v{X}
            v_mul_u32_u24 v{X+2}, 3277, v{X+1}
            v_lshrrev_b32 v{X+2}, 16, v{X+2}
            v_mul_u32_u24 v{X+3}, 20, v{X+2}
            v_sub_u32 v{X+3}, v{X+1}, v{X+3}
            v_cmp_gt_u32 vcc, 80, v{X+1}
            v_cmp_eq_u32 s[{S['ex']}:{S['ex']+1}], 0, v{X}
            s_cmp_ge_u32 s{JT}, 5
            s_cselect_b64 s[{S['m1']}:{S['m1']+1}], s[{S['ex']}:{S['ex']+1}], vcc
            s_cselect_b64 s[{S['ex']}:{S['ex']+1}], -1, 0
            v_cndmask_b32 v{X+3}, v{X+3}, 20, s[{S['ex']}:{S['ex']+1}]
            v_lshlrev_b32 v{X+3}, 2, v{X+3}
            v_add_u32 v{X+3}, {CMP}, v{X+3}
            v_lshrrev_b32 v{X+4}, 5, v{l}
            v_lshlrev_b32 v{X+4}, 2, v{X+4}
            s_lshl_b32 s{S['t3']}, s{S['t1']}, 5
            v_add_u32 v{X+4}, s{S['t3']}, v{X+4}
            s_movk_i32 s{S['t3']}, 84
            """)
            for qd in range(4):
                a(f"""
                v_add_u32 v{X+5}, {8*qd}, v{X+4}
                v_mul_u32_u24 v{X+6}, 3277, v{X+5}
                v_lshrrev_b32 v{X+6}, 16, v{X+6}
                v_mad_u32_u24 v{X+7}, v{X+5}, s{S['t3']}, v{X+3}
                v_cmp_eq_u32 vcc, v{X+6}, v{X+2}
                s_or_b64 vcc, vcc, s[{S['ex']}:{S['ex']+1}]
                s_and_b64 s[{S['m2']}:{S['m2']+1}], vcc, s[{S['m1']}:{S['m1']+1}]
                v_cmp_gt_u32 vcc, 80, v{X+5}
                s_and_b64 vcc, vcc, s[{S['m2']}:{S['m2']+1}]
                v_cndmask_b32 v{CMPA+4*h+qd}, v{X+8}, v{X+7}, vcc
                """)
            a(f"s_lshl_b32 s{S['pa']+2*h}, s{S['t1']}, 11\ns_lshl_b32 s{S['pa']+2*h+1}, s{S['t2']}, 11")

    def scatter_setup(X):
        for i in range(7):
            a(f"""
            v_add_u32 v{X}, {256*i}, v0
            v_mul_u32_u24 v{X+1}, 3121, v{X}
            v_lshrrev_b32 v{X+1}, 16, v{X+1}
            v_mul_u32_u24 v{X+2}, 21, v{X+1}
            v_sub_u32 v{X+2}, v{X}, v{X+2}
            v_mul_u32_u24 v{X+3}, 3277, v{X+1}
            v_lshrrev_b32 v{X+3}, 16, v{X+3}
            v_mad_u32_u24 v{X+4}, v{X+3}, 20, v{X+2}
            v_lshrrev_b32 v{X+5}, 5, v{X+4}
            v_lshlrev_b32 v{X+5}, 1, v{X+5}
            v_and_b32 v{X+4}, 31, v{X+4}
            v_cmp_eq_u32 vcc, 20, v{X+2}
            v_cndmask_b32 v{X+5}, v{X+5}, 9, vcc
            v_cndmask_b32 v{X+4}, v{X+4}, v{X+3}, vcc
            v_lshrrev_b32 v{X+6}, 4, v{X+1}
            v_add_u32 v{X+5}, v{X+5}, v{X+6}
            v_mov_b32 v{X+6}, {FRGA}
            v_mov_b32 v{X+7}, {FRGB - 5*1024}
            v_cmp_le_u32 vcc, 5, v{X+5}
            v_cndmask_b32 v{X+6}, v{X+6}, v{X+7}, vcc
            v_mov_b32 v{X+7}, {FRGC - 9*1024}
            v_cmp_le_u32 vcc, 9, v{X+5}
            v_cndmask_b32 v{X+6}, v{X+6}, v{X+7}, vcc
            v_lshl_add_u32 v{X+5}, v{X+5}, 10, v{X+6}
            v_bfe_u32 v{X+6}, v{X+1}, 2, 1
            v_lshl_add_u32 v{X+4}, v{X+6}, 5, v{X+4}
            v_lshl_add_u32 v{X+5}, v{X+4}, 4, v{X+5}
            v_bfe_u32 v{X+6}, v{X+1}, 3, 1
            v_and_b32 v{X+4}, 3, v{X+1}
            v_lshl_add_u32 v{X+4}, v{X+6}, 2, v{X+4}
            v_lshl_add_u32 v{X+5}, v{X+4}, 1, v{X+5}
            v_mov_b32 v{X+6}, {SDUM}
            v_cmp_gt_u32 vcc, 1680, v{X}
            v_cndmask_b32 v{SCA+i}, v{X+6}, v{X+5}, vcc
            """)

    def step_off(i, dst, base, mul):
        n, r, s0, k = (S["nH"], S["rH"], S["sH"], i) if i < 7 else (S["nO"], S["rO"], S["sO"], i - 7)
        it = f"""
        s_add_u32 s{dst}, s{r}, {k}
        s_cmp_ge_u32 s{dst}, s{n}
        s_cselect_b32 s{S['pc']}, s{n}, 0
        s_sub_u32 s{dst}, s{dst}, s{S['pc']}
        s_add_u32 s{dst}, s{dst}, s{s0}
        s_mul_i32 s{dst}, s{dst}, {mul}
        s_add_u32 s{dst}, s{dst}, s{base}
        """
        if i in (6, 9):
            it += f"s_cmp_gt_u32 s{n}, {k}\ns_cselect_b32 s{dst}, s{dst}, {OOB}"
        return I(it)

    def b_load(i, reg):
        pcs = []
        for ct in range(5):
            pre = step_off(i, JT, S["p2B"], 5120) if ct == 0 else (I(f"s_add_u32 s{JT}, s{JT}, 4096") if ct == 4 else [])
            pcs.append(pre + [("vm", f"buffer_load_dwordx4 v[{reg+4*ct}:{reg+4*ct+3}], v{L16}, s[{SWS}:{SWS+3}], s{JT} offen offset:{(ct&3)*1024} sc1", ("B", i))])
        return pcs

    def b_prefetch_regs(first=0):
        pcs = []
        for i in range(first, 5):
            pcs += b_load(i, BB + 20 * i)
        return pcs

    def b_prefetch_lds():
        pcs = []
        for i in (7, 8, 9):
            for ct in range(5):
                pre = step_off(i, JT, S["p2B"], 5120) + I(f"s_mul_i32 s{JT1}, s{S['w']}, {PW}") if ct == 0 else I(f"s_add_u32 s{JT}, s{JT}, 1024")
                pcs.append(pre + I(f"s_add_u32 m0, s{JT1}, {(i-7)*5120 + ct*1024}") +
                           [("vm", f"buffer_load_dwordx4 v{L16}, s[{SWS}:{SWS+3}], s{JT} offen sc1 lds", ("B", i))])
        return pcs

    def a2_addr(dst):
        a(f"""
        s_lshl_b32 s{S['t']}, s{S['rb']}, 1
        s_lshr_b32 s{S['t1']}, s{S['rg']}, 1
        s_add_u32 s{S['t']}, s{S['t']}, s{S['t1']}
        s_mul_i32 s{S['t']}, s{S['t']}, {A2_RB}
        s_and_b32 s{S['t1']}, s{S['rg']}, 1
        s_lshl_b32 s{S['t1']}, s{S['t1']}, 11
        s_add_u32 s{S['t']}, s{S['t']}, s{S['t1']}
        v_bfe_u32 v{dst}, v{l}, 4, 1
        v_lshlrev_b32 v{dst}, 10, v{dst}
        v_lshrrev_b32 v{dst+1}, 5, v{l}
        v_lshl_add_u32 v{dst}, v{dst+1}, 8, v{dst}
        v_and_b32 v{dst+1}, 15, v{l}
        v_lshl_add_u32 v{dst}, v{dst+1}, 4, v{dst}
        v_add_u32 v{dst}, s{S['t']}, v{dst}
        """)

    def signal(flag, idx_reg):
        a(f"""
        s_add_u32 s{S['t']}, s{idx_reg}, {flag}
        s_lshl_b32 s{S['t']}, s{S['t']}, 7
        v_mov_b32 v{T+46}, s{S['t']}
        v_mov_b32 v{T+47}, 1
        s_cmp_eq_u32 s{S['w']}, 0
        s_cselect_b32 exec_lo, 1, 0
        s_mov_b32 exec_hi, 0
        global_atomic_add v{T+46}, v{T+47}, s[{S['fl']}:{S['fl']+1}]
        s_mov_b64 exec, -1
        """)

    def lds_add(off):
        a(f"v_mov_b32 v{RS}, {SYN}\nv_mov_b32 v{IRS}, 1\ns_mov_b64 exec, 1\nds_add_u32 v{RS}, v{IRS} offset:{off}\ns_mov_b64 exec, -1")

    def lds_wait(off, target, err, tmp):
        def chk():
            a(f"ds_read_b32 v{tmp+1}, v{tmp} offset:{off}\ns_waitcnt lgkmcnt(0)\nv_readfirstlane_b32 s{S['t']}, v{tmp+1}\ns_cmp_ge_u32 s{S['t']}, {target}")
        a(f"v_mov_b32 v{tmp}, {SYN}")
        chk()
        poll_slow(chk, err, sleep=1)

    def wait_flag(st, flag, target, err, line_expr, who=0, then=None):
        skip = a.newlabel("WF")

        def chk():
            a(f"""
            global_load_dword v{IRS}, v{RS}, s[{S['fl']}:{S['fl']+1}] sc1
            s_waitcnt vmcnt(0)
            v_readfirstlane_b32 s{S['t']}, v{IRS}
            s_cmp_ge_u32 s{S['t']}, {target}
            """)
        a(f"""
        s_cmp_lg_u32 s{S['w']}, {who}
        s_cbranch_scc1 {skip}
        {line_expr}
        s_add_u32 s{S['t']}, s{S['t']}, {flag}
        s_lshl_b32 s{S['t']}, s{S['t']}, 7
        v_mov_b32 v{RS}, s{S['t']}
        s_mov_b64 exec, 1
        """)
        chk()
        poll_slow(chk, err, sleep=4)
        a("s_mov_b64 exec, -1")
        if then is not None:
            lds_add(then)
        a.label(skip)

    def emit_pcs(st, pcs):
        for p in pcs:
            emit_all(st, p)

    def h_epilogue(nt, tp, st, first, lds_done=False):
        C = T + 12
        a(f"""
        v_mul_f32 v{C}, {hx(GC1)}, v{RS}
        v_mul_f32 v{C+2}, v{RS}, v{RS}
        v_mul_f32 v{C+2}, v{C+2}, v{RS}
        v_mul_f32 v{C+2}, {hx(GC2)}, v{C+2}
        v_mov_b32 v{C+4}, v{IRS}
        """)
        AD = T + 18
        a2_addr(AD)
        a(f"s_lshl_b32 s{S['t']}, s{S['col0']}, 7\ns_lshl_b32 s{S['t1']}, s{tp}, 12\ns_add_u32 s{S['t']}, s{S['t']}, s{S['t1']}")
        pf = b_prefetch_regs(4 if (Cfg.hpass == 2 and not first and Cfg.pf_l) else 0)
        W0 = T + 20
        pk = Cfg.gelu_pk0 if first else 1
        if nt == 3 and Cfg.eprio:
            a(f"s_setprio {Cfg.eprio}")
        for t in range(nt):
            acc = ACC + 16 * t
            for c in range(2):
                o = T + 32 + 4 * ((2 * t + c) % 3)
                ps = [acc + 8 * c + 2 * k for k in range(4)]
                ws = [W0 + 2 * k for k in range(4)]
                seq = []
                if pk:
                    seq.append([f"v_pk_mul_f32 v[{w}:{w+1}], v[{p}:{p+1}], v[{p}:{p+1}]" for p, w in zip(ps, ws)])
                    seq.append([f"v_pk_fma_f32 v[{w}:{w+1}], v[{w}:{w+1}], v[{C+2}:{C+3}], v[{C}:{C+1}] op_sel_hi:[1,0,0]" for w in ws])
                    seq.append([f"v_pk_mul_f32 v[{w}:{w+1}], v[{w}:{w+1}], v[{p}:{p+1}]" for p, w in zip(ps, ws)])
                else:
                    seq.append([f"v_mul_f32 v{w+k}, v{p+k}, v{p+k}" for p, w in zip(ps, ws) for k in range(2)])
                    seq.append([f"v_fma_f32 v{w+k}, v{w+k}, v{C+2}, v{C}" for w in ws for k in range(2)])
                    seq.append([f"v_mul_f32 v{w+k}, v{w+k}, v{p+k}" for p, w in zip(ps, ws) for k in range(2)])
                seq.append([f"v_exp_f32 v{w+k}, v{w+k}" for w in ws for k in range(2)])
                if pk:
                    seq.append([f"v_pk_fma_f32 v[{w}:{w+1}], v[{w}:{w+1}], v[{C+4}:{C+5}], v[{C+4}:{C+5}] op_sel_hi:[1,0,0]" for w in ws])
                else:
                    seq.append([f"v_fma_f32 v{w+k}, v{w+k}, v{C+4}, v{C+4}" for w in ws for k in range(2)])
                seq.append([f"v_rcp_f32 v{w+k}, v{w+k}" for w in ws for k in range(2)])
                if pk:
                    seq.append([f"v_pk_mul_f32 v[{w}:{w+1}], v[{w}:{w+1}], v[{p}:{p+1}]" for p, w in zip(ps, ws)])
                else:
                    seq.append([f"v_mul_f32 v{w+k}, v{w+k}, v{p+k}" for p, w in zip(ps, ws) for k in range(2)])
                seq.append([f"v_cvt_pk_bf16_f32 v{o+k}, v{w}, v{w+1}" for k, w in enumerate(ws)])
                for gi, grp in enumerate(seq):
                    for x in grp:
                        a(x)
                    if not first and gi in (1, 3, 5, 2, 4)[:Cfg.pf_h] and pf:
                        emit_all(st, pf.pop(0))
                st.emit(("vm", f"buffer_store_dwordx4 v[{o}:{o+3}], v{AD}, s[{SWS}:{SWS+3}], s{S['t']} offen offset:{c*512} sc1", "hst"))
                if first and 2 * t + c + 1 == Cfg.hbar_chunk:
                    a("s_barrier")
            a(f"s_add_u32 s{S['t']}, s{S['t']}, 4096")
        stamp(14)
        if first:
            emit_pcs(st, pf)
            pf = []
        st.wait("vm", ["hst"])
        stamp(15)
        a("s_setprio 0\ns_barrier")
        signal(F_H, S["rb"])
        emit_pcs(st, pf + ([] if lds_done else b_prefetch_lds()))

    st = loader(0)
    if Cfg.cprio:
        a("s_setprio 3")
    a(f"s_mov_b64 exec, 1\nds_add_u32 v{SMALL+10}, v{SMALL+11} offset:{W_P2}\ns_mov_b64 exec, -1")
    stamp(15)
    PQ = ACC + 48
    a(f"v_mul_f32 v{T+44}, {hx(LOG2E)}, v{RS}\nv_mul_f32 v{T+45}, {hx(EPS6)}, v{IRS}")
    for f in range(5):
        base = ACC + 8 * f
        for k in range(4):
            a(f"v_pk_mul_f32 v[{T+2*k}:{T+2*k+1}], v[{base+2*k}:{base+2*k+1}], v[{T+44}:{T+45}] op_sel_hi:[1,0]")
        for k in range(8):
            a(f"v_exp_f32 v{T+k}, v{T+k} clamp")
        for k in range(8):
            a(f"v_max_f32 v{base+k}, v{base+k}, v{T+45}")
        for k in range(4):
            a(f"v_pk_fma_f32 v[{T+2*k}:{T+2*k+1}], v[{base+2*k}:{base+2*k+1}], v[{RS}:{RS+1}], v[{T+2*k}:{T+2*k+1}] op_sel_hi:[1,0,1]")
        for k in range(4):
            a(f"v_cvt_pk_bf16_f32 v{PQ+4*f+k}, v{T+2*k}, v{T+2*k+1}")
    AD = T + 44
    a2_addr(AD)
    a(f"v_add_u32 v{T+46}, {FRGB}, v{L16}\nv_add_u32 v{T+47}, {FRGC}, v{L16}")
    stamp(16)
    lds_wait(W_SC, 4, 0x10a, RS)
    stamp(17)
    NUM, DEN = ACC, T + 28
    prods = [(9 + ks, ks, DEN) for ks in range(5)] + [(ks + 2 * Tt, ks, NUM + 16 * Tt) for Tt, kss in ((0, (0, 1, 2)), (1, (1, 2, 3, 4)), (2, (3, 4))) for ks in kss]
    FRS = [T + 4 * i for i in range(7)] + [ACC + 68 + 4 * i for i in range(3)]

    def frd(i):
        fi = prods[i][0]
        r = FRS[i % 10]
        src, b0 = (L16, 0) if fi < 5 else ((T + 46, FRGB) if fi < 9 else (T + 47, FRGC))
        st.emit(("ds", f"ds_read_b128 v[{r}:{r+3}], v{src} offset:{frg(fi)-b0}", ("f", i)))
    for i in range(10):
        frd(i)
    seen = set()
    for i, (fi, ks, D) in enumerate(prods):
        st.wait("ds", [("f", i)])
        c = f"v[{D}:{D+15}]" if D in seen else "0"
        seen.add(D)
        r = FRS[i % 10]
        a(f"v_mfma_f32_32x32x16_bf16 v[{D}:{D+15}], v[{r}:{r+3}], v[{PQ+4*ks}:{PQ+4*ks+3}], {c}")
        if i + 10 < 14:
            frd(i + 10)
        if i == 8:
            for h in range(4):
                a(f"v_add_f32 v{DEN+h}, {hx(1e-6)}, v{DEN+h}")
            for h in range(4):
                a(f"v_rcp_f32 v{DEN+h}, v{DEN+h}")
    a(f"""
    s_mov_b32 s{S['m1']}, 0
    s_mov_b32 s{S['m1']+1}, -1
    v_cndmask_b32 v{DEN+4}, v{DEN}, v{DEN+1}, s[{S['m1']}:{S['m1']+1}]
    v_cndmask_b32 v{DEN+5}, v{DEN+2}, v{DEN+3}, s[{S['m1']}:{S['m1']+1}]
    s_mul_i32 s{S['t2']}, s{S['j']}, 5
    """)
    for p2 in range(5):
        for k in range(8):
            qd = 2 * p2 + (k >> 2)
            h0, h1 = (2 * qd) // 5, (2 * qd + 1) // 5
            dr = DEN + h0 if h0 == h1 else (DEN + 4 if h0 == 0 else DEN + 5)
            a(f"v_mul_f32 v{NUM+8*p2+k}, v{NUM+8*p2+k}, v{dr}")
        o = T + 4 * p2
        a(f"""
        s_add_u32 s{S['t']}, s{S['t2']}, {p2}
        s_lshr_b32 s{S['t1']}, s{S['t']}, 1
        s_lshl_b32 s{S['t1']}, s{S['t1']}, 12
        s_and_b32 s{S['t']}, s{S['t']}, 1
        s_lshl_b32 s{S['t']}, s{S['t']}, 9
        s_add_u32 s{S['t']}, s{S['t']}, s{S['t1']}
        s_add_u32 s{S['t']}, s{S['t']}, {54*4096}
        """)
        for k in range(4):
            a(f"v_cvt_pk_bf16_f32 v{o+k}, v{NUM+8*p2+2*k}, v{NUM+8*p2+2*k+1}")
        a(f"buffer_store_dwordx4 v[{o}:{o+3}], v{AD}, s[{SWS}:{SWS+3}], s{S['t']} offen sc1")
    stamp(18)
    a(f"""
    s_add_u32 s{S['t']}, s{S['rb']}, {F_O}
    s_lshl_b32 s{S['t']}, s{S['t']}, 7
    v_mov_b32 v{RS}, s{S['t']}
    v_mov_b32 v{IRS}, 1
    s_waitcnt vmcnt(0)
    s_mov_b64 exec, 1
    global_atomic_add v{RS}, v{IRS}, s[{S['fl']}:{S['fl']+1}]
    s_mov_b64 exec, -1
    s_setprio {Cfg.qprio}
    """)
    lds_wait(W_P2, 4, 0x114, RS)
    emit_pcs(st, b_prefetch_regs(4 if Cfg.pf_l else 0) + b_prefetch_lds())
    lds_wait(W_H, 1, 0x10b, RS)
    a("s_branch PHASE2B")

    a.label("ROLE_KV")
    st = helper(0)
    if Cfg.cprio:
        a("s_setprio 3")
    RT, RL2, E = T, T + 16, T + 32
    X = T + 40
    a(f"""
    v_lshrrev_b32 v{X}, 5, v{l}
    v_lshlrev_b32 v{X}, 4, v{X}
    s_lshl_b32 s{S['t']}, s{S['rg']}, 7
    s_add_u32 s{S['t']}, s{S['t']}, {ST_RS}
    v_add_u32 v{X}, s{S['t']}, v{X}
    """)
    for i in range(4):
        a(f"ds_read_b128 v[{RT+4*i}:{RT+4*i+3}], v{X} offset:{i*32}")
    a(f"""
    s_mul_i32 s{S['t']}, s{S['rg']}, 10240
    s_cmp_eq_u32 s{S['rg']}, 3
    s_cselect_b32 s{S['t']}, {KVX3}, s{S['t']}
    v_add_u32 v{X+1}, s{S['t']}, v{L16}
    v_lshlrev_b32 v{X+2}, 2, v0
    v_add_u32 v{X+2}, {ONES}, v{X+2}
    v_mov_b32 v{X+3}, 0x3f803f80
    ds_write_b32 v{X+2}, v{X+3}
    s_mov_b32 s{S['m2']}, 0x0000ffff
    s_mov_b32 s{S['m2']+1}, 0x0000ffff
    v_mov_b32 v{X+2}, {hx(LOG2E)}
    v_mov_b32 v{X+3}, {hx(EPS6)}
    v_mov_b32 v{X+4}, 0xff800000
    v_cndmask_b32 v{X+5}, v{X+4}, v{X+3}, s[{S['m2']}:{S['m2']+1}]
    v_cndmask_b32 v{X+4}, v{X+4}, 0, s[{S['m2']}:{S['m2']+1}]
    s_waitcnt lgkmcnt(0)
    """)
    for k in range(8):
        a(f"v_pk_mul_f32 v[{RL2+2*k}:{RL2+2*k+1}], v[{RT+2*k}:{RT+2*k+1}], v[{X+2}:{X+3}] op_sel_hi:[1,0]")
    pfk = b_prefetch_regs()
    for t in range(5):
        for hf in range(2):
            base = ACC + 16 * t + 8 * hf
            o = base
            if Cfg.kv_pk:
                if t <= 2:
                    for k in range(4):
                        p, r = f"v[{base+2*k}:{base+2*k+1}]", f"v[{RL2+8*hf+2*k}:{RL2+8*hf+2*k+1}]"
                        if t < 2:
                            a(f"v_pk_mul_f32 v[{E+2*k}:{E+2*k+1}], {p}, {r}")
                        else:
                            a(f"v_pk_fma_f32 v[{E+2*k}:{E+2*k+1}], {p}, {r}, v[{X+4}:{X+5}] op_sel_hi:[1,1,0]")
                for k in range(4):
                    a(f"v_pk_mul_f32 v[{base+2*k}:{base+2*k+1}], v[{base+2*k}:{base+2*k+1}], v[{RT+8*hf+2*k}:{RT+8*hf+2*k+1}]")
            else:
                if t <= 2:
                    for k in range(8):
                        if t < 2:
                            a(f"v_mul_f32 v{E+k}, v{base+k}, v{RL2+8*hf+k}")
                        else:
                            a(f"v_fma_f32 v{E+k}, v{base+k}, v{RL2+8*hf+k}, v{X+4}")
                for k in range(8):
                    a(f"v_mul_f32 v{base+k}, v{base+k}, v{RT+8*hf+k}")
            if t <= 2:
                for k in range(8):
                    a(f"v_exp_f32 v{E+k}, v{E+k} clamp")
                for k in range(8):
                    a(f"v_max_f32 v{base+k}, v{X+3 if t < 2 else X+5}, v{base+k}")
                if Cfg.kv_pk:
                    for k in range(4):
                        a(f"v_pk_add_f32 v[{base+2*k}:{base+2*k+1}], v[{base+2*k}:{base+2*k+1}], v[{E+2*k}:{E+2*k+1}]")
                else:
                    for k in range(8):
                        a(f"v_add_f32 v{base+k}, v{base+k}, v{E+k}")
            for k in range(4):
                a(f"v_cvt_pk_bf16_f32 v{o+k}, v{base+2*k}, v{base+2*k+1}")
            a(f"ds_write_b128 v{X+1}, v[{o}:{o+3}] offset:{t*2048 + hf*1024}")
            for _ in range(Cfg.pf_k0):
                if pfk:
                    emit_all(st, pfk.pop(0))
    a(f"""
    v_add_u32 v{X}, s{S['pa']}, v{L16}
    v_add_u32 v{X+1}, s{S['pa']+1}, v{L16}
    v_add_u32 v{X+2}, s{S['pa']+2}, v{L16}
    v_add_u32 v{X+3}, {KVX3}, v{X}
    v_add_u32 v{X+4}, {KVX3}, v{X+1}
    v_add_u32 v{X+5}, {KVX3}, v{X+2}
    s_waitcnt lgkmcnt(0)
    s_barrier
    """)
    stamp(14)
    D0, D1, PA0, PB0, PA1, PB1 = ACC, ACC + 16, T, ACC + 32, T, ACC + 32

    def kvx_read(dst, base, base3, s, tag):
        src, off = (base, (s >> 1) * 10240 + (s & 1) * 1024) if s < 6 else (base3, (s & 1) * 1024)
        st.emit(("ds", f"ds_read_b128 v[{dst}:{dst+3}], v{src} offset:{off}", tag))
    for s_ in range(8):
        kvx_read(PA0 + 4 * s_, X, X + 3, s_, ("p", s_))
        kvx_read(PB0 + 4 * s_, X + 1, X + 4, s_, ("p", s_))
        if s_ == 5:
            st.wait("ds", [("p", 0)])
    a(f"""
    s_cmp_eq_u32 s{S['rg']}, 0
    s_cselect_b32 s{S['t']}, {4*2048}, {ONES}
    s_cselect_b32 s{S['t1']}, 1024, 0
    s_cselect_b32 s{S['t2']}, {10240 - 1024}, 0
    s_cselect_b32 s{S['t3']}, {KVX3 - 2*10240 - 1024}, 0
    v_add_u32 v{X+6}, s{S['t']}, v{L16}
    """.replace(f"s_cselect_b32 s{S['t']}, {4*2048}, {ONES}", f"s_mov_b32 s{S['t']}, {ONES}\ns_cselect_b32 s{S['t']}, {4*2048}, s{S['t']}"))
    for s_ in range(8):
        st.wait("ds", [("p", s_)])
        c = "0" if s_ == 0 else f"v[{D0}:{D0+15}]"
        a(f"v_mfma_f32_32x32x16_bf16 v[{D0}:{D0+15}], v[{PA0+4*s_}:{PA0+4*s_+3}], v[{PB0+4*s_}:{PB0+4*s_+3}], {c}")
        kvx_read(PA1 + 4 * s_, X + 2, X + 5, s_, ("q", s_))
        st.emit(("ds", f"ds_read_b128 v[{PB1+4*s_}:{PB1+4*s_+3}], v{X+6}", ("q", s_)))
        if s_ < 7:
            a(f"v_add_u32 v{X+6}, s{S['t1'] if s_ % 2 == 0 else (S['t3'] if s_ == 5 else S['t2'])}, v{X+6}")
    for s_ in range(8):
        st.wait("ds", [("q", s_)])
        c = "0" if s_ == 0 else f"v[{D1}:{D1+15}]"
        a(f"v_mfma_f32_32x32x16_bf16 v[{D1}:{D1+15}], v[{PA1+4*s_}:{PA1+4*s_+3}], v[{PB1+4*s_}:{PB1+4*s_+3}], {c}")
        if s_ >= 2:
            for r in range(3 * (s_ - 2), min(16, 3 * (s_ - 1))):
                st.emit(("ds", f"ds_write_b32 v{CMPA + (r >> 2)}, v{D0+r} offset:{(r & 3)*84}", "cw"))
    a(f"""
    s_lshl_b32 s{S['t']}, s{S['j']}, 13
    s_add_u32 s96, s24, s{S['t']}
    s_addc_u32 s97, s25, 0
    s_add_u32 s96, s96, {KV_OFF}
    s_addc_u32 s97, s97, 0
    v_lshlrev_b32 v{X}, 2, v0
    v_add_u32 v{X+1}, 4096, v{X}
    v_add_u32 v{X+2}, {CMP}, v{X}
    v_cmp_gt_u32 vcc, 144, v0
    """)
    for r in range(16):
        a(f"ds_write_b32 v{CMPA + 4 + (r >> 2)}, v{D1+r} offset:{(r & 3)*84}")
    a("s_waitcnt lgkmcnt(0)")
    lds_add(W_C1)
    lds_wait(W_C1, 4, 0x115, RS)
    st.q["ds"].clear()
    stamp(25)
    for i in range(7):
        a(f"ds_read_b32 v{T+32+i}, v{X+2} offset:{i*1024}")
    for i in range(7):
        a(f"s_waitcnt lgkmcnt({6-i})")
        if i == 6:
            a("s_mov_b64 exec, vcc")
        st.emit(("vm0" if i == 6 else "vm", f"global_atomic_add_f32 v{X+(i>>2)}, v{T+32+i}, s[96:97] offset:{(i&3)*1024}", "kva"))
    a("s_mov_b64 exec, -1")
    st.wait("vm", ["kva"])
    stamp(26)
    lds_add(W_C2)
    lds_wait(W_C2, 4, 0x116, RS)
    signal(F_KV, S["j"])
    stamp(15)
    lds_wait(W_CQ, 4, 0x117, RS)
    a(f"""
    v_mov_b32 v{T+8}, 0
    v_mov_b32 v{T+9}, 0
    v_mov_b32 v{T+10}, 0
    v_mov_b32 v{T+11}, 0
    v_lshlrev_b32 v{T+7}, 4, v0
    v_add_u32 v{T+6}, {FRGB}, v{T+7}
    v_add_u32 v{T+5}, {FRGC}, v{T+7}
    ds_write_b128 v{T+7}, v[{T+8}:{T+11}] offset:{FRGA}
    ds_write_b128 v{T+7}, v[{T+8}:{T+11}] offset:{FRGA + 1024}
    ds_write_b128 v{T+6}, v[{T+8}:{T+11}]
    ds_write_b128 v{T+5}, v[{T+8}:{T+11}]
    ds_write_b128 v{T+5}, v[{T+8}:{T+11}] offset:1024
    s_waitcnt lgkmcnt(0)
    """)
    lds_add(W_GO)
    n1 = min(len(pfk), Cfg.pf_k1)
    a(f"s_cmp_eq_u32 s{S['w']}, 0\ns_cbranch_scc1 KV_POLL")
    emit_pcs(Stream(a), pfk[:n1])
    a("KV_POLL:")
    wait_flag(st, F_KV, 16, 0x102, f"s_mov_b32 s{S['t']}, s{S['j']}", then=W_GO)
    lds_wait(W_GO, 5, 0x109, RS)
    stamp(16)
    for i in range(7):
        st.emit(("vm", f"global_load_dword v{T+32+i}, v{X+(i>>2)}, s[96:97] offset:{(i&3)*1024} sc1", ("g", i)))
    for i in range(7):
        a(f"v_cmp_le_u32 vcc, {FRGC}, v{SCA+i}")
        st.wait("vm", [("g", i)])
        a(f"""
        v_cvt_pk_bf16_f32 v{T+32+i}, v{T+32+i}, v{T+32+i}
        ds_write_b16 v{SCA+i}, v{T+32+i}
        s_mov_b64 exec, vcc
        ds_write_b16 v{SCA+i}, v{T+32+i} offset:64
        s_mov_b64 exec, -1
        """)
    a("s_waitcnt lgkmcnt(0)")
    lds_add(W_SC)
    stamp(17)
    a(f"s_setprio 0\ns_cmp_lg_u32 s{S['w']}, 0\ns_cbranch_scc1 KV_REST")
    emit_pcs(st, pfk[:n1])
    a("KV_REST:")
    emit_pcs(st, pfk[n1:])
    lds_wait(W_P2, 4, 0x110, RS)
    emit_pcs(st, b_prefetch_lds())
    stamp(18)
    wait_flag(st, F_H, 8, 0x107, f"s_lshr_b32 s{S['t']}, s{S['r2']}, 1", then=W_H)
    lds_wait(W_H, 1, 0x10c, RS)
    a("s_branch PHASE2B")

    a.label("ROLE_H0")
    if Cfg.hpass == 2:
        st = helper(1)
        h_epilogue(4, S["tp1"], st, True)
    else:
        st = hloop(False)
        h_epilogue(4, S["tp1"], st, False)
    a("s_branch PHASE2")
    a.label("ROLE_H1")
    if Cfg.hpass == 2:
        st = loader(1)
        h_epilogue(3, S["tp2"], st, False)
    else:
        st = hloop(True)
        h_epilogue(3, S["tp1"], st, False, Cfg.early_lds)

    a.label("PHASE2")
    stamp(19)
    st = Stream(a)
    wait_flag(st, F_H, 8, 0x105, f"s_lshr_b32 s{S['t']}, s{S['r2']}, 1")
    a("s_barrier")
    a.label("PHASE2B")
    stamp(20)
    P2S = S["so"]

    def areg(i):
        return T + 16 * (i % 3) if i < 7 else BB + 20 * (i - 5)

    def breg(i):
        return BB + 20 * (i % 5) if i < 7 else BB + 20 * ((i - 7) & 1)

    def a_load(i):
        f = areg(i)
        it = [("atomic", step_off(i, P2S, S["p2A"], 4096))]
        for tt in range(4):
            it.append(("vm", f"buffer_load_dwordx4 v[{f+4*tt}:{f+4*tt+3}], v{L16}, s[{SWS}:{SWS+3}], s{P2S} offen offset:{tt*1024} sc1", ("A", i)))
        return it

    OA, RAD, WA, CB = SMALL, SMALL + 3, SMALL + 6, SMALL + 14
    XR = [T + 16 + 2 * k for k in range(3)]
    BR = [T + 22 + 2 * k for k in range(3)]

    def epi_setup():
        X = RS
        it = I(f"""
        s_mov_b32 s{SR}, s20
        s_mov_b32 s{SR+1}, s21
        s_mov_b32 s{SR+2}, {2048*1280}
        s_mov_b32 s{SR+3}, 0x20000
        s_mov_b32 s{SAUX}, s18
        s_mov_b32 s{SAUX+1}, s19
        s_mov_b32 s{SAUX+2}, 1280
        s_mov_b32 s{SAUX+3}, 0x20000
        s_mul_i32 s{JT}, s{S['r2']}, {64*1280}
        s_mul_i32 s{JT1}, s{S['c2']}, 160
        s_add_u32 s{JT}, s{JT}, s{JT1}
        """)
        Y = SMALL + 7
        for i in range(3):
            it += I(f"""
            v_add_u32 v{Y}, {512*i}, v0
            v_mul_u32_u24 v{Y+1}, 3277, v{Y}
            v_lshrrev_b32 v{Y+1}, 16, v{Y+1}
            v_mul_u32_u24 v{Y+2}, 20, v{Y+1}
            v_sub_u32 v{Y+2}, v{Y}, v{Y+2}
            v_mul_u32_u24 v{Y+3}, 1280, v{Y+1}
            v_lshl_add_u32 v{Y+3}, v{Y+2}, 3, v{Y+3}
            v_add_u32 v{Y+3}, s{JT}, v{Y+3}
            v_cmp_gt_u32 vcc, 1280, v{Y}
            v_mov_b32 v{Y+4}, {OOB}
            v_cndmask_b32 v{OA+i}, v{Y+4}, v{Y+3}, vcc
            v_bfe_u32 v{Y+4}, v{Y+1}, 1, 2
            v_xor_b32 v{Y+4}, v{Y+4}, v{Y+2}
            v_mul_u32_u24 v{Y+5}, 320, v{Y+1}
            v_lshl_add_u32 v{Y+5}, v{Y+4}, 4, v{Y+5}
            v_cndmask_b32 v{RAD+i}, 0, v{Y+5}, vcc
            v_lshlrev_b32 v{CB+i}, 3, v{Y+2}
            """)
        it += I(f"""
        v_and_b32 v{Y}, 15, v{l}
        v_mul_u32_u24 v{Y}, 320, v{Y}
        v_lshrrev_b32 v{Y+1}, 4, v{l}
        v_bfe_u32 v{Y+2}, v{l}, 1, 2
        v_xor_b32 v{Y+1}, v{Y+1}, v{Y+2}
        v_lshl_add_u32 v{Y}, v{Y+1}, 4, v{Y}
        s_mul_i32 s{JT}, s{S['w']}, {PW}
        v_add_u32 v{WA}, s{JT}, v{Y}
        v_add_u32 v{Y+6}, s{JT}, v{L16}
        """)
        return it

    def epi_loads():
        it = I(f"s_mul_i32 s{JT1}, s{S['c2']}, 160")
        for i in range(3):
            it.append(("vm", f"buffer_load_dwordx2 v[{XR[i]}:{XR[i]+1}], v{OA+i}, s[{SX}:{SX+3}], 0 offen", "x"))
            it.append(("vm", f"buffer_load_dwordx2 v[{BR[i]}:{BR[i]+1}], v{CB+i}, s[{SAUX}:{SAUX+3}], s{JT1} offen", "x"))
        return it

    LB = SMALL + 13

    def p2_step(i, fill):
        st.wait("vm", [("A", i), ("B", i)])
        st.wait("ds", [("B", i)])
        f, b = areg(i), breg(i)
        opt = i in (6, 9)
        if opt:
            emit_all(st, fill)
            fill = []
            lab = a.newlabel("OPT")
            a(f"s_cmp_gt_u32 s{S['nH'] if i == 6 else S['nO']}, {6 if i == 6 else 2}\ns_cbranch_scc0 {lab}")
        k = 0
        for tt in range(4):
            for ct in range(5):
                acc = ACC + 4 * (tt * 5 + ct)
                c = "0" if i == 0 else f"v[{acc}:{acc+3}]"
                a(f"v_mfma_f32_16x16x32_bf16 v[{acc}:{acc+3}], v[{b+4*ct}:{b+4*ct+3}], v[{f+4*tt}:{f+4*tt+3}], {c}")
                k += 1
                n = -(-len(fill) // (21 - k)) if fill else 0
                for _ in range(min(n, len(fill))):
                    emit_item(st, fill.pop(0))
        if opt:
            a.label(lab)

    def lds_b(i):
        r = breg(i)
        return [("ds", f"ds_read_b128 v[{r+4*ct}:{r+4*ct+3}], v{LB} offset:{(i-7)*5120 + ct*1024}", ("B", i)) for ct in range(5)]

    def o_loads(s2):
        for k in (7, 8, 9):
            emit_all(s2, a_load(k))

    def o_try():
        l0, l1 = a.newlabel("OT"), a.newlabel("OT")
        a(f"""
        s_mov_b32 s{S['hs']}, 0
        s_cmp_lg_u32 s{S['w']}, 0
        s_cbranch_scc1 {l0}
        s_lshr_b32 s{S['t']}, s{S['r2']}, 1
        s_add_u32 s{S['t']}, s{S['t']}, {F_O}
        s_lshl_b32 s{S['t']}, s{S['t']}, 7
        v_mov_b32 v{RS}, s{S['t']}
        global_load_dword v{IRS}, v{RS}, s[{S['fl']}:{S['fl']+1}] sc1
        s_waitcnt vmcnt(0)
        v_readfirstlane_b32 s{S['t']}, v{IRS}
        s_cmp_ge_u32 s{S['t']}, 32
        s_cbranch_scc0 {l1}
        """)
        lds_add(12)
        a(f"""
        {l0}:
        v_mov_b32 v{RS}, {SYN}
        ds_read_b32 v{IRS}, v{RS} offset:12
        s_waitcnt lgkmcnt(0)
        v_readfirstlane_b32 s{S['t']}, v{IRS}
        s_cmp_ge_u32 s{S['t']}, 1
        s_cbranch_scc0 {l1}
        s_mov_b32 s{S['hs']}, 1
        """)
        o_loads(Stream(a))
        a.label(l1)

    def o_wait():
        done = a.newlabel("OW")
        if Cfg.o_try >= 0:
            a(f"s_cmp_eq_u32 s{S['hs']}, 1\ns_cbranch_scc1 {done}")
        wait_flag(st, F_O, 32, 0x106, f"s_lshr_b32 s{S['t']}, s{S['r2']}, 1", then=12)
        lds_wait(12, 1, 0x10d, RS)
        o_loads(st)
        a.label(done)
        lds_add(16)
        stamp(21)

    def after_step(i):
        it = []
        if i + 3 <= 6:
            it += a_load(i + 3)
        if i in (0, 1):
            for p in b_load(i + 5, breg(i)):
                it.append(("atomic", p))
        if i == Cfg.o_try:
            it.append(("call", o_try))
        if i == Cfg.o_at:
            it.append(("call", o_wait))
        if i == 4:
            it += epi_loads()
        if i in (5, 6, 7):
            it = lds_b(i + 2) + it
        return it

    for i in range(3):
        emit_all(st, a_load(i))
    carry = group_scc(epi_setup())
    for i in range(10):
        if i == 7 and Cfg.o_at == 6:
            emit_all(st, carry)
            carry = []
        p2_step(i, carry)
        stamp(27 + i)
        carry = after_step(i)
    st.wait2(None, None)
    a.label("P2_RED")
    stamp(22)
    a(f"s_cmp_lg_u32 s{S['w']}, 7\ns_cbranch_scc1 P2_DUMP")
    lds_wait(16, 8, 0x10e, RS)
    a.label("P2_DUMP")
    for tt in range(4):
        for ct in range(5):
            acc = ACC + 4 * (tt * 5 + ct)
            a(f"ds_write_b128 v{WA}, v[{acc}:{acc+3}] offset:{tt*5120 + ct*64}")
    a("s_waitcnt lgkmcnt(0)\ns_barrier")
    stamp(23)
    for i in range(3):
        if i == 2:
            a(f"s_cmp_ge_u32 s{S['w']}, 4\ns_cbranch_scc1 FIN")
        f = ACC + 32 * (i & 1)
        a(f"v_add_u32 v{T+8}, {4*PW}, v{RAD+i}")
        for w in range(8):
            src, off = (RAD + i, w * PW) if w < 4 else (T + 8, (w - 4) * PW)
            a(f"ds_read_b128 v[{f+4*w}:{f+4*w+3}], v{src} offset:{off}")
        x, b = XR[i], BR[i]
        a(f"""
        v_lshlrev_b32 v{T}, 16, v{x}
        v_and_b32 v{T+1}, 0xffff0000, v{x}
        v_lshlrev_b32 v{T+2}, 16, v{x+1}
        v_and_b32 v{T+3}, 0xffff0000, v{x+1}
        v_lshlrev_b32 v{T+4}, 16, v{b}
        v_and_b32 v{T+5}, 0xffff0000, v{b}
        v_lshlrev_b32 v{T+6}, 16, v{b+1}
        v_and_b32 v{T+7}, 0xffff0000, v{b+1}
        v_pk_add_f32 v[{T}:{T+1}], v[{T}:{T+1}], v[{T+4}:{T+5}]
        v_pk_add_f32 v[{T+2}:{T+3}], v[{T+2}:{T+3}], v[{T+6}:{T+7}]
        """)
        for w in range(8):
            a(f"""
            s_waitcnt lgkmcnt({7-w})
            v_pk_add_f32 v[{T}:{T+1}], v[{T}:{T+1}], v[{f+4*w}:{f+4*w+1}]
            v_pk_add_f32 v[{T+2}:{T+3}], v[{T+2}:{T+3}], v[{f+4*w+2}:{f+4*w+3}]
            """)
        a(f"""
        v_cvt_pk_bf16_f32 v{T+10+2*i}, v{T}, v{T+1}
        v_cvt_pk_bf16_f32 v{T+11+2*i}, v{T+2}, v{T+3}
        buffer_store_dwordx2 v[{T+10+2*i}:{T+11+2*i}], v{OA+i}, s[{SR}:{SR+3}], 0 offen
        """)
    a.label("FIN")
    stamp(24)
    if Cfg.stamps:
        a(f"""
        s_memrealtime s[{S['t0']}:{S['t0']+1}]
        s_waitcnt lgkmcnt(0)
        v_writelane_b32 v{ITS}, s{S['t0']}, 63
        s_lshl_b32 s{S['t']}, s2, 3
        s_add_u32 s{S['t']}, s{S['t']}, s{S['w']}
        s_lshl_b32 s{S['t']}, s{S['t']}, 8
        s_add_u32 s{S['t']}, s{S['t']}, {STAMP_OFF}
        v_lshlrev_b32 v{T+20}, 2, v{l}
        v_add_u32 v{T+20}, s{S['t']}, v{T+20}
        global_store_dword v{T+20}, v{ITS}, s[24:25]
        """)
    a.label("END")
    a("s_endpgm")
    for f in ool:
        f()
    a.label("CODE_END")
    a("s_endpgm")
    return a.L


def build():
    head = open("cdna_kernels/%s.s.ref" % NAME).read().split("; Override launch")[0]
    out = head + "; @launch grid=(256,1,1) block=(512,1,1) lds=163840\n"
    out += '.amdgcn_target "amdgcn-amd-amdhsa--gfx950"\n.text\n'
    L, n = fix_hazards(gen())
    out += f".globl {KN}\n.p2align 8\n.type {KN},@function\n"
    out += "\n".join(x if x.endswith(":") else "    " + x for x in L) + "\n"
    print("instrs", len(L), "nops inserted", n, file=sys.stderr)
    out += f""".section .rodata,"a"
.p2align 6
.amdhsa_kernel {KN}
  .amdhsa_next_free_vgpr 256
  .amdhsa_next_free_sgpr 102
  .amdhsa_accum_offset 256
  .amdhsa_group_segment_fixed_size 0
  .amdhsa_kernarg_size 88
  .amdhsa_user_sgpr_count 2
  .amdhsa_user_sgpr_kernarg_segment_ptr 1
  .amdhsa_system_sgpr_workgroup_id_x 1
  .amdhsa_float_denorm_mode_32 3
.end_amdhsa_kernel
"""
    return out


if __name__ == "__main__":
    for arg in sys.argv[2:]:
        k, v = arg.split("=")
        assert hasattr(Cfg, k), k
        setattr(Cfg, k, int(v))
    open(sys.argv[1], "w").write(build())
```

```python
import sys, struct
from asmlib import Asm, fix_hazards, RegAlloc

NAME = "parallel_sum__linear_attn_block__mixer_channel_mlp__prompt"
KN = NAME + "_kernel"

A2_OFF = 0
A2_RB = 74 * 4096
B2_OFF = 32 * A2_RB
B2_C = 74 * 5120
KV_OFF = B2_OFF + 8 * B2_C
CS_OFF = KV_OFF + 8 * 8192
FLAG_OFF = CS_OFF + 16384
RS_OFF = FLAG_OFF + 8192
WS_SIZE = RS_OFF + 16384
F_KV, F_H, F_O, F_EARLY, F_B2 = 0, 8, 24, 40, 48
STAMP_OFF = WS_SIZE + 65536
OOB = 0x7f000000

SLOT = 49152
MISC = 3 * SLOT
RELAY = MISC
ST_M, ST_RS, ST_IRS, CSP = MISC + 12288, MISC + 12800, MISC + 13312, MISC + 14336
SYN = MISC + 15360
PW = 20480
GAP = 15360
KVX = 0
CMP = 40960
CDUM = CMP + 6720
ONES = CMP + 7232
FRG = 4 * PW + GAP


def frg(fi):
    return FRG + fi * 1024 + (fi // 5) * GAP


LOG2E = 1.4426950408889634
GC1 = -2.0 * 0.7978845608028654 * LOG2E
GC2 = GC1 * 0.044715
EPS6 = 9.98377799987793e-07


def hx(x):
    return "0x%08x" % struct.unpack("<I", struct.pack("<f", x))[0]


class Cfg:
    stamps = 0
    prefetch_code = 1
    x_nodma = 0
    bpos = 1
    map1 = 2
    map2 = 0
    wnt = 1
    prio = 0
    prio2 = 1
    cprio = 1
    nfirst = 4
    poll_it = 7
    touch = 1
    fill = 2
    pf_h = 2
    pf_q1 = 25
    pf_k1 = 10
    pf_k0 = 0
    phi_n = 3
    pf_l = 1
    hbar = 6
    hbar_chunk = 5
    gelu_pk0 = 0
    kv_pk = 1
    h_early = 1
    rot2 = 1
    o_at = 6
    o_try = 4
    p2sc = 1
    qprio = 1
    hpass = 1
    rs_it = 0
    hpoll = 7
    hsig = 3
    touch_it = 8
    hfill = 3
    hprio = 1
    early_lds = 1
    dfirst = 1
    qb3 = 2
    qb4 = 5
    sig_it = 4
    eprio = 0


def typ_of(ids):
    return {0: (ids >> 5) & 1, 1: (ids >> 3) & 1, 2: ids >> 7}[Cfg.map1]


class Stream:
    def __init__(self, a):
        self.a = a
        self.q = {"ds": [], "vm": []}

    def emit(self, it):
        k = it[0]
        if k == "i":
            self.a(it[1])
        elif k in ("ds", "vm"):
            self.a(it[1])
            self.q[k].append(it[2])
        elif k == "vm0":
            self.a(it[1])
            self.q["vm"].append(("*", it[2]))
        elif k in ("wds", "wvm"):
            self.wait(k[1:], it[1])
        else:
            raise ValueError(it)

    def count(self, k, tags):
        q = self.q[k]
        def star(t):
            return isinstance(t, tuple) and t[0] == "*"
        idx = max([i for i, t in enumerate(q) if tags is None or t in tags or (star(t) and t[1] in tags)], default=-1)
        if idx < 0:
            return None
        left = sum(1 for t in q[idx + 1:] if not star(t))
        del q[:idx + 1]
        return min(left, 15 if k == "ds" else 63)

    def wait(self, k, tags):
        n = self.count(k, tags)
        if n is not None:
            self.a(f"s_waitcnt {'lgkmcnt' if k == 'ds' else 'vmcnt'}({n})")

    def wait2(self, dtags, vtags):
        nd, nv = self.count("ds", dtags), self.count("vm", vtags) if vtags != [] else None
        p = []
        if nv is not None:
            p.append(f"vmcnt({nv})")
        if nd is not None:
            p.append(f"lgkmcnt({nd})")
        if p:
            self.a("s_waitcnt " + " ".join(p))


def I(text):
    return [("i", x.strip()) for x in text.strip().split("\n") if x.strip()]


def group_scc(items):
    out, i = [], 0
    while i < len(items):
        it = items[i]
        if it[0] == "i" and it[1].startswith("s_cmp"):
            j = i + 1
            while j < len(items) and items[j][0] == "i" and items[j][1].startswith("s_cselect"):
                j += 1
            out.append(("atomic", items[i:j]))
            i = j
        else:
            out.append(it)
            i += 1
    return out


def gen():
    a = Asm()
    ool = []
    S = {}
    sa = RegAlloc(44, 96)
    for n in ("w", "rg", "rb", "j", "typ", "col0", "soA", "soB", "so2", "so", "ofA", "ofB", "of2", "t", "t1", "t2", "t3", "pc",
              "rlo", "rls", "hs", "jt", "jt1", "r2", "c2", "sH", "sO", "nH", "nO", "rH", "rO", "p2A", "p2B", "tp1", "tp2"):
        S[n] = sa.alloc(n)
    S["uo"] = sa.alloc("uo", 4)
    S["pa"] = sa.alloc("pa", 4)
    for n in ("ex", "m1", "m2"):
        S[n] = sa.alloc(n, 2, 2)
    S["fl"], S["t0"] = 10, 100
    SX, SW, SWS, SR, SAUX = 28, 32, 36, 40, 96

    l, Z, ITS, RS, IRS, L16, SMALL = 1, 2, 3, 4, 5, 6, 7
    ACC, T, BB = 24, 104, 152
    CMPA, SCA = SMALL, SMALL + 8
    vb = RegAlloc(BB, BB + 100)
    FA = vb.alloc("fa", 8, 2)
    FB = vb.alloc("fb", 40, 2)
    XE = vb.alloc("xe", 4, 2)
    WE = vb.alloc("we", 20, 2)
    RA = vb.alloc("rA", 4)
    RA0 = vb.alloc("rA0")
    RB = vb.alloc("rB")
    RB0 = vb.alloc("rB0")
    BIAS = vb.alloc("bias", 5)
    RLD = vb.alloc("rld")
    QSCA = SMALL + 4

    def srd(base, ptr, size):
        a(f"s_mov_b32 s{base}, s{ptr}\ns_mov_b32 s{base+1}, s{ptr+1}\ns_mov_b32 s{base+2}, {size}\ns_mov_b32 s{base+3}, 0x20000")

    DBGW = {3: 2, 13: 3, 15: 4, 20: 5, 21: 6, 22: 7, 24: 9}

    def stamp(lane):
        if Cfg.stamps == 4:
            if lane in DBGW:
                a(f"s_memrealtime s[{S['t0']}:{S['t0']+1}]\ns_waitcnt lgkmcnt(0)\nv_mov_b32 v{ITS}, s{S['t0']}\ns_mov_b64 exec, 1\n"
                  f"global_atomic_umax v{Z}, v{ITS}, s[22:23] offset:{4*DBGW[lane]}\ns_mov_b64 exec, -1")
        elif Cfg.stamps:
            a(f"{'s_memrealtime' if Cfg.stamps == 3 else 's_memtime'} s[{S['t0']}:{S['t0']+1}]\ns_waitcnt lgkmcnt(0)\nv_writelane_b32 v{ITS}, s{S['t0']}, {lane}")

    def poll_slow(check, err, sleep=8):
        lp, back = a.newlabel("PL"), a.newlabel("PB")
        a(f"s_cbranch_scc0 {lp}\n{back}:")

        def emit():
            l2 = a.newlabel("PL")
            a(f"{lp}:\ns_mov_b32 s{S['pc']}, 0\n{l2}:\ns_sleep {sleep}")
            if Cfg.stamps == 4 and err in (0x101, 0x104, 0x102, 0x105, 0x106, 0x107):
                wd = {0x101: 10, 0x104: 11, 0x102: 12, 0x105: 13, 0x106: 14, 0x107: 15}[err]
                a(f"v_mov_b32 v{ITS}, 1\ns_mov_b64 s[{S['t0']}:{S['t0']+1}], exec\ns_mov_b64 exec, 1\nglobal_atomic_add v{Z}, v{ITS}, s[22:23] offset:{4*wd}\ns_mov_b64 exec, s[{S['t0']}:{S['t0']+1}]")
            check()
            a(f"""
            s_cbranch_scc1 {back}
            s_add_u32 s{S['pc']}, s{S['pc']}, 1
            s_cmp_lt_u32 s{S['pc']}, 0x20000
            s_cbranch_scc1 {l2}
            v_mov_b32 v{IRS}, {err}
            global_store_dword v{Z}, v{IRS}, s[22:23] offset:32
            s_branch {back}
            """)
        ool.append(emit)

    a.label(KN)
    a(f"""
    s_cmp_ge_u32 s2, 256
    s_cbranch_scc1 END
    s_load_dwordx16 s[4:19], s[0:1], 0
    s_load_dwordx4 s[20:23], s[0:1], 64
    s_load_dwordx2 s[24:25], s[0:1], 80
    v_lshrrev_b32 v{T}, 6, v0
    v_and_b32 v{l}, 63, v0
    v_readfirstlane_b32 s{S['w']}, v{T}
    """)
    if Cfg.stamps:
        a(f"v_mov_b32 v{ITS}, 0\ns_memtime s[{S['t0']}:{S['t0']+1}]\ns_memrealtime s[{S['ex']}:{S['ex']+1}]")
    if Cfg.prefetch_code:
        here = a.newlabel("PC")
        a(f"""
        s_getpc_b64 s[26:27]
        {here}:
        s_bfe_u32 s{S['t']}, s2, 0x20003
        s_lshl_b32 s{S['t']}, s{S['t']}, 14
        v_lshlrev_b32 v{T+2}, 5, v0
        v_add_u32 v{T+2}, s{S['t']}, v{T+2}
        v_min_u32 v{T+2}, CODE_END-{here}-4, v{T+2}
        v_mov_b32 v{T+3}, s27
        v_add_co_u32 v{T+2}, vcc, s26, v{T+2}
        v_addc_co_u32 v{T+3}, vcc, 0, v{T+3}, vcc
        s_mov_b32 exec_lo, 0x11111111
        s_mov_b32 exec_hi, 0x11111111
        global_load_dword v{RS}, v[{T+2}:{T+3}], off
        s_mov_b64 exec, -1
        """)
    if Cfg.map1 == 0:
        a(f"""
        s_and_b32 s{S['t']}, s2, 3
        s_lshl_b32 s{S['t']}, s{S['t']}, 2
        s_bfe_u32 s{S['t1']}, s2, 0x20003
        s_add_u32 s{S['rb']}, s{S['t']}, s{S['t1']}
        s_bfe_u32 s{S['typ']}, s2, 0x10005
        s_bfe_u32 s{S['t']}, s2, 0x10002
        s_lshl_b32 s{S['t']}, s{S['t']}, 2
        s_bfe_u32 s{S['t1']}, s2, 0x20006
        s_add_u32 s{S['j']}, s{S['t']}, s{S['t1']}
        """)
    else:
        if Cfg.map1 == 1:
            a(f"s_and_b32 s{S['j']}, s2, 7\ns_bfe_u32 s{S['typ']}, s2, 0x10003\ns_lshr_b32 s{S['rb']}, s2, 4")
        else:
            a(f"s_and_b32 s{S['j']}, s2, 7\ns_lshr_b32 s{S['typ']}, s2, 7\ns_bfe_u32 s{S['rb']}, s2, 0x40003")
    a(f"""
    v_mov_b32 v{Z}, 0
    v_lshlrev_b32 v{L16}, 4, v{l}
    s_and_b32 s{S['rg']}, s{S['w']}, 3
    s_mul_i32 s{S['t']}, s{S['j']}, 7
    s_min_u32 s{S['t']}, s{S['t']}, 47
    s_lshl_b32 s{S['t']}, s{S['t']}, 5
    s_mul_i32 s{S['t1']}, s{S['j']}, 80
    s_cmp_eq_u32 s{S['typ']}, 0
    s_cselect_b32 s{S['col0']}, s{S['t1']}, s{S['t']}
    s_lshr_b32 s{S['t']}, s{S['w']}, 2
    s_lshl_b32 s{S['t1']}, s{S['typ']}, 1
    s_add_u32 s{S['t3']}, s{S['t']}, s{S['t1']}
    s_cmp_eq_u32 s{S['t3']}, 0
    s_cbranch_scc1 ROLE_KV
    s_cmp_eq_u32 s{S['t3']}, 2
    s_cbranch_scc1 ROLE_H0
    s_cmp_eq_u32 s{S['t3']}, 3
    s_cbranch_scc1 ROLE_H1
    """)

    TY = {0: dict(nt=5, stride=3840, wptr=6, qkv=True), 1: dict(nt=4, stride=3456, wptr=12, qkv=False)}
    JT, JT1 = S["jt"], S["jt1"]

    def after_kernarg():
        a("s_waitcnt lgkmcnt(0)")
        if Cfg.stamps == 4:
            a(f"s_not_b32 s{S['ex']}, s{S['ex']}\nv_mov_b32 v{ITS}, s{S['ex']}\ns_mov_b64 exec, 1\nglobal_atomic_umax v{Z}, v{ITS}, s[22:23] offset:4\ns_mov_b64 exec, -1")
        elif Cfg.stamps:
            a(f"v_writelane_b32 v{ITS}, s{S['t0']}, 0\nv_writelane_b32 v{ITS}, s{S['ex']}, 62")
        srd(SX, 4, 2048 * 1280)
        srd(SWS, 24, WS_SIZE)
        a(f"s_add_u32 s{S['fl']}, s24, {FLAG_OFF}\ns_addc_u32 s{S['fl']+1}, s25, 0")

    def emit_item(st, it):
        if it[0] == "atomic":
            for x in it[1]:
                emit_item(st, x)
        elif it[0] == "call":
            it[1]()
        else:
            st.emit(it)

    def emit_all(st, items):
        for x in items:
            emit_item(st, x)

    def p2_params():
        if Cfg.map2 == 0:
            a(f"""
            s_and_b32 s{S['t']}, s2, 3
            s_lshl_b32 s{S['t']}, s{S['t']}, 3
            s_bfe_u32 s{S['t1']}, s2, 0x30003
            s_add_u32 s{S['r2']}, s{S['t']}, s{S['t1']}
            s_bfe_u32 s{S['t']}, s2, 0x10002
            s_lshl_b32 s{S['t']}, s{S['t']}, 2
            s_lshr_b32 s{S['t1']}, s2, 6
            s_add_u32 s{S['c2']}, s{S['t']}, s{S['t1']}
            """)
        else:
            a(f"""
            s_and_b32 s{S['t']}, s2, 7
            s_lshl_b32 s{S['t']}, s{S['t']}, 2
            s_bfe_u32 s{S['t1']}, s2, 0x20003
            s_add_u32 s{S['r2']}, s{S['t']}, s{S['t1']}
            s_lshr_b32 s{S['c2']}, s2, 5
            """)
        a(f"""
        s_mul_i32 s{S['t']}, s{S['w']}, 7
        s_mul_i32 s{S['t1']}, s{S['w']}, 6
        s_add_u32 s{S['t1']}, s{S['t1']}, 6
        s_cmp_lt_u32 s{S['w']}, 6
        s_cselect_b32 s{S['sH']}, s{S['t']}, s{S['t1']}
        s_cselect_b32 s{S['nH']}, 7, 6
        s_lshl_b32 s{S['t']}, s{S['w']}, 2
        s_lshr_b32 s{S['t1']}, 0x33222233, s{S['t']}
        s_and_b32 s{S['nO']}, s{S['t1']}, 15
        s_lshl_b32 s{S['t']}, s{S['w']}, 1
        s_min_u32 s{S['t1']}, s{S['w']}, 2
        s_add_u32 s{S['t']}, s{S['t']}, s{S['t1']}
        s_cmp_eq_u32 s{S['w']}, 7
        s_cselect_b32 s{S['t1']}, 55, 54
        s_add_u32 s{S['sO']}, s{S['t']}, s{S['t1']}
        s_and_b32 s{S['t']}, s{S['c2']}, 3
        s_mul_i32 s{S['rH']}, s{S['t']}, {2 * Cfg.rot2}
        s_mul_i32 s{S['rO']}, s{S['t']}, {Cfg.rot2}
        s_cmp_ge_u32 s{S['rH']}, s{S['nH']}
        s_cselect_b32 s{S['rH']}, 1, s{S['rH']}
        s_cmp_ge_u32 s{S['rO']}, s{S['nO']}
        s_cselect_b32 s{S['t']}, s{S['nO']}, 0
        s_sub_u32 s{S['rO']}, s{S['rO']}, s{S['t']}
        s_mul_i32 s{S['p2A']}, s{S['r2']}, {A2_RB}
        s_mul_i32 s{S['p2B']}, s{S['c2']}, {B2_C}
        s_add_u32 s{S['p2B']}, s{S['p2B']}, {B2_OFF}
        """)

    def relay_params(base):
        a(f"""
        s_lshl_b32 s{S['t']}, s{S['rg']}, 8
        s_add_u32 s{S['t3']}, s{S['t']}, s2
        s_mul_i32 s{S['t2']}, s{S['t3']}, 6554
        s_lshr_b32 s{S['t2']}, s{S['t2']}, 16
        s_mul_i32 s{S['t']}, s{S['t2']}, 10
        s_sub_u32 s{S['t1']}, s{S['t3']}, s{S['t']}
        s_min_u32 s{S['so']}, s{S['rg']}, 2
        s_lshl_b32 s{S['so']}, s{S['so']}, 12
        s_add_u32 s{S['rls']}, s{S['so']}, {base}
        """)

    def frag_addr_a(dst, X):
        a(f"""
        v_and_b32 v{X}, 31, v{l}
        s_lshl_b32 s{S['t']}, s{S['rg']}, 5
        v_add_u32 v{X}, s{S['t']}, v{X}
        v_bfe_u32 v{X+1}, v{X}, 1, 3
        v_lshrrev_b32 v{X+2}, 5, v{l}
        v_xor_b32 v{X+1}, v{X+1}, v{X+2}
        v_lshlrev_b32 v{X+1}, 4, v{X+1}
        v_lshl_add_u32 v{dst}, v{X}, 7, v{X+1}
        """)

    def frag_addr_b_low(dst, X):
        a(f"""
        v_bfe_u32 v{X}, v{l}, 2, 2
        v_lshlrev_b32 v{dst}, 6, v{X}
        v_bfe_u32 v{X}, v{l}, 4, 1
        v_lshl_add_u32 v{dst}, v{X}, 5, v{dst}
        v_and_b32 v{X}, 3, v{l}
        v_lshl_add_u32 v{dst}, v{X}, 3, v{dst}
        """)

    def bias_setup(R, regs, n, tp, second, st, X):
        if not R["qkv"]:
            srd(SAUX, 14, 3456)
            a(f"""
            s_lshl_b32 s{S['t']}, s{tp}, 5
            s_add_u32 s{S['t']}, s{S['t']}, s{S['col0']}
            s_lshl_b32 s{S['t']}, s{S['t']}, 1
            v_and_b32 v{X}, 31, v{l}
            v_lshlrev_b32 v{X}, 1, v{X}
            """)
            for t in range(n):
                st.emit(("vm", f"buffer_load_ushort v{regs+t}, v{X}, s[{SAUX}:{SAUX+3}], s{S['t']} offen offset:{t*64}", "bias"))
        elif second:
            for t in range(3):
                a(f"v_mov_b32 v{regs+t}, 0x3586")
        else:
            a(f"""
            v_mov_b32 v{regs}, 0x3586
            v_mov_b32 v{regs+1}, 0x3586
            s_mov_b32 s{S['m2']}, 0x0000ffff
            s_mov_b32 s{S['m2']+1}, 0x0000ffff
            v_cndmask_b32 v{regs+2}, 0, v{regs}, s[{S['m2']}:{S['m2']+1}]
            v_mov_b32 v{regs+3}, 0
            v_mov_b32 v{regs+4}, 0
            """)

    def vcol(reg, tmp):
        return I(f"""
        v_mov_b32 v{tmp}, 0
        v_mov_b32 v{tmp+1}, -16
        v_cmp_le_u32 vcc, 80, v{reg}
        v_cndmask_b32 v{tmp}, v{tmp}, v{tmp+1}, vcc
        v_mov_b32 v{tmp+1}, {640-96}
        v_cmp_le_u32 vcc, 96, v{reg}
        v_cndmask_b32 v{tmp}, v{tmp}, v{tmp+1}, vcc
        v_mov_b32 v{tmp+1}, {1280-176}
        v_cmp_le_u32 vcc, 176, v{reg}
        v_cndmask_b32 v{tmp}, v{tmp}, v{tmp+1}, vcc
        v_add_u32 v{reg}, v{reg}, v{tmp}
        """)

    def job_build_ext(nt, tp, xe, we, bias, X):
        it = I(f"""
        v_and_b32 v{X}, 31, v{l}
        s_lshl_b32 s{JT}, s{S['rg']}, 5
        v_add_lshl_u32 v{X+1}, v{X}, s{JT}, 2
        v_add_u32 v{X+1}, {MISC}, v{X+1}
        s_lshl_b32 s{JT}, s{tp}, 7
        s_add_u32 s{JT}, s{JT}, {CSP}
        v_lshl_add_u32 v{X}, v{X}, 2, s{JT}
        """)
        for r, off in ((X + 2, ST_M), (RS, ST_RS), (IRS, ST_IRS)):
            it.append(("ds", f"ds_read_b32 v{r}, v{X+1} offset:{off-MISC}", "bx"))
        for t in range(nt):
            it.append(("ds", f"ds_read_b32 v{we+4*t+3}, v{X} offset:{t*128}", "bx"))
        it += I(f"s_mov_b32 s{S['m1']}, -1\ns_mov_b32 s{S['m1']+1}, 0") + [("wds", ["bx"])] + I(f"""
        v_sub_f32 v{X+2}, 0, v{X+2}
        v_cvt_pk_bf16_f32 v{X+3}, v{X+2}, v{IRS}
        v_lshlrev_b32 v{X+4}, 16, v{X+3}
        v_and_b32 v{X+5}, 0xffff0000, v{X+3}
        v_sub_f32 v{X+4}, v{X+2}, v{X+4}
        v_sub_f32 v{X+5}, v{IRS}, v{X+5}
        v_cvt_pk_bf16_f32 v{X+4}, v{X+2}, v{X+4}
        v_cvt_pk_bf16_f32 v{X+5}, v{X+5}, v{Z}
        v_cndmask_b32 v{xe}, 0, v{X+4}, s[{S['m1']}:{S['m1']+1}]
        v_cndmask_b32 v{xe+1}, 0, v{X+3}, s[{S['m1']}:{S['m1']+1}]
        v_cndmask_b32 v{xe+2}, 0, v{X+5}, s[{S['m1']}:{S['m1']+1}]
        v_mov_b32 v{xe+3}, 0
        """)
        for t in range(nt):
            w, b = we + 4 * t, bias + t
            it += I(f"""
            v_cvt_pk_bf16_f32 v{w}, v{w+3}, v{w+3}
            v_and_b32 v{w+1}, 0xffff0000, v{w}
            v_sub_f32 v{w+1}, v{w+3}, v{w+1}
            v_cvt_pk_bf16_f32 v{w+1}, v{w+1}, v{Z}
            v_lshl_or_b32 v{w+1}, v{b}, 16, v{w+1}
            v_mov_b32 v{w+2}, v{b}
            v_mov_b32 v{w+3}, 0
            """)
        return it

    def ext_mfma(nt, xe, we, tr):
        for t in range(nt):
            w, acc = we + 4 * t, ACC + 16 * t
            x, y = (w, xe) if tr else (xe, w)
            a(f"v_mfma_f32_32x32x16_bf16 v[{acc}:{acc+15}], v[{x}:{x+3}], v[{y}:{y+3}], v[{acc}:{acc+15}]")

    def shard_flag_jobs(flag, V, err, who, lanes=8):
        sig = I(f"""
        s_and_b32 s{JT}, s2, 7
        s_lshl_b32 s{JT}, s{JT}, 7
        s_add_u32 s{JT}, s{JT}, {flag*128}
        v_mov_b32 v{V}, s{JT}
        v_mov_b32 v{V+1}, 1
        """) + [("atomic", I(f"s_cmp_eq_u32 s{S['w']}, {who}\ns_cselect_b32 exec_lo, 1, 0\ns_mov_b32 exec_hi, 0") +
                 [("vm0", f"global_atomic_add v{V}, v{V+1}, s[{S['fl']}:{S['fl']+1}]", "sg")] + I("s_mov_b64 exec, -1"))]
        ldj = I(f"""
        v_lshlrev_b32 v{V}, 7, v{l}
        v_add_u32 v{V}, {flag*128}, v{V}
        v_mov_b32 v{V+1}, 32
        """) + [("atomic", I(f"s_cmp_eq_u32 s{S['w']}, {who}\ns_cselect_b32 exec_lo, {hex((1 << lanes) - 1)}, 0\ns_mov_b32 exec_hi, 0") +
                 [("vm0", f"global_load_dword v{V+1}, v{V}, s[{S['fl']}:{S['fl']+1}] sc1", ("fl", flag))] + I("s_mov_b64 exec, -1"))]

        def chk():
            a(f"""
            s_mov_b64 exec, {hex((1 << lanes) - 1)}
            global_load_dword v{V+1}, v{V}, s[{S['fl']}:{S['fl']+1}] sc1
            s_mov_b64 exec, -1
            s_waitcnt vmcnt(0)
            v_cmp_gt_u32 vcc, 32, v{V+1}
            s_cmp_eq_u64 vcc, 0
            """)
        ck = [("wvm", [("fl", flag)]), ("atomic", I(f"v_cmp_gt_u32 vcc, 32, v{V+1}\ns_cmp_eq_u64 vcc, 0") + [("call", lambda: poll_slow(chk, err))])]
        return sig, ldj, ck

    def row_publish(SQ, SM, Y):
        it = I(f"""
        s_mov_b32 s{S['m1']}, 0xaaaaaaaa
        s_mov_b32 s{S['m1']+1}, 0xaaaaaaaa
        s_mov_b32 s{S['m2']}, 0xcccccccc
        s_mov_b32 s{S['m2']+1}, 0xcccccccc
        v_cndmask_b32 v{Y+2}, v{SQ}, v{SQ+1}, s[{S['m1']}:{S['m1']+1}]
        v_cndmask_b32 v{Y+3}, v{SQ+2}, v{SQ+3}, s[{S['m1']}:{S['m1']+1}]
        v_cndmask_b32 v{Y+2}, v{Y+2}, v{Y+3}, s[{S['m2']}:{S['m2']+1}]
        s_lshl_b32 s{JT}, s{S['rb']}, 2
        s_add_u32 s{JT}, s{JT}, s{S['rg']}
        s_lshl_b32 s{JT}, s{JT}, 7
        s_add_u32 s{JT}, s{JT}, {RS_OFF}
        s_lshl_b32 s{JT1}, s{S['j']}, 1
        s_add_u32 s{JT1}, s{JT1}, s{S['typ']}
        s_cmp_ge_u32 s{JT1}, 10
        s_cselect_b32 s{JT}, {OOB}, s{JT}
        v_and_b32 v{Y+4}, 31, v{l}
        v_lshrrev_b32 v{Y+5}, 5, v{l}
        v_lshlrev_b32 v{Y+5}, 13, v{Y+5}
        v_permlane32_swap_b32 v{SM}, v{Y+2}
        v_lshl_add_u32 v{Y+4}, v{Y+4}, 2, v{Y+5}
        v_add_f32 v{Y+2}, v{Y+2}, v{SM}
        """)
        it.append(("vm", f"buffer_atomic_add_f32 v{Y+2}, v{Y+4}, s[{SWS}:{SWS+3}], s{JT} offen", "stat"))
        return it


    def job_load_stats(qkv, Y):
        it = I(f"""
        v_and_b32 v{Y}, 31, v{l}
        s_lshl_b32 s{JT}, s{S['rb']}, 2
        s_add_u32 s{JT}, s{JT}, s{S['rg']}
        s_lshl_b32 s{JT}, s{JT}, 7
        s_add_u32 s{JT}, s{JT}, {RS_OFF}
        s_add_u32 s{JT1}, s{JT}, 8192
        v_lshlrev_b32 v{Y+1}, 2, v{Y}
        """)
        it.append(("vm", f"buffer_load_dword v{Y+2}, v{Y+1}, s[{SWS}:{SWS+3}], s{JT} offen sc1", "ls"))
        it.append(("vm", f"buffer_load_dword v{Y+3}, v{Y+1}, s[{SWS}:{SWS+3}], s{JT1} offen sc1", "ls"))
        it += I(f"s_lshl_b32 s{JT}, s{S['rg']}, 6\nv_add_u32 v{Y+1}, s{JT}, v{l}")
        if qkv:
            it += vcol(Y + 1, Y + 4) + I(f"s_lshl_b32 s{JT}, s{S['col0']}, 2\ns_add_u32 s{JT}, s{JT}, {CS_OFF}")
        else:
            it += I(f"s_lshl_b32 s{JT}, s{S['col0']}, 2\ns_add_u32 s{JT}, s{JT}, {CS_OFF + 1920*4}")
        it += I(f"v_lshlrev_b32 v{Y+1}, 2, v{Y+1}")
        it.append(("vm", f"buffer_load_dword v{Y+4}, v{Y+1}, s[{SWS}:{SWS+3}], s{JT} offen sc1", "ls"))
        return it

    def job_publish_stats(qkv, Y):
        it = I(f"""
        v_and_b32 v{Y+5}, 31, v{l}
        s_lshl_b32 s{JT}, s{S['rg']}, 5
        v_add_lshl_u32 v{Y+5}, v{Y+5}, s{JT}, 2
        v_add_u32 v{Y+5}, {MISC}, v{Y+5}
        s_lshl_b32 s{JT}, s{S['rg']}, 8
        s_add_u32 s{JT}, s{JT}, {CSP}
        v_lshl_add_u32 v{Y+6}, v{l}, 2, s{JT}
        """) + [("wvm", ["ls"])] + I(f"""
        v_mul_f32 v{Y+2}, {hx(1/640)}, v{Y+2}
        v_mul_f32 v{Y+3}, {hx(1/640)}, v{Y+3}
        v_fma_f32 v{Y+3}, -v{Y+2}, v{Y+2}, v{Y+3}
        v_max_f32 v{Y+3}, 0, v{Y+3}
        v_add_f32 v{Y}, {hx(1e-5)}, v{Y+3}
        """)
        if not qkv:
            it += I(f"v_mov_b32 v{Y+1}, {hx(1e-5)}\nv_fma_f32 v{Y}, v{Y}, v{Y+1}, v{Y+3}")
        it += I(f"v_sqrt_f32 v{Y+1}, v{Y}\nv_rsq_f32 v{Y}, v{Y}")
        for r, off in ((Y + 2, ST_M), (Y, ST_RS), (Y + 1, ST_IRS)):
            it.append(("ds", f"ds_write_b32 v{Y+5}, v{r} offset:{off-MISC}", "pub"))
        it.append(("ds", f"ds_write_b32 v{Y+6}, v{Y+4}", "pub"))
        return it

    def job_touch(V):
        it = I(f"""
        s_and_b32 s{JT}, s{S['r2']}, 7
        s_mul_i32 s{JT}, s{JT}, {370*128}
        s_mul_i32 s{JT1}, s{S['rg']}, {96*128}
        s_add_u32 s{JT}, s{JT}, s{JT1}
        s_add_u32 s{JT}, s{JT}, s{S['p2B']}
        v_lshlrev_b32 v{V+1}, 7, v{l}
        """)
        it.append(("vm", f"buffer_load_dword v{V}, v{V+1}, s[{SWS}:{SWS+3}], s{JT} offen sc1", "tc"))
        it += I(f"s_add_u32 s{JT}, s{JT}, 8192")
        it.append(("atomic", I("s_mov_b32 exec_hi, 0") + [("vm", f"buffer_load_dword v{V}, v{V+1}, s[{SWS}:{SWS+3}], s{JT} offen sc1", "tc")] + I("s_mov_b32 exec_hi, -1")))
        return it


    def zero_init():
        a(f"v_mov_b32 v{T+13}, {SYN}\nds_write_b128 v{T+13}, v[{T+8}:{T+11}]\nds_write_b128 v{T+13}, v[{T+8}:{T+11}] offset:16".replace("v_mov_b32", f"v_mov_b32 v{T+8}, 0\nv_mov_b32 v{T+9}, 0\nv_mov_b32 v{T+10}, 0\nv_mov_b32 v{T+11}, 0\nv_mov_b32", 1))
        lab = a.newlabel("NI")
        a(f"""
        s_cmp_lg_u32 s{S['rg']}, 3
        s_cbranch_scc1 {lab}
        s_cmp_ge_u32 s2, 32
        s_cbranch_scc1 {lab}
        v_mov_b32 v{T+8}, 0
        v_mov_b32 v{T+9}, 0
        v_mov_b32 v{T+10}, 0
        v_mov_b32 v{T+11}, 0
        s_mul_i32 s{S['t']}, s2, 3328
        s_add_u32 s{S['t']}, s{S['t']}, {KV_OFF}
        buffer_store_dwordx4 v[{T+8}:{T+11}], v{L16}, s[{SWS}:{SWS+3}], s{S['t']} offen sc1
        buffer_store_dwordx4 v[{T+8}:{T+11}], v{L16}, s[{SWS}:{SWS+3}], s{S['t']} offen offset:1024 sc1
        buffer_store_dwordx4 v[{T+8}:{T+11}], v{L16}, s[{SWS}:{SWS+3}], s{S['t']} offen offset:2048 sc1
        buffer_store_dwordx4 v[{T+8}:{T+11}], v{L16}, s[{SWS}:{SWS+3}], s{S['t']} offen offset:2304 sc1
        v_mov_b32 v{T+12}, 1
        s_waitcnt vmcnt(0)
        s_mov_b64 exec, 1
        global_atomic_add v{Z}, v{T+12}, s[22:23]
        s_mov_b64 exec, -1
        {lab}:
        """)

    def relay_issue(st, X, base):
        relay_params(base)
        a(f"""
        s_cmp_lt_u32 s{S['t2']}, 54
        s_cselect_b32 s{SR}, s16, s8
        s_cselect_b32 s{SR+1}, s17, s9
        s_mov_b32 s{SR+2}, {640*1280}
        s_cselect_b32 s{SR+2}, {1728*1280}, s{SR+2}
        s_mov_b32 s{SR+3}, 0x20000
        s_cselect_b32 s{S['t']}, 0, 54
        s_sub_u32 s{S['t']}, s{S['t2']}, s{S['t']}
        s_mul_i32 s{S['t']}, s{S['t']}, {32*1280}
        s_lshl_b32 s{S['so']}, s{S['t1']}, 7
        s_add_u32 s{S['rlo']}, s{S['t']}, s{S['so']}
        v_lshrrev_b32 v{X}, 3, v{l}
        v_mul_u32_u24 v{X}, 1280, v{X}
        v_and_b32 v{X+1}, 7, v{l}
        v_lshl_add_u32 v{RLD}, v{X+1}, 4, v{X}
        s_cmp_lt_u32 s{S['t3']}, 740
        s_cselect_b32 s{S['hs']}, -1, 0
        s_barrier
        s_mov_b32 exec_lo, s{S['hs']}
        s_mov_b32 exec_hi, s{S['hs']}
        """)
        for i in range(4):
            a(f"s_add_u32 m0, s{S['rls']}, {i*1024}\ns_add_u32 s{JT}, s{S['rlo']}, {i*8*1280}")
            st.emit(("vm0", f"buffer_load_dwordx4 v{RLD}, s[{SR}:{SR+3}], s{JT} offen nt lds", "rl"))
        a("s_mov_b64 exec, -1")

    def init_check():
        def chk():
            a(f"global_load_dword v{T+44}, v{Z}, s[22:23] sc1\ns_waitcnt vmcnt(0)\nv_readfirstlane_b32 s{JT}, v{T+44}\ns_cmp_ge_u32 s{JT}, 32")
        lab = a.newlabel("IC")
        a(f"s_cmp_lg_u32 s{S['rg']}, 3\ns_cbranch_scc1 {lab}")
        chk()
        poll_slow(chk, 0x101)
        a.label(lab)


    def kloop(ld, qkv):
        st = Stream(a)
        NT, stride = (8, 3840) if qkv else (7, 3456)
        PITCH = NT * 256
        nt, t0 = ((3, 0) if ld else (5, 3)) if qkv else ((3, 4) if ld else (4, 0))
        tr = ld or not qkv
        hv = RegAlloc(RLD + 1, BB + 100)
        HDA, HDB, HRCS = hv.alloc("da"), hv.alloc("db", 7), hv.alloc("rcs")
        HRLY = HDA
        X = T + 32
        SQ, SM, ONE, CSA, CF = T + 20, T + 24, T + 28, T + 16, T
        a(f"s_mov_b32 s{S['tp1']}, {t0}")

        def dma(s_):
            if Cfg.x_nodma:
                return []
            slot = (s_ % 3) * SLOT
            NTM = " nt" if (Cfg.wnt == 1 and s_ == 0) else ""
            A, B = [], []
            for m in range(4):
                A.append(I(f"s_add_u32 m0, s{S['ofA']}, {slot + m*4096}\ns_add_u32 s{S['so']}, s{S['soA']}, {m*32*1280}") +
                         [("vm", f"buffer_load_dwordx4 v{HDA}, s[{SX}:{SX+3}], s{S['so']} offen lds", ("S", s_))])
            for i in range(NT):
                if qkv:
                    B.append(I(f"s_add_u32 m0, s{S['ofB']}, {slot + i*4096}\ns_add_u32 s{S['so']}, s{S['soB']}, {i*8*3840}") +
                             [("vm", f"buffer_load_dwordx4 v{HDB}, s[{SW}:{SW+3}], s{S['so']} offen{NTM} lds", ("S", s_))])
                else:
                    B.append(I(f"s_add_u32 m0, s{S['ofB']}, {slot + i*1024}") +
                             [("vm", f"buffer_load_dwordx4 v{HDB+i}, s[{SW}:{SW+3}], s{S['soB']} offen{NTM} lds", ("S", s_))])
            res = []
            while A or B:
                if B: res.append(B.pop(0))
                if A: res.append(A.pop(0))
                if B: res.append(B.pop(0))
            if s_ > 0:
                res[0] = I(f"""
                s_add_u32 s{S['soA']}, s{S['soA']}, 128
                s_add_u32 s{S['soB']}, s{S['soB']}, {64*stride}
                s_cmp_eq_u32 s{S['soA']}, 1280
                s_cselect_b32 s{S['soA']}, 0, s{S['soA']}
                s_cselect_b32 s{S['soB']}, 0, s{S['soB']}
                """) + res[0]
            return [("atomic", p) for p in res]

        def setup():
            frag_addr_a(RA0, X)
            frag_addr_b_low(RB0, X)
            a(f"""
            v_lshrrev_b32 v{X}, 5, v{l}
            v_mul_u32_u24 v{X}, {2*PITCH}, v{X}
            v_add_u32 v{X}, v{X}, v{RB0}
            v_add_u32 v{RB0}, {16384 + t0*256}, v{X}
            s_min_u32 s{S['t']}, s{S['w']}, {NT-1}
            s_lshl_b32 s{S['t']}, s{S['t']}, 8
            s_add_u32 s{S['t']}, s{S['t']}, 16384
            v_add_u32 v{HRCS}, s{S['t']}, v{X}
            v_mov_b32 v{ONE}, 0x3f803f80
            v_mov_b32 v{ONE+1}, 0x3f803f80
            s_mov_b32 s{S['m1']}, 0x00020001
            s_mov_b32 s{S['m1']+1}, 0x00020001
            """)
            for k in range(4):
                a(f"v_cndmask_b32 v{XE+k}, 0, v{ONE}, s[{S['m1']}:{S['m1']+1}]")
            p2_params()
            bias_setup(TY[0 if qkv else 1], BIAS, nt, S["tp1"], ld, st, X)
            if qkv:
                kv_addr_setup(X)
                if ld:
                    scatter_setup(X)

        if ld:
            a(f"""
            v_lshrrev_b32 v{T}, 3, v{l}
            s_lshl_b32 s{S['t']}, s{S['rg']}, 3
            s_lshl_b32 s{S['t1']}, s{S['rb']}, 7
            s_add_u32 s{S['t']}, s{S['t']}, s{S['t1']}
            v_add_u32 v{T}, s{S['t']}, v{T}
            v_mul_u32_u24 v{HDA}, 1280, v{T}
            v_lshrrev_b32 v{T}, 1, v{T}
            v_xor_b32 v{T}, v{T}, v{l}
            v_and_b32 v{T}, 7, v{T}
            v_lshl_add_u32 v{HDA}, v{T}, 4, v{HDA}
            s_lshl_b32 s{S['ofA']}, s{S['rg']}, 10
            v_bfe_u32 v{T}, v{l}, 2, 2
            v_lshrrev_b32 v{T+1}, 4, v{l}
            v_and_b32 v{T+5}, 3, v{l}
            s_lshl_b32 s{S['t']}, s{S['j']}, 1
            s_add_u32 s{S['t']}, s{S['t']}, s{S['typ']}
            s_add_u32 s{S['t']}, s{S['t']}, s{S['rb']}
            s_mul_i32 s{S['t1']}, s{S['t']}, 26
            s_lshr_b32 s{S['t1']}, s{S['t1']}, 8
            s_mul_i32 s{S['t1']}, s{S['t1']}, 10
            s_sub_u32 s{S['t']}, s{S['t']}, s{S['t1']}
            s_lshl_b32 s{S['soA']}, s{S['t']}, 7
            s_mul_i32 s{S['soB']}, s{S['t']}, {64*stride}
            """)
            if qkv:
                a(f"""
                s_add_u32 s{S['ofB']}, s{S['ofA']}, 16384
                s_lshr_b32 s{S['t']}, s{S['rg']}, 1
                s_lshl_b32 s{S['t']}, s{S['t']}, 2
                v_add_u32 v{T}, s{S['t']}, v{T}
                v_mul_u32_u24 v{T}, 3840, v{T}
                s_and_b32 s{S['t']}, s{S['rg']}, 1
                s_lshl_b32 s{S['t']}, s{S['t']}, 4
                v_lshl_add_u32 v{T+5}, v{T+1}, 2, v{T+5}
                v_add_u32 v{T+5}, s{S['t']}, v{T+5}
                v_mov_b32 v{T+6}, 0
                v_mov_b32 v{T+7}, -32
                v_cmp_le_u32 vcc, 10, v{T+5}
                v_cndmask_b32 v{T+6}, v{T+6}, v{T+7}, vcc
                v_mov_b32 v{T+7}, {1280 - 192}
                v_cmp_le_u32 vcc, 12, v{T+5}
                v_cndmask_b32 v{T+6}, v{T+6}, v{T+7}, vcc
                v_mov_b32 v{T+7}, {2560 - 352}
                v_cmp_le_u32 vcc, 22, v{T+5}
                v_cndmask_b32 v{T+6}, v{T+6}, v{T+7}, vcc
                v_lshl_add_u32 v{T+5}, v{T+5}, 4, v{T+6}
                s_lshl_b32 s{S['t']}, s{S['col0']}, 1
                v_add3_u32 v{HDB}, v{T}, v{T+5}, s{S['t']}
                """)
            else:
                a(f"""
                s_mul_i32 s{S['ofB']}, s{S['rg']}, 7168
                s_add_u32 s{S['ofB']}, s{S['ofB']}, 16384
                s_lshl_b32 s{S['t']}, s{S['rg']}, 4
                v_add_u32 v{T}, s{S['t']}, v{T}
                v_mul_u32_u24 v{T}, 3456, v{T}
                v_lshl_add_u32 v{T}, v{T+5}, 4, v{T}
                s_lshl_b32 s{S['t']}, s{S['col0']}, 1
                v_add_u32 v{T}, s{S['t']}, v{T}
                s_mov_b32 s{S['t']}, {4*3456 - 448}
                """)
                for i in range(7):
                    a(f"""
                    v_add_u32 v{T+5}, {4*i}, v{T+1}
                    v_mul_u32_u24 v{T+6}, 37, v{T+5}
                    v_lshrrev_b32 v{T+6}, 8, v{T+6}
                    v_mad_u32_u24 v{T+6}, v{T+6}, s{S['t']}, v{T}
                    v_lshl_add_u32 v{HDB+i}, v{T+5}, 6, v{T+6}
                    """)
            after_kernarg()
            srd(SW, 6 if qkv else 12, 640 * stride)
            d0 = dma(0)
            emit_all(st, d0[:5])
            setup()
            emit_all(st, d0[5:])
            stamp(1)
            a("s_barrier")
            emit_all(st, dma(1))
            stamp(2)
        else:
            after_kernarg()
            zero_init()
            relay_issue(st, X, RELAY)
            for ct in range(4):
                a(f"""
                s_lshl_b32 s{S['t']}, s{S['t1']}, 2
                s_add_u32 s{S['t']}, s{S['t']}, {ct}
                s_mul_i32 s{JT}, s{S['t']}, 52
                s_lshr_b32 s{JT}, s{JT}, 8
                s_mul_i32 s{JT}, s{JT}, {B2_C - 5*1024}
                s_lshl_b32 s{S['t']}, s{S['t']}, 10
                s_add_u32 s{S['t']}, s{S['t']}, s{JT}
                s_mul_i32 s{JT}, s{S['t2']}, 5120
                s_add_u32 s{S['t']}, s{S['t']}, s{JT}
                s_add_u32 s{S['t']}, s{S['t']}, {B2_OFF}
                s_cmp_lt_u32 s{S['t3']}, 740
                s_cselect_b32 s{S['uo']+ct}, s{S['t']}, {OOB}
                """)
            a(f"""
            v_lshrrev_b32 v{X}, 5, v{l}
            v_lshlrev_b32 v{X}, 4, v{X}
            v_bfe_u32 v{X+1}, v{l}, 4, 1
            v_lshl_add_u32 v{X}, v{X+1}, 2, v{X}
            v_bfe_u32 v{X+1}, v{l}, 2, 2
            v_add_u32 v{X}, v{X}, v{X+1}
            v_lshlrev_b32 v{X}, 7, v{X}
            v_and_b32 v{X+1}, 3, v{l}
            v_lshl_add_u32 v{X}, v{X+1}, 3, v{X}
            v_add_u32 v{HRLY}, s{S['rls']}, v{X}
            """)
            setup()
            init_check()

        def job_colsum():
            it = []
            for ks in range(4):
                for i in range(2):
                    it.append(("ds", f"ds_read_b64_tr_b16 v[{CF+4*ks+2*i}:{CF+4*ks+2*i+1}], v{HRCS} offset:{(4*ks+i)*PITCH}", ("cs", ks)))
            for ks in range(4):
                it.append(("wds", [("cs", ks)]))
                c = "0" if ks == 0 else f"v[{CSA}:{CSA+3}]"
                it += I(f"v_mfma_f32_16x16x32_bf16 v[{CSA}:{CSA+3}], v[{XE}:{XE+3}], v[{CF+4*ks}:{CF+4*ks+3}], {c}")
            return it

        def job_publish():
            it = I(f"""
            s_lshl_b32 s{JT}, s{S['w']}, 5
            v_add_u32 v{X}, s{JT}, v{l}
            v_permlane16_swap_b32 v{CSA}, v{CSA+1}
            s_mov_b32 s{S['m2']}, -1
            s_mov_b32 s{S['m2']+1}, 0
            """)
            if qkv:
                it += I(f"s_cmp_eq_u32 s{S['w']}, 2\ns_cselect_b32 s{S['m2']}, 0xffff, s{S['m2']}") + vcol(X, X + 1)
                it += I(f"s_lshl_b32 s{JT}, s{S['col0']}, 2\ns_add_u32 s{JT}, s{JT}, {CS_OFF}")
            else:
                it += I(f"""
                s_lshl_b32 s{JT}, s{S['col0']}, 2
                s_add_u32 s{JT}, s{JT}, {CS_OFF + 1920*4}
                s_lshl_b32 s{JT1}, s{S['j']}, 3
                s_add_u32 s{JT1}, s{JT1}, s{S['w']}
                s_sub_u32 s{JT1}, s{JT1}, 56
                s_cmp_lt_u32 s{JT1}, 2
                s_cselect_b32 s{JT}, {OOB}, s{JT}
                s_cmp_eq_u32 s{S['w']}, 7
                s_cselect_b32 s{JT}, {OOB}, s{JT}
                """)
            it += I(f"""
            s_cmp_ge_u32 s{S['rb']}, 10
            s_cselect_b32 s{JT}, {OOB}, s{JT}
            v_lshlrev_b32 v{X}, 2, v{X}
            v_mov_b32 v{X+1}, {OOB}
            v_cndmask_b32 v{X}, v{X+1}, v{X}, s[{S['m2']}:{S['m2']+1}]
            """)
            it.append(("vm", f"buffer_atomic_add_f32 v{CSA}, v{X}, s[{SWS}:{SWS+3}], s{JT} offen", "stat"))
            if not ld:
                it += row_publish(SQ, SM, X)
            return it

        def job_relay_store():
            it = [("wvm", ["rl"])]
            for ct in range(4):
                it.append(("ds", f"ds_read_b64_tr_b16 v[{T+4*ct}:{T+4*ct+1}], v{HRLY} offset:{ct*32}", ("rl", ct)))
                it.append(("ds", f"ds_read_b64_tr_b16 v[{T+4*ct+2}:{T+4*ct+3}], v{HRLY} offset:{ct*32 + 1024}", ("rl", ct)))
            for ct in range(4):
                it.append(("wds", [("rl", ct)]))
                it.append(("vm", f"buffer_store_dwordx4 v[{T+4*ct}:{T+4*ct+3}], v{L16}, s[{SWS}:{SWS+3}], s{S['uo']+ct} offen sc1", "rs"))
            return it

        e_sig, e_ld, e_ck = shard_flag_jobs(F_EARLY, T + 46, 0x104, 0, 16)
        b_sig, _, _ = shard_flag_jobs(F_B2, T + 46, 0x108, 0)
        pi = Cfg.hpoll
        J = [(0, 0, 0, job_colsum()), (1, 0, 1, job_publish())]
        if not ld:
            J.append((Cfg.rs_it, 2 if Cfg.rs_it == 0 else 1, Cfg.rs_it, job_relay_store()))
            J.append((Cfg.hsig - 1, 2, Cfg.hsig - 1, [("wvm", None)]))
            J.append((Cfg.hsig, 0, Cfg.hsig, e_sig + b_sig))
            J.append((pi, 0, pi, e_ld))
            J.append((pi, 2, pi, e_ck))
            J.append((pi + 1, 0, pi + 1, job_load_stats(qkv, T + 38)))
            J.append((8, 2 if pi == 7 else 0, 8, job_publish_stats(qkv, T + 38)))
            if Cfg.touch:
                J.append((max(Cfg.touch_it, pi + 1), 1, 10, job_touch(T + 46)))
        if ld and Cfg.early_lds:
            J.append((9, 0, 10, [("atomic", p) for p in b_prefetch_lds()]))
        J.append((9, 0, 10, job_build_ext(nt, S["tp1"], XE, WE, BIAS, X)))
        J.sort(key=lambda x: (x[0], x[1]))
        pend = []

        def drain(n=None, deadline=None):
            k = 0
            while pend and (n is None or k < n):
                if deadline is not None and not any(p[0] <= deadline for p in pend):
                    break
                emit_item(st, pend.pop(0)[1])
                k += 1

        def addrs(s_):
            sl = (s_ % 3) * SLOT
            return I(f"""
            v_add_u32 v{RA}, {sl}, v{RA0}
            v_add_u32 v{RB}, {sl}, v{RB0}
            v_xor_b32 v{RA+1}, 32, v{RA}
            v_xor_b32 v{RA+2}, 64, v{RA}
            v_xor_b32 v{RA+3}, 0x60, v{RA}
            """)

        def reads(s_, ks):
            b = ks & 1
            out = [("ds", f"ds_read_b128 v[{FA+4*b}:{FA+4*b+3}], v{RA+ks}", ("A", s_, ks))]
            for t in range(nt):
                f = FB + 20 * b + 4 * t
                for i in range(2):
                    out.append(("ds", f"ds_read_b64_tr_b16 v[{f+2*i}:{f+2*i+1}], v{RB} offset:{(4*ks+i)*PITCH + t*256}", (t, s_, ks)))
            return out

        emit_all(st, addrs(0))
        if ld:
            st.wait("vm", [("S", 0)])
            if Cfg.hprio:
                a("s_setprio 1")
        a("s_barrier")
        stamp(3)
        emit_all(st, reads(0, 0))
        dq = dma(2) if ld else []
        gaps_left = 3 * nt + Cfg.bpos
        for s_ in range(10):
            for ks in range(4):
                while J and (J[0][0], J[0][1]) <= (s_, ks):
                    jb = J.pop(0)
                    pend.extend([jb[2], x] for x in group_scc(jb[3]))
                last = ks == 3
                rd = reads(s_, ks + 1) if not last else (reads(s_ + 1, 0) if s_ < 9 else [])
                gaps = nt if not last else nt - Cfg.bpos
                for t in range(nt):
                    if last and t == Cfg.bpos:
                        drain(deadline=s_)
                        assert not dq
                        st.wait2(None, [("S", s_ + 1)] + (["stat"] if s_ == Cfg.hsig - 1 else []) if ld else [])
                        a("s_barrier")
                        if ld:
                            dq = dma(s_ + 3) if s_ + 3 <= 9 else []
                            gaps_left = 4 * nt
                            if Cfg.hprio and s_ == 7:
                                a("s_setprio 0")
                    b = ks & 1
                    fa, f, acc = FA + 4 * b, FB + 20 * b + 4 * t, ACC + 16 * t
                    st.wait("ds", [("A", s_, ks), (t, s_, ks)])
                    c = "0" if (s_ == 0 and ks == 0) else f"v[{acc}:{acc+15}]"
                    x, y = (f, fa) if tr else (fa, f)
                    a(f"v_mfma_f32_32x32x16_bf16 v[{acc}:{acc+15}], v[{x}:{x+3}], v[{y}:{y+3}], {c}")
                    if s_ == 0 and not ld and t < 2:
                        c1 = "0" if (ks == 0 and t == 0) else f"v[{SQ}:{SQ+3}]"
                        c2 = "0" if (ks == 0 and t == 0) else f"v[{SM}:{SM+3}]"
                        a(f"v_mfma_f32_4x4x4_16b_bf16 v[{SQ}:{SQ+3}], v[{fa+2*t}:{fa+2*t+1}], v[{fa+2*t}:{fa+2*t+1}], {c1}")
                        a(f"v_mfma_f32_4x4x4_16b_bf16 v[{SM}:{SM+3}], v[{ONE}:{ONE+1}], v[{fa+2*t}:{fa+2*t+1}], {c2}")
                    g = t if not last else t - Cfg.bpos
                    if g >= 0:
                        emit_all(st, rd[(len(rd) * g) // gaps:(len(rd) * (g + 1)) // gaps])
                    if dq:
                        k = -(-len(dq) // max(1, gaps_left - Cfg.bpos))
                        for _ in range(min(k, len(dq))):
                            emit_item(st, dq.pop(0))
                    gaps_left -= 1
                    if ks == 2 and t == nt - 1 and s_ < 9:
                        emit_all(st, addrs(s_ + 1))
                    drain(Cfg.hfill)
            stamp(4 + s_)
        drain()
        ext_mfma(nt, XE, WE, tr)
        st.wait2(None, ["tc", "bias"])
        return st

    def kv_addr_setup(X):
        a(f"v_mov_b32 v{X+8}, {CDUM}")
        for h in range(1):
            a(f"""
            s_mov_b32 s{JT}, s{S['w']}
            s_lshl_b32 s{S['t']}, s{JT}, 2
            s_lshr_b32 s{S['t1']}, 0x21021100, s{S['t']}
            s_and_b32 s{S['t1']}, s{S['t1']}, 15
            s_lshr_b32 s{S['t2']}, 0x00044332, s{S['t']}
            s_and_b32 s{S['t2']}, s{S['t2']}, 15
            v_and_b32 v{X}, 31, v{l}
            s_lshl_b32 s{S['t3']}, s{S['t2']}, 5
            s_sub_u32 s{S['t3']}, s{S['t3']}, 80
            v_add_u32 v{X+1}, s{S['t3']}, v{X}
            v_mul_u32_u24 v{X+2}, 3277, v{X+1}
            v_lshrrev_b32 v{X+2}, 16, v{X+2}
            v_mul_u32_u24 v{X+3}, 20, v{X+2}
            v_sub_u32 v{X+3}, v{X+1}, v{X+3}
            v_cmp_gt_u32 vcc, 80, v{X+1}
            v_cmp_eq_u32 s[{S['ex']}:{S['ex']+1}], 0, v{X}
            s_cmp_ge_u32 s{JT}, 5
            s_cselect_b64 s[{S['m1']}:{S['m1']+1}], s[{S['ex']}:{S['ex']+1}], vcc
            s_cselect_b64 s[{S['ex']}:{S['ex']+1}], -1, 0
            v_cndmask_b32 v{X+3}, v{X+3}, 20, s[{S['ex']}:{S['ex']+1}]
            v_lshlrev_b32 v{X+3}, 2, v{X+3}
            v_add_u32 v{X+3}, {CMP}, v{X+3}
            v_lshrrev_b32 v{X+4}, 5, v{l}
            v_lshlrev_b32 v{X+4}, 2, v{X+4}
            s_lshl_b32 s{S['t3']}, s{S['t1']}, 5
            v_add_u32 v{X+4}, s{S['t3']}, v{X+4}
            s_movk_i32 s{S['t3']}, 84
            """)
            for qd in range(4):
                a(f"""
                v_add_u32 v{X+5}, {8*qd}, v{X+4}
                v_mul_u32_u24 v{X+6}, 3277, v{X+5}
                v_lshrrev_b32 v{X+6}, 16, v{X+6}
                v_mad_u32_u24 v{X+7}, v{X+5}, s{S['t3']}, v{X+3}
                v_cmp_eq_u32 vcc, v{X+6}, v{X+2}
                s_or_b64 vcc, vcc, s[{S['ex']}:{S['ex']+1}]
                s_and_b64 s[{S['m2']}:{S['m2']+1}], vcc, s[{S['m1']}:{S['m1']+1}]
                v_cmp_gt_u32 vcc, 80, v{X+5}
                s_and_b64 vcc, vcc, s[{S['m2']}:{S['m2']+1}]
                v_cndmask_b32 v{CMPA+4*h+qd}, v{X+8}, v{X+7}, vcc
                """)
            a(f"""
            s_lshl_b32 s{S['pa']}, s{S['t1']}, 11
            s_lshl_b32 s{S['t3']}, s{S['t2']}, 11
            s_cmp_ge_u32 s{S['w']}, 5
            s_cselect_b32 s{S['pa']+1}, {ONES}, s{S['t3']}
            """)

    def scatter_setup(X):
        for i in range(7):
            a(f"""
            v_add_u32 v{X}, {256*i - 256}, v0
            v_mul_u32_u24 v{X+1}, 3121, v{X}
            v_lshrrev_b32 v{X+1}, 16, v{X+1}
            v_mul_u32_u24 v{X+2}, 21, v{X+1}
            v_sub_u32 v{X+2}, v{X}, v{X+2}
            v_mul_u32_u24 v{X+3}, 3277, v{X+1}
            v_lshrrev_b32 v{X+3}, 16, v{X+3}
            v_mad_u32_u24 v{X+4}, v{X+3}, 20, v{X+2}
            v_lshrrev_b32 v{X+5}, 5, v{X+4}
            v_lshlrev_b32 v{X+5}, 1, v{X+5}
            v_and_b32 v{X+4}, 31, v{X+4}
            v_cmp_eq_u32 vcc, 20, v{X+2}
            v_cndmask_b32 v{X+5}, v{X+5}, 9, vcc
            v_cndmask_b32 v{X+4}, v{X+4}, v{X+3}, vcc
            v_lshrrev_b32 v{X+6}, 4, v{X+1}
            v_add_u32 v{X+5}, v{X+5}, v{X+6}
            v_mul_u32_u24 v{X+6}, 52, v{X+5}
            v_lshrrev_b32 v{X+6}, 8, v{X+6}
            v_mad_u32_u24 v{X+5}, v{X+6}, 15, v{X+5}
            v_lshlrev_b32 v{X+5}, 10, v{X+5}
            v_bfe_u32 v{X+6}, v{X+1}, 2, 1
            v_lshl_add_u32 v{X+4}, v{X+6}, 5, v{X+4}
            v_lshl_add_u32 v{X+5}, v{X+4}, 4, v{X+5}
            v_bfe_u32 v{X+6}, v{X+1}, 3, 1
            v_and_b32 v{X+4}, 3, v{X+1}
            v_lshl_add_u32 v{X+4}, v{X+6}, 2, v{X+4}
            v_lshl_add_u32 v{X+5}, v{X+4}, 1, v{X+5}
            v_add_u32 v{X+5}, {FRG}, v{X+5}
            v_mov_b32 v{X+6}, {GAP}
            v_cmp_gt_u32 vcc, 1680, v{X}
            v_cndmask_b32 v{QSCA+i}, v{X+6}, v{X+5}, vcc
            """)

    def step_off(i, dst, base, mul):
        n, r, s0, k = (S["nH"], S["rH"], S["sH"], i) if i < 7 else (S["nO"], S["rO"], S["sO"], i - 7)
        it = f"""
        s_add_u32 s{dst}, s{r}, {k}
        s_cmp_ge_u32 s{dst}, s{n}
        s_cselect_b32 s{S['pc']}, s{n}, 0
        s_sub_u32 s{dst}, s{dst}, s{S['pc']}
        s_add_u32 s{dst}, s{dst}, s{s0}
        s_mul_i32 s{dst}, s{dst}, {mul}
        s_add_u32 s{dst}, s{dst}, s{base}
        """
        if i in (6, 9):
            it += f"s_cmp_gt_u32 s{n}, {k}\ns_cselect_b32 s{dst}, s{dst}, {OOB}"
        return I(it)

    def b_load(i, reg):
        pcs = []
        for ct in range(5):
            pre = step_off(i, JT, S["p2B"], 5120) if ct == 0 else (I(f"s_add_u32 s{JT}, s{JT}, 4096") if ct == 4 else [])
            pcs.append(pre + [("vm", f"buffer_load_dwordx4 v[{reg+4*ct}:{reg+4*ct+3}], v{L16}, s[{SWS}:{SWS+3}], s{JT} offen offset:{(ct&3)*1024} sc1", ("B", i))])
        return pcs

    def b_prefetch_regs(first=0):
        pcs = []
        for i in range(first, 5):
            pcs += b_load(i, BB + 20 * i)
        return pcs

    def b_prefetch_lds():
        pcs = []
        for i in (7, 8, 9):
            for ct in range(5):
                pre = step_off(i, JT, S["p2B"], 5120) + I(f"s_mul_i32 s{JT1}, s{S['w']}, {PW}") if ct == 0 else I(f"s_add_u32 s{JT}, s{JT}, 1024")
                pcs.append(pre + I(f"s_add_u32 m0, s{JT1}, {(i-7)*5120 + ct*1024}") +
                           [("vm", f"buffer_load_dwordx4 v{L16}, s[{SWS}:{SWS+3}], s{JT} offen sc1 lds", ("B", i))])
        return pcs

    P2S = S["so"]

    def areg(i):
        return T + 16 * (i % 3) if i < 7 else BB + 20 * (i - 5)

    def breg(i):
        return BB + 20 * (i % 5) if i < 7 else BB + 20 * ((i - 7) & 1)

    def a_load(i):
        f = areg(i)
        it = [("atomic", step_off(i, P2S, S["p2A"], 4096))]
        for tt in range(4):
            it.append(("vm", f"buffer_load_dwordx4 v[{f+4*tt}:{f+4*tt+3}], v{L16}, s[{SWS}:{SWS+3}], s{P2S} offen offset:{tt*1024}{' sc1' if Cfg.p2sc else ''}", ("A", i)))
        return it

    def a2_addr(dst):
        a(f"""
        s_lshl_b32 s{S['t']}, s{S['rb']}, 1
        s_lshr_b32 s{S['t1']}, s{S['rg']}, 1
        s_add_u32 s{S['t']}, s{S['t']}, s{S['t1']}
        s_mul_i32 s{S['t']}, s{S['t']}, {A2_RB}
        s_and_b32 s{S['t1']}, s{S['rg']}, 1
        s_lshl_b32 s{S['t1']}, s{S['t1']}, 11
        s_add_u32 s{S['t']}, s{S['t']}, s{S['t1']}
        v_bfe_u32 v{dst}, v{l}, 4, 1
        v_lshlrev_b32 v{dst}, 10, v{dst}
        v_lshrrev_b32 v{dst+1}, 5, v{l}
        v_lshl_add_u32 v{dst}, v{dst+1}, 8, v{dst}
        v_and_b32 v{dst+1}, 15, v{l}
        v_lshl_add_u32 v{dst}, v{dst+1}, 4, v{dst}
        v_add_u32 v{dst}, s{S['t']}, v{dst}
        """)

    def signal(flag, idx_reg):
        a(f"""
        s_add_u32 s{S['t']}, s{idx_reg}, {flag}
        s_lshl_b32 s{S['t']}, s{S['t']}, 7
        v_mov_b32 v{T+46}, s{S['t']}
        v_mov_b32 v{T+47}, 1
        s_cmp_eq_u32 s{S['w']}, 0
        s_cselect_b32 exec_lo, 1, 0
        s_mov_b32 exec_hi, 0
        global_atomic_add v{T+46}, v{T+47}, s[{S['fl']}:{S['fl']+1}]
        s_mov_b64 exec, -1
        """)

    def lds_add(off):
        a(f"v_mov_b32 v{RS}, {SYN}\nv_mov_b32 v{IRS}, 1\ns_mov_b64 exec, 1\nds_add_u32 v{RS}, v{IRS} offset:{off}\ns_mov_b64 exec, -1")

    def lds_wait(off, target, err, tmp):
        def chk():
            a(f"ds_read_b32 v{tmp+1}, v{tmp} offset:{off}\ns_waitcnt lgkmcnt(0)\nv_readfirstlane_b32 s{S['t']}, v{tmp+1}\ns_cmp_ge_u32 s{S['t']}, {target}")
        a(f"v_mov_b32 v{tmp}, {SYN}")
        chk()
        poll_slow(chk, err, sleep=1)

    def wait_flag(st, flag, target, err, line_expr, who=0, then=None):
        skip = a.newlabel("WF")

        def chk():
            a(f"""
            global_load_dword v{IRS}, v{RS}, s[{S['fl']}:{S['fl']+1}] sc1
            s_waitcnt vmcnt(0)
            v_readfirstlane_b32 s{S['t']}, v{IRS}
            s_cmp_ge_u32 s{S['t']}, {target}
            """)
        a(f"""
        s_cmp_lg_u32 s{S['w']}, {who}
        s_cbranch_scc1 {skip}
        {line_expr}
        s_add_u32 s{S['t']}, s{S['t']}, {flag}
        s_lshl_b32 s{S['t']}, s{S['t']}, 7
        v_mov_b32 v{RS}, s{S['t']}
        s_mov_b64 exec, 1
        """)
        chk()
        poll_slow(chk, err, sleep=4)
        a("s_mov_b64 exec, -1")
        if then is not None:
            lds_add(then)
        a.label(skip)

    def emit_pcs(st, pcs):
        for p in pcs:
            emit_all(st, p)

    def h_epilogue(nt, tp, st, first, lds_done=False):
        C = T + 12
        a(f"""
        v_mul_f32 v{C}, {hx(GC1)}, v{RS}
        v_mul_f32 v{C+2}, v{RS}, v{RS}
        v_mul_f32 v{C+2}, v{C+2}, v{RS}
        v_mul_f32 v{C+2}, {hx(GC2)}, v{C+2}
        v_mov_b32 v{C+4}, v{IRS}
        """)
        AD = T + 18
        a2_addr(AD)
        a(f"s_lshl_b32 s{S['t']}, s{S['col0']}, 7\ns_lshl_b32 s{S['t1']}, s{tp}, 12\ns_add_u32 s{S['t']}, s{S['t']}, s{S['t1']}")
        pf = b_prefetch_regs()
        W0 = T + 20
        pk = Cfg.gelu_pk0 if first else 1
        if nt == 3 and Cfg.eprio:
            a(f"s_setprio {Cfg.eprio}")
        for t in range(nt):
            acc = ACC + 16 * t
            for c in range(2):
                o = T + 32 + 4 * ((2 * t + c) % 3)
                ps = [acc + 8 * c + 2 * k for k in range(4)]
                ws = [W0 + 2 * k for k in range(4)]
                seq = []
                if pk:
                    seq.append([f"v_pk_mul_f32 v[{w}:{w+1}], v[{p}:{p+1}], v[{p}:{p+1}]" for p, w in zip(ps, ws)])
                    seq.append([f"v_pk_fma_f32 v[{w}:{w+1}], v[{w}:{w+1}], v[{C+2}:{C+3}], v[{C}:{C+1}] op_sel_hi:[1,0,0]" for w in ws])
                    seq.append([f"v_pk_mul_f32 v[{w}:{w+1}], v[{w}:{w+1}], v[{p}:{p+1}]" for p, w in zip(ps, ws)])
                else:
                    seq.append([f"v_mul_f32 v{w+k}, v{p+k}, v{p+k}" for p, w in zip(ps, ws) for k in range(2)])
                    seq.append([f"v_fma_f32 v{w+k}, v{w+k}, v{C+2}, v{C}" for w in ws for k in range(2)])
                    seq.append([f"v_mul_f32 v{w+k}, v{w+k}, v{p+k}" for p, w in zip(ps, ws) for k in range(2)])
                seq.append([f"v_exp_f32 v{w+k}, v{w+k}" for w in ws for k in range(2)])
                if pk:
                    seq.append([f"v_pk_fma_f32 v[{w}:{w+1}], v[{w}:{w+1}], v[{C+4}:{C+5}], v[{C+4}:{C+5}] op_sel_hi:[1,0,0]" for w in ws])
                else:
                    seq.append([f"v_fma_f32 v{w+k}, v{w+k}, v{C+4}, v{C+4}" for w in ws for k in range(2)])
                seq.append([f"v_rcp_f32 v{w+k}, v{w+k}" for w in ws for k in range(2)])
                if pk:
                    seq.append([f"v_pk_mul_f32 v[{w}:{w+1}], v[{w}:{w+1}], v[{p}:{p+1}]" for p, w in zip(ps, ws)])
                else:
                    seq.append([f"v_mul_f32 v{w+k}, v{w+k}, v{p+k}" for p, w in zip(ps, ws) for k in range(2)])
                seq.append([f"v_cvt_pk_bf16_f32 v{o+k}, v{w}, v{w+1}" for k, w in enumerate(ws)])
                for gi, grp in enumerate(seq):
                    for x in grp:
                        a(x)
                    if not first and gi in (1, 3, 5, 2, 4)[:Cfg.pf_h] and pf:
                        emit_all(st, pf.pop(0))
                st.emit(("vm", f"buffer_store_dwordx4 v[{o}:{o+3}], v{AD}, s[{SWS}:{SWS+3}], s{S['t']} offen offset:{c*512} sc1", "hst"))
                if first and 2 * t + c + 1 == Cfg.hbar_chunk:
                    a("s_barrier")
            a(f"s_add_u32 s{S['t']}, s{S['t']}, 4096")
        stamp(14)
        if first:
            emit_pcs(st, pf)
            pf = []
        st.wait("vm", ["hst"])
        stamp(15)
        a("s_setprio 0\ns_barrier")
        signal(F_H, S["rb"])
        emit_pcs(st, pf + ([] if lds_done else b_prefetch_lds()))

    def products_and_atomics(q, st):
        D = ACC + 48 if q else ACC
        PA, X = T, T + 40
        pb = [(ACC + 64 + 4 * (s_ & 3)) if q else (ACC + 16 + 4 * s_) for s_ in range(8)]
        a(f"""
        v_add_u32 v{X}, s{S['pa']}, v{L16}
        v_add_u32 v{X+1}, s{S['pa']+1}, v{L16}
        s_cmp_ge_u32 s{S['w']}, 5
        s_cselect_b32 s{S['t']}, 0, 1024
        s_cselect_b32 s{S['t1']}, 0, 10240
        v_add_u32 v{X+2}, s{S['t']}, v{X+1}
        s_waitcnt lgkmcnt(0)
        s_barrier
        """)
        st.q["ds"].clear()
        stamp(14)

        def rd(s_):
            st.emit(("ds", f"ds_read_b128 v[{PA+4*s_}:{PA+4*s_+3}], v{X} offset:{(s_ >> 1) * 10240 + (s_ & 1) * 1024}", ("p", s_)))
            st.emit(("ds", f"ds_read_b128 v[{pb[s_]}:{pb[s_]+3}], v{X+1+(s_&1)}", ("p", s_)))
            if s_ & 1 and s_ < 7:
                a(f"v_add_u32 v{X+1}, s{S['t1']}, v{X+1}\nv_add_u32 v{X+2}, s{S['t1']}, v{X+2}")
        ahead = 4 if q else 7
        for s_ in range(ahead):
            rd(s_)
        for s_ in range(8):
            st.wait("ds", [("p", s_)])
            c = "0" if s_ == 0 else f"v[{D}:{D+15}]"
            a(f"v_mfma_f32_32x32x16_bf16 v[{D}:{D+15}], v[{PA+4*s_}:{PA+4*s_+3}], v[{pb[s_]}:{pb[s_]+3}], {c}")
            if s_ + ahead < 8:
                rd(s_ + ahead)
        a(f"""
        s_lshl_b32 s{S['t']}, s{S['j']}, 13
        s_add_u32 s96, s24, s{S['t']}
        s_addc_u32 s97, s25, 0
        s_add_u32 s96, s96, {KV_OFF}
        s_addc_u32 s97, s97, 0
        v_lshlrev_b32 v{X}, 2, v0
        v_add_u32 v{X+1}, 4096, v{X}
        v_add_u32 v{X+2}, {CMP}, v{X}
        v_cmp_gt_u32 vcc, 144, v0
        """)
        for r in range(16):
            a(f"ds_write_b32 v{CMPA + (r >> 2)}, v{D+r} offset:{(r & 3)*84}")
        a("s_waitcnt lgkmcnt(0)\ns_barrier")
        stamp(25)
        for i in range(4):
            a(f"ds_read_b32 v{T+32+i}, v{X+2} offset:{i*2048}")
        for i in range(4):
            a(f"s_waitcnt lgkmcnt({3-i})")
            if i == 3:
                a("s_mov_b64 exec, vcc")
            st.emit(("vm0" if i == 3 else "vm", f"global_atomic_add_f32 v{X+(i>>1)}, v{T+32+i}, s[96:97] offset:{(i&1)*2048}", "kva"))
        a("s_mov_b64 exec, -1")

    st = kloop(True, True)
    a(f"""
    v_mov_b32 v{T+8}, 0
    v_mov_b32 v{T+9}, 0
    v_mov_b32 v{T+10}, 0
    v_mov_b32 v{T+11}, 0
    v_lshlrev_b32 v{T+7}, 4, v0
    v_add_u32 v{T+6}, {FRG - 4096}, v{T+7}
    ds_write_b128 v{T+6}, v[{T+8}:{T+11}]
    ds_write_b128 v{T+6}, v[{T+8}:{T+11}] offset:1024
    ds_write_b128 v{T+6}, v[{T+8}:{T+11}] offset:{PW}
    ds_write_b128 v{T+6}, v[{T+8}:{T+11}] offset:{PW + 1024}
    ds_write_b128 v{T+6}, v[{T+8}:{T+11}] offset:{2*PW}
    v_lshlrev_b32 v{T+7}, 2, v0
    v_add_u32 v{T+7}, {ONES - 1024}, v{T+7}
    v_mov_b32 v{T+12}, 0x3f803f80
    ds_write_b32 v{T+7}, v{T+12}
    """)
    pfq = b_prefetch_regs() + ([] if Cfg.early_lds else b_prefetch_lds())
    emit_pcs(st, pfq[:Cfg.pf_q1])
    pfq = pfq[Cfg.pf_q1:]
    if Cfg.cprio:
        a("s_setprio 3")
    products_and_atomics(True, st)
    PQ = ACC + 48
    a(f"v_mul_f32 v{T+44}, {hx(LOG2E)}, v{RS}\nv_mul_f32 v{T+45}, {hx(EPS6)}, v{IRS}")
    for f in range(5):
        base = ACC + 8 * f
        for k in range(4):
            a(f"v_pk_mul_f32 v[{T+2*k}:{T+2*k+1}], v[{base+2*k}:{base+2*k+1}], v[{T+44}:{T+45}] op_sel_hi:[1,0]")
        for k in range(8):
            a(f"v_exp_f32 v{T+k}, v{T+k} clamp")
        for k in range(8):
            a(f"v_max_f32 v{base+k}, v{base+k}, v{T+45}")
        for k in range(4):
            a(f"v_pk_fma_f32 v[{T+2*k}:{T+2*k+1}], v[{base+2*k}:{base+2*k+1}], v[{RS}:{RS+1}], v[{T+2*k}:{T+2*k+1}] op_sel_hi:[1,0,1]")
        for k in range(4):
            a(f"v_cvt_pk_bf16_f32 v{PQ+4*f+k}, v{T+2*k}, v{T+2*k+1}")
        if f == Cfg.phi_n - 1:
            st.wait("vm", ["kva"])
            stamp(26)
            a("s_barrier")
            stamp(15)
    AD = T + 44
    a2_addr(AD)
    a(f"""
    v_add_u32 v{T+46}, {FRG}, v{L16}
    v_lshlrev_b32 v{T+8}, 2, v0
    v_subrev_u32 v{T+8}, 1024, v{T+8}
    v_add_u32 v{T+9}, 4096, v{T+8}
    """)
    wait_flag(st, F_KV, 16, 0x102, f"s_mov_b32 s{S['t']}, s{S['j']}", who=4, then=0)
    lds_wait(0, 1, 0x109, RS)
    stamp(16)
    for i in range(7):
        st.emit(("vm", f"global_load_dword v{T+i}, v{T+8+(i>>2)}, s[96:97] offset:{(i&3)*1024} sc1", ("g", i)))
    for i in range(7):
        a(f"v_cmp_le_u32 vcc, {frg(9)}, v{QSCA+i}")
        st.wait("vm", [("g", i)])
        a(f"""
        v_cvt_pk_bf16_f32 v{T+i}, v{T+i}, v{T+i}
        ds_write_b16 v{QSCA+i}, v{T+i}
        s_mov_b64 exec, vcc
        ds_write_b16 v{QSCA+i}, v{T+i} offset:64
        s_mov_b64 exec, -1
        """)
    a("s_waitcnt lgkmcnt(0)")
    lds_add(4)
    lds_wait(4, 4, 0x10a, RS)
    stamp(17)
    NUM, DEN = ACC, T + 28
    prods = [(9 + ks, ks, DEN) for ks in range(5)] + [(ks + 2 * Tt, ks, NUM + 16 * Tt) for Tt, kss in ((0, (0, 1, 2)), (1, (1, 2, 3, 4)), (2, (3, 4))) for ks in kss]
    FRS = [T + 4 * i for i in range(7)] + [ACC + 68 + 4 * i for i in range(3)]

    def frd(i):
        fi = prods[i][0]
        r = FRS[i % 10]
        st.emit(("ds", f"ds_read_b128 v[{r}:{r+3}], v{T+46} offset:{frg(fi)-FRG}", ("f", i)))
    for i in range(10):
        frd(i)
    seen = set()
    for i, (fi, ks, D) in enumerate(prods):
        st.wait("ds", [("f", i)])
        c = f"v[{D}:{D+15}]" if D in seen else "0"
        seen.add(D)
        r = FRS[i % 10]
        a(f"v_mfma_f32_32x32x16_bf16 v[{D}:{D+15}], v[{r}:{r+3}], v[{PQ+4*ks}:{PQ+4*ks+3}], {c}")
        if i + 10 < 14:
            frd(i + 10)
        if i == 8:
            for h in range(4):
                a(f"v_add_f32 v{DEN+h}, {hx(1e-6)}, v{DEN+h}")
            for h in range(4):
                a(f"v_rcp_f32 v{DEN+h}, v{DEN+h}")
    a(f"""
    s_mov_b32 s{S['m1']}, 0
    s_mov_b32 s{S['m1']+1}, -1
    v_cndmask_b32 v{DEN+4}, v{DEN}, v{DEN+1}, s[{S['m1']}:{S['m1']+1}]
    v_cndmask_b32 v{DEN+5}, v{DEN+2}, v{DEN+3}, s[{S['m1']}:{S['m1']+1}]
    s_mul_i32 s{S['t2']}, s{S['j']}, 5
    """)
    for p2 in range(5):
        for k in range(8):
            qd = 2 * p2 + (k >> 2)
            h0, h1 = (2 * qd) // 5, (2 * qd + 1) // 5
            dr = DEN + h0 if h0 == h1 else (DEN + 4 if h0 == 0 else DEN + 5)
            a(f"v_mul_f32 v{NUM+8*p2+k}, v{NUM+8*p2+k}, v{dr}")
        o = ACC + 48 + 4 * p2
        a(f"""
        s_add_u32 s{S['t']}, s{S['t2']}, {p2}
        s_lshr_b32 s{S['t1']}, s{S['t']}, 1
        s_lshl_b32 s{S['t1']}, s{S['t1']}, 12
        s_and_b32 s{S['t']}, s{S['t']}, 1
        s_lshl_b32 s{S['t']}, s{S['t']}, 9
        s_add_u32 s{S['t']}, s{S['t']}, s{S['t1']}
        s_add_u32 s{S['t']}, s{S['t']}, {54*4096}
        """)
        for k in range(4):
            a(f"v_cvt_pk_bf16_f32 v{o+k}, v{NUM+8*p2+2*k}, v{NUM+8*p2+2*k+1}")
        a(f"buffer_store_dwordx4 v[{o}:{o+3}], v{AD}, s[{SWS}:{SWS+3}], s{S['t']} offen sc1")
    stamp(18)
    lds_wait(8, 1, 0x10b, RS)
    emit_pcs(st, pfq)
    nq = sum(1 for p in pfq for x in p if x[0] == "vm")
    for i in range(3):
        emit_all(st, a_load(i))
    a(f"""
    s_add_u32 s{S['t']}, s{S['rb']}, {F_O}
    s_lshl_b32 s{S['t']}, s{S['t']}, 7
    v_mov_b32 v{RS}, s{S['t']}
    v_mov_b32 v{IRS}, 1
    s_waitcnt vmcnt({12 + nq})
    s_mov_b64 exec, 1
    global_atomic_add v{RS}, v{IRS}, s[{S['fl']}:{S['fl']+1}]
    s_mov_b64 exec, -1
    s_setprio {Cfg.qprio}
    s_branch PHASE2C
    """)

    a.label("ROLE_KV")
    st = kloop(False, True)
    if Cfg.cprio:
        a("s_setprio 3")
    RT, RL2, E = T, T + 16, T + 32
    X = T + 40
    a(f"""
    v_lshrrev_b32 v{X}, 5, v{l}
    v_lshlrev_b32 v{X}, 4, v{X}
    s_lshl_b32 s{S['t']}, s{S['rg']}, 7
    s_add_u32 s{S['t']}, s{S['t']}, {ST_RS}
    v_add_u32 v{X}, s{S['t']}, v{X}
    """)
    for i in range(4):
        a(f"ds_read_b128 v[{RT+4*i}:{RT+4*i+3}], v{X} offset:{i*32}")
    a(f"""
    s_mul_i32 s{S['t']}, s{S['rg']}, 10240
    v_add_u32 v{X+1}, s{S['t']}, v{L16}
    s_mov_b32 s{S['m2']}, 0x0000ffff
    s_mov_b32 s{S['m2']+1}, 0x0000ffff
    v_mov_b32 v{X+2}, {hx(LOG2E)}
    v_mov_b32 v{X+3}, {hx(EPS6)}
    v_mov_b32 v{X+4}, 0xff800000
    v_cndmask_b32 v{X+5}, v{X+4}, v{X+3}, s[{S['m2']}:{S['m2']+1}]
    v_cndmask_b32 v{X+4}, v{X+4}, 0, s[{S['m2']}:{S['m2']+1}]
    s_waitcnt lgkmcnt(0)
    """)
    for k in range(8):
        a(f"v_pk_mul_f32 v[{RL2+2*k}:{RL2+2*k+1}], v[{RT+2*k}:{RT+2*k+1}], v[{X+2}:{X+3}] op_sel_hi:[1,0]")
    pfk = b_prefetch_regs()
    for t in range(5):
        for hf in range(2):
            base = ACC + 16 * t + 8 * hf
            o = base
            if Cfg.kv_pk:
                if t <= 2:
                    for k in range(4):
                        p, r = f"v[{base+2*k}:{base+2*k+1}]", f"v[{RL2+8*hf+2*k}:{RL2+8*hf+2*k+1}]"
                        if t < 2:
                            a(f"v_pk_mul_f32 v[{E+2*k}:{E+2*k+1}], {p}, {r}")
                        else:
                            a(f"v_pk_fma_f32 v[{E+2*k}:{E+2*k+1}], {p}, {r}, v[{X+4}:{X+5}] op_sel_hi:[1,1,0]")
                for k in range(4):
                    a(f"v_pk_mul_f32 v[{base+2*k}:{base+2*k+1}], v[{base+2*k}:{base+2*k+1}], v[{RT+8*hf+2*k}:{RT+8*hf+2*k+1}]")
            else:
                if t <= 2:
                    for k in range(8):
                        if t < 2:
                            a(f"v_mul_f32 v{E+k}, v{base+k}, v{RL2+8*hf+k}")
                        else:
                            a(f"v_fma_f32 v{E+k}, v{base+k}, v{RL2+8*hf+k}, v{X+4}")
                for k in range(8):
                    a(f"v_mul_f32 v{base+k}, v{base+k}, v{RT+8*hf+k}")
            if t <= 2:
                for k in range(8):
                    a(f"v_exp_f32 v{E+k}, v{E+k} clamp")
                for k in range(8):
                    a(f"v_max_f32 v{base+k}, v{X+3 if t < 2 else X+5}, v{base+k}")
                if Cfg.kv_pk:
                    for k in range(4):
                        a(f"v_pk_add_f32 v[{base+2*k}:{base+2*k+1}], v[{base+2*k}:{base+2*k+1}], v[{E+2*k}:{E+2*k+1}]")
                else:
                    for k in range(8):
                        a(f"v_add_f32 v{base+k}, v{base+k}, v{E+k}")
            for k in range(4):
                a(f"v_cvt_pk_bf16_f32 v{o+k}, v{base+2*k}, v{base+2*k+1}")
            a(f"ds_write_b128 v{X+1}, v[{o}:{o+3}] offset:{t*2048 + hf*1024}")
            for _ in range(Cfg.pf_k0):
                if pfk:
                    emit_all(st, pfk.pop(0))
    products_and_atomics(False, st)
    st.wait("vm", ["kva"])
    stamp(26)
    a("s_barrier")
    stamp(15)
    signal(F_KV, S["j"])
    a("s_setprio 0")
    emit_pcs(st, pfk + b_prefetch_lds())
    stamp(16)
    wait_flag(st, F_H, 8, 0x107, f"s_lshr_b32 s{S['t']}, s{S['r2']}, 1", then=8)
    lds_wait(8, 1, 0x10c, RS)
    a("s_branch PHASE2B")

    a.label("ROLE_H0")
    st = kloop(False, False)
    h_epilogue(4, S["tp1"], st, False)
    a("s_branch PHASE2")
    a.label("ROLE_H1")
    st = kloop(True, False)
    h_epilogue(3, S["tp1"], st, False, Cfg.early_lds)

    a.label("PHASE2")
    stamp(19)
    st = Stream(a)
    wait_flag(st, F_H, 8, 0x105, f"s_lshr_b32 s{S['t']}, s{S['r2']}, 1")
    a("s_barrier")
    a.label("PHASE2B")
    stamp(20)

    OA, RAD, WA, CB = SMALL, SMALL + 3, SMALL + 6, SMALL + 14
    XR = [T + 16 + 2 * k for k in range(3)]
    BR = [T + 22 + 2 * k for k in range(3)]

    def epi_setup():
        X = RS
        it = I(f"""
        s_mov_b32 s{SR}, s20
        s_mov_b32 s{SR+1}, s21
        s_mov_b32 s{SR+2}, {2048*1280}
        s_mov_b32 s{SR+3}, 0x20000
        s_mov_b32 s{SAUX}, s18
        s_mov_b32 s{SAUX+1}, s19
        s_mov_b32 s{SAUX+2}, 1280
        s_mov_b32 s{SAUX+3}, 0x20000
        s_mul_i32 s{JT}, s{S['r2']}, {64*1280}
        s_mul_i32 s{JT1}, s{S['c2']}, 160
        s_add_u32 s{JT}, s{JT}, s{JT1}
        """)
        Y = SMALL + 7
        for i in range(3):
            it += I(f"""
            v_add_u32 v{Y}, {512*i}, v0
            v_mul_u32_u24 v{Y+1}, 3277, v{Y}
            v_lshrrev_b32 v{Y+1}, 16, v{Y+1}
            v_mul_u32_u24 v{Y+2}, 20, v{Y+1}
            v_sub_u32 v{Y+2}, v{Y}, v{Y+2}
            v_mul_u32_u24 v{Y+3}, 1280, v{Y+1}
            v_lshl_add_u32 v{Y+3}, v{Y+2}, 3, v{Y+3}
            v_add_u32 v{Y+3}, s{JT}, v{Y+3}
            v_cmp_gt_u32 vcc, 1280, v{Y}
            v_mov_b32 v{Y+4}, {OOB}
            v_cndmask_b32 v{OA+i}, v{Y+4}, v{Y+3}, vcc
            v_bfe_u32 v{Y+4}, v{Y+1}, 1, 2
            v_xor_b32 v{Y+4}, v{Y+4}, v{Y+2}
            v_mul_u32_u24 v{Y+5}, 320, v{Y+1}
            v_lshl_add_u32 v{Y+5}, v{Y+4}, 4, v{Y+5}
            v_cndmask_b32 v{RAD+i}, 0, v{Y+5}, vcc
            v_lshlrev_b32 v{CB+i}, 3, v{Y+2}
            """)
        it += I(f"""
        v_and_b32 v{Y}, 15, v{l}
        v_mul_u32_u24 v{Y}, 320, v{Y}
        v_lshrrev_b32 v{Y+1}, 4, v{l}
        v_bfe_u32 v{Y+2}, v{l}, 1, 2
        v_xor_b32 v{Y+1}, v{Y+1}, v{Y+2}
        v_lshl_add_u32 v{Y}, v{Y+1}, 4, v{Y}
        s_mul_i32 s{JT}, s{S['w']}, {PW}
        v_add_u32 v{WA}, s{JT}, v{Y}
        v_add_u32 v{Y+6}, s{JT}, v{L16}
        """)
        return it

    def epi_loads():
        it = I(f"s_mul_i32 s{JT1}, s{S['c2']}, 160")
        for i in range(3):
            it.append(("vm", f"buffer_load_dwordx2 v[{XR[i]}:{XR[i]+1}], v{OA+i}, s[{SX}:{SX+3}], 0 offen", "x"))
            it.append(("vm", f"buffer_load_dwordx2 v[{BR[i]}:{BR[i]+1}], v{CB+i}, s[{SAUX}:{SAUX+3}], s{JT1} offen", "x"))
        return it

    LB = SMALL + 13

    def p2_step(i, fill):
        st.wait("vm", [("A", i), ("B", i)])
        st.wait("ds", [("B", i)])
        f, b = areg(i), breg(i)
        opt = i in (6, 9)
        if opt:
            emit_all(st, fill)
            fill = []
            lab = a.newlabel("OPT")
            a(f"s_cmp_gt_u32 s{S['nH'] if i == 6 else S['nO']}, {6 if i == 6 else 2}\ns_cbranch_scc0 {lab}")
        k = 0
        for tt in range(4):
            for ct in range(5):
                acc = ACC + 4 * (tt * 5 + ct)
                c = "0" if i == 0 else f"v[{acc}:{acc+3}]"
                a(f"v_mfma_f32_16x16x32_bf16 v[{acc}:{acc+3}], v[{b+4*ct}:{b+4*ct+3}], v[{f+4*tt}:{f+4*tt+3}], {c}")
                k += 1
                n = -(-len(fill) // (21 - k)) if fill else 0
                for _ in range(min(n, len(fill))):
                    emit_item(st, fill.pop(0))
        if opt:
            a.label(lab)

    def lds_b(i):
        r = breg(i)
        return [("ds", f"ds_read_b128 v[{r+4*ct}:{r+4*ct+3}], v{LB} offset:{(i-7)*5120 + ct*1024}", ("B", i)) for ct in range(5)]

    def o_loads(s2):
        for k in (7, 8, 9):
            emit_all(s2, a_load(k))

    def o_try():
        l0, l1 = a.newlabel("OT"), a.newlabel("OT")
        a(f"""
        s_mov_b32 s{S['hs']}, 0
        s_cmp_lg_u32 s{S['w']}, 0
        s_cbranch_scc1 {l0}
        s_lshr_b32 s{S['t']}, s{S['r2']}, 1
        s_add_u32 s{S['t']}, s{S['t']}, {F_O}
        s_lshl_b32 s{S['t']}, s{S['t']}, 7
        v_mov_b32 v{RS}, s{S['t']}
        global_load_dword v{IRS}, v{RS}, s[{S['fl']}:{S['fl']+1}] sc1
        s_waitcnt vmcnt(0)
        v_readfirstlane_b32 s{S['t']}, v{IRS}
        s_cmp_ge_u32 s{S['t']}, 32
        s_cbranch_scc0 {l1}
        """)
        lds_add(12)
        a(f"""
        {l0}:
        v_mov_b32 v{RS}, {SYN}
        ds_read_b32 v{IRS}, v{RS} offset:12
        s_waitcnt lgkmcnt(0)
        v_readfirstlane_b32 s{S['t']}, v{IRS}
        s_cmp_ge_u32 s{S['t']}, 1
        s_cbranch_scc0 {l1}
        s_mov_b32 s{S['hs']}, 1
        """)
        o_loads(Stream(a))
        a.label(l1)

    def o_wait():
        done = a.newlabel("OW")
        if Cfg.o_try >= 0:
            a(f"s_cmp_eq_u32 s{S['hs']}, 1\ns_cbranch_scc1 {done}")
        wait_flag(st, F_O, 32, 0x106, f"s_lshr_b32 s{S['t']}, s{S['r2']}, 1", then=12)
        lds_wait(12, 1, 0x10d, RS)
        o_loads(st)
        a.label(done)
        lds_add(16)
        stamp(21)

    def after_step(i):
        it = []
        if i + 3 <= 6:
            it += a_load(i + 3)
        if i in (0, 1):
            for p in b_load(i + 5, breg(i)):
                it.append(("atomic", p))
        if i == Cfg.o_try:
            it.append(("call", o_try))
        if i == Cfg.o_at:
            it.append(("call", o_wait))
        if i == 4:
            it += epi_loads()
        if i in (5, 6, 7):
            it = lds_b(i + 2) + it
        return it

    for i in range(3):
        emit_all(st, a_load(i))
    a.label("PHASE2C")
    carry = group_scc(epi_setup())
    for i in range(10):
        if i == 7 and Cfg.o_at == 6:
            emit_all(st, carry)
            carry = []
        p2_step(i, carry)
        stamp(27 + i)
        carry = after_step(i)
    st.wait2(None, None)
    a.label("P2_RED")
    stamp(22)
    a(f"s_cmp_lg_u32 s{S['w']}, 7\ns_cbranch_scc1 P2_DUMP")
    lds_wait(16, 8, 0x10e, RS)
    a.label("P2_DUMP")
    for tt in range(4):
        for ct in range(5):
            acc = ACC + 4 * (tt * 5 + ct)
            a(f"ds_write_b128 v{WA}, v[{acc}:{acc+3}] offset:{tt*5120 + ct*64}")
    a("s_waitcnt lgkmcnt(0)\ns_barrier")
    stamp(23)
    for i in range(3):
        if i == 2:
            a(f"s_cmp_ge_u32 s{S['w']}, 4\ns_cbranch_scc1 FIN")
        f = ACC + 32 * (i & 1)
        a(f"v_add_u32 v{T+8}, {4*PW}, v{RAD+i}")
        for w in range(8):
            src, off = (RAD + i, w * PW) if w < 4 else (T + 8, (w - 4) * PW)
            a(f"ds_read_b128 v[{f+4*w}:{f+4*w+3}], v{src} offset:{off}")
        x, b = XR[i], BR[i]
        a(f"""
        v_lshlrev_b32 v{T}, 16, v{x}
        v_and_b32 v{T+1}, 0xffff0000, v{x}
        v_lshlrev_b32 v{T+2}, 16, v{x+1}
        v_and_b32 v{T+3}, 0xffff0000, v{x+1}
        v_lshlrev_b32 v{T+4}, 16, v{b}
        v_and_b32 v{T+5}, 0xffff0000, v{b}
        v_lshlrev_b32 v{T+6}, 16, v{b+1}
        v_and_b32 v{T+7}, 0xffff0000, v{b+1}
        v_pk_add_f32 v[{T}:{T+1}], v[{T}:{T+1}], v[{T+4}:{T+5}]
        v_pk_add_f32 v[{T+2}:{T+3}], v[{T+2}:{T+3}], v[{T+6}:{T+7}]
        """)
        for w in range(8):
            a(f"""
            s_waitcnt lgkmcnt({7-w})
            v_pk_add_f32 v[{T}:{T+1}], v[{T}:{T+1}], v[{f+4*w}:{f+4*w+1}]
            v_pk_add_f32 v[{T+2}:{T+3}], v[{T+2}:{T+3}], v[{f+4*w+2}:{f+4*w+3}]
            """)
        a(f"""
        v_cvt_pk_bf16_f32 v{T+10+2*i}, v{T}, v{T+1}
        v_cvt_pk_bf16_f32 v{T+11+2*i}, v{T+2}, v{T+3}
        buffer_store_dwordx2 v[{T+10+2*i}:{T+11+2*i}], v{OA+i}, s[{SR}:{SR+3}], 0 offen
        """)
    a.label("FIN")
    stamp(24)
    if Cfg.stamps and Cfg.stamps != 4:
        a(f"""
        s_memrealtime s[{S['t0']}:{S['t0']+1}]
        s_waitcnt lgkmcnt(0)
        v_writelane_b32 v{ITS}, s{S['t0']}, 63
        s_lshl_b32 s{S['t']}, s2, 3
        s_add_u32 s{S['t']}, s{S['t']}, s{S['w']}
        s_lshl_b32 s{S['t']}, s{S['t']}, 8
        s_add_u32 s{S['t']}, s{S['t']}, {STAMP_OFF}
        v_lshlrev_b32 v{T+20}, 2, v{l}
        v_add_u32 v{T+20}, s{S['t']}, v{T+20}
        global_store_dword v{T+20}, v{ITS}, s[24:25]
        """)
    a.label("END")
    a("s_endpgm")
    for f in ool:
        f()
    a.label("CODE_END")
    a("s_endpgm")
    return a.L


def build():
    head = open("cdna_kernels/%s.s.ref" % NAME).read().split("; Override launch")[0]
    out = head + "; @launch grid=(256,1,1) block=(512,1,1) lds=163840\n"
    out += '.amdgcn_target "amdgcn-amd-amdhsa--gfx950"\n.text\n'
    L, n = fix_hazards(gen())
    out += f".globl {KN}\n.p2align 8\n.type {KN},@function\n"
    out += "\n".join(x if x.endswith(":") else "    " + x for x in L) + "\n"
    print("instrs", len(L), "nops inserted", n, file=sys.stderr)
    out += f""".section .rodata,"a"
.p2align 6
.amdhsa_kernel {KN}
  .amdhsa_next_free_vgpr 256
  .amdhsa_next_free_sgpr 102
  .amdhsa_accum_offset 256
  .amdhsa_group_segment_fixed_size 0
  .amdhsa_kernarg_size 88
  .amdhsa_user_sgpr_count 2
  .amdhsa_user_sgpr_kernarg_segment_ptr 1
  .amdhsa_system_sgpr_workgroup_id_x 1
  .amdhsa_float_denorm_mode_32 3
.end_amdhsa_kernel
"""
    return out


if __name__ == "__main__":
    for arg in sys.argv[2:]:
        k, v = arg.split("=")
        assert hasattr(Cfg, k), k
        setattr(Cfg, k, int(v))
    open(sys.argv[1], "w").write(build())
```

```python
import sys, struct
from asmlib import Asm, fix_hazards, RegAlloc

NAME = "parallel_sum__linear_attn_block__mixer_channel_mlp__prompt"
KN = NAME + "_kernel"

A2_OFF = 0
A2_RB = 74 * 4096
B2_OFF = 32 * A2_RB
B2_C = 74 * 5120
KV_OFF = B2_OFF + 8 * B2_C
CS_OFF = KV_OFF + 8 * 8192
FLAG_OFF = CS_OFF + 16384
RS_OFF = FLAG_OFF + 8192
WS_SIZE = RS_OFF + 16384
F_KV, F_H, F_O, F_EARLY, F_B2 = 0, 8, 24, 40, 48
STAMP_OFF = WS_SIZE + 65536
OOB = 0x7f000000

SLOT = 49152
MISC = 3 * SLOT
RELAY = MISC
ST_M, ST_RS, ST_IRS, CSP = MISC + 12288, MISC + 12800, MISC + 13312, MISC + 14336
SYN = MISC + 15360
PW = 20480
GAP = 15360
KVX = 0
CMP = 40960
CDUM = CMP + 6720
ONES = CMP + 7232
FRG = 4 * PW + GAP


def frg(fi):
    return FRG + fi * 1024 + (fi // 5) * GAP


LOG2E = 1.4426950408889634
GC1 = -2.0 * 0.7978845608028654 * LOG2E
GC2 = GC1 * 0.044715
EPS6 = 9.98377799987793e-07


def hx(x):
    return "0x%08x" % struct.unpack("<I", struct.pack("<f", x))[0]


class Cfg:
    stamps = 0
    probe = 24
    probe_wg = 200
    probe_w = 0
    probe_cyc = 0
    prefetch_code = 1
    x_nodma = 0
    bpos = 1
    map1 = 2
    map2 = 0
    wnt = 1
    prio = 0
    prio2 = 1
    cprio = 1
    nfirst = 4
    poll_it = 7
    touch = 1
    fill = 2
    pf_h = 2
    pf_q1 = 25
    pf_k1 = 10
    pf_k0 = 0
    phi_n = 3
    pf_l = 1
    hbar = 6
    hbar_chunk = 5
    gelu_pk0 = 0
    kv_pk = 1
    h_early = 1
    rot2 = 1
    o_at = 6
    o_try = 4
    p2sc = 1
    qprio = 1
    hpass = 1
    rs_it = 0
    hpoll = 7
    hsig = 3
    touch_it = 8
    hfill = 3
    hprio = 1
    early_lds = 1
    dfirst = 1
    qb3 = 2
    qb4 = 5
    sig_it = 4
    eprio = 0


def typ_of(ids):
    return {0: (ids >> 5) & 1, 1: (ids >> 3) & 1, 2: ids >> 7}[Cfg.map1]


class Stream:
    def __init__(self, a):
        self.a = a
        self.q = {"ds": [], "vm": []}

    def emit(self, it):
        k = it[0]
        if k == "i":
            self.a(it[1])
        elif k in ("ds", "vm"):
            self.a(it[1])
            self.q[k].append(it[2])
        elif k == "vm0":
            self.a(it[1])
            self.q["vm"].append(("*", it[2]))
        elif k in ("wds", "wvm"):
            self.wait(k[1:], it[1])
        else:
            raise ValueError(it)

    def count(self, k, tags):
        q = self.q[k]
        def star(t):
            return isinstance(t, tuple) and t[0] == "*"
        idx = max([i for i, t in enumerate(q) if tags is None or t in tags or (star(t) and t[1] in tags)], default=-1)
        if idx < 0:
            return None
        left = sum(1 for t in q[idx + 1:] if not star(t))
        del q[:idx + 1]
        return min(left, 15 if k == "ds" else 63)

    def wait(self, k, tags):
        n = self.count(k, tags)
        if n is not None:
            self.a(f"s_waitcnt {'lgkmcnt' if k == 'ds' else 'vmcnt'}({n})")

    def wait2(self, dtags, vtags):
        nd, nv = self.count("ds", dtags), self.count("vm", vtags) if vtags != [] else None
        p = []
        if nv is not None:
            p.append(f"vmcnt({nv})")
        if nd is not None:
            p.append(f"lgkmcnt({nd})")
        if p:
            self.a("s_waitcnt " + " ".join(p))


def I(text):
    return [("i", x.strip()) for x in text.strip().split("\n") if x.strip()]


def group_scc(items):
    out, i = [], 0
    while i < len(items):
        it = items[i]
        if it[0] == "i" and it[1].startswith("s_cmp"):
            j = i + 1
            while j < len(items) and items[j][0] == "i" and items[j][1].startswith("s_cselect"):
                j += 1
            out.append(("atomic", items[i:j]))
            i = j
        else:
            out.append(it)
            i += 1
    return out


def gen():
    a = Asm()
    ool = []
    S = {}
    sa = RegAlloc(44, 96)
    for n in ("w", "rg", "rb", "j", "typ", "col0", "soA", "soB", "so2", "so", "ofA", "ofB", "of2", "t", "t1", "t2", "t3", "pc",
              "rlo", "rls", "hs", "jt", "jt1", "r2", "c2", "sH", "sO", "nH", "nO", "rH", "rO", "p2A", "p2B", "tp1", "tp2"):
        S[n] = sa.alloc(n)
    S["uo"] = sa.alloc("uo", 4)
    S["pa"] = sa.alloc("pa", 4)
    for n in ("ex", "m1", "m2"):
        S[n] = sa.alloc(n, 2, 2)
    S["fl"], S["t0"] = 10, 100
    SX, SW, SWS, SR, SAUX = 28, 32, 36, 40, 96

    l, Z, ITS, RS, IRS, L16, SMALL = 1, 2, 3, 4, 5, 6, 7
    ACC, T, BB = 24, 104, 152
    CMPA, SCA = SMALL, SMALL + 8
    vb = RegAlloc(BB, BB + 100)
    FA = vb.alloc("fa", 8, 2)
    FB = vb.alloc("fb", 40, 2)
    XE = vb.alloc("xe", 4, 2)
    WE = vb.alloc("we", 20, 2)
    RA = vb.alloc("rA", 4)
    RA0 = vb.alloc("rA0")
    RB = vb.alloc("rB")
    RB0 = vb.alloc("rB0")
    BIAS = vb.alloc("bias", 5)
    RLD = vb.alloc("rld")
    QSCA = SMALL + 4

    def srd(base, ptr, size):
        a(f"s_mov_b32 s{base}, s{ptr}\ns_mov_b32 s{base+1}, s{ptr+1}\ns_mov_b32 s{base+2}, {size}\ns_mov_b32 s{base+3}, 0x20000")

    DBGW = {3: 2, 13: 3, 15: 4, 20: 5, 21: 6, 22: 7, 24: 9}

    def stamp(lane):
        if Cfg.stamps == 5:
            if lane == Cfg.probe:
                a(f"{'s_memtime' if Cfg.probe_cyc else 's_memrealtime'} s[{S['t0']}:{S['t0']+1}]\ns_waitcnt lgkmcnt(0)\nv_writelane_b32 v{ITS}, s{S['t0']}, {lane}")
        elif Cfg.stamps == 4:
            if lane in DBGW:
                a(f"s_memrealtime s[{S['t0']}:{S['t0']+1}]\ns_waitcnt lgkmcnt(0)\nv_mov_b32 v{ITS}, s{S['t0']}\ns_mov_b64 exec, 1\n"
                  f"global_atomic_umax v{Z}, v{ITS}, s[22:23] offset:{4*DBGW[lane]}\ns_mov_b64 exec, -1")
        elif Cfg.stamps:
            a(f"{'s_memrealtime' if Cfg.stamps == 3 else 's_memtime'} s[{S['t0']}:{S['t0']+1}]\ns_waitcnt lgkmcnt(0)\nv_writelane_b32 v{ITS}, s{S['t0']}, {lane}")

    def poll_slow(check, err, sleep=8):
        lp, back = a.newlabel("PL"), a.newlabel("PB")
        a(f"s_cbranch_scc0 {lp}\n{back}:")

        def emit():
            l2 = a.newlabel("PL")
            a(f"{lp}:\ns_mov_b32 s{S['pc']}, 0\n{l2}:\ns_sleep {sleep}")
            if Cfg.stamps == 4 and err in (0x101, 0x104, 0x102, 0x105, 0x106, 0x107):
                wd = {0x101: 10, 0x104: 11, 0x102: 12, 0x105: 13, 0x106: 14, 0x107: 15}[err]
                a(f"v_mov_b32 v{ITS}, 1\ns_mov_b64 s[{S['t0']}:{S['t0']+1}], exec\ns_mov_b64 exec, 1\nglobal_atomic_add v{Z}, v{ITS}, s[22:23] offset:{4*wd}\ns_mov_b64 exec, s[{S['t0']}:{S['t0']+1}]")
            check()
            a(f"""
            s_cbranch_scc1 {back}
            s_add_u32 s{S['pc']}, s{S['pc']}, 1
            s_cmp_lt_u32 s{S['pc']}, 0x20000
            s_cbranch_scc1 {l2}
            v_mov_b32 v{IRS}, {err}
            global_store_dword v{Z}, v{IRS}, s[22:23] offset:32
            s_branch {back}
            """)
        ool.append(emit)

    a.label(KN)
    a(f"""
    s_cmp_ge_u32 s2, 256
    s_cbranch_scc1 END
    s_load_dwordx16 s[4:19], s[0:1], 0
    s_load_dwordx4 s[20:23], s[0:1], 64
    s_load_dwordx2 s[24:25], s[0:1], 80
    v_lshrrev_b32 v{T}, 6, v0
    v_and_b32 v{l}, 63, v0
    v_readfirstlane_b32 s{S['w']}, v{T}
    """)
    if Cfg.stamps:
        a(f"v_mov_b32 v{ITS}, 0\ns_memtime s[{S['t0']}:{S['t0']+1}]\ns_memrealtime s[{S['ex']}:{S['ex']+1}]")
    if Cfg.prefetch_code:
        here = a.newlabel("PC")
        a(f"""
        s_getpc_b64 s[26:27]
        {here}:
        s_bfe_u32 s{S['t']}, s2, 0x20003
        s_lshl_b32 s{S['t']}, s{S['t']}, 14
        v_lshlrev_b32 v{T+2}, 5, v0
        v_add_u32 v{T+2}, s{S['t']}, v{T+2}
        v_min_u32 v{T+2}, CODE_END-{here}-4, v{T+2}
        v_mov_b32 v{T+3}, s27
        v_add_co_u32 v{T+2}, vcc, s26, v{T+2}
        v_addc_co_u32 v{T+3}, vcc, 0, v{T+3}, vcc
        s_mov_b32 exec_lo, 0x11111111
        s_mov_b32 exec_hi, 0x11111111
        global_load_dword v{RS}, v[{T+2}:{T+3}], off
        s_mov_b64 exec, -1
        """)
    if Cfg.map1 == 0:
        a(f"""
        s_and_b32 s{S['t']}, s2, 3
        s_lshl_b32 s{S['t']}, s{S['t']}, 2
        s_bfe_u32 s{S['t1']}, s2, 0x20003
        s_add_u32 s{S['rb']}, s{S['t']}, s{S['t1']}
        s_bfe_u32 s{S['typ']}, s2, 0x10005
        s_bfe_u32 s{S['t']}, s2, 0x10002
        s_lshl_b32 s{S['t']}, s{S['t']}, 2
        s_bfe_u32 s{S['t1']}, s2, 0x20006
        s_add_u32 s{S['j']}, s{S['t']}, s{S['t1']}
        """)
    else:
        if Cfg.map1 == 1:
            a(f"s_and_b32 s{S['j']}, s2, 7\ns_bfe_u32 s{S['typ']}, s2, 0x10003\ns_lshr_b32 s{S['rb']}, s2, 4")
        else:
            a(f"s_and_b32 s{S['j']}, s2, 7\ns_lshr_b32 s{S['typ']}, s2, 7\ns_bfe_u32 s{S['rb']}, s2, 0x40003")
    a(f"""
    v_mov_b32 v{Z}, 0
    v_lshlrev_b32 v{L16}, 4, v{l}
    s_and_b32 s{S['rg']}, s{S['w']}, 3
    s_mul_i32 s{S['t']}, s{S['j']}, 7
    s_min_u32 s{S['t']}, s{S['t']}, 47
    s_lshl_b32 s{S['t']}, s{S['t']}, 5
    s_mul_i32 s{S['t1']}, s{S['j']}, 80
    s_cmp_eq_u32 s{S['typ']}, 0
    s_cselect_b32 s{S['col0']}, s{S['t1']}, s{S['t']}
    s_lshr_b32 s{S['t']}, s{S['w']}, 2
    s_lshl_b32 s{S['t1']}, s{S['typ']}, 1
    s_add_u32 s{S['t3']}, s{S['t']}, s{S['t1']}
    s_cmp_eq_u32 s{S['t3']}, 0
    s_cbranch_scc1 ROLE_KV
    s_cmp_eq_u32 s{S['t3']}, 2
    s_cbranch_scc1 ROLE_H0
    s_cmp_eq_u32 s{S['t3']}, 3
    s_cbranch_scc1 ROLE_H1
    """)

    TY = {0: dict(nt=5, stride=3840, wptr=6, qkv=True), 1: dict(nt=4, stride=3456, wptr=12, qkv=False)}
    JT, JT1 = S["jt"], S["jt1"]

    def after_kernarg():
        a("s_waitcnt lgkmcnt(0)")
        if Cfg.stamps == 4:
            a(f"s_not_b32 s{S['ex']}, s{S['ex']}\nv_mov_b32 v{ITS}, s{S['ex']}\ns_mov_b64 exec, 1\nglobal_atomic_umax v{Z}, v{ITS}, s[22:23] offset:4\ns_mov_b64 exec, -1")
        elif Cfg.stamps:
            a(f"v_writelane_b32 v{ITS}, s{S['t0']}, 0\nv_writelane_b32 v{ITS}, s{S['ex']}, 62")
        srd(SX, 4, 2048 * 1280)
        srd(SWS, 24, WS_SIZE)
        a(f"s_add_u32 s{S['fl']}, s24, {FLAG_OFF}\ns_addc_u32 s{S['fl']+1}, s25, 0")

    def emit_item(st, it):
        if it[0] == "atomic":
            for x in it[1]:
                emit_item(st, x)
        elif it[0] == "call":
            it[1]()
        else:
            st.emit(it)

    def emit_all(st, items):
        for x in items:
            emit_item(st, x)

    def p2_params():
        if Cfg.map2 == 0:
            a(f"""
            s_and_b32 s{S['t']}, s2, 3
            s_lshl_b32 s{S['t']}, s{S['t']}, 3
            s_bfe_u32 s{S['t1']}, s2, 0x30003
            s_add_u32 s{S['r2']}, s{S['t']}, s{S['t1']}
            s_bfe_u32 s{S['t']}, s2, 0x10002
            s_lshl_b32 s{S['t']}, s{S['t']}, 2
            s_lshr_b32 s{S['t1']}, s2, 6
            s_add_u32 s{S['c2']}, s{S['t']}, s{S['t1']}
            """)
        else:
            a(f"""
            s_and_b32 s{S['t']}, s2, 7
            s_lshl_b32 s{S['t']}, s{S['t']}, 2
            s_bfe_u32 s{S['t1']}, s2, 0x20003
            s_add_u32 s{S['r2']}, s{S['t']}, s{S['t1']}
            s_lshr_b32 s{S['c2']}, s2, 5
            """)
        a(f"""
        s_mul_i32 s{S['t']}, s{S['w']}, 7
        s_mul_i32 s{S['t1']}, s{S['w']}, 6
        s_add_u32 s{S['t1']}, s{S['t1']}, 6
        s_cmp_lt_u32 s{S['w']}, 6
        s_cselect_b32 s{S['sH']}, s{S['t']}, s{S['t1']}
        s_cselect_b32 s{S['nH']}, 7, 6
        s_lshl_b32 s{S['t']}, s{S['w']}, 2
        s_lshr_b32 s{S['t1']}, 0x33222233, s{S['t']}
        s_and_b32 s{S['nO']}, s{S['t1']}, 15
        s_lshl_b32 s{S['t']}, s{S['w']}, 1
        s_min_u32 s{S['t1']}, s{S['w']}, 2
        s_add_u32 s{S['t']}, s{S['t']}, s{S['t1']}
        s_cmp_eq_u32 s{S['w']}, 7
        s_cselect_b32 s{S['t1']}, 55, 54
        s_add_u32 s{S['sO']}, s{S['t']}, s{S['t1']}
        s_and_b32 s{S['t']}, s{S['c2']}, 3
        s_mul_i32 s{S['rH']}, s{S['t']}, {2 * Cfg.rot2}
        s_mul_i32 s{S['rO']}, s{S['t']}, {Cfg.rot2}
        s_cmp_ge_u32 s{S['rH']}, s{S['nH']}
        s_cselect_b32 s{S['rH']}, 1, s{S['rH']}
        s_cmp_ge_u32 s{S['rO']}, s{S['nO']}
        s_cselect_b32 s{S['t']}, s{S['nO']}, 0
        s_sub_u32 s{S['rO']}, s{S['rO']}, s{S['t']}
        s_mul_i32 s{S['p2A']}, s{S['r2']}, {A2_RB}
        s_mul_i32 s{S['p2B']}, s{S['c2']}, {B2_C}
        s_add_u32 s{S['p2B']}, s{S['p2B']}, {B2_OFF}
        """)

    def relay_params(base):
        a(f"""
        s_lshl_b32 s{S['t']}, s{S['rg']}, 8
        s_add_u32 s{S['t3']}, s{S['t']}, s2
        s_mul_i32 s{S['t2']}, s{S['t3']}, 6554
        s_lshr_b32 s{S['t2']}, s{S['t2']}, 16
        s_mul_i32 s{S['t']}, s{S['t2']}, 10
        s_sub_u32 s{S['t1']}, s{S['t3']}, s{S['t']}
        s_min_u32 s{S['so']}, s{S['rg']}, 2
        s_lshl_b32 s{S['so']}, s{S['so']}, 12
        s_add_u32 s{S['rls']}, s{S['so']}, {base}
        """)

    def frag_addr_a(dst, X):
        a(f"""
        v_and_b32 v{X}, 31, v{l}
        s_lshl_b32 s{S['t']}, s{S['rg']}, 5
        v_add_u32 v{X}, s{S['t']}, v{X}
        v_bfe_u32 v{X+1}, v{X}, 1, 3
        v_lshrrev_b32 v{X+2}, 5, v{l}
        v_xor_b32 v{X+1}, v{X+1}, v{X+2}
        v_lshlrev_b32 v{X+1}, 4, v{X+1}
        v_lshl_add_u32 v{dst}, v{X}, 7, v{X+1}
        """)

    def frag_addr_b_low(dst, X):
        a(f"""
        v_bfe_u32 v{X}, v{l}, 2, 2
        v_lshlrev_b32 v{dst}, 6, v{X}
        v_bfe_u32 v{X}, v{l}, 4, 1
        v_lshl_add_u32 v{dst}, v{X}, 5, v{dst}
        v_and_b32 v{X}, 3, v{l}
        v_lshl_add_u32 v{dst}, v{X}, 3, v{dst}
        """)

    def bias_setup(R, regs, n, tp, second, st, X):
        if not R["qkv"]:
            srd(SAUX, 14, 3456)
            a(f"""
            s_lshl_b32 s{S['t']}, s{tp}, 5
            s_add_u32 s{S['t']}, s{S['t']}, s{S['col0']}
            s_lshl_b32 s{S['t']}, s{S['t']}, 1
            v_and_b32 v{X}, 31, v{l}
            v_lshlrev_b32 v{X}, 1, v{X}
            """)
            for t in range(n):
                st.emit(("vm", f"buffer_load_ushort v{regs+t}, v{X}, s[{SAUX}:{SAUX+3}], s{S['t']} offen offset:{t*64}", "bias"))
        elif second:
            for t in range(3):
                a(f"v_mov_b32 v{regs+t}, 0x3586")
        else:
            a(f"""
            v_mov_b32 v{regs}, 0x3586
            v_mov_b32 v{regs+1}, 0x3586
            s_mov_b32 s{S['m2']}, 0x0000ffff
            s_mov_b32 s{S['m2']+1}, 0x0000ffff
            v_cndmask_b32 v{regs+2}, 0, v{regs}, s[{S['m2']}:{S['m2']+1}]
            v_mov_b32 v{regs+3}, 0
            v_mov_b32 v{regs+4}, 0
            """)

    def vcol(reg, tmp):
        return I(f"""
        v_mov_b32 v{tmp}, 0
        v_mov_b32 v{tmp+1}, -16
        v_cmp_le_u32 vcc, 80, v{reg}
        v_cndmask_b32 v{tmp}, v{tmp}, v{tmp+1}, vcc
        v_mov_b32 v{tmp+1}, {640-96}
        v_cmp_le_u32 vcc, 96, v{reg}
        v_cndmask_b32 v{tmp}, v{tmp}, v{tmp+1}, vcc
        v_mov_b32 v{tmp+1}, {1280-176}
        v_cmp_le_u32 vcc, 176, v{reg}
        v_cndmask_b32 v{tmp}, v{tmp}, v{tmp+1}, vcc
        v_add_u32 v{reg}, v{reg}, v{tmp}
        """)

    def job_build_ext(nt, tp, xe, we, bias, X):
        it = I(f"""
        v_and_b32 v{X}, 31, v{l}
        s_lshl_b32 s{JT}, s{S['rg']}, 5
        v_add_lshl_u32 v{X+1}, v{X}, s{JT}, 2
        v_add_u32 v{X+1}, {MISC}, v{X+1}
        s_lshl_b32 s{JT}, s{tp}, 7
        s_add_u32 s{JT}, s{JT}, {CSP}
        v_lshl_add_u32 v{X}, v{X}, 2, s{JT}
        """)
        for r, off in ((X + 2, ST_M), (RS, ST_RS), (IRS, ST_IRS)):
            it.append(("ds", f"ds_read_b32 v{r}, v{X+1} offset:{off-MISC}", "bx"))
        for t in range(nt):
            it.append(("ds", f"ds_read_b32 v{we+4*t+3}, v{X} offset:{t*128}", "bx"))
        it += I(f"s_mov_b32 s{S['m1']}, -1\ns_mov_b32 s{S['m1']+1}, 0") + [("wds", ["bx"])] + I(f"""
        v_sub_f32 v{X+2}, 0, v{X+2}
        v_cvt_pk_bf16_f32 v{X+3}, v{X+2}, v{IRS}
        v_lshlrev_b32 v{X+4}, 16, v{X+3}
        v_and_b32 v{X+5}, 0xffff0000, v{X+3}
        v_sub_f32 v{X+4}, v{X+2}, v{X+4}
        v_sub_f32 v{X+5}, v{IRS}, v{X+5}
        v_cvt_pk_bf16_f32 v{X+4}, v{X+2}, v{X+4}
        v_cvt_pk_bf16_f32 v{X+5}, v{X+5}, v{Z}
        v_cndmask_b32 v{xe}, 0, v{X+4}, s[{S['m1']}:{S['m1']+1}]
        v_cndmask_b32 v{xe+1}, 0, v{X+3}, s[{S['m1']}:{S['m1']+1}]
        v_cndmask_b32 v{xe+2}, 0, v{X+5}, s[{S['m1']}:{S['m1']+1}]
        v_mov_b32 v{xe+3}, 0
        """)
        for t in range(nt):
            w, b = we + 4 * t, bias + t
            it += I(f"""
            v_cvt_pk_bf16_f32 v{w}, v{w+3}, v{w+3}
            v_and_b32 v{w+1}, 0xffff0000, v{w}
            v_sub_f32 v{w+1}, v{w+3}, v{w+1}
            v_cvt_pk_bf16_f32 v{w+1}, v{w+1}, v{Z}
            v_lshl_or_b32 v{w+1}, v{b}, 16, v{w+1}
            v_mov_b32 v{w+2}, v{b}
            v_mov_b32 v{w+3}, 0
            """)
        return it

    def ext_mfma(nt, xe, we, tr):
        for t in range(nt):
            w, acc = we + 4 * t, ACC + 16 * t
            x, y = (w, xe) if tr else (xe, w)
            a(f"v_mfma_f32_32x32x16_bf16 v[{acc}:{acc+15}], v[{x}:{x+3}], v[{y}:{y+3}], v[{acc}:{acc+15}]")

    def shard_flag_jobs(flag, V, err, who, lanes=8):
        sig = I(f"""
        s_and_b32 s{JT}, s2, 7
        s_lshl_b32 s{JT}, s{JT}, 7
        s_add_u32 s{JT}, s{JT}, {flag*128}
        v_mov_b32 v{V}, s{JT}
        v_mov_b32 v{V+1}, 1
        """) + [("atomic", I(f"s_cmp_eq_u32 s{S['w']}, {who}\ns_cselect_b32 exec_lo, 1, 0\ns_mov_b32 exec_hi, 0") +
                 [("vm0", f"global_atomic_add v{V}, v{V+1}, s[{S['fl']}:{S['fl']+1}]", "sg")] + I("s_mov_b64 exec, -1"))]
        ldj = I(f"""
        v_lshlrev_b32 v{V}, 7, v{l}
        v_add_u32 v{V}, {flag*128}, v{V}
        v_mov_b32 v{V+1}, 32
        """) + [("atomic", I(f"s_cmp_eq_u32 s{S['w']}, {who}\ns_cselect_b32 exec_lo, {hex((1 << lanes) - 1)}, 0\ns_mov_b32 exec_hi, 0") +
                 [("vm0", f"global_load_dword v{V+1}, v{V}, s[{S['fl']}:{S['fl']+1}] sc1", ("fl", flag))] + I("s_mov_b64 exec, -1"))]

        def chk():
            a(f"""
            s_mov_b64 exec, {hex((1 << lanes) - 1)}
            global_load_dword v{V+1}, v{V}, s[{S['fl']}:{S['fl']+1}] sc1
            s_mov_b64 exec, -1
            s_waitcnt vmcnt(0)
            v_cmp_gt_u32 vcc, 32, v{V+1}
            s_cmp_eq_u64 vcc, 0
            """)
        ck = [("wvm", [("fl", flag)]), ("atomic", I(f"v_cmp_gt_u32 vcc, 32, v{V+1}\ns_cmp_eq_u64 vcc, 0") + [("call", lambda: poll_slow(chk, err))])]
        return sig, ldj, ck

    def row_publish(SQ, SM, Y):
        it = I(f"""
        s_mov_b32 s{S['m1']}, 0xaaaaaaaa
        s_mov_b32 s{S['m1']+1}, 0xaaaaaaaa
        s_mov_b32 s{S['m2']}, 0xcccccccc
        s_mov_b32 s{S['m2']+1}, 0xcccccccc
        v_cndmask_b32 v{Y+2}, v{SQ}, v{SQ+1}, s[{S['m1']}:{S['m1']+1}]
        v_cndmask_b32 v{Y+3}, v{SQ+2}, v{SQ+3}, s[{S['m1']}:{S['m1']+1}]
        v_cndmask_b32 v{Y+2}, v{Y+2}, v{Y+3}, s[{S['m2']}:{S['m2']+1}]
        s_lshl_b32 s{JT}, s{S['rb']}, 2
        s_add_u32 s{JT}, s{JT}, s{S['rg']}
        s_lshl_b32 s{JT}, s{JT}, 7
        s_add_u32 s{JT}, s{JT}, {RS_OFF}
        s_lshl_b32 s{JT1}, s{S['j']}, 1
        s_add_u32 s{JT1}, s{JT1}, s{S['typ']}
        s_cmp_ge_u32 s{JT1}, 10
        s_cselect_b32 s{JT}, {OOB}, s{JT}
        v_and_b32 v{Y+4}, 31, v{l}
        v_lshrrev_b32 v{Y+5}, 5, v{l}
        v_lshlrev_b32 v{Y+5}, 13, v{Y+5}
        v_permlane32_swap_b32 v{SM}, v{Y+2}
        v_lshl_add_u32 v{Y+4}, v{Y+4}, 2, v{Y+5}
        v_add_f32 v{Y+2}, v{Y+2}, v{SM}
        """)
        it.append(("vm", f"buffer_atomic_add_f32 v{Y+2}, v{Y+4}, s[{SWS}:{SWS+3}], s{JT} offen", "stat"))
        return it


    def job_load_stats(qkv, Y):
        it = I(f"""
        v_and_b32 v{Y}, 31, v{l}
        s_lshl_b32 s{JT}, s{S['rb']}, 2
        s_add_u32 s{JT}, s{JT}, s{S['rg']}
        s_lshl_b32 s{JT}, s{JT}, 7
        s_add_u32 s{JT}, s{JT}, {RS_OFF}
        s_add_u32 s{JT1}, s{JT}, 8192
        v_lshlrev_b32 v{Y+1}, 2, v{Y}
        """)
        it.append(("vm", f"buffer_load_dword v{Y+2}, v{Y+1}, s[{SWS}:{SWS+3}], s{JT} offen sc1", "ls"))
        it.append(("vm", f"buffer_load_dword v{Y+3}, v{Y+1}, s[{SWS}:{SWS+3}], s{JT1} offen sc1", "ls"))
        it += I(f"s_lshl_b32 s{JT}, s{S['rg']}, 6\nv_add_u32 v{Y+1}, s{JT}, v{l}")
        if qkv:
            it += vcol(Y + 1, Y + 4) + I(f"s_lshl_b32 s{JT}, s{S['col0']}, 2\ns_add_u32 s{JT}, s{JT}, {CS_OFF}")
        else:
            it += I(f"s_lshl_b32 s{JT}, s{S['col0']}, 2\ns_add_u32 s{JT}, s{JT}, {CS_OFF + 1920*4}")
        it += I(f"v_lshlrev_b32 v{Y+1}, 2, v{Y+1}")
        it.append(("vm", f"buffer_load_dword v{Y+4}, v{Y+1}, s[{SWS}:{SWS+3}], s{JT} offen sc1", "ls"))
        return it

    def job_publish_stats(qkv, Y):
        it = I(f"""
        v_and_b32 v{Y+5}, 31, v{l}
        s_lshl_b32 s{JT}, s{S['rg']}, 5
        v_add_lshl_u32 v{Y+5}, v{Y+5}, s{JT}, 2
        v_add_u32 v{Y+5}, {MISC}, v{Y+5}
        s_lshl_b32 s{JT}, s{S['rg']}, 8
        s_add_u32 s{JT}, s{JT}, {CSP}
        v_lshl_add_u32 v{Y+6}, v{l}, 2, s{JT}
        """) + [("wvm", ["ls"])] + I(f"""
        v_mul_f32 v{Y+2}, {hx(1/640)}, v{Y+2}
        v_mul_f32 v{Y+3}, {hx(1/640)}, v{Y+3}
        v_fma_f32 v{Y+3}, -v{Y+2}, v{Y+2}, v{Y+3}
        v_max_f32 v{Y+3}, 0, v{Y+3}
        v_add_f32 v{Y}, {hx(1e-5)}, v{Y+3}
        """)
        if not qkv:
            it += I(f"v_mov_b32 v{Y+1}, {hx(1e-5)}\nv_fma_f32 v{Y}, v{Y}, v{Y+1}, v{Y+3}")
        it += I(f"v_sqrt_f32 v{Y+1}, v{Y}\nv_rsq_f32 v{Y}, v{Y}")
        for r, off in ((Y + 2, ST_M), (Y, ST_RS), (Y + 1, ST_IRS)):
            it.append(("ds", f"ds_write_b32 v{Y+5}, v{r} offset:{off-MISC}", "pub"))
        it.append(("ds", f"ds_write_b32 v{Y+6}, v{Y+4}", "pub"))
        return it

    def job_touch(V):
        it = I(f"""
        s_and_b32 s{JT}, s{S['r2']}, 7
        s_mul_i32 s{JT}, s{JT}, {370*128}
        s_mul_i32 s{JT1}, s{S['rg']}, {96*128}
        s_add_u32 s{JT}, s{JT}, s{JT1}
        s_add_u32 s{JT}, s{JT}, s{S['p2B']}
        v_lshlrev_b32 v{V+1}, 7, v{l}
        """)
        it.append(("vm", f"buffer_load_dword v{V}, v{V+1}, s[{SWS}:{SWS+3}], s{JT} offen sc1", "tc"))
        it += I(f"s_add_u32 s{JT}, s{JT}, 8192")
        it.append(("atomic", I("s_mov_b32 exec_hi, 0") + [("vm", f"buffer_load_dword v{V}, v{V+1}, s[{SWS}:{SWS+3}], s{JT} offen sc1", "tc")] + I("s_mov_b32 exec_hi, -1")))
        return it


    def zero_init():
        a(f"v_mov_b32 v{T+13}, {SYN}\nds_write_b128 v{T+13}, v[{T+8}:{T+11}]\nds_write_b128 v{T+13}, v[{T+8}:{T+11}] offset:16".replace("v_mov_b32", f"v_mov_b32 v{T+8}, 0\nv_mov_b32 v{T+9}, 0\nv_mov_b32 v{T+10}, 0\nv_mov_b32 v{T+11}, 0\nv_mov_b32", 1))
        lab = a.newlabel("NI")
        a(f"""
        s_cmp_lg_u32 s{S['rg']}, 3
        s_cbranch_scc1 {lab}
        s_cmp_ge_u32 s2, 32
        s_cbranch_scc1 {lab}
        v_mov_b32 v{T+8}, 0
        v_mov_b32 v{T+9}, 0
        v_mov_b32 v{T+10}, 0
        v_mov_b32 v{T+11}, 0
        s_mul_i32 s{S['t']}, s2, 3328
        s_add_u32 s{S['t']}, s{S['t']}, {KV_OFF}
        buffer_store_dwordx4 v[{T+8}:{T+11}], v{L16}, s[{SWS}:{SWS+3}], s{S['t']} offen sc1
        buffer_store_dwordx4 v[{T+8}:{T+11}], v{L16}, s[{SWS}:{SWS+3}], s{S['t']} offen offset:1024 sc1
        buffer_store_dwordx4 v[{T+8}:{T+11}], v{L16}, s[{SWS}:{SWS+3}], s{S['t']} offen offset:2048 sc1
        buffer_store_dwordx4 v[{T+8}:{T+11}], v{L16}, s[{SWS}:{SWS+3}], s{S['t']} offen offset:2304 sc1
        v_mov_b32 v{T+12}, 1
        s_waitcnt vmcnt(0)
        s_mov_b64 exec, 1
        global_atomic_add v{Z}, v{T+12}, s[22:23]
        s_mov_b64 exec, -1
        {lab}:
        """)

    def relay_issue(st, X, base):
        relay_params(base)
        a(f"""
        s_cmp_lt_u32 s{S['t2']}, 54
        s_cselect_b32 s{SR}, s16, s8
        s_cselect_b32 s{SR+1}, s17, s9
        s_mov_b32 s{SR+2}, {640*1280}
        s_cselect_b32 s{SR+2}, {1728*1280}, s{SR+2}
        s_mov_b32 s{SR+3}, 0x20000
        s_cselect_b32 s{S['t']}, 0, 54
        s_sub_u32 s{S['t']}, s{S['t2']}, s{S['t']}
        s_mul_i32 s{S['t']}, s{S['t']}, {32*1280}
        s_lshl_b32 s{S['so']}, s{S['t1']}, 7
        s_add_u32 s{S['rlo']}, s{S['t']}, s{S['so']}
        v_lshrrev_b32 v{X}, 3, v{l}
        v_mul_u32_u24 v{X}, 1280, v{X}
        v_and_b32 v{X+1}, 7, v{l}
        v_lshl_add_u32 v{RLD}, v{X+1}, 4, v{X}
        s_cmp_lt_u32 s{S['t3']}, 740
        s_cselect_b32 s{S['hs']}, -1, 0
        s_barrier
        s_mov_b32 exec_lo, s{S['hs']}
        s_mov_b32 exec_hi, s{S['hs']}
        """)
        for i in range(4):
            a(f"s_add_u32 m0, s{S['rls']}, {i*1024}\ns_add_u32 s{JT}, s{S['rlo']}, {i*8*1280}")
            st.emit(("vm0", f"buffer_load_dwordx4 v{RLD}, s[{SR}:{SR+3}], s{JT} offen nt lds", "rl"))
        a("s_mov_b64 exec, -1")

    def init_check():
        def chk():
            a(f"global_load_dword v{T+44}, v{Z}, s[22:23] sc1\ns_waitcnt vmcnt(0)\nv_readfirstlane_b32 s{JT}, v{T+44}\ns_cmp_ge_u32 s{JT}, 32")
        lab = a.newlabel("IC")
        a(f"s_cmp_lg_u32 s{S['rg']}, 3\ns_cbranch_scc1 {lab}")
        chk()
        poll_slow(chk, 0x101)
        a.label(lab)


    def kloop(ld, qkv):
        st = Stream(a)
        NT, stride = (8, 3840) if qkv else (7, 3456)
        PITCH = NT * 256
        nt, t0 = ((3, 0) if ld else (5, 3)) if qkv else ((3, 4) if ld else (4, 0))
        tr = ld or not qkv
        hv = RegAlloc(RLD + 1, BB + 100)
        HDA, HDB, HRCS = hv.alloc("da"), hv.alloc("db", 7), hv.alloc("rcs")
        HRLY = HDA
        X = T + 32
        SQ, SM, ONE, CSA, CF = T + 20, T + 24, T + 28, T + 16, T
        a(f"s_mov_b32 s{S['tp1']}, {t0}")

        def dma(s_):
            if Cfg.x_nodma:
                return []
            slot = (s_ % 3) * SLOT
            NTM = " nt" if (Cfg.wnt == 1 and s_ == 0) else ""
            A, B = [], []
            for m in range(4):
                A.append(I(f"s_add_u32 m0, s{S['ofA']}, {slot + m*4096}\ns_add_u32 s{S['so']}, s{S['soA']}, {m*32*1280}") +
                         [("vm", f"buffer_load_dwordx4 v{HDA}, s[{SX}:{SX+3}], s{S['so']} offen lds", ("S", s_))])
            for i in range(NT):
                if qkv:
                    B.append(I(f"s_add_u32 m0, s{S['ofB']}, {slot + i*4096}\ns_add_u32 s{S['so']}, s{S['soB']}, {i*8*3840}") +
                             [("vm", f"buffer_load_dwordx4 v{HDB}, s[{SW}:{SW+3}], s{S['so']} offen{NTM} lds", ("S", s_))])
                else:
                    B.append(I(f"s_add_u32 m0, s{S['ofB']}, {slot + i*1024}") +
                             [("vm", f"buffer_load_dwordx4 v{HDB+i}, s[{SW}:{SW+3}], s{S['soB']} offen{NTM} lds", ("S", s_))])
            res = []
            while A or B:
                if B: res.append(B.pop(0))
                if A: res.append(A.pop(0))
                if B: res.append(B.pop(0))
            if s_ > 0:
                res[0] = I(f"""
                s_add_u32 s{S['soA']}, s{S['soA']}, 128
                s_add_u32 s{S['soB']}, s{S['soB']}, {64*stride}
                s_cmp_eq_u32 s{S['soA']}, 1280
                s_cselect_b32 s{S['soA']}, 0, s{S['soA']}
                s_cselect_b32 s{S['soB']}, 0, s{S['soB']}
                """) + res[0]
            return [("atomic", p) for p in res]

        def setup():
            frag_addr_a(RA0, X)
            frag_addr_b_low(RB0, X)
            a(f"""
            v_lshrrev_b32 v{X}, 5, v{l}
            v_mul_u32_u24 v{X}, {2*PITCH}, v{X}
            v_add_u32 v{X}, v{X}, v{RB0}
            v_add_u32 v{RB0}, {16384 + t0*256}, v{X}
            s_min_u32 s{S['t']}, s{S['w']}, {NT-1}
            s_lshl_b32 s{S['t']}, s{S['t']}, 8
            s_add_u32 s{S['t']}, s{S['t']}, 16384
            v_add_u32 v{HRCS}, s{S['t']}, v{X}
            v_mov_b32 v{ONE}, 0x3f803f80
            v_mov_b32 v{ONE+1}, 0x3f803f80
            s_mov_b32 s{S['m1']}, 0x00020001
            s_mov_b32 s{S['m1']+1}, 0x00020001
            """)
            for k in range(4):
                a(f"v_cndmask_b32 v{XE+k}, 0, v{ONE}, s[{S['m1']}:{S['m1']+1}]")
            p2_params()
            bias_setup(TY[0 if qkv else 1], BIAS, nt, S["tp1"], ld, st, X)
            if qkv:
                kv_addr_setup(X)
                if ld:
                    scatter_setup(X)

        if ld:
            a(f"""
            v_lshrrev_b32 v{T}, 3, v{l}
            s_lshl_b32 s{S['t']}, s{S['rg']}, 3
            s_lshl_b32 s{S['t1']}, s{S['rb']}, 7
            s_add_u32 s{S['t']}, s{S['t']}, s{S['t1']}
            v_add_u32 v{T}, s{S['t']}, v{T}
            v_mul_u32_u24 v{HDA}, 1280, v{T}
            v_lshrrev_b32 v{T}, 1, v{T}
            v_xor_b32 v{T}, v{T}, v{l}
            v_and_b32 v{T}, 7, v{T}
            v_lshl_add_u32 v{HDA}, v{T}, 4, v{HDA}
            s_lshl_b32 s{S['ofA']}, s{S['rg']}, 10
            v_bfe_u32 v{T}, v{l}, 2, 2
            v_lshrrev_b32 v{T+1}, 4, v{l}
            v_and_b32 v{T+5}, 3, v{l}
            s_lshl_b32 s{S['t']}, s{S['j']}, 1
            s_add_u32 s{S['t']}, s{S['t']}, s{S['typ']}
            s_add_u32 s{S['t']}, s{S['t']}, s{S['rb']}
            s_mul_i32 s{S['t1']}, s{S['t']}, 26
            s_lshr_b32 s{S['t1']}, s{S['t1']}, 8
            s_mul_i32 s{S['t1']}, s{S['t1']}, 10
            s_sub_u32 s{S['t']}, s{S['t']}, s{S['t1']}
            s_lshl_b32 s{S['soA']}, s{S['t']}, 7
            s_mul_i32 s{S['soB']}, s{S['t']}, {64*stride}
            """)
            if qkv:
                a(f"""
                s_add_u32 s{S['ofB']}, s{S['ofA']}, 16384
                s_lshr_b32 s{S['t']}, s{S['rg']}, 1
                s_lshl_b32 s{S['t']}, s{S['t']}, 2
                v_add_u32 v{T}, s{S['t']}, v{T}
                v_mul_u32_u24 v{T}, 3840, v{T}
                s_and_b32 s{S['t']}, s{S['rg']}, 1
                s_lshl_b32 s{S['t']}, s{S['t']}, 4
                v_lshl_add_u32 v{T+5}, v{T+1}, 2, v{T+5}
                v_add_u32 v{T+5}, s{S['t']}, v{T+5}
                v_mov_b32 v{T+6}, 0
                v_mov_b32 v{T+7}, -32
                v_cmp_le_u32 vcc, 10, v{T+5}
                v_cndmask_b32 v{T+6}, v{T+6}, v{T+7}, vcc
                v_mov_b32 v{T+7}, {1280 - 192}
                v_cmp_le_u32 vcc, 12, v{T+5}
                v_cndmask_b32 v{T+6}, v{T+6}, v{T+7}, vcc
                v_mov_b32 v{T+7}, {2560 - 352}
                v_cmp_le_u32 vcc, 22, v{T+5}
                v_cndmask_b32 v{T+6}, v{T+6}, v{T+7}, vcc
                v_lshl_add_u32 v{T+5}, v{T+5}, 4, v{T+6}
                s_lshl_b32 s{S['t']}, s{S['col0']}, 1
                v_add3_u32 v{HDB}, v{T}, v{T+5}, s{S['t']}
                """)
            else:
                a(f"""
                s_mul_i32 s{S['ofB']}, s{S['rg']}, 7168
                s_add_u32 s{S['ofB']}, s{S['ofB']}, 16384
                s_lshl_b32 s{S['t']}, s{S['rg']}, 4
                v_add_u32 v{T}, s{S['t']}, v{T}
                v_mul_u32_u24 v{T}, 3456, v{T}
                v_lshl_add_u32 v{T}, v{T+5}, 4, v{T}
                s_lshl_b32 s{S['t']}, s{S['col0']}, 1
                v_add_u32 v{T}, s{S['t']}, v{T}
                s_mov_b32 s{S['t']}, {4*3456 - 448}
                """)
                for i in range(7):
                    a(f"""
                    v_add_u32 v{T+5}, {4*i}, v{T+1}
                    v_mul_u32_u24 v{T+6}, 37, v{T+5}
                    v_lshrrev_b32 v{T+6}, 8, v{T+6}
                    v_mad_u32_u24 v{T+6}, v{T+6}, s{S['t']}, v{T}
                    v_lshl_add_u32 v{HDB+i}, v{T+5}, 6, v{T+6}
                    """)
            after_kernarg()
            srd(SW, 6 if qkv else 12, 640 * stride)
            d0 = dma(0)
            emit_all(st, d0[:5])
            setup()
            emit_all(st, d0[5:])
            stamp(1)
            a("s_barrier")
            emit_all(st, dma(1))
            stamp(2)
        else:
            after_kernarg()
            zero_init()
            relay_issue(st, X, RELAY)
            for ct in range(4):
                a(f"""
                s_lshl_b32 s{S['t']}, s{S['t1']}, 2
                s_add_u32 s{S['t']}, s{S['t']}, {ct}
                s_mul_i32 s{JT}, s{S['t']}, 52
                s_lshr_b32 s{JT}, s{JT}, 8
                s_mul_i32 s{JT}, s{JT}, {B2_C - 5*1024}
                s_lshl_b32 s{S['t']}, s{S['t']}, 10
                s_add_u32 s{S['t']}, s{S['t']}, s{JT}
                s_mul_i32 s{JT}, s{S['t2']}, 5120
                s_add_u32 s{S['t']}, s{S['t']}, s{JT}
                s_add_u32 s{S['t']}, s{S['t']}, {B2_OFF}
                s_cmp_lt_u32 s{S['t3']}, 740
                s_cselect_b32 s{S['uo']+ct}, s{S['t']}, {OOB}
                """)
            a(f"""
            v_lshrrev_b32 v{X}, 5, v{l}
            v_lshlrev_b32 v{X}, 4, v{X}
            v_bfe_u32 v{X+1}, v{l}, 4, 1
            v_lshl_add_u32 v{X}, v{X+1}, 2, v{X}
            v_bfe_u32 v{X+1}, v{l}, 2, 2
            v_add_u32 v{X}, v{X}, v{X+1}
            v_lshlrev_b32 v{X}, 7, v{X}
            v_and_b32 v{X+1}, 3, v{l}
            v_lshl_add_u32 v{X}, v{X+1}, 3, v{X}
            v_add_u32 v{HRLY}, s{S['rls']}, v{X}
            """)
            setup()
            init_check()

        def job_colsum():
            it = []
            for ks in range(4):
                for i in range(2):
                    it.append(("ds", f"ds_read_b64_tr_b16 v[{CF+4*ks+2*i}:{CF+4*ks+2*i+1}], v{HRCS} offset:{(4*ks+i)*PITCH}", ("cs", ks)))
            for ks in range(4):
                it.append(("wds", [("cs", ks)]))
                c = "0" if ks == 0 else f"v[{CSA}:{CSA+3}]"
                it += I(f"v_mfma_f32_16x16x32_bf16 v[{CSA}:{CSA+3}], v[{XE}:{XE+3}], v[{CF+4*ks}:{CF+4*ks+3}], {c}")
            return it

        def job_publish():
            it = I(f"""
            s_lshl_b32 s{JT}, s{S['w']}, 5
            v_add_u32 v{X}, s{JT}, v{l}
            v_permlane16_swap_b32 v{CSA}, v{CSA+1}
            s_mov_b32 s{S['m2']}, -1
            s_mov_b32 s{S['m2']+1}, 0
            """)
            if qkv:
                it += I(f"s_cmp_eq_u32 s{S['w']}, 2\ns_cselect_b32 s{S['m2']}, 0xffff, s{S['m2']}") + vcol(X, X + 1)
                it += I(f"s_lshl_b32 s{JT}, s{S['col0']}, 2\ns_add_u32 s{JT}, s{JT}, {CS_OFF}")
            else:
                it += I(f"""
                s_lshl_b32 s{JT}, s{S['col0']}, 2
                s_add_u32 s{JT}, s{JT}, {CS_OFF + 1920*4}
                s_lshl_b32 s{JT1}, s{S['j']}, 3
                s_add_u32 s{JT1}, s{JT1}, s{S['w']}
                s_sub_u32 s{JT1}, s{JT1}, 56
                s_cmp_lt_u32 s{JT1}, 2
                s_cselect_b32 s{JT}, {OOB}, s{JT}
                s_cmp_eq_u32 s{S['w']}, 7
                s_cselect_b32 s{JT}, {OOB}, s{JT}
                """)
            it += I(f"""
            s_cmp_ge_u32 s{S['rb']}, 10
            s_cselect_b32 s{JT}, {OOB}, s{JT}
            v_lshlrev_b32 v{X}, 2, v{X}
            v_mov_b32 v{X+1}, {OOB}
            v_cndmask_b32 v{X}, v{X+1}, v{X}, s[{S['m2']}:{S['m2']+1}]
            """)
            it.append(("vm", f"buffer_atomic_add_f32 v{CSA}, v{X}, s[{SWS}:{SWS+3}], s{JT} offen", "stat"))
            if not ld:
                it += row_publish(SQ, SM, X)
            return it

        def job_relay_store():
            it = [("wvm", ["rl"])]
            for ct in range(4):
                it.append(("ds", f"ds_read_b64_tr_b16 v[{T+4*ct}:{T+4*ct+1}], v{HRLY} offset:{ct*32}", ("rl", ct)))
                it.append(("ds", f"ds_read_b64_tr_b16 v[{T+4*ct+2}:{T+4*ct+3}], v{HRLY} offset:{ct*32 + 1024}", ("rl", ct)))
            for ct in range(4):
                it.append(("wds", [("rl", ct)]))
                it.append(("vm", f"buffer_store_dwordx4 v[{T+4*ct}:{T+4*ct+3}], v{L16}, s[{SWS}:{SWS+3}], s{S['uo']+ct} offen sc1", "rs"))
            return it

        e_sig, e_ld, e_ck = shard_flag_jobs(F_EARLY, T + 46, 0x104, 0, 16)
        b_sig, _, _ = shard_flag_jobs(F_B2, T + 46, 0x108, 0)
        pi = Cfg.hpoll
        J = [(0, 0, 0, job_colsum()), (1, 0, 1, job_publish())]
        if not ld:
            J.append((Cfg.rs_it, 2 if Cfg.rs_it == 0 else 1, Cfg.rs_it, job_relay_store()))
            J.append((Cfg.hsig - 1, 2, Cfg.hsig - 1, [("wvm", None)]))
            J.append((Cfg.hsig, 0, Cfg.hsig, e_sig + b_sig))
            J.append((pi, 0, pi, e_ld))
            J.append((pi, 2, pi, e_ck))
            J.append((pi + 1, 0, pi + 1, job_load_stats(qkv, T + 38)))
            J.append((8, 2 if pi == 7 else 0, 8, job_publish_stats(qkv, T + 38)))
            if Cfg.touch:
                J.append((max(Cfg.touch_it, pi + 1), 1, 10, job_touch(T + 46)))
        if ld and Cfg.early_lds:
            J.append((9, 0, 10, [("atomic", p) for p in b_prefetch_lds()]))
        J.append((9, 0, 10, job_build_ext(nt, S["tp1"], XE, WE, BIAS, X)))
        J.sort(key=lambda x: (x[0], x[1]))
        pend = []

        def drain(n=None, deadline=None):
            k = 0
            while pend and (n is None or k < n):
                if deadline is not None and not any(p[0] <= deadline for p in pend):
                    break
                emit_item(st, pend.pop(0)[1])
                k += 1

        def addrs(s_):
            sl = (s_ % 3) * SLOT
            return I(f"""
            v_add_u32 v{RA}, {sl}, v{RA0}
            v_add_u32 v{RB}, {sl}, v{RB0}
            v_xor_b32 v{RA+1}, 32, v{RA}
            v_xor_b32 v{RA+2}, 64, v{RA}
            v_xor_b32 v{RA+3}, 0x60, v{RA}
            """)

        def reads(s_, ks):
            b = ks & 1
            out = [("ds", f"ds_read_b128 v[{FA+4*b}:{FA+4*b+3}], v{RA+ks}", ("A", s_, ks))]
            for t in range(nt):
                f = FB + 20 * b + 4 * t
                for i in range(2):
                    out.append(("ds", f"ds_read_b64_tr_b16 v[{f+2*i}:{f+2*i+1}], v{RB} offset:{(4*ks+i)*PITCH + t*256}", (t, s_, ks)))
            return out

        emit_all(st, addrs(0))
        if ld:
            st.wait("vm", [("S", 0)])
            if Cfg.hprio:
                a("s_setprio 1")
        a("s_barrier")
        stamp(3)
        emit_all(st, reads(0, 0))
        dq = dma(2) if ld else []
        gaps_left = 3 * nt + Cfg.bpos
        for s_ in range(10):
            for ks in range(4):
                while J and (J[0][0], J[0][1]) <= (s_, ks):
                    jb = J.pop(0)
                    pend.extend([jb[2], x] for x in group_scc(jb[3]))
                last = ks == 3
                rd = reads(s_, ks + 1) if not last else (reads(s_ + 1, 0) if s_ < 9 else [])
                gaps = nt if not last else nt - Cfg.bpos
                for t in range(nt):
                    if last and t == Cfg.bpos:
                        drain(deadline=s_)
                        assert not dq
                        st.wait2(None, [("S", s_ + 1)] + (["stat"] if s_ == Cfg.hsig - 1 else []) if ld else [])
                        a("s_barrier")
                        if ld:
                            dq = dma(s_ + 3) if s_ + 3 <= 9 else []
                            gaps_left = 4 * nt
                            if Cfg.hprio and s_ == 7:
                                a("s_setprio 0")
                    b = ks & 1
                    fa, f, acc = FA + 4 * b, FB + 20 * b + 4 * t, ACC + 16 * t
                    st.wait("ds", [("A", s_, ks), (t, s_, ks)])
                    c = "0" if (s_ == 0 and ks == 0) else f"v[{acc}:{acc+15}]"
                    x, y = (f, fa) if tr else (fa, f)
                    a(f"v_mfma_f32_32x32x16_bf16 v[{acc}:{acc+15}], v[{x}:{x+3}], v[{y}:{y+3}], {c}")
                    if s_ == 0 and not ld and t < 2:
                        c1 = "0" if (ks == 0 and t == 0) else f"v[{SQ}:{SQ+3}]"
                        c2 = "0" if (ks == 0 and t == 0) else f"v[{SM}:{SM+3}]"
                        a(f"v_mfma_f32_4x4x4_16b_bf16 v[{SQ}:{SQ+3}], v[{fa+2*t}:{fa+2*t+1}], v[{fa+2*t}:{fa+2*t+1}], {c1}")
                        a(f"v_mfma_f32_4x4x4_16b_bf16 v[{SM}:{SM+3}], v[{ONE}:{ONE+1}], v[{fa+2*t}:{fa+2*t+1}], {c2}")
                    g = t if not last else t - Cfg.bpos
                    if g >= 0:
                        emit_all(st, rd[(len(rd) * g) // gaps:(len(rd) * (g + 1)) // gaps])
                    if dq:
                        k = -(-len(dq) // max(1, gaps_left - Cfg.bpos))
                        for _ in range(min(k, len(dq))):
                            emit_item(st, dq.pop(0))
                    gaps_left -= 1
                    if ks == 2 and t == nt - 1 and s_ < 9:
                        emit_all(st, addrs(s_ + 1))
                    drain(Cfg.hfill)
            stamp(4 + s_)
        drain()
        ext_mfma(nt, XE, WE, tr)
        st.wait2(None, ["tc", "bias"])
        return st

    def kv_addr_setup(X):
        a(f"v_mov_b32 v{X+8}, {CDUM}")
        for h in range(1):
            a(f"""
            s_mov_b32 s{JT}, s{S['w']}
            s_lshl_b32 s{S['t']}, s{JT}, 2
            s_lshr_b32 s{S['t1']}, 0x21021100, s{S['t']}
            s_and_b32 s{S['t1']}, s{S['t1']}, 15
            s_lshr_b32 s{S['t2']}, 0x00044332, s{S['t']}
            s_and_b32 s{S['t2']}, s{S['t2']}, 15
            v_and_b32 v{X}, 31, v{l}
            s_lshl_b32 s{S['t3']}, s{S['t2']}, 5
            s_sub_u32 s{S['t3']}, s{S['t3']}, 80
            v_add_u32 v{X+1}, s{S['t3']}, v{X}
            v_mul_u32_u24 v{X+2}, 3277, v{X+1}
            v_lshrrev_b32 v{X+2}, 16, v{X+2}
            v_mul_u32_u24 v{X+3}, 20, v{X+2}
            v_sub_u32 v{X+3}, v{X+1}, v{X+3}
            v_cmp_gt_u32 vcc, 80, v{X+1}
            v_cmp_eq_u32 s[{S['ex']}:{S['ex']+1}], 0, v{X}
            s_cmp_ge_u32 s{JT}, 5
            s_cselect_b64 s[{S['m1']}:{S['m1']+1}], s[{S['ex']}:{S['ex']+1}], vcc
            s_cselect_b64 s[{S['ex']}:{S['ex']+1}], -1, 0
            v_cndmask_b32 v{X+3}, v{X+3}, 20, s[{S['ex']}:{S['ex']+1}]
            v_lshlrev_b32 v{X+3}, 2, v{X+3}
            v_add_u32 v{X+3}, {CMP}, v{X+3}
            v_lshrrev_b32 v{X+4}, 5, v{l}
            v_lshlrev_b32 v{X+4}, 2, v{X+4}
            s_lshl_b32 s{S['t3']}, s{S['t1']}, 5
            v_add_u32 v{X+4}, s{S['t3']}, v{X+4}
            s_movk_i32 s{S['t3']}, 84
            """)
            for qd in range(4):
                a(f"""
                v_add_u32 v{X+5}, {8*qd}, v{X+4}
                v_mul_u32_u24 v{X+6}, 3277, v{X+5}
                v_lshrrev_b32 v{X+6}, 16, v{X+6}
                v_mad_u32_u24 v{X+7}, v{X+5}, s{S['t3']}, v{X+3}
                v_cmp_eq_u32 vcc, v{X+6}, v{X+2}
                s_or_b64 vcc, vcc, s[{S['ex']}:{S['ex']+1}]
                s_and_b64 s[{S['m2']}:{S['m2']+1}], vcc, s[{S['m1']}:{S['m1']+1}]
                v_cmp_gt_u32 vcc, 80, v{X+5}
                s_and_b64 vcc, vcc, s[{S['m2']}:{S['m2']+1}]
                v_cndmask_b32 v{CMPA+4*h+qd}, v{X+8}, v{X+7}, vcc
                """)
            a(f"""
            s_lshl_b32 s{S['pa']}, s{S['t1']}, 11
            s_lshl_b32 s{S['t3']}, s{S['t2']}, 11
            s_cmp_ge_u32 s{S['w']}, 5
            s_cselect_b32 s{S['pa']+1}, {ONES}, s{S['t3']}
            """)

    def scatter_setup(X):
        for i in range(7):
            a(f"""
            v_add_u32 v{X}, {256*i - 256}, v0
            v_mul_u32_u24 v{X+1}, 3121, v{X}
            v_lshrrev_b32 v{X+1}, 16, v{X+1}
            v_mul_u32_u24 v{X+2}, 21, v{X+1}
            v_sub_u32 v{X+2}, v{X}, v{X+2}
            v_mul_u32_u24 v{X+3}, 3277, v{X+1}
            v_lshrrev_b32 v{X+3}, 16, v{X+3}
            v_mad_u32_u24 v{X+4}, v{X+3}, 20, v{X+2}
            v_lshrrev_b32 v{X+5}, 5, v{X+4}
            v_lshlrev_b32 v{X+5}, 1, v{X+5}
            v_and_b32 v{X+4}, 31, v{X+4}
            v_cmp_eq_u32 vcc, 20, v{X+2}
            v_cndmask_b32 v{X+5}, v{X+5}, 9, vcc
            v_cndmask_b32 v{X+4}, v{X+4}, v{X+3}, vcc
            v_lshrrev_b32 v{X+6}, 4, v{X+1}
            v_add_u32 v{X+5}, v{X+5}, v{X+6}
            v_mul_u32_u24 v{X+6}, 52, v{X+5}
            v_lshrrev_b32 v{X+6}, 8, v{X+6}
            v_mad_u32_u24 v{X+5}, v{X+6}, 15, v{X+5}
            v_lshlrev_b32 v{X+5}, 10, v{X+5}
            v_bfe_u32 v{X+6}, v{X+1}, 2, 1
            v_lshl_add_u32 v{X+4}, v{X+6}, 5, v{X+4}
            v_lshl_add_u32 v{X+5}, v{X+4}, 4, v{X+5}
            v_bfe_u32 v{X+6}, v{X+1}, 3, 1
            v_and_b32 v{X+4}, 3, v{X+1}
            v_lshl_add_u32 v{X+4}, v{X+6}, 2, v{X+4}
            v_lshl_add_u32 v{X+5}, v{X+4}, 1, v{X+5}
            v_add_u32 v{X+5}, {FRG}, v{X+5}
            v_mov_b32 v{X+6}, {GAP}
            v_cmp_gt_u32 vcc, 1680, v{X}
            v_cndmask_b32 v{QSCA+i}, v{X+6}, v{X+5}, vcc
            """)

    def step_off(i, dst, base, mul):
        n, r, s0, k = (S["nH"], S["rH"], S["sH"], i) if i < 7 else (S["nO"], S["rO"], S["sO"], i - 7)
        it = f"""
        s_add_u32 s{dst}, s{r}, {k}
        s_cmp_ge_u32 s{dst}, s{n}
        s_cselect_b32 s{S['pc']}, s{n}, 0
        s_sub_u32 s{dst}, s{dst}, s{S['pc']}
        s_add_u32 s{dst}, s{dst}, s{s0}
        s_mul_i32 s{dst}, s{dst}, {mul}
        s_add_u32 s{dst}, s{dst}, s{base}
        """
        if i in (6, 9):
            it += f"s_cmp_gt_u32 s{n}, {k}\ns_cselect_b32 s{dst}, s{dst}, {OOB}"
        return I(it)

    def b_load(i, reg):
        pcs = []
        for ct in range(5):
            pre = step_off(i, JT, S["p2B"], 5120) if ct == 0 else (I(f"s_add_u32 s{JT}, s{JT}, 4096") if ct == 4 else [])
            pcs.append(pre + [("vm", f"buffer_load_dwordx4 v[{reg+4*ct}:{reg+4*ct+3}], v{L16}, s[{SWS}:{SWS+3}], s{JT} offen offset:{(ct&3)*1024} sc1", ("B", i))])
        return pcs

    def b_prefetch_regs(first=0):
        pcs = []
        for i in range(first, 5):
            pcs += b_load(i, BB + 20 * i)
        return pcs

    def b_prefetch_lds():
        pcs = []
        for i in (7, 8, 9):
            for ct in range(5):
                pre = step_off(i, JT, S["p2B"], 5120) + I(f"s_mul_i32 s{JT1}, s{S['w']}, {PW}") if ct == 0 else I(f"s_add_u32 s{JT}, s{JT}, 1024")
                pcs.append(pre + I(f"s_add_u32 m0, s{JT1}, {(i-7)*5120 + ct*1024}") +
                           [("vm", f"buffer_load_dwordx4 v{L16}, s[{SWS}:{SWS+3}], s{JT} offen sc1 lds", ("B", i))])
        return pcs

    P2S = S["so"]

    def areg(i):
        return T + 16 * (i % 3) if i < 7 else BB + 20 * (i - 5)

    def breg(i):
        return BB + 20 * (i % 5) if i < 7 else BB + 20 * ((i - 7) & 1)

    def a_load(i):
        f = areg(i)
        it = [("atomic", step_off(i, P2S, S["p2A"], 4096))]
        for tt in range(4):
            it.append(("vm", f"buffer_load_dwordx4 v[{f+4*tt}:{f+4*tt+3}], v{L16}, s[{SWS}:{SWS+3}], s{P2S} offen offset:{tt*1024}{' sc1' if Cfg.p2sc else ''}", ("A", i)))
        return it

    def a2_addr(dst):
        a(f"""
        s_lshl_b32 s{S['t']}, s{S['rb']}, 1
        s_lshr_b32 s{S['t1']}, s{S['rg']}, 1
        s_add_u32 s{S['t']}, s{S['t']}, s{S['t1']}
        s_mul_i32 s{S['t']}, s{S['t']}, {A2_RB}
        s_and_b32 s{S['t1']}, s{S['rg']}, 1
        s_lshl_b32 s{S['t1']}, s{S['t1']}, 11
        s_add_u32 s{S['t']}, s{S['t']}, s{S['t1']}
        v_bfe_u32 v{dst}, v{l}, 4, 1
        v_lshlrev_b32 v{dst}, 10, v{dst}
        v_lshrrev_b32 v{dst+1}, 5, v{l}
        v_lshl_add_u32 v{dst}, v{dst+1}, 8, v{dst}
        v_and_b32 v{dst+1}, 15, v{l}
        v_lshl_add_u32 v{dst}, v{dst+1}, 4, v{dst}
        v_add_u32 v{dst}, s{S['t']}, v{dst}
        """)

    def signal(flag, idx_reg):
        a(f"""
        s_add_u32 s{S['t']}, s{idx_reg}, {flag}
        s_lshl_b32 s{S['t']}, s{S['t']}, 7
        v_mov_b32 v{T+46}, s{S['t']}
        v_mov_b32 v{T+47}, 1
        s_cmp_eq_u32 s{S['w']}, 0
        s_cselect_b32 exec_lo, 1, 0
        s_mov_b32 exec_hi, 0
        global_atomic_add v{T+46}, v{T+47}, s[{S['fl']}:{S['fl']+1}]
        s_mov_b64 exec, -1
        """)

    def lds_add(off):
        a(f"v_mov_b32 v{RS}, {SYN}\nv_mov_b32 v{IRS}, 1\ns_mov_b64 exec, 1\nds_add_u32 v{RS}, v{IRS} offset:{off}\ns_mov_b64 exec, -1")

    def lds_wait(off, target, err, tmp):
        def chk():
            a(f"ds_read_b32 v{tmp+1}, v{tmp} offset:{off}\ns_waitcnt lgkmcnt(0)\nv_readfirstlane_b32 s{S['t']}, v{tmp+1}\ns_cmp_ge_u32 s{S['t']}, {target}")
        a(f"v_mov_b32 v{tmp}, {SYN}")
        chk()
        poll_slow(chk, err, sleep=1)

    def wait_flag(st, flag, target, err, line_expr, who=0, then=None):
        skip = a.newlabel("WF")

        def chk():
            a(f"""
            global_load_dword v{IRS}, v{RS}, s[{S['fl']}:{S['fl']+1}] sc1
            s_waitcnt vmcnt(0)
            v_readfirstlane_b32 s{S['t']}, v{IRS}
            s_cmp_ge_u32 s{S['t']}, {target}
            """)
        a(f"""
        s_cmp_lg_u32 s{S['w']}, {who}
        s_cbranch_scc1 {skip}
        {line_expr}
        s_add_u32 s{S['t']}, s{S['t']}, {flag}
        s_lshl_b32 s{S['t']}, s{S['t']}, 7
        v_mov_b32 v{RS}, s{S['t']}
        s_mov_b64 exec, 1
        """)
        chk()
        poll_slow(chk, err, sleep=4)
        a("s_mov_b64 exec, -1")
        if then is not None:
            lds_add(then)
        a.label(skip)

    def emit_pcs(st, pcs):
        for p in pcs:
            emit_all(st, p)

    def h_epilogue(nt, tp, st, first, lds_done=False):
        C = T + 12
        a(f"""
        v_mul_f32 v{C}, {hx(GC1)}, v{RS}
        v_mul_f32 v{C+2}, v{RS}, v{RS}
        v_mul_f32 v{C+2}, v{C+2}, v{RS}
        v_mul_f32 v{C+2}, {hx(GC2)}, v{C+2}
        v_mov_b32 v{C+4}, v{IRS}
        """)
        AD = T + 18
        a2_addr(AD)
        a(f"s_lshl_b32 s{S['t']}, s{S['col0']}, 7\ns_lshl_b32 s{S['t1']}, s{tp}, 12\ns_add_u32 s{S['t']}, s{S['t']}, s{S['t1']}")
        pf = b_prefetch_regs()
        W0 = T + 20
        pk = Cfg.gelu_pk0 if first else 1
        if nt == 3 and Cfg.eprio:
            a(f"s_setprio {Cfg.eprio}")
        for t in range(nt):
            acc = ACC + 16 * t
            for c in range(2):
                o = T + 32 + 4 * ((2 * t + c) % 3)
                ps = [acc + 8 * c + 2 * k for k in range(4)]
                ws = [W0 + 2 * k for k in range(4)]
                seq = []
                if pk:
                    seq.append([f"v_pk_mul_f32 v[{w}:{w+1}], v[{p}:{p+1}], v[{p}:{p+1}]" for p, w in zip(ps, ws)])
                    seq.append([f"v_pk_fma_f32 v[{w}:{w+1}], v[{w}:{w+1}], v[{C+2}:{C+3}], v[{C}:{C+1}] op_sel_hi:[1,0,0]" for w in ws])
                    seq.append([f"v_pk_mul_f32 v[{w}:{w+1}], v[{w}:{w+1}], v[{p}:{p+1}]" for p, w in zip(ps, ws)])
                else:
                    seq.append([f"v_mul_f32 v{w+k}, v{p+k}, v{p+k}" for p, w in zip(ps, ws) for k in range(2)])
                    seq.append([f"v_fma_f32 v{w+k}, v{w+k}, v{C+2}, v{C}" for w in ws for k in range(2)])
                    seq.append([f"v_mul_f32 v{w+k}, v{w+k}, v{p+k}" for p, w in zip(ps, ws) for k in range(2)])
                seq.append([f"v_exp_f32 v{w+k}, v{w+k}" for w in ws for k in range(2)])
                if pk:
                    seq.append([f"v_pk_fma_f32 v[{w}:{w+1}], v[{w}:{w+1}], v[{C+4}:{C+5}], v[{C+4}:{C+5}] op_sel_hi:[1,0,0]" for w in ws])
                else:
                    seq.append([f"v_fma_f32 v{w+k}, v{w+k}, v{C+4}, v{C+4}" for w in ws for k in range(2)])
                seq.append([f"v_rcp_f32 v{w+k}, v{w+k}" for w in ws for k in range(2)])
                if pk:
                    seq.append([f"v_pk_mul_f32 v[{w}:{w+1}], v[{w}:{w+1}], v[{p}:{p+1}]" for p, w in zip(ps, ws)])
                else:
                    seq.append([f"v_mul_f32 v{w+k}, v{w+k}, v{p+k}" for p, w in zip(ps, ws) for k in range(2)])
                seq.append([f"v_cvt_pk_bf16_f32 v{o+k}, v{w}, v{w+1}" for k, w in enumerate(ws)])
                for gi, grp in enumerate(seq):
                    for x in grp:
                        a(x)
                    if not first and gi in (1, 3, 5, 2, 4)[:Cfg.pf_h] and pf:
                        emit_all(st, pf.pop(0))
                st.emit(("vm", f"buffer_store_dwordx4 v[{o}:{o+3}], v{AD}, s[{SWS}:{SWS+3}], s{S['t']} offen offset:{c*512} sc1", "hst"))
                if first and 2 * t + c + 1 == Cfg.hbar_chunk:
                    a("s_barrier")
            a(f"s_add_u32 s{S['t']}, s{S['t']}, 4096")
        stamp(14)
        if first:
            emit_pcs(st, pf)
            pf = []
        st.wait("vm", ["hst"])
        stamp(15)
        a("s_setprio 0\ns_barrier")
        signal(F_H, S["rb"])
        emit_pcs(st, pf + ([] if lds_done else b_prefetch_lds()))

    def products_and_atomics(q, st):
        D = ACC + 48 if q else ACC
        PA, X = T, T + 40
        pb = [(ACC + 64 + 4 * (s_ & 3)) if q else (ACC + 16 + 4 * s_) for s_ in range(8)]
        a(f"""
        v_add_u32 v{X}, s{S['pa']}, v{L16}
        v_add_u32 v{X+1}, s{S['pa']+1}, v{L16}
        s_cmp_ge_u32 s{S['w']}, 5
        s_cselect_b32 s{S['t']}, 0, 1024
        s_cselect_b32 s{S['t1']}, 0, 10240
        v_add_u32 v{X+2}, s{S['t']}, v{X+1}
        s_waitcnt lgkmcnt(0)
        s_barrier
        """)
        st.q["ds"].clear()
        stamp(14)

        def rd(s_):
            st.emit(("ds", f"ds_read_b128 v[{PA+4*s_}:{PA+4*s_+3}], v{X} offset:{(s_ >> 1) * 10240 + (s_ & 1) * 1024}", ("p", s_)))
            st.emit(("ds", f"ds_read_b128 v[{pb[s_]}:{pb[s_]+3}], v{X+1+(s_&1)}", ("p", s_)))
            if s_ & 1 and s_ < 7:
                a(f"v_add_u32 v{X+1}, s{S['t1']}, v{X+1}\nv_add_u32 v{X+2}, s{S['t1']}, v{X+2}")
        ahead = 4 if q else 7
        for s_ in range(ahead):
            rd(s_)
        for s_ in range(8):
            st.wait("ds", [("p", s_)])
            c = "0" if s_ == 0 else f"v[{D}:{D+15}]"
            a(f"v_mfma_f32_32x32x16_bf16 v[{D}:{D+15}], v[{PA+4*s_}:{PA+4*s_+3}], v[{pb[s_]}:{pb[s_]+3}], {c}")
            if s_ + ahead < 8:
                rd(s_ + ahead)
        a(f"""
        s_lshl_b32 s{S['t']}, s{S['j']}, 13
        s_add_u32 s96, s24, s{S['t']}
        s_addc_u32 s97, s25, 0
        s_add_u32 s96, s96, {KV_OFF}
        s_addc_u32 s97, s97, 0
        v_lshlrev_b32 v{X}, 2, v0
        v_add_u32 v{X+1}, 4096, v{X}
        v_add_u32 v{X+2}, {CMP}, v{X}
        v_cmp_gt_u32 vcc, 144, v0
        """)
        for r in range(16):
            a(f"ds_write_b32 v{CMPA + (r >> 2)}, v{D+r} offset:{(r & 3)*84}")
        a("s_waitcnt lgkmcnt(0)\ns_barrier")
        stamp(25)
        for i in range(4):
            a(f"ds_read_b32 v{T+32+i}, v{X+2} offset:{i*2048}")
        for i in range(4):
            a(f"s_waitcnt lgkmcnt({3-i})")
            if i == 3:
                a("s_mov_b64 exec, vcc")
            st.emit(("vm0" if i == 3 else "vm", f"global_atomic_add_f32 v{X+(i>>1)}, v{T+32+i}, s[96:97] offset:{(i&1)*2048}", "kva"))
        a("s_mov_b64 exec, -1")

    st = kloop(True, True)
    a(f"""
    v_mov_b32 v{T+8}, 0
    v_mov_b32 v{T+9}, 0
    v_mov_b32 v{T+10}, 0
    v_mov_b32 v{T+11}, 0
    v_lshlrev_b32 v{T+7}, 4, v0
    v_add_u32 v{T+6}, {FRG - 4096}, v{T+7}
    ds_write_b128 v{T+6}, v[{T+8}:{T+11}]
    ds_write_b128 v{T+6}, v[{T+8}:{T+11}] offset:1024
    ds_write_b128 v{T+6}, v[{T+8}:{T+11}] offset:{PW}
    ds_write_b128 v{T+6}, v[{T+8}:{T+11}] offset:{PW + 1024}
    ds_write_b128 v{T+6}, v[{T+8}:{T+11}] offset:{2*PW}
    v_lshlrev_b32 v{T+7}, 2, v0
    v_add_u32 v{T+7}, {ONES - 1024}, v{T+7}
    v_mov_b32 v{T+12}, 0x3f803f80
    ds_write_b32 v{T+7}, v{T+12}
    """)
    pfq = b_prefetch_regs() + ([] if Cfg.early_lds else b_prefetch_lds())
    emit_pcs(st, pfq[:Cfg.pf_q1])
    pfq = pfq[Cfg.pf_q1:]
    if Cfg.cprio:
        a("s_setprio 3")
    products_and_atomics(True, st)
    PQ = ACC + 48
    a(f"v_mul_f32 v{T+44}, {hx(LOG2E)}, v{RS}\nv_mul_f32 v{T+45}, {hx(EPS6)}, v{IRS}")
    for f in range(5):
        base = ACC + 8 * f
        for k in range(4):
            a(f"v_pk_mul_f32 v[{T+2*k}:{T+2*k+1}], v[{base+2*k}:{base+2*k+1}], v[{T+44}:{T+45}] op_sel_hi:[1,0]")
        for k in range(8):
            a(f"v_exp_f32 v{T+k}, v{T+k} clamp")
        for k in range(8):
            a(f"v_max_f32 v{base+k}, v{base+k}, v{T+45}")
        for k in range(4):
            a(f"v_pk_fma_f32 v[{T+2*k}:{T+2*k+1}], v[{base+2*k}:{base+2*k+1}], v[{RS}:{RS+1}], v[{T+2*k}:{T+2*k+1}] op_sel_hi:[1,0,1]")
        for k in range(4):
            a(f"v_cvt_pk_bf16_f32 v{PQ+4*f+k}, v{T+2*k}, v{T+2*k+1}")
        if f == Cfg.phi_n - 1:
            st.wait("vm", ["kva"])
            stamp(26)
            a("s_barrier")
            stamp(15)
    AD = T + 44
    a2_addr(AD)
    a(f"""
    v_add_u32 v{T+46}, {FRG}, v{L16}
    v_lshlrev_b32 v{T+8}, 2, v0
    v_subrev_u32 v{T+8}, 1024, v{T+8}
    v_add_u32 v{T+9}, 4096, v{T+8}
    """)
    wait_flag(st, F_KV, 16, 0x102, f"s_mov_b32 s{S['t']}, s{S['j']}", who=4, then=0)
    lds_wait(0, 1, 0x109, RS)
    stamp(16)
    for i in range(7):
        st.emit(("vm", f"global_load_dword v{T+i}, v{T+8+(i>>2)}, s[96:97] offset:{(i&3)*1024} sc1", ("g", i)))
    for i in range(7):
        a(f"v_cmp_le_u32 vcc, {frg(9)}, v{QSCA+i}")
        st.wait("vm", [("g", i)])
        a(f"""
        v_cvt_pk_bf16_f32 v{T+i}, v{T+i}, v{T+i}
        ds_write_b16 v{QSCA+i}, v{T+i}
        s_mov_b64 exec, vcc
        ds_write_b16 v{QSCA+i}, v{T+i} offset:64
        s_mov_b64 exec, -1
        """)
    a("s_waitcnt lgkmcnt(0)")
    lds_add(4)
    lds_wait(4, 4, 0x10a, RS)
    stamp(17)
    NUM, DEN = ACC, T + 28
    prods = [(9 + ks, ks, DEN) for ks in range(5)] + [(ks + 2 * Tt, ks, NUM + 16 * Tt) for Tt, kss in ((0, (0, 1, 2)), (1, (1, 2, 3, 4)), (2, (3, 4))) for ks in kss]
    FRS = [T + 4 * i for i in range(7)] + [ACC + 68 + 4 * i for i in range(3)]

    def frd(i):
        fi = prods[i][0]
        r = FRS[i % 10]
        st.emit(("ds", f"ds_read_b128 v[{r}:{r+3}], v{T+46} offset:{frg(fi)-FRG}", ("f", i)))
    for i in range(10):
        frd(i)
    seen = set()
    for i, (fi, ks, D) in enumerate(prods):
        st.wait("ds", [("f", i)])
        c = f"v[{D}:{D+15}]" if D in seen else "0"
        seen.add(D)
        r = FRS[i % 10]
        a(f"v_mfma_f32_32x32x16_bf16 v[{D}:{D+15}], v[{r}:{r+3}], v[{PQ+4*ks}:{PQ+4*ks+3}], {c}")
        if i + 10 < 14:
            frd(i + 10)
        if i == 8:
            for h in range(4):
                a(f"v_add_f32 v{DEN+h}, {hx(1e-6)}, v{DEN+h}")
            for h in range(4):
                a(f"v_rcp_f32 v{DEN+h}, v{DEN+h}")
    a(f"""
    s_mov_b32 s{S['m1']}, 0
    s_mov_b32 s{S['m1']+1}, -1
    v_cndmask_b32 v{DEN+4}, v{DEN}, v{DEN+1}, s[{S['m1']}:{S['m1']+1}]
    v_cndmask_b32 v{DEN+5}, v{DEN+2}, v{DEN+3}, s[{S['m1']}:{S['m1']+1}]
    s_mul_i32 s{S['t2']}, s{S['j']}, 5
    """)
    for p2 in range(5):
        for k in range(8):
            qd = 2 * p2 + (k >> 2)
            h0, h1 = (2 * qd) // 5, (2 * qd + 1) // 5
            dr = DEN + h0 if h0 == h1 else (DEN + 4 if h0 == 0 else DEN + 5)
            a(f"v_mul_f32 v{NUM+8*p2+k}, v{NUM+8*p2+k}, v{dr}")
        o = ACC + 48 + 4 * p2
        a(f"""
        s_add_u32 s{S['t']}, s{S['t2']}, {p2}
        s_lshr_b32 s{S['t1']}, s{S['t']}, 1
        s_lshl_b32 s{S['t1']}, s{S['t1']}, 12
        s_and_b32 s{S['t']}, s{S['t']}, 1
        s_lshl_b32 s{S['t']}, s{S['t']}, 9
        s_add_u32 s{S['t']}, s{S['t']}, s{S['t1']}
        s_add_u32 s{S['t']}, s{S['t']}, {54*4096}
        """)
        for k in range(4):
            a(f"v_cvt_pk_bf16_f32 v{o+k}, v{NUM+8*p2+2*k}, v{NUM+8*p2+2*k+1}")
        a(f"buffer_store_dwordx4 v[{o}:{o+3}], v{AD}, s[{SWS}:{SWS+3}], s{S['t']} offen sc1")
    stamp(18)
    lds_wait(8, 1, 0x10b, RS)
    emit_pcs(st, pfq)
    nq = sum(1 for p in pfq for x in p if x[0] == "vm")
    for i in range(3):
        emit_all(st, a_load(i))
    a(f"""
    s_add_u32 s{S['t']}, s{S['rb']}, {F_O}
    s_lshl_b32 s{S['t']}, s{S['t']}, 7
    v_mov_b32 v{RS}, s{S['t']}
    v_mov_b32 v{IRS}, 1
    s_waitcnt vmcnt({12 + nq})
    s_mov_b64 exec, 1
    global_atomic_add v{RS}, v{IRS}, s[{S['fl']}:{S['fl']+1}]
    s_mov_b64 exec, -1
    s_setprio {Cfg.qprio}
    s_branch PHASE2C
    """)

    a.label("ROLE_KV")
    st = kloop(False, True)
    if Cfg.cprio:
        a("s_setprio 3")
    RT, RL2, E = T, T + 16, T + 32
    X = T + 40
    a(f"""
    v_lshrrev_b32 v{X}, 5, v{l}
    v_lshlrev_b32 v{X}, 4, v{X}
    s_lshl_b32 s{S['t']}, s{S['rg']}, 7
    s_add_u32 s{S['t']}, s{S['t']}, {ST_RS}
    v_add_u32 v{X}, s{S['t']}, v{X}
    """)
    for i in range(4):
        a(f"ds_read_b128 v[{RT+4*i}:{RT+4*i+3}], v{X} offset:{i*32}")
    a(f"""
    s_mul_i32 s{S['t']}, s{S['rg']}, 10240
    v_add_u32 v{X+1}, s{S['t']}, v{L16}
    s_mov_b32 s{S['m2']}, 0x0000ffff
    s_mov_b32 s{S['m2']+1}, 0x0000ffff
    v_mov_b32 v{X+2}, {hx(LOG2E)}
    v_mov_b32 v{X+3}, {hx(EPS6)}
    v_mov_b32 v{X+4}, 0xff800000
    v_cndmask_b32 v{X+5}, v{X+4}, v{X+3}, s[{S['m2']}:{S['m2']+1}]
    v_cndmask_b32 v{X+4}, v{X+4}, 0, s[{S['m2']}:{S['m2']+1}]
    s_waitcnt lgkmcnt(0)
    """)
    for k in range(8):
        a(f"v_pk_mul_f32 v[{RL2+2*k}:{RL2+2*k+1}], v[{RT+2*k}:{RT+2*k+1}], v[{X+2}:{X+3}] op_sel_hi:[1,0]")
    pfk = b_prefetch_regs()
    for t in range(5):
        for hf in range(2):
            base = ACC + 16 * t + 8 * hf
            o = base
            if Cfg.kv_pk:
                if t <= 2:
                    for k in range(4):
                        p, r = f"v[{base+2*k}:{base+2*k+1}]", f"v[{RL2+8*hf+2*k}:{RL2+8*hf+2*k+1}]"
                        if t < 2:
                            a(f"v_pk_mul_f32 v[{E+2*k}:{E+2*k+1}], {p}, {r}")
                        else:
                            a(f"v_pk_fma_f32 v[{E+2*k}:{E+2*k+1}], {p}, {r}, v[{X+4}:{X+5}] op_sel_hi:[1,1,0]")
                for k in range(4):
                    a(f"v_pk_mul_f32 v[{base+2*k}:{base+2*k+1}], v[{base+2*k}:{base+2*k+1}], v[{RT+8*hf+2*k}:{RT+8*hf+2*k+1}]")
            else:
                if t <= 2:
                    for k in range(8):
                        if t < 2:
                            a(f"v_mul_f32 v{E+k}, v{base+k}, v{RL2+8*hf+k}")
                        else:
                            a(f"v_fma_f32 v{E+k}, v{base+k}, v{RL2+8*hf+k}, v{X+4}")
                for k in range(8):
                    a(f"v_mul_f32 v{base+k}, v{base+k}, v{RT+8*hf+k}")
            if t <= 2:
                for k in range(8):
                    a(f"v_exp_f32 v{E+k}, v{E+k} clamp")
                for k in range(8):
                    a(f"v_max_f32 v{base+k}, v{X+3 if t < 2 else X+5}, v{base+k}")
                if Cfg.kv_pk:
                    for k in range(4):
                        a(f"v_pk_add_f32 v[{base+2*k}:{base+2*k+1}], v[{base+2*k}:{base+2*k+1}], v[{E+2*k}:{E+2*k+1}]")
                else:
                    for k in range(8):
                        a(f"v_add_f32 v{base+k}, v{base+k}, v{E+k}")
            for k in range(4):
                a(f"v_cvt_pk_bf16_f32 v{o+k}, v{base+2*k}, v{base+2*k+1}")
            a(f"ds_write_b128 v{X+1}, v[{o}:{o+3}] offset:{t*2048 + hf*1024}")
            for _ in range(Cfg.pf_k0):
                if pfk:
                    emit_all(st, pfk.pop(0))
    products_and_atomics(False, st)
    st.wait("vm", ["kva"])
    stamp(26)
    a("s_barrier")
    stamp(15)
    signal(F_KV, S["j"])
    a("s_setprio 0")
    emit_pcs(st, pfk + b_prefetch_lds())
    stamp(16)
    wait_flag(st, F_H, 8, 0x107, f"s_lshr_b32 s{S['t']}, s{S['r2']}, 1", then=8)
    lds_wait(8, 1, 0x10c, RS)
    a("s_branch PHASE2B")

    a.label("ROLE_H0")
    st = kloop(False, False)
    h_epilogue(4, S["tp1"], st, False)
    a("s_branch PHASE2")
    a.label("ROLE_H1")
    st = kloop(True, False)
    h_epilogue(3, S["tp1"], st, False, Cfg.early_lds)

    a.label("PHASE2")
    stamp(19)
    st = Stream(a)
    wait_flag(st, F_H, 8, 0x105, f"s_lshr_b32 s{S['t']}, s{S['r2']}, 1")
    a("s_barrier")
    a.label("PHASE2B")
    stamp(20)

    OA, RAD, WA, CB = SMALL, SMALL + 3, SMALL + 6, SMALL + 14
    XR = [T + 16 + 2 * k for k in range(3)]
    BR = [T + 22 + 2 * k for k in range(3)]

    def epi_setup():
        X = RS
        it = I(f"""
        s_mov_b32 s{SR}, s20
        s_mov_b32 s{SR+1}, s21
        s_mov_b32 s{SR+2}, {2048*1280}
        s_mov_b32 s{SR+3}, 0x20000
        s_mov_b32 s{SAUX}, s18
        s_mov_b32 s{SAUX+1}, s19
        s_mov_b32 s{SAUX+2}, 1280
        s_mov_b32 s{SAUX+3}, 0x20000
        s_mul_i32 s{JT}, s{S['r2']}, {64*1280}
        s_mul_i32 s{JT1}, s{S['c2']}, 160
        s_add_u32 s{JT}, s{JT}, s{JT1}
        """)
        Y = SMALL + 7
        for i in range(3):
            it += I(f"""
            v_add_u32 v{Y}, {512*i}, v0
            v_mul_u32_u24 v{Y+1}, 3277, v{Y}
            v_lshrrev_b32 v{Y+1}, 16, v{Y+1}
            v_mul_u32_u24 v{Y+2}, 20, v{Y+1}
            v_sub_u32 v{Y+2}, v{Y}, v{Y+2}
            v_mul_u32_u24 v{Y+3}, 1280, v{Y+1}
            v_lshl_add_u32 v{Y+3}, v{Y+2}, 3, v{Y+3}
            v_add_u32 v{Y+3}, s{JT}, v{Y+3}
            v_cmp_gt_u32 vcc, 1280, v{Y}
            v_mov_b32 v{Y+4}, {OOB}
            v_cndmask_b32 v{OA+i}, v{Y+4}, v{Y+3}, vcc
            v_bfe_u32 v{Y+4}, v{Y+1}, 1, 2
            v_xor_b32 v{Y+4}, v{Y+4}, v{Y+2}
            v_mul_u32_u24 v{Y+5}, 320, v{Y+1}
            v_lshl_add_u32 v{Y+5}, v{Y+4}, 4, v{Y+5}
            v_cndmask_b32 v{RAD+i}, 0, v{Y+5}, vcc
            v_lshlrev_b32 v{CB+i}, 3, v{Y+2}
            """)
        it += I(f"""
        v_and_b32 v{Y}, 15, v{l}
        v_mul_u32_u24 v{Y}, 320, v{Y}
        v_lshrrev_b32 v{Y+1}, 4, v{l}
        v_bfe_u32 v{Y+2}, v{l}, 1, 2
        v_xor_b32 v{Y+1}, v{Y+1}, v{Y+2}
        v_lshl_add_u32 v{Y}, v{Y+1}, 4, v{Y}
        s_mul_i32 s{JT}, s{S['w']}, {PW}
        v_add_u32 v{WA}, s{JT}, v{Y}
        v_add_u32 v{Y+6}, s{JT}, v{L16}
        """)
        return it

    def epi_loads():
        it = I(f"s_mul_i32 s{JT1}, s{S['c2']}, 160")
        for i in range(3):
            it.append(("vm", f"buffer_load_dwordx2 v[{XR[i]}:{XR[i]+1}], v{OA+i}, s[{SX}:{SX+3}], 0 offen", "x"))
            it.append(("vm", f"buffer_load_dwordx2 v[{BR[i]}:{BR[i]+1}], v{CB+i}, s[{SAUX}:{SAUX+3}], s{JT1} offen", "x"))
        return it

    LB = SMALL + 13

    def p2_step(i, fill):
        st.wait("vm", [("A", i), ("B", i)])
        st.wait("ds", [("B", i)])
        f, b = areg(i), breg(i)
        opt = i in (6, 9)
        if opt:
            emit_all(st, fill)
            fill = []
            lab = a.newlabel("OPT")
            a(f"s_cmp_gt_u32 s{S['nH'] if i == 6 else S['nO']}, {6 if i == 6 else 2}\ns_cbranch_scc0 {lab}")
        k = 0
        for tt in range(4):
            for ct in range(5):
                acc = ACC + 4 * (tt * 5 + ct)
                c = "0" if i == 0 else f"v[{acc}:{acc+3}]"
                a(f"v_mfma_f32_16x16x32_bf16 v[{acc}:{acc+3}], v[{b+4*ct}:{b+4*ct+3}], v[{f+4*tt}:{f+4*tt+3}], {c}")
                k += 1
                n = -(-len(fill) // (21 - k)) if fill else 0
                for _ in range(min(n, len(fill))):
                    emit_item(st, fill.pop(0))
        if opt:
            a.label(lab)

    def lds_b(i):
        r = breg(i)
        return [("ds", f"ds_read_b128 v[{r+4*ct}:{r+4*ct+3}], v{LB} offset:{(i-7)*5120 + ct*1024}", ("B", i)) for ct in range(5)]

    def o_loads(s2):
        for k in (7, 8, 9):
            emit_all(s2, a_load(k))

    def o_try():
        l0, l1 = a.newlabel("OT"), a.newlabel("OT")
        a(f"""
        s_mov_b32 s{S['hs']}, 0
        s_cmp_lg_u32 s{S['w']}, 0
        s_cbranch_scc1 {l0}
        s_lshr_b32 s{S['t']}, s{S['r2']}, 1
        s_add_u32 s{S['t']}, s{S['t']}, {F_O}
        s_lshl_b32 s{S['t']}, s{S['t']}, 7
        v_mov_b32 v{RS}, s{S['t']}
        global_load_dword v{IRS}, v{RS}, s[{S['fl']}:{S['fl']+1}] sc1
        s_waitcnt vmcnt(0)
        v_readfirstlane_b32 s{S['t']}, v{IRS}
        s_cmp_ge_u32 s{S['t']}, 32
        s_cbranch_scc0 {l1}
        """)
        lds_add(12)
        a(f"""
        {l0}:
        v_mov_b32 v{RS}, {SYN}
        ds_read_b32 v{IRS}, v{RS} offset:12
        s_waitcnt lgkmcnt(0)
        v_readfirstlane_b32 s{S['t']}, v{IRS}
        s_cmp_ge_u32 s{S['t']}, 1
        s_cbranch_scc0 {l1}
        s_mov_b32 s{S['hs']}, 1
        """)
        o_loads(Stream(a))
        a.label(l1)

    def o_wait():
        done = a.newlabel("OW")
        if Cfg.o_try >= 0:
            a(f"s_cmp_eq_u32 s{S['hs']}, 1\ns_cbranch_scc1 {done}")
        wait_flag(st, F_O, 32, 0x106, f"s_lshr_b32 s{S['t']}, s{S['r2']}, 1", then=12)
        lds_wait(12, 1, 0x10d, RS)
        o_loads(st)
        a.label(done)
        lds_add(16)
        stamp(21)

    def after_step(i):
        it = []
        if i + 3 <= 6:
            it += a_load(i + 3)
        if i in (0, 1):
            for p in b_load(i + 5, breg(i)):
                it.append(("atomic", p))
        if i == Cfg.o_try:
            it.append(("call", o_try))
        if i == Cfg.o_at:
            it.append(("call", o_wait))
        if i == 4:
            it += epi_loads()
        if i in (5, 6, 7):
            it = lds_b(i + 2) + it
        return it

    for i in range(3):
        emit_all(st, a_load(i))
    a.label("PHASE2C")
    carry = group_scc(epi_setup())
    for i in range(10):
        if i == 7 and Cfg.o_at == 6:
            emit_all(st, carry)
            carry = []
        p2_step(i, carry)
        stamp(27 + i)
        carry = after_step(i)
    st.wait2(None, None)
    a.label("P2_RED")
    stamp(22)
    a(f"s_cmp_lg_u32 s{S['w']}, 7\ns_cbranch_scc1 P2_DUMP")
    lds_wait(16, 8, 0x10e, RS)
    a.label("P2_DUMP")
    for tt in range(4):
        for ct in range(5):
            acc = ACC + 4 * (tt * 5 + ct)
            a(f"ds_write_b128 v{WA}, v[{acc}:{acc+3}] offset:{tt*5120 + ct*64}")
    a("s_waitcnt lgkmcnt(0)\ns_barrier")
    stamp(23)
    for i in range(3):
        if i == 2:
            a(f"s_cmp_ge_u32 s{S['w']}, 4\ns_cbranch_scc1 FIN")
        f = ACC + 32 * (i & 1)
        a(f"v_add_u32 v{T+8}, {4*PW}, v{RAD+i}")
        for w in range(8):
            src, off = (RAD + i, w * PW) if w < 4 else (T + 8, (w - 4) * PW)
            a(f"ds_read_b128 v[{f+4*w}:{f+4*w+3}], v{src} offset:{off}")
        x, b = XR[i], BR[i]
        a(f"""
        v_lshlrev_b32 v{T}, 16, v{x}
        v_and_b32 v{T+1}, 0xffff0000, v{x}
        v_lshlrev_b32 v{T+2}, 16, v{x+1}
        v_and_b32 v{T+3}, 0xffff0000, v{x+1}
        v_lshlrev_b32 v{T+4}, 16, v{b}
        v_and_b32 v{T+5}, 0xffff0000, v{b}
        v_lshlrev_b32 v{T+6}, 16, v{b+1}
        v_and_b32 v{T+7}, 0xffff0000, v{b+1}
        v_pk_add_f32 v[{T}:{T+1}], v[{T}:{T+1}], v[{T+4}:{T+5}]
        v_pk_add_f32 v[{T+2}:{T+3}], v[{T+2}:{T+3}], v[{T+6}:{T+7}]
        """)
        for w in range(8):
            a(f"""
            s_waitcnt lgkmcnt({7-w})
            v_pk_add_f32 v[{T}:{T+1}], v[{T}:{T+1}], v[{f+4*w}:{f+4*w+1}]
            v_pk_add_f32 v[{T+2}:{T+3}], v[{T+2}:{T+3}], v[{f+4*w+2}:{f+4*w+3}]
            """)
        a(f"""
        v_cvt_pk_bf16_f32 v{T+10+2*i}, v{T}, v{T+1}
        v_cvt_pk_bf16_f32 v{T+11+2*i}, v{T+2}, v{T+3}
        buffer_store_dwordx2 v[{T+10+2*i}:{T+11+2*i}], v{OA+i}, s[{SR}:{SR+3}], 0 offen
        """)
    a.label("FIN")
    stamp(24)
    if Cfg.stamps == 5:
        a(f"""
        s_cmp_lg_u32 s2, {Cfg.probe_wg}
        s_cbranch_scc1 END
        s_cmp_lg_u32 s{S['w']}, {Cfg.probe_w}
        s_cbranch_scc1 END
        v_readlane_b32 s{S['t']}, v{ITS}, {Cfg.probe}
        v_readlane_b32 s{S['t1']}, v{ITS}, {0 if Cfg.probe_cyc else 62}
        s_sub_u32 s{S['t']}, s{S['t']}, s{S['t1']}
        s_{'lshr' if Cfg.probe_cyc else 'lshl'}_b32 s{S['t']}, s{S['t']}, {3 if Cfg.probe_cyc else 2}
        s_min_u32 s{S['t']}, s{S['t']}, 100000
        v_mov_b32 v{T}, s{S['t']}
        global_store_dword v{Z}, v{T}, s[22:23] offset:4
        s_memrealtime s[{S['t0']}:{S['t0']+1}]
        s_waitcnt lgkmcnt(0)
        s_mov_b32 s{S['t1']}, s{S['t0']}
        SPIN:
        s_memrealtime s[{S['t0']}:{S['t0']+1}]
        s_waitcnt lgkmcnt(0)
        s_sub_u32 s{S['t2']}, s{S['t0']}, s{S['t1']}
        s_cmp_lt_u32 s{S['t2']}, s{S['t']}
        s_cbranch_scc1 SPIN
        """)
    elif Cfg.stamps and Cfg.stamps != 4:
        a(f"""
        s_memrealtime s[{S['t0']}:{S['t0']+1}]
        s_waitcnt lgkmcnt(0)
        v_writelane_b32 v{ITS}, s{S['t0']}, 63
        s_lshl_b32 s{S['t']}, s2, 3
        s_add_u32 s{S['t']}, s{S['t']}, s{S['w']}
        s_lshl_b32 s{S['t']}, s{S['t']}, 8
        s_add_u32 s{S['t']}, s{S['t']}, {STAMP_OFF}
        v_lshlrev_b32 v{T+20}, 2, v{l}
        v_add_u32 v{T+20}, s{S['t']}, v{T+20}
        global_store_dword v{T+20}, v{ITS}, s[24:25]
        """)
    a.label("END")
    a("s_endpgm")
    for f in ool:
        f()
    a.label("CODE_END")
    a("s_endpgm")
    return a.L


def build():
    head = open("cdna_kernels/%s.s.ref" % NAME).read().split("; Override launch")[0]
    out = head + "; @launch grid=(256,1,1) block=(512,1,1) lds=163840\n"
    out += '.amdgcn_target "amdgcn-amd-amdhsa--gfx950"\n.text\n'
    L, n = fix_hazards(gen())
    out += f".globl {KN}\n.p2align 8\n.type {KN},@function\n"
    out += "\n".join(x if x.endswith(":") else "    " + x for x in L) + "\n"
    print("instrs", len(L), "nops inserted", n, file=sys.stderr)
    out += f""".section .rodata,"a"
.p2align 6
.amdhsa_kernel {KN}
  .amdhsa_next_free_vgpr 256
  .amdhsa_next_free_sgpr 102
  .amdhsa_accum_offset 256
  .amdhsa_group_segment_fixed_size 0
  .amdhsa_kernarg_size 88
  .amdhsa_user_sgpr_count 2
  .amdhsa_user_sgpr_kernarg_segment_ptr 1
  .amdhsa_system_sgpr_workgroup_id_x 1
  .amdhsa_float_denorm_mode_32 3
.end_amdhsa_kernel
"""
    return out


if __name__ == "__main__":
    for arg in sys.argv[2:]:
        k, v = arg.split("=")
        assert hasattr(Cfg, k), k
        setattr(Cfg, k, int(v))
    open(sys.argv[1], "w").write(build())
```

```python
import sys, struct
from asmlib import Asm, fix_hazards, RegAlloc

NAME = "parallel_sum__linear_attn_block__mixer_channel_mlp__prompt"
KN = NAME + "_kernel"

A2_OFF = 0
A2_RB = 74 * 4096
B2_OFF = 32 * A2_RB
B2_C = 74 * 5120
KV_OFF = B2_OFF + 8 * B2_C
CS_OFF = KV_OFF + 8 * 8192
FLAG_OFF = CS_OFF + 16384
RS_OFF = FLAG_OFF + 8192
WS_SIZE = RS_OFF + 16384
F_KV, F_H, F_O, F_EARLY, F_B2 = 0, 8, 24, 40, 48
STAMP_OFF = WS_SIZE + 65536
OOB = 0x7f000000

SLOT = 49152
MISC = 3 * SLOT
RELAY = MISC
ST_M, ST_RS, ST_IRS, CSP = MISC + 12288, MISC + 12800, MISC + 13312, MISC + 14336
SYN = MISC + 15360
PW = 20480
GAP = 15360
KVX = 0
CMP = 40960
CDUM = CMP + 6720
ONES = CMP + 7232
FRG = 4 * PW + GAP


def frg(fi):
    return FRG + fi * 1024 + (fi // 5) * GAP


LOG2E = 1.4426950408889634
GC1 = -2.0 * 0.7978845608028654 * LOG2E
GC2 = GC1 * 0.044715
EPS6 = 9.98377799987793e-07


def hx(x):
    return "0x%08x" % struct.unpack("<I", struct.pack("<f", x))[0]


class Cfg:
    stamps = 0
    probe = 24
    probe_wg = 200
    probe_w = 0
    probe_cyc = 0
    prefetch_code = 1
    x_nodma = 0
    bpos = 1
    map1 = 2
    map2 = 0
    wnt = 0
    rnt = 1
    p2prio = 2
    prio = 0
    prio2 = 1
    cprio = 1
    nfirst = 4
    poll_it = 7
    touch = 1
    fine = 0
    fill = 2
    pf_h = 2
    pf_q1 = 25
    pf_k1 = 10
    pf_k0 = 0
    phi_n = 3
    pf_l = 1
    hbar = 6
    hbar_chunk = 5
    gelu_pk0 = 0
    kv_pk = 1
    h_early = 1
    rot2 = 1
    o_at = 6
    o_try = 4
    p2sc = 1
    qprio = 1
    hpass = 1
    rs_it = 1
    hpoll = 7
    hsig = 3
    ini_it = 0
    bsig = 3
    bpoll = 6
    touch_it = 8
    hfill = 3
    hprio = 1
    early_lds = 1
    dfirst = 1
    qb3 = 2
    qb4 = 5
    sig_it = 4
    eprio = 0


def typ_of(ids):
    return {0: (ids >> 5) & 1, 1: (ids >> 3) & 1, 2: ids >> 7}[Cfg.map1]


class Stream:
    def __init__(self, a):
        self.a = a
        self.q = {"ds": [], "vm": []}

    def emit(self, it):
        k = it[0]
        if k == "i":
            self.a(it[1])
        elif k in ("ds", "vm"):
            self.a(it[1])
            self.q[k].append(it[2])
        elif k == "vm0":
            self.a(it[1])
            self.q["vm"].append(("*", it[2]))
        elif k in ("wds", "wvm"):
            self.wait(k[1:], it[1])
        else:
            raise ValueError(it)

    def count(self, k, tags):
        q = self.q[k]
        def star(t):
            return isinstance(t, tuple) and t[0] == "*"
        idx = max([i for i, t in enumerate(q) if tags is None or t in tags or (star(t) and t[1] in tags)], default=-1)
        if idx < 0:
            return None
        left = sum(1 for t in q[idx + 1:] if not star(t))
        del q[:idx + 1]
        return min(left, 15 if k == "ds" else 63)

    def wait(self, k, tags):
        n = self.count(k, tags)
        if n is not None:
            self.a(f"s_waitcnt {'lgkmcnt' if k == 'ds' else 'vmcnt'}({n})")

    def wait2(self, dtags, vtags):
        nd, nv = self.count("ds", dtags), self.count("vm", vtags) if vtags != [] else None
        p = []
        if nv is not None:
            p.append(f"vmcnt({nv})")
        if nd is not None:
            p.append(f"lgkmcnt({nd})")
        if p:
            self.a("s_waitcnt " + " ".join(p))


def I(text):
    return [("i", x.strip()) for x in text.strip().split("\n") if x.strip()]


def group_scc(items):
    out, i = [], 0
    while i < len(items):
        it = items[i]
        if it[0] == "i" and it[1].startswith("s_cmp"):
            j = i + 1
            while j < len(items) and items[j][0] == "i" and items[j][1].startswith("s_cselect"):
                j += 1
            out.append(("atomic", items[i:j]))
            i = j
        else:
            out.append(it)
            i += 1
    return out


def gen():
    a = Asm()
    ool = []
    S = {}
    sa = RegAlloc(44, 96)
    for n in ("w", "rg", "rb", "j", "typ", "col0", "soA", "soB", "so2", "so", "ofA", "ofB", "of2", "t", "t1", "t2", "t3", "pc",
              "rlo", "rls", "hs", "jt", "jt1", "r2", "c2", "sH", "sO", "nH", "nO", "rH", "rO", "p2A", "p2B", "tp1", "tp2"):
        S[n] = sa.alloc(n)
    S["uo"] = sa.alloc("uo", 4)
    S["pa"] = sa.alloc("pa", 4)
    for n in ("ex", "m1", "m2"):
        S[n] = sa.alloc(n, 2, 2)
    S["fl"], S["t0"] = 10, 100
    SX, SW, SWS, SR, SAUX = 28, 32, 36, 40, 96

    l, Z, ITS, RS, IRS, L16, SMALL = 1, 2, 3, 4, 5, 6, 7
    ACC, T, BB = 24, 104, 152
    CMPA, SCA = SMALL, SMALL + 8
    vb = RegAlloc(BB, BB + 100)
    FA = vb.alloc("fa", 8, 2)
    FB = vb.alloc("fb", 40, 2)
    XE = vb.alloc("xe", 4, 2)
    WE = vb.alloc("we", 20, 2)
    RA = vb.alloc("rA", 4)
    RA0 = vb.alloc("rA0")
    RB = vb.alloc("rB")
    RB0 = vb.alloc("rB0")
    BIAS = vb.alloc("bias", 5)
    RLD = vb.alloc("rld")
    QSCA = SMALL + 4

    def srd(base, ptr, size):
        a(f"s_mov_b32 s{base}, s{ptr}\ns_mov_b32 s{base+1}, s{ptr+1}\ns_mov_b32 s{base+2}, {size}\ns_mov_b32 s{base+3}, 0x20000")

    DBGW = {3: 2, 13: 3, 15: 4, 20: 5, 21: 6, 22: 7, 24: 9}

    def stamp(lane):
        if Cfg.stamps == 5:
            if lane == Cfg.probe:
                a(f"{'s_memtime' if Cfg.probe_cyc else 's_memrealtime'} s[{S['t0']}:{S['t0']+1}]\ns_waitcnt lgkmcnt(0)\nv_writelane_b32 v{ITS}, s{S['t0']}, {lane}")
        elif Cfg.stamps == 4:
            if lane in DBGW:
                a(f"s_memrealtime s[{S['t0']}:{S['t0']+1}]\ns_waitcnt lgkmcnt(0)\nv_mov_b32 v{ITS}, s{S['t0']}\ns_mov_b64 exec, 1\n"
                  f"global_atomic_umax v{Z}, v{ITS}, s[22:23] offset:{4*DBGW[lane]}\ns_mov_b64 exec, -1")
        elif Cfg.stamps:
            a(f"{'s_memrealtime' if Cfg.stamps == 3 else 's_memtime'} s[{S['t0']}:{S['t0']+1}]\ns_waitcnt lgkmcnt(0)\nv_writelane_b32 v{ITS}, s{S['t0']}, {lane}")

    def poll_slow(check, err, sleep=24):
        lp, back = a.newlabel("PL"), a.newlabel("PB")
        a(f"s_cbranch_scc0 {lp}\n{back}:")

        def emit():
            l2 = a.newlabel("PL")
            a(f"{lp}:\ns_mov_b32 s{S['pc']}, 0\n{l2}:\ns_sleep {sleep}")
            if Cfg.stamps == 4 and err in (0x101, 0x104, 0x102, 0x105, 0x106, 0x107):
                wd = {0x101: 10, 0x104: 11, 0x102: 12, 0x105: 13, 0x106: 14, 0x107: 15}[err]
                a(f"v_mov_b32 v{ITS}, 1\ns_mov_b64 s[{S['t0']}:{S['t0']+1}], exec\ns_mov_b64 exec, 1\nglobal_atomic_add v{Z}, v{ITS}, s[22:23] offset:{4*wd}\ns_mov_b64 exec, s[{S['t0']}:{S['t0']+1}]")
            check()
            a(f"""
            s_cbranch_scc1 {back}
            s_add_u32 s{S['pc']}, s{S['pc']}, 1
            s_cmp_lt_u32 s{S['pc']}, 0x20000
            s_cbranch_scc1 {l2}
            v_mov_b32 v{IRS}, {err}
            global_store_dword v{Z}, v{IRS}, s[22:23] offset:32
            s_branch {back}
            """)
        ool.append(emit)

    a.label(KN)
    a(f"""
    s_cmp_ge_u32 s2, 256
    s_cbranch_scc1 END
    s_load_dwordx16 s[4:19], s[0:1], 0
    s_load_dwordx4 s[20:23], s[0:1], 64
    s_load_dwordx2 s[24:25], s[0:1], 80
    v_lshrrev_b32 v{T}, 6, v0
    v_and_b32 v{l}, 63, v0
    v_readfirstlane_b32 s{S['w']}, v{T}
    """)
    if Cfg.stamps:
        a(f"v_mov_b32 v{ITS}, 0\ns_memtime s[{S['t0']}:{S['t0']+1}]\ns_memrealtime s[{S['ex']}:{S['ex']+1}]")
    if Cfg.map1 == 0:
        a(f"""
        s_and_b32 s{S['t']}, s2, 3
        s_lshl_b32 s{S['t']}, s{S['t']}, 2
        s_bfe_u32 s{S['t1']}, s2, 0x20003
        s_add_u32 s{S['rb']}, s{S['t']}, s{S['t1']}
        s_bfe_u32 s{S['typ']}, s2, 0x10005
        s_bfe_u32 s{S['t']}, s2, 0x10002
        s_lshl_b32 s{S['t']}, s{S['t']}, 2
        s_bfe_u32 s{S['t1']}, s2, 0x20006
        s_add_u32 s{S['j']}, s{S['t']}, s{S['t1']}
        """)
    else:
        if Cfg.map1 == 1:
            a(f"s_and_b32 s{S['j']}, s2, 7\ns_bfe_u32 s{S['typ']}, s2, 0x10003\ns_lshr_b32 s{S['rb']}, s2, 4")
        else:
            a(f"s_and_b32 s{S['j']}, s2, 7\ns_lshr_b32 s{S['typ']}, s2, 7\ns_bfe_u32 s{S['rb']}, s2, 0x40003")
    a(f"""
    v_mov_b32 v{Z}, 0
    v_lshlrev_b32 v{L16}, 4, v{l}
    s_and_b32 s{S['rg']}, s{S['w']}, 3
    s_mul_i32 s{S['t']}, s{S['j']}, 7
    s_min_u32 s{S['t']}, s{S['t']}, 47
    s_lshl_b32 s{S['t']}, s{S['t']}, 5
    s_mul_i32 s{S['t1']}, s{S['j']}, 80
    s_cmp_eq_u32 s{S['typ']}, 0
    s_cselect_b32 s{S['col0']}, s{S['t1']}, s{S['t']}
    s_lshr_b32 s{S['t']}, s{S['w']}, 2
    s_lshl_b32 s{S['t1']}, s{S['typ']}, 1
    s_add_u32 s{S['t3']}, s{S['t']}, s{S['t1']}
    s_cmp_eq_u32 s{S['t3']}, 0
    s_cbranch_scc1 ROLE_KV
    s_cmp_eq_u32 s{S['t3']}, 2
    s_cbranch_scc1 ROLE_H0
    s_cmp_eq_u32 s{S['t3']}, 3
    s_cbranch_scc1 ROLE_H1
    """)

    TY = {0: dict(nt=5, stride=3840, wptr=6, qkv=True), 1: dict(nt=4, stride=3456, wptr=12, qkv=False)}
    JT, JT1 = S["jt"], S["jt1"]

    def after_kernarg():
        a("s_waitcnt lgkmcnt(0)")
        if Cfg.stamps == 4:
            a(f"s_not_b32 s{S['ex']}, s{S['ex']}\nv_mov_b32 v{ITS}, s{S['ex']}\ns_mov_b64 exec, 1\nglobal_atomic_umax v{Z}, v{ITS}, s[22:23] offset:4\ns_mov_b64 exec, -1")
        elif Cfg.stamps:
            a(f"v_writelane_b32 v{ITS}, s{S['t0']}, 0\nv_writelane_b32 v{ITS}, s{S['ex']}, 62")
        srd(SX, 4, 2048 * 1280)
        srd(SWS, 24, WS_SIZE)
        a(f"s_add_u32 s{S['fl']}, s24, {FLAG_OFF}\ns_addc_u32 s{S['fl']+1}, s25, 0")

    def emit_item(st, it):
        if it[0] == "atomic":
            for x in it[1]:
                emit_item(st, x)
        elif it[0] == "call":
            it[1]()
        else:
            st.emit(it)

    def emit_all(st, items):
        for x in items:
            emit_item(st, x)

    def p2_params():
        if Cfg.map2 == 0:
            a(f"""
            s_and_b32 s{S['t']}, s2, 3
            s_lshl_b32 s{S['t']}, s{S['t']}, 3
            s_bfe_u32 s{S['t1']}, s2, 0x30003
            s_add_u32 s{S['r2']}, s{S['t']}, s{S['t1']}
            s_bfe_u32 s{S['t']}, s2, 0x10002
            s_lshl_b32 s{S['t']}, s{S['t']}, 2
            s_lshr_b32 s{S['t1']}, s2, 6
            s_add_u32 s{S['c2']}, s{S['t']}, s{S['t1']}
            """)
        else:
            a(f"""
            s_and_b32 s{S['t']}, s2, 7
            s_lshl_b32 s{S['t']}, s{S['t']}, 2
            s_bfe_u32 s{S['t1']}, s2, 0x20003
            s_add_u32 s{S['r2']}, s{S['t']}, s{S['t1']}
            s_lshr_b32 s{S['c2']}, s2, 5
            """)
        a(f"""
        s_mul_i32 s{S['t']}, s{S['w']}, 7
        s_mul_i32 s{S['t1']}, s{S['w']}, 6
        s_add_u32 s{S['t1']}, s{S['t1']}, 6
        s_cmp_lt_u32 s{S['w']}, 6
        s_cselect_b32 s{S['sH']}, s{S['t']}, s{S['t1']}
        s_cselect_b32 s{S['nH']}, 7, 6
        s_lshl_b32 s{S['t']}, s{S['w']}, 2
        s_lshr_b32 s{S['t1']}, 0x33222233, s{S['t']}
        s_and_b32 s{S['nO']}, s{S['t1']}, 15
        s_lshl_b32 s{S['t']}, s{S['w']}, 1
        s_min_u32 s{S['t1']}, s{S['w']}, 2
        s_add_u32 s{S['t']}, s{S['t']}, s{S['t1']}
        s_cmp_eq_u32 s{S['w']}, 7
        s_cselect_b32 s{S['t1']}, 55, 54
        s_add_u32 s{S['sO']}, s{S['t']}, s{S['t1']}
        s_and_b32 s{S['t']}, s{S['c2']}, 3
        s_mul_i32 s{S['rH']}, s{S['t']}, {2 * Cfg.rot2}
        s_mul_i32 s{S['rO']}, s{S['t']}, {Cfg.rot2}
        s_cmp_ge_u32 s{S['rH']}, s{S['nH']}
        s_cselect_b32 s{S['rH']}, 1, s{S['rH']}
        s_cmp_ge_u32 s{S['rO']}, s{S['nO']}
        s_cselect_b32 s{S['t']}, s{S['nO']}, 0
        s_sub_u32 s{S['rO']}, s{S['rO']}, s{S['t']}
        s_mul_i32 s{S['p2A']}, s{S['r2']}, {A2_RB}
        s_mul_i32 s{S['p2B']}, s{S['c2']}, {B2_C}
        s_add_u32 s{S['p2B']}, s{S['p2B']}, {B2_OFF}
        """)

    def relay_params(base):
        a(f"""
        s_lshl_b32 s{S['t']}, s{S['rg']}, 8
        s_add_u32 s{S['t3']}, s{S['t']}, s2
        s_mul_i32 s{S['t2']}, s{S['t3']}, 6554
        s_lshr_b32 s{S['t2']}, s{S['t2']}, 16
        s_mul_i32 s{S['t']}, s{S['t2']}, 10
        s_sub_u32 s{S['t1']}, s{S['t3']}, s{S['t']}
        s_min_u32 s{S['so']}, s{S['rg']}, 2
        s_lshl_b32 s{S['so']}, s{S['so']}, 12
        s_add_u32 s{S['rls']}, s{S['so']}, {base}
        """)

    def frag_addr_a(dst, X):
        a(f"""
        v_and_b32 v{X}, 31, v{l}
        s_lshl_b32 s{S['t']}, s{S['rg']}, 5
        v_add_u32 v{X}, s{S['t']}, v{X}
        v_bfe_u32 v{X+1}, v{X}, 1, 3
        v_lshrrev_b32 v{X+2}, 5, v{l}
        v_xor_b32 v{X+1}, v{X+1}, v{X+2}
        v_lshlrev_b32 v{X+1}, 4, v{X+1}
        v_lshl_add_u32 v{dst}, v{X}, 7, v{X+1}
        """)

    def frag_addr_b_low(dst, X):
        a(f"""
        v_bfe_u32 v{X}, v{l}, 2, 2
        v_lshlrev_b32 v{dst}, 6, v{X}
        v_bfe_u32 v{X}, v{l}, 4, 1
        v_lshl_add_u32 v{dst}, v{X}, 5, v{dst}
        v_and_b32 v{X}, 3, v{l}
        v_lshl_add_u32 v{dst}, v{X}, 3, v{dst}
        """)

    def bias_setup(R, regs, n, tp, second, st, X):
        if not R["qkv"]:
            srd(SAUX, 14, 3456)
            a(f"""
            s_lshl_b32 s{S['t']}, s{tp}, 5
            s_add_u32 s{S['t']}, s{S['t']}, s{S['col0']}
            s_lshl_b32 s{S['t']}, s{S['t']}, 1
            v_and_b32 v{X}, 31, v{l}
            v_lshlrev_b32 v{X}, 1, v{X}
            """)
            for t in range(n):
                st.emit(("vm", f"buffer_load_ushort v{regs+t}, v{X}, s[{SAUX}:{SAUX+3}], s{S['t']} offen offset:{t*64}", "bias"))
        elif second:
            for t in range(3):
                a(f"v_mov_b32 v{regs+t}, 0x3586")
        else:
            a(f"""
            v_mov_b32 v{regs}, 0x3586
            v_mov_b32 v{regs+1}, 0x3586
            s_mov_b32 s{S['m2']}, 0x0000ffff
            s_mov_b32 s{S['m2']+1}, 0x0000ffff
            v_cndmask_b32 v{regs+2}, 0, v{regs}, s[{S['m2']}:{S['m2']+1}]
            v_mov_b32 v{regs+3}, 0
            v_mov_b32 v{regs+4}, 0
            """)

    def vcol(reg, tmp):
        return I(f"""
        v_mov_b32 v{tmp}, 0
        v_mov_b32 v{tmp+1}, -16
        v_cmp_le_u32 vcc, 80, v{reg}
        v_cndmask_b32 v{tmp}, v{tmp}, v{tmp+1}, vcc
        v_mov_b32 v{tmp+1}, {640-96}
        v_cmp_le_u32 vcc, 96, v{reg}
        v_cndmask_b32 v{tmp}, v{tmp}, v{tmp+1}, vcc
        v_mov_b32 v{tmp+1}, {1280-176}
        v_cmp_le_u32 vcc, 176, v{reg}
        v_cndmask_b32 v{tmp}, v{tmp}, v{tmp+1}, vcc
        v_add_u32 v{reg}, v{reg}, v{tmp}
        """)

    def job_build_ext(nt, tp, xe, we, bias, X):
        it = I(f"""
        v_and_b32 v{X}, 31, v{l}
        s_lshl_b32 s{JT}, s{S['rg']}, 5
        v_add_lshl_u32 v{X+1}, v{X}, s{JT}, 2
        v_add_u32 v{X+1}, {MISC}, v{X+1}
        s_lshl_b32 s{JT}, s{tp}, 7
        s_add_u32 s{JT}, s{JT}, {CSP}
        v_lshl_add_u32 v{X}, v{X}, 2, s{JT}
        """)
        for r, off in ((X + 2, ST_M), (RS, ST_RS), (IRS, ST_IRS)):
            it.append(("ds", f"ds_read_b32 v{r}, v{X+1} offset:{off-MISC}", "bx"))
        for t in range(nt):
            it.append(("ds", f"ds_read_b32 v{we+4*t+3}, v{X} offset:{t*128}", "bx"))
        it += I(f"s_mov_b32 s{S['m1']}, -1\ns_mov_b32 s{S['m1']+1}, 0") + [("wds", ["bx"])] + I(f"""
        v_sub_f32 v{X+2}, 0, v{X+2}
        v_cvt_pk_bf16_f32 v{X+3}, v{X+2}, v{IRS}
        v_lshlrev_b32 v{X+4}, 16, v{X+3}
        v_and_b32 v{X+5}, 0xffff0000, v{X+3}
        v_sub_f32 v{X+4}, v{X+2}, v{X+4}
        v_sub_f32 v{X+5}, v{IRS}, v{X+5}
        v_cvt_pk_bf16_f32 v{X+4}, v{X+2}, v{X+4}
        v_cvt_pk_bf16_f32 v{X+5}, v{X+5}, v{Z}
        v_cndmask_b32 v{xe}, 0, v{X+4}, s[{S['m1']}:{S['m1']+1}]
        v_cndmask_b32 v{xe+1}, 0, v{X+3}, s[{S['m1']}:{S['m1']+1}]
        v_cndmask_b32 v{xe+2}, 0, v{X+5}, s[{S['m1']}:{S['m1']+1}]
        v_mov_b32 v{xe+3}, 0
        """)
        for t in range(nt):
            w, b = we + 4 * t, bias + t
            it += I(f"""
            v_cvt_pk_bf16_f32 v{w}, v{w+3}, v{w+3}
            v_and_b32 v{w+1}, 0xffff0000, v{w}
            v_sub_f32 v{w+1}, v{w+3}, v{w+1}
            v_cvt_pk_bf16_f32 v{w+1}, v{w+1}, v{Z}
            v_lshl_or_b32 v{w+1}, v{b}, 16, v{w+1}
            v_mov_b32 v{w+2}, v{b}
            v_mov_b32 v{w+3}, 0
            """)
        return it

    def ext_mfma(nt, xe, we, tr):
        for t in range(nt):
            w, acc = we + 4 * t, ACC + 16 * t
            x, y = (w, xe) if tr else (xe, w)
            a(f"v_mfma_f32_32x32x16_bf16 v[{acc}:{acc+15}], v[{x}:{x+3}], v[{y}:{y+3}], v[{acc}:{acc+15}]")

    def shard_flag_jobs(flag, V, err, who, lanes=8):
        sig = I(f"""
        s_and_b32 s{JT}, s2, 7
        s_lshl_b32 s{JT}, s{JT}, 7
        s_add_u32 s{JT}, s{JT}, {flag*128}
        v_mov_b32 v{V}, s{JT}
        v_mov_b32 v{V+1}, 1
        """) + [("atomic", I(f"s_cmp_eq_u32 s{S['w']}, {who}\ns_cselect_b32 exec_lo, 1, 0\ns_mov_b32 exec_hi, 0") +
                 [("vm0", f"global_atomic_add v{V}, v{V+1}, s[{S['fl']}:{S['fl']+1}]", "sg")] + I("s_mov_b64 exec, -1"))]
        ldj = I(f"""
        v_lshlrev_b32 v{V}, 7, v{l}
        v_add_u32 v{V}, {flag*128}, v{V}
        v_mov_b32 v{V+1}, 32
        """) + [("atomic", I(f"s_cmp_eq_u32 s{S['w']}, {who}\ns_cselect_b32 exec_lo, {hex((1 << lanes) - 1)}, 0\ns_mov_b32 exec_hi, 0") +
                 [("vm0", f"global_load_dword v{V+1}, v{V}, s[{S['fl']}:{S['fl']+1}] sc1", ("fl", flag))] + I("s_mov_b64 exec, -1"))]

        def chk():
            a(f"""
            s_mov_b64 exec, {hex((1 << lanes) - 1)}
            global_load_dword v{V+1}, v{V}, s[{S['fl']}:{S['fl']+1}] sc1
            s_mov_b64 exec, -1
            s_waitcnt vmcnt(0)
            v_cmp_gt_u32 vcc, 32, v{V+1}
            s_cmp_eq_u64 vcc, 0
            """)
        ck = [("wvm", [("fl", flag)]), ("atomic", I(f"v_cmp_gt_u32 vcc, 32, v{V+1}\ns_cmp_eq_u64 vcc, 0") + [("call", lambda: poll_slow(chk, err))])]
        return sig, ldj, ck

    def row_publish(SQ, SM, Y):
        it = I(f"""
        s_mov_b32 s{S['m1']}, 0xaaaaaaaa
        s_mov_b32 s{S['m1']+1}, 0xaaaaaaaa
        s_mov_b32 s{S['m2']}, 0xcccccccc
        s_mov_b32 s{S['m2']+1}, 0xcccccccc
        v_cndmask_b32 v{Y+2}, v{SQ}, v{SQ+1}, s[{S['m1']}:{S['m1']+1}]
        v_cndmask_b32 v{Y+3}, v{SQ+2}, v{SQ+3}, s[{S['m1']}:{S['m1']+1}]
        v_cndmask_b32 v{Y+2}, v{Y+2}, v{Y+3}, s[{S['m2']}:{S['m2']+1}]
        s_lshl_b32 s{JT}, s{S['rb']}, 2
        s_add_u32 s{JT}, s{JT}, s{S['rg']}
        s_lshl_b32 s{JT}, s{JT}, 7
        s_add_u32 s{JT}, s{JT}, {RS_OFF}
        s_lshl_b32 s{JT1}, s{S['j']}, 1
        s_add_u32 s{JT1}, s{JT1}, s{S['typ']}
        s_cmp_ge_u32 s{JT1}, 10
        s_cselect_b32 s{JT}, {OOB}, s{JT}
        v_and_b32 v{Y+4}, 31, v{l}
        v_lshrrev_b32 v{Y+5}, 5, v{l}
        v_lshlrev_b32 v{Y+5}, 13, v{Y+5}
        v_permlane32_swap_b32 v{SM}, v{Y+2}
        v_lshl_add_u32 v{Y+4}, v{Y+4}, 2, v{Y+5}
        v_add_f32 v{Y+2}, v{Y+2}, v{SM}
        """)
        it.append(("vm", f"buffer_atomic_add_f32 v{Y+2}, v{Y+4}, s[{SWS}:{SWS+3}], s{JT} offen", "stat"))
        return it


    def job_load_stats(qkv, Y):
        it = I(f"""
        v_and_b32 v{Y}, 31, v{l}
        s_lshl_b32 s{JT}, s{S['rb']}, 2
        s_add_u32 s{JT}, s{JT}, s{S['rg']}
        s_lshl_b32 s{JT}, s{JT}, 7
        s_add_u32 s{JT}, s{JT}, {RS_OFF}
        s_add_u32 s{JT1}, s{JT}, 8192
        v_lshlrev_b32 v{Y+1}, 2, v{Y}
        """)
        it.append(("vm", f"buffer_load_dword v{Y+2}, v{Y+1}, s[{SWS}:{SWS+3}], s{JT} offen sc1", "ls"))
        it.append(("vm", f"buffer_load_dword v{Y+3}, v{Y+1}, s[{SWS}:{SWS+3}], s{JT1} offen sc1", "ls"))
        it += I(f"s_lshl_b32 s{JT}, s{S['rg']}, 6\nv_add_u32 v{Y+1}, s{JT}, v{l}")
        if qkv:
            it += vcol(Y + 1, Y + 4) + I(f"s_lshl_b32 s{JT}, s{S['col0']}, 2\ns_add_u32 s{JT}, s{JT}, {CS_OFF}")
        else:
            it += I(f"s_lshl_b32 s{JT}, s{S['col0']}, 2\ns_add_u32 s{JT}, s{JT}, {CS_OFF + 1920*4}")
        it += I(f"v_lshlrev_b32 v{Y+1}, 2, v{Y+1}")
        it.append(("vm", f"buffer_load_dword v{Y+4}, v{Y+1}, s[{SWS}:{SWS+3}], s{JT} offen sc1", "ls"))
        return it

    def job_publish_stats(qkv, Y):
        it = I(f"""
        v_and_b32 v{Y+5}, 31, v{l}
        s_lshl_b32 s{JT}, s{S['rg']}, 5
        v_add_lshl_u32 v{Y+5}, v{Y+5}, s{JT}, 2
        v_add_u32 v{Y+5}, {MISC}, v{Y+5}
        s_lshl_b32 s{JT}, s{S['rg']}, 8
        s_add_u32 s{JT}, s{JT}, {CSP}
        v_lshl_add_u32 v{Y+6}, v{l}, 2, s{JT}
        """) + [("wvm", ["ls"])] + I(f"""
        v_mul_f32 v{Y+2}, {hx(1/640)}, v{Y+2}
        v_mul_f32 v{Y+3}, {hx(1/640)}, v{Y+3}
        v_fma_f32 v{Y+3}, -v{Y+2}, v{Y+2}, v{Y+3}
        v_max_f32 v{Y+3}, 0, v{Y+3}
        v_add_f32 v{Y}, {hx(1e-5)}, v{Y+3}
        """)
        if not qkv:
            it += I(f"v_mov_b32 v{Y+1}, {hx(1e-5)}\nv_fma_f32 v{Y}, v{Y}, v{Y+1}, v{Y+3}")
        it += I(f"v_sqrt_f32 v{Y+1}, v{Y}\nv_rsq_f32 v{Y}, v{Y}")
        for r, off in ((Y + 2, ST_M), (Y, ST_RS), (Y + 1, ST_IRS)):
            it.append(("ds", f"ds_write_b32 v{Y+5}, v{r} offset:{off-MISC}", "pub"))
        it.append(("ds", f"ds_write_b32 v{Y+6}, v{Y+4}", "pub"))
        return it

    def job_touch(V):
        it = I(f"""
        s_and_b32 s{JT}, s{S['r2']}, 7
        s_mul_i32 s{JT}, s{JT}, {370*128}
        s_mul_i32 s{JT1}, s{S['rg']}, {96*128}
        s_add_u32 s{JT}, s{JT}, s{JT1}
        s_add_u32 s{JT}, s{JT}, s{S['p2B']}
        v_lshlrev_b32 v{V+1}, 7, v{l}
        """)
        it.append(("vm", f"buffer_load_dword v{V}, v{V+1}, s[{SWS}:{SWS+3}], s{JT} offen sc1", "tc"))
        it += I(f"s_add_u32 s{JT}, s{JT}, 8192")
        it.append(("atomic", I("s_mov_b32 exec_hi, 0") + [("vm", f"buffer_load_dword v{V}, v{V+1}, s[{SWS}:{SWS+3}], s{JT} offen sc1", "tc")] + I("s_mov_b32 exec_hi, -1")))
        return it


    def code_prefetch():
        if not Cfg.prefetch_code:
            return
        here = a.newlabel("PC")
        a(f"""
        s_getpc_b64 s[26:27]
        {here}:
        s_sub_u32 s26, s26, {here}-{KN}
        s_subb_u32 s27, s27, 0
        s_bfe_u32 s{S['t']}, s2, 0x20003
        s_lshl_b32 s{S['t']}, s{S['t']}, 14
        v_lshlrev_b32 v{T+2}, 6, v0
        v_add_u32 v{T+2}, s{S['t']}, v{T+2}
        v_min_u32 v{T+2}, CODE_END-{KN}-4, v{T+2}
        v_mov_b32 v{T+3}, s27
        v_add_co_u32 v{T+2}, vcc, s26, v{T+2}
        v_addc_co_u32 v{T+3}, vcc, 0, v{T+3}, vcc
        s_mov_b32 exec_lo, 0x55555555
        s_mov_b32 exec_hi, 0x55555555
        global_load_dword v{RS}, v[{T+2}:{T+3}], off
        s_mov_b64 exec, -1
        """)

    def zero_init():
        a(f"v_mov_b32 v{T+13}, {SYN}\nds_write_b128 v{T+13}, v[{T+8}:{T+11}]\nds_write_b128 v{T+13}, v[{T+8}:{T+11}] offset:16".replace("v_mov_b32", f"v_mov_b32 v{T+8}, 0\nv_mov_b32 v{T+9}, 0\nv_mov_b32 v{T+10}, 0\nv_mov_b32 v{T+11}, 0\nv_mov_b32", 1))
        lab = a.newlabel("NI")
        a(f"""
        s_cmp_lg_u32 s{S['rg']}, 3
        s_cbranch_scc1 {lab}
        s_cmp_ge_u32 s2, 32
        s_cbranch_scc1 {lab}
        v_mov_b32 v{T+8}, 0
        v_mov_b32 v{T+9}, 0
        v_mov_b32 v{T+10}, 0
        v_mov_b32 v{T+11}, 0
        s_mul_i32 s{S['t']}, s2, 3328
        s_add_u32 s{S['t']}, s{S['t']}, {KV_OFF}
        buffer_store_dwordx4 v[{T+8}:{T+11}], v{L16}, s[{SWS}:{SWS+3}], s{S['t']} offen sc1
        buffer_store_dwordx4 v[{T+8}:{T+11}], v{L16}, s[{SWS}:{SWS+3}], s{S['t']} offen offset:1024 sc1
        buffer_store_dwordx4 v[{T+8}:{T+11}], v{L16}, s[{SWS}:{SWS+3}], s{S['t']} offen offset:2048 sc1
        buffer_store_dwordx4 v[{T+8}:{T+11}], v{L16}, s[{SWS}:{SWS+3}], s{S['t']} offen offset:2304 sc1
        v_mov_b32 v{T+12}, 1
        s_waitcnt vmcnt(0)
        s_mov_b64 exec, 1
        global_atomic_add v{Z}, v{T+12}, s[22:23]
        s_mov_b64 exec, -1
        {lab}:
        """)

    def relay_issue(st, X, base):
        relay_params(base)
        a(f"""
        s_cmp_lt_u32 s{S['t2']}, 54
        s_cselect_b32 s{SR}, s16, s8
        s_cselect_b32 s{SR+1}, s17, s9
        s_mov_b32 s{SR+2}, {640*1280}
        s_cselect_b32 s{SR+2}, {1728*1280}, s{SR+2}
        s_mov_b32 s{SR+3}, 0x20000
        s_cselect_b32 s{S['t']}, 0, 54
        s_sub_u32 s{S['t']}, s{S['t2']}, s{S['t']}
        s_mul_i32 s{S['t']}, s{S['t']}, {32*1280}
        s_lshl_b32 s{S['so']}, s{S['t1']}, 7
        s_add_u32 s{S['rlo']}, s{S['t']}, s{S['so']}
        v_lshrrev_b32 v{X}, 3, v{l}
        v_mul_u32_u24 v{X}, 1280, v{X}
        v_and_b32 v{X+1}, 7, v{l}
        v_lshl_add_u32 v{RLD}, v{X+1}, 4, v{X}
        s_cmp_lt_u32 s{S['t3']}, 740
        s_cselect_b32 s{S['hs']}, -1, 0
        s_barrier
        s_mov_b32 exec_lo, s{S['hs']}
        s_mov_b32 exec_hi, s{S['hs']}
        """)
        for i in range(4):
            a(f"s_add_u32 m0, s{S['rls']}, {i*1024}\ns_add_u32 s{JT}, s{S['rlo']}, {i*8*1280}")
            st.emit(("vm0", f"buffer_load_dwordx4 v{RLD}, s[{SR}:{SR+3}], s{JT} offen{' nt' if Cfg.rnt else ''} lds", "rl"))
        a("s_mov_b64 exec, -1")

    def job_init_load():
        return [("atomic", I(f"v_mov_b32 v{T+44}, 32\ns_cmp_eq_u32 s{S['rg']}, 3\ns_cselect_b32 exec_lo, 1, 0\ns_mov_b32 exec_hi, 0") +
                 [("vm0", f"global_load_dword v{T+44}, v{Z}, s[22:23] sc1", "il")] + I("s_mov_b64 exec, -1"))]

    def job_init_check():
        def chk():
            a(f"global_load_dword v{T+44}, v{Z}, s[22:23] sc1\ns_waitcnt vmcnt(0)\nv_readfirstlane_b32 s{JT}, v{T+44}\ns_cmp_ge_u32 s{JT}, 32")
        return [("wvm", ["il"]), ("atomic", I(f"v_readfirstlane_b32 s{JT}, v{T+44}\ns_cmp_ge_u32 s{JT}, 32") + [("call", lambda: poll_slow(chk, 0x101, sleep=32))])]

    def kloop(ld, qkv):
        st = Stream(a)
        NT, stride = (8, 3840) if qkv else (7, 3456)
        PITCH = NT * 256
        nt, t0 = ((3, 0) if ld else (5, 3)) if qkv else ((3, 4) if ld else (4, 0))
        tr = ld or not qkv
        hv = RegAlloc(RLD + 1, BB + 100)
        HDA, HDB, HRCS = hv.alloc("da"), hv.alloc("db", 7), hv.alloc("rcs")
        HRLY = HDA
        X = T + 32
        SQ, SM, ONE, CSA, CF = T + 20, T + 24, T + 28, T + 16, T
        a(f"s_mov_b32 s{S['tp1']}, {t0}")

        def dma(s_):
            if Cfg.x_nodma:
                return []
            slot = (s_ % 3) * SLOT
            NTM = " nt" if (Cfg.wnt == 1 and s_ == 0) else ""
            A, B = [], []
            for m in range(4):
                A.append(I(f"s_add_u32 m0, s{S['ofA']}, {slot + m*4096}\ns_add_u32 s{S['so']}, s{S['soA']}, {m*32*1280}") +
                         [("vm", f"buffer_load_dwordx4 v{HDA}, s[{SX}:{SX+3}], s{S['so']} offen lds", ("S", s_))])
            for i in range(NT):
                if qkv:
                    B.append(I(f"s_add_u32 m0, s{S['ofB']}, {slot + i*4096}\ns_add_u32 s{S['so']}, s{S['soB']}, {i*8*3840}") +
                             [("vm", f"buffer_load_dwordx4 v{HDB}, s[{SW}:{SW+3}], s{S['so']} offen{NTM} lds", ("S", s_))])
                else:
                    B.append(I(f"s_add_u32 m0, s{S['ofB']}, {slot + i*1024}") +
                             [("vm", f"buffer_load_dwordx4 v{HDB+i}, s[{SW}:{SW+3}], s{S['soB']} offen{NTM} lds", ("S", s_))])
            res = []
            while A or B:
                if B: res.append(B.pop(0))
                if A: res.append(A.pop(0))
                if B: res.append(B.pop(0))
            if s_ > 0:
                res[0] = I(f"""
                s_add_u32 s{S['soA']}, s{S['soA']}, 128
                s_add_u32 s{S['soB']}, s{S['soB']}, {64*stride}
                s_cmp_eq_u32 s{S['soA']}, 1280
                s_cselect_b32 s{S['soA']}, 0, s{S['soA']}
                s_cselect_b32 s{S['soB']}, 0, s{S['soB']}
                """) + res[0]
            return [("atomic", p) for p in res]

        def setup():
            frag_addr_a(RA0, X)
            frag_addr_b_low(RB0, X)
            a(f"""
            v_lshrrev_b32 v{X}, 5, v{l}
            v_mul_u32_u24 v{X}, {2*PITCH}, v{X}
            v_add_u32 v{X}, v{X}, v{RB0}
            v_add_u32 v{RB0}, {16384 + t0*256}, v{X}
            s_min_u32 s{S['t']}, s{S['w']}, {NT-1}
            s_lshl_b32 s{S['t']}, s{S['t']}, 8
            s_add_u32 s{S['t']}, s{S['t']}, 16384
            v_add_u32 v{HRCS}, s{S['t']}, v{X}
            v_mov_b32 v{ONE}, 0x3f803f80
            v_mov_b32 v{ONE+1}, 0x3f803f80
            s_mov_b32 s{S['m1']}, 0x00020001
            s_mov_b32 s{S['m1']+1}, 0x00020001
            """)
            for k in range(4):
                a(f"v_cndmask_b32 v{XE+k}, 0, v{ONE}, s[{S['m1']}:{S['m1']+1}]")
            p2_params()
            bias_setup(TY[0 if qkv else 1], BIAS, nt, S["tp1"], ld, st, X)
            if qkv:
                kv_addr_setup(X)
                if ld:
                    scatter_setup(X)

        if ld:
            a(f"""
            v_lshrrev_b32 v{T}, 3, v{l}
            s_lshl_b32 s{S['t']}, s{S['rg']}, 3
            s_lshl_b32 s{S['t1']}, s{S['rb']}, 7
            s_add_u32 s{S['t']}, s{S['t']}, s{S['t1']}
            v_add_u32 v{T}, s{S['t']}, v{T}
            v_mul_u32_u24 v{HDA}, 1280, v{T}
            v_lshrrev_b32 v{T}, 1, v{T}
            v_xor_b32 v{T}, v{T}, v{l}
            v_and_b32 v{T}, 7, v{T}
            v_lshl_add_u32 v{HDA}, v{T}, 4, v{HDA}
            s_lshl_b32 s{S['ofA']}, s{S['rg']}, 10
            v_bfe_u32 v{T}, v{l}, 2, 2
            v_lshrrev_b32 v{T+1}, 4, v{l}
            v_and_b32 v{T+5}, 3, v{l}
            s_lshl_b32 s{S['t']}, s{S['j']}, 1
            s_add_u32 s{S['t']}, s{S['t']}, s{S['typ']}
            s_add_u32 s{S['t']}, s{S['t']}, s{S['rb']}
            s_mul_i32 s{S['t1']}, s{S['t']}, 26
            s_lshr_b32 s{S['t1']}, s{S['t1']}, 8
            s_mul_i32 s{S['t1']}, s{S['t1']}, 10
            s_sub_u32 s{S['t']}, s{S['t']}, s{S['t1']}
            s_lshl_b32 s{S['soA']}, s{S['t']}, 7
            s_mul_i32 s{S['soB']}, s{S['t']}, {64*stride}
            """)
            if qkv:
                a(f"""
                s_add_u32 s{S['ofB']}, s{S['ofA']}, 16384
                s_lshr_b32 s{S['t']}, s{S['rg']}, 1
                s_lshl_b32 s{S['t']}, s{S['t']}, 2
                v_add_u32 v{T}, s{S['t']}, v{T}
                v_mul_u32_u24 v{T}, 3840, v{T}
                s_and_b32 s{S['t']}, s{S['rg']}, 1
                s_lshl_b32 s{S['t']}, s{S['t']}, 4
                v_lshl_add_u32 v{T+5}, v{T+1}, 2, v{T+5}
                v_add_u32 v{T+5}, s{S['t']}, v{T+5}
                v_mov_b32 v{T+6}, 0
                v_mov_b32 v{T+7}, -32
                v_cmp_le_u32 vcc, 10, v{T+5}
                v_cndmask_b32 v{T+6}, v{T+6}, v{T+7}, vcc
                v_mov_b32 v{T+7}, {1280 - 192}
                v_cmp_le_u32 vcc, 12, v{T+5}
                v_cndmask_b32 v{T+6}, v{T+6}, v{T+7}, vcc
                v_mov_b32 v{T+7}, {2560 - 352}
                v_cmp_le_u32 vcc, 22, v{T+5}
                v_cndmask_b32 v{T+6}, v{T+6}, v{T+7}, vcc
                v_lshl_add_u32 v{T+5}, v{T+5}, 4, v{T+6}
                s_lshl_b32 s{S['t']}, s{S['col0']}, 1
                v_add3_u32 v{HDB}, v{T}, v{T+5}, s{S['t']}
                """)
            else:
                a(f"""
                s_mul_i32 s{S['ofB']}, s{S['rg']}, 7168
                s_add_u32 s{S['ofB']}, s{S['ofB']}, 16384
                s_lshl_b32 s{S['t']}, s{S['rg']}, 4
                v_add_u32 v{T}, s{S['t']}, v{T}
                v_mul_u32_u24 v{T}, 3456, v{T}
                v_lshl_add_u32 v{T}, v{T+5}, 4, v{T}
                s_lshl_b32 s{S['t']}, s{S['col0']}, 1
                v_add_u32 v{T}, s{S['t']}, v{T}
                s_mov_b32 s{S['t']}, {4*3456 - 448}
                """)
                for i in range(7):
                    a(f"""
                    v_add_u32 v{T+5}, {4*i}, v{T+1}
                    v_mul_u32_u24 v{T+6}, 37, v{T+5}
                    v_lshrrev_b32 v{T+6}, 8, v{T+6}
                    v_mad_u32_u24 v{T+6}, v{T+6}, s{S['t']}, v{T}
                    v_lshl_add_u32 v{HDB+i}, v{T+5}, 6, v{T+6}
                    """)
            after_kernarg()
            srd(SW, 6 if qkv else 12, 640 * stride)
            d0 = dma(0)
            emit_all(st, d0[:5])
            setup()
            emit_all(st, d0[5:])
            stamp(1)
            a("s_barrier")
            emit_all(st, dma(1))
            stamp(2)
        else:
            after_kernarg()
            zero_init()
            code_prefetch()
            relay_issue(st, X, RELAY)
            for ct in range(4):
                a(f"""
                s_lshl_b32 s{S['t']}, s{S['t1']}, 2
                s_add_u32 s{S['t']}, s{S['t']}, {ct}
                s_mul_i32 s{JT}, s{S['t']}, 52
                s_lshr_b32 s{JT}, s{JT}, 8
                s_mul_i32 s{JT}, s{JT}, {B2_C - 5*1024}
                s_lshl_b32 s{S['t']}, s{S['t']}, 10
                s_add_u32 s{S['t']}, s{S['t']}, s{JT}
                s_mul_i32 s{JT}, s{S['t2']}, 5120
                s_add_u32 s{S['t']}, s{S['t']}, s{JT}
                s_add_u32 s{S['t']}, s{S['t']}, {B2_OFF}
                s_cmp_lt_u32 s{S['t3']}, 740
                s_cselect_b32 s{S['uo']+ct}, s{S['t']}, {OOB}
                """)
            a(f"""
            v_lshrrev_b32 v{X}, 5, v{l}
            v_lshlrev_b32 v{X}, 4, v{X}
            v_bfe_u32 v{X+1}, v{l}, 4, 1
            v_lshl_add_u32 v{X}, v{X+1}, 2, v{X}
            v_bfe_u32 v{X+1}, v{l}, 2, 2
            v_add_u32 v{X}, v{X}, v{X+1}
            v_lshlrev_b32 v{X}, 7, v{X}
            v_and_b32 v{X+1}, 3, v{l}
            v_lshl_add_u32 v{X}, v{X+1}, 3, v{X}
            v_add_u32 v{HRLY}, s{S['rls']}, v{X}
            """)
            setup()

        def job_colsum():
            it = []
            for ks in range(4):
                for i in range(2):
                    it.append(("ds", f"ds_read_b64_tr_b16 v[{CF+4*ks+2*i}:{CF+4*ks+2*i+1}], v{HRCS} offset:{(4*ks+i)*PITCH}", ("cs", ks)))
            for ks in range(4):
                it.append(("wds", [("cs", ks)]))
                c = "0" if ks == 0 else f"v[{CSA}:{CSA+3}]"
                it += I(f"v_mfma_f32_16x16x32_bf16 v[{CSA}:{CSA+3}], v[{XE}:{XE+3}], v[{CF+4*ks}:{CF+4*ks+3}], {c}")
            return it

        def job_publish():
            it = I(f"""
            s_lshl_b32 s{JT}, s{S['w']}, 5
            v_add_u32 v{X}, s{JT}, v{l}
            v_permlane16_swap_b32 v{CSA}, v{CSA+1}
            s_mov_b32 s{S['m2']}, -1
            s_mov_b32 s{S['m2']+1}, 0
            """)
            if qkv:
                it += I(f"s_cmp_eq_u32 s{S['w']}, 2\ns_cselect_b32 s{S['m2']}, 0xffff, s{S['m2']}") + vcol(X, X + 1)
                it += I(f"s_lshl_b32 s{JT}, s{S['col0']}, 2\ns_add_u32 s{JT}, s{JT}, {CS_OFF}")
            else:
                it += I(f"""
                s_lshl_b32 s{JT}, s{S['col0']}, 2
                s_add_u32 s{JT}, s{JT}, {CS_OFF + 1920*4}
                s_lshl_b32 s{JT1}, s{S['j']}, 3
                s_add_u32 s{JT1}, s{JT1}, s{S['w']}
                s_sub_u32 s{JT1}, s{JT1}, 56
                s_cmp_lt_u32 s{JT1}, 2
                s_cselect_b32 s{JT}, {OOB}, s{JT}
                s_cmp_eq_u32 s{S['w']}, 7
                s_cselect_b32 s{JT}, {OOB}, s{JT}
                """)
            it += I(f"""
            s_cmp_ge_u32 s{S['rb']}, 10
            s_cselect_b32 s{JT}, {OOB}, s{JT}
            v_lshlrev_b32 v{X}, 2, v{X}
            v_mov_b32 v{X+1}, {OOB}
            v_cndmask_b32 v{X}, v{X+1}, v{X}, s[{S['m2']}:{S['m2']+1}]
            """)
            it.append(("vm", f"buffer_atomic_add_f32 v{CSA}, v{X}, s[{SWS}:{SWS+3}], s{JT} offen", "stat"))
            if not ld:
                it += row_publish(SQ, SM, X)
            return it

        def job_relay_store():
            it = [("wvm", ["rl"])]
            for ct in range(4):
                it.append(("ds", f"ds_read_b64_tr_b16 v[{T+4*ct}:{T+4*ct+1}], v{HRLY} offset:{ct*32}", ("rl", ct)))
                it.append(("ds", f"ds_read_b64_tr_b16 v[{T+4*ct+2}:{T+4*ct+3}], v{HRLY} offset:{ct*32 + 1024}", ("rl", ct)))
            for ct in range(4):
                it.append(("wds", [("rl", ct)]))
                it.append(("vm", f"buffer_store_dwordx4 v[{T+4*ct}:{T+4*ct+3}], v{L16}, s[{SWS}:{SWS+3}], s{S['uo']+ct} offen sc1", "rs"))
            return it

        e_sig, e_ld, e_ck = shard_flag_jobs(F_EARLY, T + 46, 0x104, 0)
        b_sig, b_ld, b_ck = shard_flag_jobs(F_B2, T + 46, 0x108, 1)
        pi = Cfg.hpoll
        J = [(0, 0, 0, job_colsum()), (Cfg.ini_it + 1, 0, Cfg.ini_it + 1, job_publish())]
        if not ld:
            J.append((Cfg.ini_it, 0, Cfg.ini_it, job_init_load()))
            J.append((Cfg.ini_it, 3, Cfg.ini_it, job_init_check()))
            J.append((Cfg.rs_it, 2 if Cfg.rs_it == 0 else 1, Cfg.rs_it, job_relay_store()))
            J.append((Cfg.hsig - 1, 2, Cfg.hsig - 1, [("wvm", None)]))
            J.append((Cfg.hsig, 0, Cfg.hsig, e_sig))
            J.append((Cfg.bsig - 1, 3, Cfg.bsig - 1, [("wvm", ["rs"])]))
            J.append((Cfg.bsig, 0, Cfg.bsig, b_sig))
            J.append((Cfg.bpoll, 0, Cfg.bpoll, b_ld))
            J.append((Cfg.bpoll, 3, Cfg.bpoll, b_ck))
            J.append((pi, 0, pi, e_ld))
            J.append((pi, 3, pi, e_ck))
            J.append((pi + 1, 0, pi + 1, job_load_stats(qkv, T + 38)))
            J.append((8, 2 if pi == 7 else 0, 8, job_publish_stats(qkv, T + 38)))
            if Cfg.touch:
                J.append((Cfg.touch_it, 1, 10, job_touch(T + 46)))
        J.append((9, 0, 10, job_build_ext(nt, S["tp1"], XE, WE, BIAS, X)))
        J.sort(key=lambda x: (x[0], x[1]))
        pend = []

        def drain(n=None, deadline=None):
            k = 0
            while pend and (n is None or k < n):
                if deadline is not None and not any(p[0] <= deadline for p in pend):
                    break
                emit_item(st, pend.pop(0)[1])
                k += 1

        def addrs(s_):
            sl = (s_ % 3) * SLOT
            return I(f"""
            v_add_u32 v{RA}, {sl}, v{RA0}
            v_add_u32 v{RB}, {sl}, v{RB0}
            v_xor_b32 v{RA+1}, 32, v{RA}
            v_xor_b32 v{RA+2}, 64, v{RA}
            v_xor_b32 v{RA+3}, 0x60, v{RA}
            """)

        def reads(s_, ks):
            b = ks & 1
            out = [("ds", f"ds_read_b128 v[{FA+4*b}:{FA+4*b+3}], v{RA+ks}", ("A", s_, ks))]
            for t in range(nt):
                f = FB + 20 * b + 4 * t
                for i in range(2):
                    out.append(("ds", f"ds_read_b64_tr_b16 v[{f+2*i}:{f+2*i+1}], v{RB} offset:{(4*ks+i)*PITCH + t*256}", (t, s_, ks)))
            return out

        emit_all(st, addrs(0))
        if ld:
            st.wait("vm", [("S", 0)])
            if Cfg.hprio:
                a("s_setprio 1")
        a("s_barrier")
        stamp(3)
        emit_all(st, reads(0, 0))
        dq = dma(2) if ld else []
        gaps_left = 3 * nt + Cfg.bpos
        for s_ in range(10):
            for ks in range(4):
                while J and (J[0][0], J[0][1]) <= (s_, ks):
                    jb = J.pop(0)
                    pend.extend([jb[2], x] for x in group_scc(jb[3]))
                last = ks == 3
                rd = reads(s_, ks + 1) if not last else (reads(s_ + 1, 0) if s_ < 9 else [])
                gaps = nt if not last else nt - Cfg.bpos
                for t in range(nt):
                    if last and t == Cfg.bpos:
                        drain(deadline=s_)
                        assert not dq
                        st.wait2(None, [("S", s_ + 1)] + (["stat"] if s_ == Cfg.hsig - 1 else []) if ld else [])
                        a("s_barrier")
                        if ld:
                            dq = dma(s_ + 3) if s_ + 3 <= 9 else []
                            gaps_left = 4 * nt
                            if Cfg.hprio and s_ == 7:
                                a("s_setprio 0")
                    b = ks & 1
                    fa, f, acc = FA + 4 * b, FB + 20 * b + 4 * t, ACC + 16 * t
                    st.wait("ds", [("A", s_, ks), (t, s_, ks)])
                    c = "0" if (s_ == 0 and ks == 0) else f"v[{acc}:{acc+15}]"
                    x, y = (f, fa) if tr else (fa, f)
                    a(f"v_mfma_f32_32x32x16_bf16 v[{acc}:{acc+15}], v[{x}:{x+3}], v[{y}:{y+3}], {c}")
                    if s_ == 0 and not ld and t < 2:
                        c1 = "0" if (ks == 0 and t == 0) else f"v[{SQ}:{SQ+3}]"
                        c2 = "0" if (ks == 0 and t == 0) else f"v[{SM}:{SM+3}]"
                        a(f"v_mfma_f32_4x4x4_16b_bf16 v[{SQ}:{SQ+3}], v[{fa+2*t}:{fa+2*t+1}], v[{fa+2*t}:{fa+2*t+1}], {c1}")
                        a(f"v_mfma_f32_4x4x4_16b_bf16 v[{SM}:{SM+3}], v[{ONE}:{ONE+1}], v[{fa+2*t}:{fa+2*t+1}], {c2}")
                    g = t if not last else t - Cfg.bpos
                    if g >= 0:
                        emit_all(st, rd[(len(rd) * g) // gaps:(len(rd) * (g + 1)) // gaps])
                    if dq:
                        k = -(-len(dq) // max(1, gaps_left - Cfg.bpos))
                        for _ in range(min(k, len(dq))):
                            emit_item(st, dq.pop(0))
                    gaps_left -= 1
                    if ks == 2 and t == nt - 1 and s_ < 9:
                        emit_all(st, addrs(s_ + 1))
                    drain(Cfg.hfill)
                if Cfg.fine and s_ in (0, 1, 2, 7, 8, 9):
                    stamp(37 + 4 * (0, 1, 2, 0, 0, 0, 0, 3, 4, 5)[s_] + ks)
            stamp(4 + s_)
        drain()
        ext_mfma(nt, XE, WE, tr)
        st.wait2(None, ["tc", "bias"])
        return st

    def kv_addr_setup(X):
        a(f"v_mov_b32 v{X+8}, {CDUM}")
        for h in range(1):
            a(f"""
            s_mov_b32 s{JT}, s{S['w']}
            s_lshl_b32 s{S['t']}, s{JT}, 2
            s_lshr_b32 s{S['t1']}, 0x21021100, s{S['t']}
            s_and_b32 s{S['t1']}, s{S['t1']}, 15
            s_lshr_b32 s{S['t2']}, 0x00044332, s{S['t']}
            s_and_b32 s{S['t2']}, s{S['t2']}, 15
            v_and_b32 v{X}, 31, v{l}
            s_lshl_b32 s{S['t3']}, s{S['t2']}, 5
            s_sub_u32 s{S['t3']}, s{S['t3']}, 80
            v_add_u32 v{X+1}, s{S['t3']}, v{X}
            v_mul_u32_u24 v{X+2}, 3277, v{X+1}
            v_lshrrev_b32 v{X+2}, 16, v{X+2}
            v_mul_u32_u24 v{X+3}, 20, v{X+2}
            v_sub_u32 v{X+3}, v{X+1}, v{X+3}
            v_cmp_gt_u32 vcc, 80, v{X+1}
            v_cmp_eq_u32 s[{S['ex']}:{S['ex']+1}], 0, v{X}
            s_cmp_ge_u32 s{JT}, 5
            s_cselect_b64 s[{S['m1']}:{S['m1']+1}], s[{S['ex']}:{S['ex']+1}], vcc
            s_cselect_b64 s[{S['ex']}:{S['ex']+1}], -1, 0
            v_cndmask_b32 v{X+3}, v{X+3}, 20, s[{S['ex']}:{S['ex']+1}]
            v_lshlrev_b32 v{X+3}, 2, v{X+3}
            v_add_u32 v{X+3}, {CMP}, v{X+3}
            v_lshrrev_b32 v{X+4}, 5, v{l}
            v_lshlrev_b32 v{X+4}, 2, v{X+4}
            s_lshl_b32 s{S['t3']}, s{S['t1']}, 5
            v_add_u32 v{X+4}, s{S['t3']}, v{X+4}
            s_movk_i32 s{S['t3']}, 84
            """)
            for qd in range(4):
                a(f"""
                v_add_u32 v{X+5}, {8*qd}, v{X+4}
                v_mul_u32_u24 v{X+6}, 3277, v{X+5}
                v_lshrrev_b32 v{X+6}, 16, v{X+6}
                v_mad_u32_u24 v{X+7}, v{X+5}, s{S['t3']}, v{X+3}
                v_cmp_eq_u32 vcc, v{X+6}, v{X+2}
                s_or_b64 vcc, vcc, s[{S['ex']}:{S['ex']+1}]
                s_and_b64 s[{S['m2']}:{S['m2']+1}], vcc, s[{S['m1']}:{S['m1']+1}]
                v_cmp_gt_u32 vcc, 80, v{X+5}
                s_and_b64 vcc, vcc, s[{S['m2']}:{S['m2']+1}]
                v_cndmask_b32 v{CMPA+4*h+qd}, v{X+8}, v{X+7}, vcc
                """)
            a(f"""
            s_lshl_b32 s{S['pa']}, s{S['t1']}, 11
            s_lshl_b32 s{S['t3']}, s{S['t2']}, 11
            s_cmp_ge_u32 s{S['w']}, 5
            s_cselect_b32 s{S['pa']+1}, {ONES}, s{S['t3']}
            """)

    def scatter_setup(X):
        for i in range(7):
            a(f"""
            v_add_u32 v{X}, {256*i - 256}, v0
            v_mul_u32_u24 v{X+1}, 3121, v{X}
            v_lshrrev_b32 v{X+1}, 16, v{X+1}
            v_mul_u32_u24 v{X+2}, 21, v{X+1}
            v_sub_u32 v{X+2}, v{X}, v{X+2}
            v_mul_u32_u24 v{X+3}, 3277, v{X+1}
            v_lshrrev_b32 v{X+3}, 16, v{X+3}
            v_mad_u32_u24 v{X+4}, v{X+3}, 20, v{X+2}
            v_lshrrev_b32 v{X+5}, 5, v{X+4}
            v_lshlrev_b32 v{X+5}, 1, v{X+5}
            v_and_b32 v{X+4}, 31, v{X+4}
            v_cmp_eq_u32 vcc, 20, v{X+2}
            v_cndmask_b32 v{X+5}, v{X+5}, 9, vcc
            v_cndmask_b32 v{X+4}, v{X+4}, v{X+3}, vcc
            v_lshrrev_b32 v{X+6}, 4, v{X+1}
            v_add_u32 v{X+5}, v{X+5}, v{X+6}
            v_mul_u32_u24 v{X+6}, 52, v{X+5}
            v_lshrrev_b32 v{X+6}, 8, v{X+6}
            v_mad_u32_u24 v{X+5}, v{X+6}, 15, v{X+5}
            v_lshlrev_b32 v{X+5}, 10, v{X+5}
            v_bfe_u32 v{X+6}, v{X+1}, 2, 1
            v_lshl_add_u32 v{X+4}, v{X+6}, 5, v{X+4}
            v_lshl_add_u32 v{X+5}, v{X+4}, 4, v{X+5}
            v_bfe_u32 v{X+6}, v{X+1}, 3, 1
            v_and_b32 v{X+4}, 3, v{X+1}
            v_lshl_add_u32 v{X+4}, v{X+6}, 2, v{X+4}
            v_lshl_add_u32 v{X+5}, v{X+4}, 1, v{X+5}
            v_add_u32 v{X+5}, {FRG}, v{X+5}
            v_mov_b32 v{X+6}, {GAP}
            v_cmp_gt_u32 vcc, 1680, v{X}
            v_cndmask_b32 v{QSCA+i}, v{X+6}, v{X+5}, vcc
            """)

    def step_off(i, dst, base, mul):
        n, r, s0, k = (S["nH"], S["rH"], S["sH"], i) if i < 7 else (S["nO"], S["rO"], S["sO"], i - 7)
        it = f"""
        s_add_u32 s{dst}, s{r}, {k}
        s_cmp_ge_u32 s{dst}, s{n}
        s_cselect_b32 s{S['pc']}, s{n}, 0
        s_sub_u32 s{dst}, s{dst}, s{S['pc']}
        s_add_u32 s{dst}, s{dst}, s{s0}
        s_mul_i32 s{dst}, s{dst}, {mul}
        s_add_u32 s{dst}, s{dst}, s{base}
        """
        if i in (6, 9):
            it += f"s_cmp_gt_u32 s{n}, {k}\ns_cselect_b32 s{dst}, s{dst}, {OOB}"
        return I(it)

    def b_load(i, reg):
        pcs = []
        for ct in range(5):
            pre = step_off(i, JT, S["p2B"], 5120) if ct == 0 else (I(f"s_add_u32 s{JT}, s{JT}, 4096") if ct == 4 else [])
            pcs.append(pre + [("vm", f"buffer_load_dwordx4 v[{reg+4*ct}:{reg+4*ct+3}], v{L16}, s[{SWS}:{SWS+3}], s{JT} offen offset:{(ct&3)*1024} sc1", ("B", i))])
        return pcs

    def b_prefetch_regs(first=0):
        pcs = []
        for i in range(first, 5):
            pcs += b_load(i, BB + 20 * i)
        return pcs

    def b_prefetch_lds():
        pcs = []
        for i in (7, 8, 9):
            for ct in range(5):
                pre = step_off(i, JT, S["p2B"], 5120) + I(f"s_mul_i32 s{JT1}, s{S['w']}, {PW}") if ct == 0 else I(f"s_add_u32 s{JT}, s{JT}, 1024")
                pcs.append(pre + I(f"s_add_u32 m0, s{JT1}, {(i-7)*5120 + ct*1024}") +
                           [("vm", f"buffer_load_dwordx4 v{L16}, s[{SWS}:{SWS+3}], s{JT} offen sc1 lds", ("B", i))])
        return pcs

    P2S = S["so"]

    def areg(i):
        return T + 16 * (i % 3) if i < 7 else BB + 20 * (i - 5)

    def breg(i):
        return BB + 20 * (i % 5) if i < 7 else BB + 20 * ((i - 7) & 1)

    def a_load(i):
        f = areg(i)
        it = [("atomic", step_off(i, P2S, S["p2A"], 4096))]
        if Cfg.p2prio == 1:
            it += I(f"s_setprio {(3, 2, 1, 2, 2, 1, 1, 0, 0, 0)[i]}")
        if Cfg.p2prio == 2 and i < 3:
            it += I(f"s_setprio {3 - i}")
        for tt in range(4):
            it.append(("vm", f"buffer_load_dwordx4 v[{f+4*tt}:{f+4*tt+3}], v{L16}, s[{SWS}:{SWS+3}], s{P2S} offen offset:{tt*1024}{' sc1' if Cfg.p2sc else ''}", ("A", i)))
        return it

    def a2_addr(dst):
        a(f"""
        s_lshl_b32 s{S['t']}, s{S['rb']}, 1
        s_lshr_b32 s{S['t1']}, s{S['rg']}, 1
        s_add_u32 s{S['t']}, s{S['t']}, s{S['t1']}
        s_mul_i32 s{S['t']}, s{S['t']}, {A2_RB}
        s_and_b32 s{S['t1']}, s{S['rg']}, 1
        s_lshl_b32 s{S['t1']}, s{S['t1']}, 11
        s_add_u32 s{S['t']}, s{S['t']}, s{S['t1']}
        v_bfe_u32 v{dst}, v{l}, 4, 1
        v_lshlrev_b32 v{dst}, 10, v{dst}
        v_lshrrev_b32 v{dst+1}, 5, v{l}
        v_lshl_add_u32 v{dst}, v{dst+1}, 8, v{dst}
        v_and_b32 v{dst+1}, 15, v{l}
        v_lshl_add_u32 v{dst}, v{dst+1}, 4, v{dst}
        v_add_u32 v{dst}, s{S['t']}, v{dst}
        """)

    def signal(flag, idx_reg):
        a(f"""
        s_add_u32 s{S['t']}, s{idx_reg}, {flag}
        s_lshl_b32 s{S['t']}, s{S['t']}, 7
        v_mov_b32 v{T+46}, s{S['t']}
        v_mov_b32 v{T+47}, 1
        s_cmp_eq_u32 s{S['w']}, 0
        s_cselect_b32 exec_lo, 1, 0
        s_mov_b32 exec_hi, 0
        global_atomic_add v{T+46}, v{T+47}, s[{S['fl']}:{S['fl']+1}]
        s_mov_b64 exec, -1
        """)

    def lds_add(off):
        a(f"v_mov_b32 v{RS}, {SYN}\nv_mov_b32 v{IRS}, 1\ns_mov_b64 exec, 1\nds_add_u32 v{RS}, v{IRS} offset:{off}\ns_mov_b64 exec, -1")

    def lds_wait(off, target, err, tmp):
        def chk():
            a(f"ds_read_b32 v{tmp+1}, v{tmp} offset:{off}\ns_waitcnt lgkmcnt(0)\nv_readfirstlane_b32 s{S['t']}, v{tmp+1}\ns_cmp_ge_u32 s{S['t']}, {target}")
        a(f"v_mov_b32 v{tmp}, {SYN}")
        chk()
        poll_slow(chk, err, sleep=1)

    def wait_flag(st, flag, target, err, line_expr, who=0, then=None):
        skip = a.newlabel("WF")

        def chk():
            a(f"""
            global_load_dword v{IRS}, v{RS}, s[{S['fl']}:{S['fl']+1}] sc1
            s_waitcnt vmcnt(0)
            v_readfirstlane_b32 s{S['t']}, v{IRS}
            s_cmp_ge_u32 s{S['t']}, {target}
            """)
        a(f"""
        s_cmp_lg_u32 s{S['w']}, {who}
        s_cbranch_scc1 {skip}
        {line_expr}
        s_add_u32 s{S['t']}, s{S['t']}, {flag}
        s_lshl_b32 s{S['t']}, s{S['t']}, 7
        v_mov_b32 v{RS}, s{S['t']}
        s_mov_b64 exec, 1
        """)
        chk()
        poll_slow(chk, err, sleep=4)
        a("s_mov_b64 exec, -1")
        if then is not None:
            lds_add(then)
        a.label(skip)

    def emit_pcs(st, pcs):
        for p in pcs:
            emit_all(st, p)

    def h_epilogue(nt, tp, st, first, lds_done=False):
        C = T + 12
        a(f"""
        v_mul_f32 v{C}, {hx(GC1)}, v{RS}
        v_mul_f32 v{C+2}, v{RS}, v{RS}
        v_mul_f32 v{C+2}, v{C+2}, v{RS}
        v_mul_f32 v{C+2}, {hx(GC2)}, v{C+2}
        v_mov_b32 v{C+4}, v{IRS}
        """)
        AD = T + 18
        a2_addr(AD)
        a(f"s_lshl_b32 s{S['t']}, s{S['col0']}, 7\ns_lshl_b32 s{S['t1']}, s{tp}, 12\ns_add_u32 s{S['t']}, s{S['t']}, s{S['t1']}")
        pf = b_prefetch_regs()
        W0 = T + 20
        pk = Cfg.gelu_pk0 if first else 1
        if nt == 3 and Cfg.eprio:
            a(f"s_setprio {Cfg.eprio}")
        for t in range(nt):
            acc = ACC + 16 * t
            for c in range(2):
                o = T + 32 + 4 * ((2 * t + c) % 3)
                ps = [acc + 8 * c + 2 * k for k in range(4)]
                ws = [W0 + 2 * k for k in range(4)]
                seq = []
                if pk:
                    seq.append([f"v_pk_mul_f32 v[{w}:{w+1}], v[{p}:{p+1}], v[{p}:{p+1}]" for p, w in zip(ps, ws)])
                    seq.append([f"v_pk_fma_f32 v[{w}:{w+1}], v[{w}:{w+1}], v[{C+2}:{C+3}], v[{C}:{C+1}] op_sel_hi:[1,0,0]" for w in ws])
                    seq.append([f"v_pk_mul_f32 v[{w}:{w+1}], v[{w}:{w+1}], v[{p}:{p+1}]" for p, w in zip(ps, ws)])
                else:
                    seq.append([f"v_mul_f32 v{w+k}, v{p+k}, v{p+k}" for p, w in zip(ps, ws) for k in range(2)])
                    seq.append([f"v_fma_f32 v{w+k}, v{w+k}, v{C+2}, v{C}" for w in ws for k in range(2)])
                    seq.append([f"v_mul_f32 v{w+k}, v{w+k}, v{p+k}" for p, w in zip(ps, ws) for k in range(2)])
                seq.append([f"v_exp_f32 v{w+k}, v{w+k}" for w in ws for k in range(2)])
                if pk:
                    seq.append([f"v_pk_fma_f32 v[{w}:{w+1}], v[{w}:{w+1}], v[{C+4}:{C+5}], v[{C+4}:{C+5}] op_sel_hi:[1,0,0]" for w in ws])
                else:
                    seq.append([f"v_fma_f32 v{w+k}, v{w+k}, v{C+4}, v{C+4}" for w in ws for k in range(2)])
                seq.append([f"v_rcp_f32 v{w+k}, v{w+k}" for w in ws for k in range(2)])
                if pk:
                    seq.append([f"v_pk_mul_f32 v[{w}:{w+1}], v[{w}:{w+1}], v[{p}:{p+1}]" for p, w in zip(ps, ws)])
                else:
                    seq.append([f"v_mul_f32 v{w+k}, v{w+k}, v{p+k}" for p, w in zip(ps, ws) for k in range(2)])
                seq.append([f"v_cvt_pk_bf16_f32 v{o+k}, v{w}, v{w+1}" for k, w in enumerate(ws)])
                for gi, grp in enumerate(seq):
                    for x in grp:
                        a(x)
                    if not first and gi in (1, 3, 5, 2, 4)[:Cfg.pf_h] and pf:
                        emit_all(st, pf.pop(0))
                st.emit(("vm", f"buffer_store_dwordx4 v[{o}:{o+3}], v{AD}, s[{SWS}:{SWS+3}], s{S['t']} offen offset:{c*512} sc1", "hst"))
                if first and 2 * t + c + 1 == Cfg.hbar_chunk:
                    a("s_barrier")
            a(f"s_add_u32 s{S['t']}, s{S['t']}, 4096")
        stamp(14)
        if first:
            emit_pcs(st, pf)
            pf = []
        st.wait("vm", ["hst"])
        stamp(15)
        a("s_setprio 0\ns_barrier")
        signal(F_H, S["rb"])
        emit_pcs(st, pf)

    def products_and_atomics(q, st):
        D = ACC + 48 if q else ACC
        PA, X = T, T + 40
        pb = [(ACC + 64 + 4 * (s_ & 3)) if q else (ACC + 16 + 4 * s_) for s_ in range(8)]
        a(f"""
        v_add_u32 v{X}, s{S['pa']}, v{L16}
        v_add_u32 v{X+1}, s{S['pa']+1}, v{L16}
        s_cmp_ge_u32 s{S['w']}, 5
        s_cselect_b32 s{S['t']}, 0, 1024
        s_cselect_b32 s{S['t1']}, 0, 10240
        v_add_u32 v{X+2}, s{S['t']}, v{X+1}
        s_waitcnt lgkmcnt(0)
        s_barrier
        """)
        st.q["ds"].clear()
        stamp(14)

        def rd(s_):
            st.emit(("ds", f"ds_read_b128 v[{PA+4*s_}:{PA+4*s_+3}], v{X} offset:{(s_ >> 1) * 10240 + (s_ & 1) * 1024}", ("p", s_)))
            st.emit(("ds", f"ds_read_b128 v[{pb[s_]}:{pb[s_]+3}], v{X+1+(s_&1)}", ("p", s_)))
            if s_ & 1 and s_ < 7:
                a(f"v_add_u32 v{X+1}, s{S['t1']}, v{X+1}\nv_add_u32 v{X+2}, s{S['t1']}, v{X+2}")
        ahead = 4 if q else 7
        for s_ in range(ahead):
            rd(s_)
        for s_ in range(8):
            st.wait("ds", [("p", s_)])
            c = "0" if s_ == 0 else f"v[{D}:{D+15}]"
            a(f"v_mfma_f32_32x32x16_bf16 v[{D}:{D+15}], v[{PA+4*s_}:{PA+4*s_+3}], v[{pb[s_]}:{pb[s_]+3}], {c}")
            if s_ + ahead < 8:
                rd(s_ + ahead)
        a(f"""
        s_lshl_b32 s{S['t']}, s{S['j']}, 13
        s_add_u32 s96, s24, s{S['t']}
        s_addc_u32 s97, s25, 0
        s_add_u32 s96, s96, {KV_OFF}
        s_addc_u32 s97, s97, 0
        v_lshlrev_b32 v{X}, 2, v0
        v_add_u32 v{X+1}, 4096, v{X}
        v_add_u32 v{X+2}, {CMP}, v{X}
        v_cmp_gt_u32 vcc, 144, v0
        """)
        for r in range(16):
            a(f"ds_write_b32 v{CMPA + (r >> 2)}, v{D+r} offset:{(r & 3)*84}")
        a("s_waitcnt lgkmcnt(0)\ns_barrier")
        stamp(25)
        for i in range(4):
            a(f"ds_read_b32 v{T+32+i}, v{X+2} offset:{i*2048}")
        for i in range(4):
            a(f"s_waitcnt lgkmcnt({3-i})")
            if i == 3:
                a("s_mov_b64 exec, vcc")
            st.emit(("vm0" if i == 3 else "vm", f"global_atomic_add_f32 v{X+(i>>1)}, v{T+32+i}, s[96:97] offset:{(i&1)*2048}", "kva"))
        a("s_mov_b64 exec, -1")

    st = kloop(True, True)
    a(f"""
    v_mov_b32 v{T+8}, 0
    v_mov_b32 v{T+9}, 0
    v_mov_b32 v{T+10}, 0
    v_mov_b32 v{T+11}, 0
    v_lshlrev_b32 v{T+7}, 4, v0
    v_add_u32 v{T+6}, {FRG - 4096}, v{T+7}
    ds_write_b128 v{T+6}, v[{T+8}:{T+11}]
    ds_write_b128 v{T+6}, v[{T+8}:{T+11}] offset:1024
    ds_write_b128 v{T+6}, v[{T+8}:{T+11}] offset:{PW}
    ds_write_b128 v{T+6}, v[{T+8}:{T+11}] offset:{PW + 1024}
    ds_write_b128 v{T+6}, v[{T+8}:{T+11}] offset:{2*PW}
    v_lshlrev_b32 v{T+7}, 2, v0
    v_add_u32 v{T+7}, {ONES - 1024}, v{T+7}
    v_mov_b32 v{T+12}, 0x3f803f80
    ds_write_b32 v{T+7}, v{T+12}
    """)
    pfq = b_prefetch_regs()
    emit_pcs(st, pfq[:Cfg.pf_q1])
    pfq = pfq[Cfg.pf_q1:]
    if Cfg.cprio:
        a("s_setprio 3")
    products_and_atomics(True, st)
    PQ = ACC + 48
    a(f"v_mul_f32 v{T+44}, {hx(LOG2E)}, v{RS}\nv_mul_f32 v{T+45}, {hx(EPS6)}, v{IRS}")
    for f in range(5):
        base = ACC + 8 * f
        for k in range(4):
            a(f"v_pk_mul_f32 v[{T+2*k}:{T+2*k+1}], v[{base+2*k}:{base+2*k+1}], v[{T+44}:{T+45}] op_sel_hi:[1,0]")
        for k in range(8):
            a(f"v_exp_f32 v{T+k}, v{T+k} clamp")
        for k in range(8):
            a(f"v_max_f32 v{base+k}, v{base+k}, v{T+45}")
        for k in range(4):
            a(f"v_pk_fma_f32 v[{T+2*k}:{T+2*k+1}], v[{base+2*k}:{base+2*k+1}], v[{RS}:{RS+1}], v[{T+2*k}:{T+2*k+1}] op_sel_hi:[1,0,1]")
        for k in range(4):
            a(f"v_cvt_pk_bf16_f32 v{PQ+4*f+k}, v{T+2*k}, v{T+2*k+1}")
        if f == Cfg.phi_n - 1:
            st.wait("vm", ["kva"])
            stamp(26)
            a("s_barrier")
            stamp(15)
    AD = T + 44
    a2_addr(AD)
    a(f"""
    v_add_u32 v{T+46}, {FRG}, v{L16}
    v_lshlrev_b32 v{T+8}, 2, v0
    v_subrev_u32 v{T+8}, 1024, v{T+8}
    v_add_u32 v{T+9}, 4096, v{T+8}
    """)
    wait_flag(st, F_KV, 16, 0x102, f"s_mov_b32 s{S['t']}, s{S['j']}", who=4, then=0)
    lds_wait(0, 1, 0x109, RS)
    stamp(16)
    for i in range(7):
        st.emit(("vm", f"global_load_dword v{T+i}, v{T+8+(i>>2)}, s[96:97] offset:{(i&3)*1024} sc1", ("g", i)))
    for i in range(7):
        a(f"v_cmp_le_u32 vcc, {frg(9)}, v{QSCA+i}")
        st.wait("vm", [("g", i)])
        a(f"""
        v_cvt_pk_bf16_f32 v{T+i}, v{T+i}, v{T+i}
        ds_write_b16 v{QSCA+i}, v{T+i}
        s_mov_b64 exec, vcc
        ds_write_b16 v{QSCA+i}, v{T+i} offset:64
        s_mov_b64 exec, -1
        """)
    a("s_waitcnt lgkmcnt(0)")
    lds_add(4)
    lds_wait(4, 4, 0x10a, RS)
    stamp(17)
    NUM, DEN = ACC, T + 28
    prods = [(9 + ks, ks, DEN) for ks in range(5)] + [(ks + 2 * Tt, ks, NUM + 16 * Tt) for Tt, kss in ((0, (0, 1, 2)), (1, (1, 2, 3, 4)), (2, (3, 4))) for ks in kss]
    FRS = [T + 4 * i for i in range(7)] + [ACC + 68 + 4 * i for i in range(3)]

    def frd(i):
        fi = prods[i][0]
        r = FRS[i % 10]
        st.emit(("ds", f"ds_read_b128 v[{r}:{r+3}], v{T+46} offset:{frg(fi)-FRG}", ("f", i)))
    for i in range(10):
        frd(i)
    seen = set()
    for i, (fi, ks, D) in enumerate(prods):
        st.wait("ds", [("f", i)])
        c = f"v[{D}:{D+15}]" if D in seen else "0"
        seen.add(D)
        r = FRS[i % 10]
        a(f"v_mfma_f32_32x32x16_bf16 v[{D}:{D+15}], v[{r}:{r+3}], v[{PQ+4*ks}:{PQ+4*ks+3}], {c}")
        if i + 10 < 14:
            frd(i + 10)
        if i == 8:
            for h in range(4):
                a(f"v_add_f32 v{DEN+h}, {hx(1e-6)}, v{DEN+h}")
            for h in range(4):
                a(f"v_rcp_f32 v{DEN+h}, v{DEN+h}")
    a(f"""
    s_mov_b32 s{S['m1']}, 0
    s_mov_b32 s{S['m1']+1}, -1
    v_cndmask_b32 v{DEN+4}, v{DEN}, v{DEN+1}, s[{S['m1']}:{S['m1']+1}]
    v_cndmask_b32 v{DEN+5}, v{DEN+2}, v{DEN+3}, s[{S['m1']}:{S['m1']+1}]
    s_mul_i32 s{S['t2']}, s{S['j']}, 5
    """)
    for p2 in range(5):
        for k in range(8):
            qd = 2 * p2 + (k >> 2)
            h0, h1 = (2 * qd) // 5, (2 * qd + 1) // 5
            dr = DEN + h0 if h0 == h1 else (DEN + 4 if h0 == 0 else DEN + 5)
            a(f"v_mul_f32 v{NUM+8*p2+k}, v{NUM+8*p2+k}, v{dr}")
        o = ACC + 48 + 4 * p2
        a(f"""
        s_add_u32 s{S['t']}, s{S['t2']}, {p2}
        s_lshr_b32 s{S['t1']}, s{S['t']}, 1
        s_lshl_b32 s{S['t1']}, s{S['t1']}, 12
        s_and_b32 s{S['t']}, s{S['t']}, 1
        s_lshl_b32 s{S['t']}, s{S['t']}, 9
        s_add_u32 s{S['t']}, s{S['t']}, s{S['t1']}
        s_add_u32 s{S['t']}, s{S['t']}, {54*4096}
        """)
        for k in range(4):
            a(f"v_cvt_pk_bf16_f32 v{o+k}, v{NUM+8*p2+2*k}, v{NUM+8*p2+2*k+1}")
        a(f"buffer_store_dwordx4 v[{o}:{o+3}], v{AD}, s[{SWS}:{SWS+3}], s{S['t']} offen sc1")
    stamp(18)
    lds_wait(8, 1, 0x10b, RS)
    emit_pcs(st, pfq)
    nq = sum(1 for p in pfq for x in p if x[0] == "vm")
    for i in range(3):
        emit_all(st, a_load(i))
    a(f"""
    s_add_u32 s{S['t']}, s{S['rb']}, {F_O}
    s_lshl_b32 s{S['t']}, s{S['t']}, 7
    v_mov_b32 v{RS}, s{S['t']}
    v_mov_b32 v{IRS}, 1
    s_waitcnt vmcnt({12 + nq})
    s_mov_b64 exec, 1
    global_atomic_add v{RS}, v{IRS}, s[{S['fl']}:{S['fl']+1}]
    s_mov_b64 exec, -1
    s_setprio {Cfg.qprio}
    s_branch PHASE2C
    """)

    a.label("ROLE_KV")
    st = kloop(False, True)
    if Cfg.cprio:
        a("s_setprio 3")
    RT, RL2, E = T, T + 16, T + 32
    X = T + 40
    a(f"""
    v_lshrrev_b32 v{X}, 5, v{l}
    v_lshlrev_b32 v{X}, 4, v{X}
    s_lshl_b32 s{S['t']}, s{S['rg']}, 7
    s_add_u32 s{S['t']}, s{S['t']}, {ST_RS}
    v_add_u32 v{X}, s{S['t']}, v{X}
    """)
    for i in range(4):
        a(f"ds_read_b128 v[{RT+4*i}:{RT+4*i+3}], v{X} offset:{i*32}")
    a(f"""
    s_mul_i32 s{S['t']}, s{S['rg']}, 10240
    v_add_u32 v{X+1}, s{S['t']}, v{L16}
    s_mov_b32 s{S['m2']}, 0x0000ffff
    s_mov_b32 s{S['m2']+1}, 0x0000ffff
    v_mov_b32 v{X+2}, {hx(LOG2E)}
    v_mov_b32 v{X+3}, {hx(EPS6)}
    v_mov_b32 v{X+4}, 0xff800000
    v_cndmask_b32 v{X+5}, v{X+4}, v{X+3}, s[{S['m2']}:{S['m2']+1}]
    v_cndmask_b32 v{X+4}, v{X+4}, 0, s[{S['m2']}:{S['m2']+1}]
    s_waitcnt lgkmcnt(0)
    """)
    for k in range(8):
        a(f"v_pk_mul_f32 v[{RL2+2*k}:{RL2+2*k+1}], v[{RT+2*k}:{RT+2*k+1}], v[{X+2}:{X+3}] op_sel_hi:[1,0]")
    pfk = b_prefetch_regs()
    for t in range(5):
        for hf in range(2):
            base = ACC + 16 * t + 8 * hf
            o = base
            if Cfg.kv_pk:
                if t <= 2:
                    for k in range(4):
                        p, r = f"v[{base+2*k}:{base+2*k+1}]", f"v[{RL2+8*hf+2*k}:{RL2+8*hf+2*k+1}]"
                        if t < 2:
                            a(f"v_pk_mul_f32 v[{E+2*k}:{E+2*k+1}], {p}, {r}")
                        else:
                            a(f"v_pk_fma_f32 v[{E+2*k}:{E+2*k+1}], {p}, {r}, v[{X+4}:{X+5}] op_sel_hi:[1,1,0]")
                for k in range(4):
                    a(f"v_pk_mul_f32 v[{base+2*k}:{base+2*k+1}], v[{base+2*k}:{base+2*k+1}], v[{RT+8*hf+2*k}:{RT+8*hf+2*k+1}]")
            else:
                if t <= 2:
                    for k in range(8):
                        if t < 2:
                            a(f"v_mul_f32 v{E+k}, v{base+k}, v{RL2+8*hf+k}")
                        else:
                            a(f"v_fma_f32 v{E+k}, v{base+k}, v{RL2+8*hf+k}, v{X+4}")
                for k in range(8):
                    a(f"v_mul_f32 v{base+k}, v{base+k}, v{RT+8*hf+k}")
            if t <= 2:
                for k in range(8):
                    a(f"v_exp_f32 v{E+k}, v{E+k} clamp")
                for k in range(8):
                    a(f"v_max_f32 v{base+k}, v{X+3 if t < 2 else X+5}, v{base+k}")
                if Cfg.kv_pk:
                    for k in range(4):
                        a(f"v_pk_add_f32 v[{base+2*k}:{base+2*k+1}], v[{base+2*k}:{base+2*k+1}], v[{E+2*k}:{E+2*k+1}]")
                else:
                    for k in range(8):
                        a(f"v_add_f32 v{base+k}, v{base+k}, v{E+k}")
            for k in range(4):
                a(f"v_cvt_pk_bf16_f32 v{o+k}, v{base+2*k}, v{base+2*k+1}")
            a(f"ds_write_b128 v{X+1}, v[{o}:{o+3}] offset:{t*2048 + hf*1024}")
            for _ in range(Cfg.pf_k0):
                if pfk:
                    emit_all(st, pfk.pop(0))
    products_and_atomics(False, st)
    st.wait("vm", ["kva"])
    stamp(26)
    a("s_barrier")
    stamp(15)
    signal(F_KV, S["j"])
    a("s_setprio 0")
    emit_pcs(st, pfk)
    stamp(16)
    wait_flag(st, F_H, 8, 0x107, f"s_lshr_b32 s{S['t']}, s{S['r2']}, 1", then=8)
    lds_wait(8, 1, 0x10c, RS)
    a("s_branch PHASE2B")

    a.label("ROLE_H0")
    st = kloop(False, False)
    h_epilogue(4, S["tp1"], st, False)
    a("s_branch PHASE2")
    a.label("ROLE_H1")
    st = kloop(True, False)
    h_epilogue(3, S["tp1"], st, False, Cfg.early_lds)

    a.label("PHASE2")
    stamp(19)
    st = Stream(a)
    wait_flag(st, F_H, 8, 0x105, f"s_lshr_b32 s{S['t']}, s{S['r2']}, 1")
    a("s_barrier")
    a.label("PHASE2B")
    stamp(20)

    OA, RAD, WA, CB = SMALL, SMALL + 3, SMALL + 6, SMALL + 14
    XR = [T + 16 + 2 * k for k in range(3)]
    BR = [T + 22 + 2 * k for k in range(3)]

    def epi_setup():
        X = RS
        it = I(f"""
        s_mov_b32 s{SR}, s20
        s_mov_b32 s{SR+1}, s21
        s_mov_b32 s{SR+2}, {2048*1280}
        s_mov_b32 s{SR+3}, 0x20000
        s_mov_b32 s{SAUX}, s18
        s_mov_b32 s{SAUX+1}, s19
        s_mov_b32 s{SAUX+2}, 1280
        s_mov_b32 s{SAUX+3}, 0x20000
        s_mul_i32 s{JT}, s{S['r2']}, {64*1280}
        s_mul_i32 s{JT1}, s{S['c2']}, 160
        s_add_u32 s{JT}, s{JT}, s{JT1}
        """)
        Y = SMALL + 7
        for i in range(3):
            it += I(f"""
            v_add_u32 v{Y}, {512*i}, v0
            v_mul_u32_u24 v{Y+1}, 3277, v{Y}
            v_lshrrev_b32 v{Y+1}, 16, v{Y+1}
            v_mul_u32_u24 v{Y+2}, 20, v{Y+1}
            v_sub_u32 v{Y+2}, v{Y}, v{Y+2}
            v_mul_u32_u24 v{Y+3}, 1280, v{Y+1}
            v_lshl_add_u32 v{Y+3}, v{Y+2}, 3, v{Y+3}
            v_add_u32 v{Y+3}, s{JT}, v{Y+3}
            v_cmp_gt_u32 vcc, 1280, v{Y}
            v_mov_b32 v{Y+4}, {OOB}
            v_cndmask_b32 v{OA+i}, v{Y+4}, v{Y+3}, vcc
            v_bfe_u32 v{Y+4}, v{Y+1}, 1, 2
            v_xor_b32 v{Y+4}, v{Y+4}, v{Y+2}
            v_mul_u32_u24 v{Y+5}, 320, v{Y+1}
            v_lshl_add_u32 v{Y+5}, v{Y+4}, 4, v{Y+5}
            v_cndmask_b32 v{RAD+i}, 0, v{Y+5}, vcc
            v_lshlrev_b32 v{CB+i}, 3, v{Y+2}
            """)
        it += I(f"""
        v_and_b32 v{Y}, 15, v{l}
        v_mul_u32_u24 v{Y}, 320, v{Y}
        v_lshrrev_b32 v{Y+1}, 4, v{l}
        v_bfe_u32 v{Y+2}, v{l}, 1, 2
        v_xor_b32 v{Y+1}, v{Y+1}, v{Y+2}
        v_lshl_add_u32 v{Y}, v{Y+1}, 4, v{Y}
        s_mul_i32 s{JT}, s{S['w']}, {PW}
        v_add_u32 v{WA}, s{JT}, v{Y}
        v_add_u32 v{Y+6}, s{JT}, v{L16}
        """)
        return it

    def epi_loads():
        it = I(f"s_mul_i32 s{JT1}, s{S['c2']}, 160")
        for i in range(3):
            it.append(("vm", f"buffer_load_dwordx2 v[{XR[i]}:{XR[i]+1}], v{OA+i}, s[{SX}:{SX+3}], 0 offen", "x"))
            it.append(("vm", f"buffer_load_dwordx2 v[{BR[i]}:{BR[i]+1}], v{CB+i}, s[{SAUX}:{SAUX+3}], s{JT1} offen", "x"))
        return it

    LB = SMALL + 13

    def p2_step(i, fill):
        st.wait("vm", [("A", i), ("B", i)])
        st.wait("ds", [("B", i)])
        f, b = areg(i), breg(i)
        opt = i in (6, 9)
        if opt:
            emit_all(st, fill)
            fill = []
            lab = a.newlabel("OPT")
            a(f"s_cmp_gt_u32 s{S['nH'] if i == 6 else S['nO']}, {6 if i == 6 else 2}\ns_cbranch_scc0 {lab}")
        k = 0
        for tt in range(4):
            for ct in range(5):
                acc = ACC + 4 * (tt * 5 + ct)
                c = "0" if i == 0 else f"v[{acc}:{acc+3}]"
                a(f"v_mfma_f32_16x16x32_bf16 v[{acc}:{acc+3}], v[{b+4*ct}:{b+4*ct+3}], v[{f+4*tt}:{f+4*tt+3}], {c}")
                k += 1
                n = -(-len(fill) // (21 - k)) if fill else 0
                for _ in range(min(n, len(fill))):
                    emit_item(st, fill.pop(0))
        if opt:
            a.label(lab)

    def lds_b(i):
        r = breg(i)
        return [("wvm", [("B", i)])] + [("ds", f"ds_read_b128 v[{r+4*ct}:{r+4*ct+3}], v{LB} offset:{(i-7)*5120 + ct*1024}", ("B", i)) for ct in range(5)]

    def o_loads(s2):
        for k in (7, 8, 9):
            emit_all(s2, a_load(k))

    def o_try():
        l0, l1 = a.newlabel("OT"), a.newlabel("OT")
        a(f"""
        s_mov_b32 s{S['hs']}, 0
        s_cmp_lg_u32 s{S['w']}, 0
        s_cbranch_scc1 {l0}
        s_lshr_b32 s{S['t']}, s{S['r2']}, 1
        s_add_u32 s{S['t']}, s{S['t']}, {F_O}
        s_lshl_b32 s{S['t']}, s{S['t']}, 7
        v_mov_b32 v{RS}, s{S['t']}
        global_load_dword v{IRS}, v{RS}, s[{S['fl']}:{S['fl']+1}] sc1
        s_waitcnt vmcnt(0)
        v_readfirstlane_b32 s{S['t']}, v{IRS}
        s_cmp_ge_u32 s{S['t']}, 32
        s_cbranch_scc0 {l1}
        """)
        lds_add(12)
        a(f"""
        {l0}:
        v_mov_b32 v{RS}, {SYN}
        ds_read_b32 v{IRS}, v{RS} offset:12
        s_waitcnt lgkmcnt(0)
        v_readfirstlane_b32 s{S['t']}, v{IRS}
        s_cmp_ge_u32 s{S['t']}, 1
        s_cbranch_scc0 {l1}
        s_mov_b32 s{S['hs']}, 1
        """)
        o_loads(Stream(a))
        a.label(l1)

    def o_wait():
        done = a.newlabel("OW")
        if Cfg.o_try >= 0:
            a(f"s_cmp_eq_u32 s{S['hs']}, 1\ns_cbranch_scc1 {done}")
        wait_flag(st, F_O, 32, 0x106, f"s_lshr_b32 s{S['t']}, s{S['r2']}, 1", then=12)
        lds_wait(12, 1, 0x10d, RS)
        o_loads(st)
        a.label(done)
        lds_add(16)
        stamp(21)

    def after_step(i):
        it = []
        if i + 3 <= 6:
            it += a_load(i + 3)
        if i in (0, 1):
            for p in b_load(i + 5, breg(i)):
                it.append(("atomic", p))
        if i in (0, 1, 2):
            it += [("atomic", p) for p in b_prefetch_lds()[5 * i:5 * i + 5]]
        if i == Cfg.o_try:
            it.append(("call", o_try))
        if i == Cfg.o_at:
            it.append(("call", o_wait))
        if i == 4:
            it += epi_loads()
        if i in (5, 6, 7):
            it = lds_b(i + 2) + it
        return it

    for i in range(3):
        emit_all(st, a_load(i))
    a("s_setprio 0")
    a.label("PHASE2C")
    carry = group_scc(epi_setup())
    for i in range(10):
        if i == 7 and Cfg.o_at == 6:
            emit_all(st, carry)
            carry = []
        p2_step(i, carry)
        stamp(27 + i)
        carry = after_step(i)
    st.wait2(None, None)
    a.label("P2_RED")
    stamp(22)
    a(f"s_cmp_lg_u32 s{S['w']}, 7\ns_cbranch_scc1 P2_DUMP")
    lds_wait(16, 8, 0x10e, RS)
    a.label("P2_DUMP")
    for tt in range(4):
        for ct in range(5):
            acc = ACC + 4 * (tt * 5 + ct)
            a(f"ds_write_b128 v{WA}, v[{acc}:{acc+3}] offset:{tt*5120 + ct*64}")
    a("s_waitcnt lgkmcnt(0)\ns_barrier")
    stamp(23)
    for i in range(3):
        if i == 2:
            a(f"s_cmp_ge_u32 s{S['w']}, 4\ns_cbranch_scc1 FIN")
        f = ACC + 32 * (i & 1)
        a(f"v_add_u32 v{T+8}, {4*PW}, v{RAD+i}")
        for w in range(8):
            src, off = (RAD + i, w * PW) if w < 4 else (T + 8, (w - 4) * PW)
            a(f"ds_read_b128 v[{f+4*w}:{f+4*w+3}], v{src} offset:{off}")
        x, b = XR[i], BR[i]
        a(f"""
        v_lshlrev_b32 v{T}, 16, v{x}
        v_and_b32 v{T+1}, 0xffff0000, v{x}
        v_lshlrev_b32 v{T+2}, 16, v{x+1}
        v_and_b32 v{T+3}, 0xffff0000, v{x+1}
        v_lshlrev_b32 v{T+4}, 16, v{b}
        v_and_b32 v{T+5}, 0xffff0000, v{b}
        v_lshlrev_b32 v{T+6}, 16, v{b+1}
        v_and_b32 v{T+7}, 0xffff0000, v{b+1}
        v_pk_add_f32 v[{T}:{T+1}], v[{T}:{T+1}], v[{T+4}:{T+5}]
        v_pk_add_f32 v[{T+2}:{T+3}], v[{T+2}:{T+3}], v[{T+6}:{T+7}]
        """)
        for w in range(8):
            a(f"""
            s_waitcnt lgkmcnt({7-w})
            v_pk_add_f32 v[{T}:{T+1}], v[{T}:{T+1}], v[{f+4*w}:{f+4*w+1}]
            v_pk_add_f32 v[{T+2}:{T+3}], v[{T+2}:{T+3}], v[{f+4*w+2}:{f+4*w+3}]
            """)
        a(f"""
        v_cvt_pk_bf16_f32 v{T+10+2*i}, v{T}, v{T+1}
        v_cvt_pk_bf16_f32 v{T+11+2*i}, v{T+2}, v{T+3}
        buffer_store_dwordx2 v[{T+10+2*i}:{T+11+2*i}], v{OA+i}, s[{SR}:{SR+3}], 0 offen
        """)
    a.label("FIN")
    stamp(24)
    if Cfg.stamps == 5:
        a(f"""
        s_cmp_lg_u32 s2, {Cfg.probe_wg}
        s_cbranch_scc1 END
        s_cmp_lg_u32 s{S['w']}, {Cfg.probe_w}
        s_cbranch_scc1 END
        v_readlane_b32 s{S['t']}, v{ITS}, {Cfg.probe}
        v_readlane_b32 s{S['t1']}, v{ITS}, {0 if Cfg.probe_cyc else 62}
        s_sub_u32 s{S['t']}, s{S['t']}, s{S['t1']}
        s_{'lshr' if Cfg.probe_cyc else 'lshl'}_b32 s{S['t']}, s{S['t']}, {3 if Cfg.probe_cyc else 2}
        s_min_u32 s{S['t']}, s{S['t']}, 100000
        v_mov_b32 v{T}, s{S['t']}
        global_store_dword v{Z}, v{T}, s[22:23] offset:4
        s_memrealtime s[{S['t0']}:{S['t0']+1}]
        s_waitcnt lgkmcnt(0)
        s_mov_b32 s{S['t1']}, s{S['t0']}
        SPIN:
        s_memrealtime s[{S['t0']}:{S['t0']+1}]
        s_waitcnt lgkmcnt(0)
        s_sub_u32 s{S['t2']}, s{S['t0']}, s{S['t1']}
        s_cmp_lt_u32 s{S['t2']}, s{S['t']}
        s_cbranch_scc1 SPIN
        """)
    elif Cfg.stamps and Cfg.stamps != 4:
        a(f"""
        s_memrealtime s[{S['t0']}:{S['t0']+1}]
        s_waitcnt lgkmcnt(0)
        v_writelane_b32 v{ITS}, s{S['t0']}, 63
        s_lshl_b32 s{S['t']}, s2, 3
        s_add_u32 s{S['t']}, s{S['t']}, s{S['w']}
        s_lshl_b32 s{S['t']}, s{S['t']}, 8
        s_add_u32 s{S['t']}, s{S['t']}, {STAMP_OFF}
        v_lshlrev_b32 v{T+20}, 2, v{l}
        v_add_u32 v{T+20}, s{S['t']}, v{T+20}
        global_store_dword v{T+20}, v{ITS}, s[24:25]
        """)
    a.label("END")
    a("s_endpgm")
    for f in ool:
        f()
    a.label("CODE_END")
    a("s_endpgm")
    return a.L


def build():
    head = open("cdna_kernels/%s.s.ref" % NAME).read().split("; Override launch")[0]
    out = head + "; @launch grid=(256,1,1) block=(512,1,1) lds=163840\n"
    out += '.amdgcn_target "amdgcn-amd-amdhsa--gfx950"\n.text\n'
    L, n = fix_hazards(gen())
    out += f".globl {KN}\n.p2align 8\n.type {KN},@function\n"
    out += "\n".join(x if x.endswith(":") else "    " + x for x in L) + "\n"
    print("instrs", len(L), "nops inserted", n, file=sys.stderr)
    out += f""".section .rodata,"a"
.p2align 6
.amdhsa_kernel {KN}
  .amdhsa_next_free_vgpr 256
  .amdhsa_next_free_sgpr 102
  .amdhsa_accum_offset 256
  .amdhsa_group_segment_fixed_size 0
  .amdhsa_kernarg_size 88
  .amdhsa_user_sgpr_count 2
  .amdhsa_user_sgpr_kernarg_segment_ptr 1
  .amdhsa_system_sgpr_workgroup_id_x 1
  .amdhsa_float_denorm_mode_32 3
.end_amdhsa_kernel
"""
    return out


if __name__ == "__main__":
    for arg in sys.argv[2:]:
        k, v = arg.split("=")
        assert hasattr(Cfg, k), k
        setattr(Cfg, k, int(v))
    open(sys.argv[1], "w").write(build())
```

```python
import sys, struct
from asmlib import Asm, fix_hazards, RegAlloc

NAME = "parallel_sum__linear_attn_block__mixer_channel_mlp__prompt"
KN = NAME + "_kernel"

A2_OFF = 0
A2_RB = 74 * 4096
B2_OFF = 32 * A2_RB
B2_C = 74 * 5120
KV_OFF = B2_OFF + 8 * B2_C
CS_OFF = KV_OFF + 8 * 8192
FLAG_OFF = CS_OFF + 16384
RS_OFF = FLAG_OFF + 37888
WS_SIZE = RS_OFF + 16384
F_KV, F_H, F_O, F_EARLY = 0, 8, 136, 264
ZERO_BYTES = 65536 + 16384 + 37888 + 16384
STAMP_OFF = WS_SIZE + 65536
OOB = 0x7f000000

SLOT = 49152
MISC = 3 * SLOT
RELAY = MISC
ST_M, ST_RS, ST_IRS, CSP = MISC + 12288, MISC + 12800, MISC + 13312, MISC + 14336
SYN = MISC + 15360
PW = 20480
GAP = 15360
KVX = 0
CMP = 40960
CDUM = CMP + 6720
ONES = CMP + 7232
FRG = 4 * PW + GAP


def frg(fi):
    return FRG + fi * 1024 + (fi // 5) * GAP


LOG2E = 1.4426950408889634
GC1 = -2.0 * 0.7978845608028654 * LOG2E
GC2 = GC1 * 0.044715
EPS6 = 9.98377799987793e-07


def hx(x):
    return "0x%08x" % struct.unpack("<I", struct.pack("<f", x))[0]


class Cfg:
    stamps = 0
    probe = 24
    probe_wg = 200
    probe_w = 0
    probe_cyc = 0
    prefetch_code = 1
    x_nodma = 0
    bpos = 1
    map1 = 2
    map2 = 0
    wnt = 0
    rnt = 1
    p2prio = 2
    prio = 0
    prio2 = 1
    cprio = 1
    nfirst = 4
    poll_it = 7
    touch = 1
    fine = 0
    fill = 2
    pf_h = 0
    pf_q1 = 25
    pf_k1 = 10
    pf_k0 = 0
    phi_n = 3
    pf_l = 1
    hbar = 6
    hbar_chunk = 5
    gelu_pk0 = 0
    kv_pk = 1
    h_early = 1
    rot2 = 1
    o_at = 6
    o_try = 5
    o_peek = 3
    yprio = 0
    ytill = 9
    psleep = 6
    zdup = 1
    x_p2n = 0
    lds_pre = 1
    rl_pos = 0
    epi_at = 4
    p2span = 20
    p2sc = 1
    qprio = 0
    hpass = 1
    rs_it = 0
    hpoll = 7
    hsig = 3
    ini_pro = 1
    q16 = 0
    pf_mid = 25
    pf_q2 = 0
    nx = 0
    bleft = 3
    wgrp = 1
    ilv = 1
    nring = 6
    align = 0
    qtill = 99
    shards = 32
    plead = 1
    bsig = 3
    bpoll = 6
    touch_it = 8
    hfill = 3
    hprio = 1
    early_lds = 0
    dfirst = 1
    qb3 = 2
    qb4 = 5
    sig_it = 4
    eprio = 2


def kperm_feature(g, j):
    return 4 * g + (j & 3) + 16 * (j >> 2)


def typ_of(ids):
    return {0: (ids >> 5) & 1, 1: (ids >> 3) & 1, 2: ids >> 7}[Cfg.map1]


class Stream:
    def __init__(self, a):
        self.a = a
        self.q = {"ds": [], "vm": []}

    def emit(self, it):
        k = it[0]
        if k == "i":
            self.a(it[1])
        elif k in ("ds", "vm"):
            self.a(it[1])
            self.q[k].append(it[2])
        elif k == "vm0":
            self.a(it[1])
            self.q["vm"].append(("*", it[2]))
        elif k in ("wds", "wvm"):
            self.wait(k[1:], it[1])
        else:
            raise ValueError(it)

    def count(self, k, tags):
        q = self.q[k]
        def star(t):
            return isinstance(t, tuple) and t[0] == "*"
        idx = max([i for i, t in enumerate(q) if tags is None or t in tags or (star(t) and t[1] in tags)], default=-1)
        if idx < 0:
            return None
        left = sum(1 for t in q[idx + 1:] if not star(t))
        del q[:idx + 1]
        return min(left, 15 if k == "ds" else 63)

    def wait(self, k, tags):
        n = self.count(k, tags)
        if n is not None:
            self.a(f"s_waitcnt {'lgkmcnt' if k == 'ds' else 'vmcnt'}({n})")

    def wait2(self, dtags, vtags):
        nd, nv = self.count("ds", dtags), self.count("vm", vtags) if vtags != [] else None
        p = []
        if nv is not None:
            p.append(f"vmcnt({nv})")
        if nd is not None:
            p.append(f"lgkmcnt({nd})")
        if p:
            self.a("s_waitcnt " + " ".join(p))


def I(text):
    return [("i", x.strip()) for x in text.strip().split("\n") if x.strip()]


def group_scc(items):
    out, i = [], 0
    while i < len(items):
        it = items[i]
        if it[0] == "i" and it[1].startswith("s_cmp"):
            j = i + 1
            while j < len(items) and items[j][0] == "i" and items[j][1].startswith("s_cselect"):
                j += 1
            out.append(("atomic", items[i:j]))
            i = j
        else:
            out.append(it)
            i += 1
    return out


def gen():
    a = Asm()
    ool = []
    S = {}
    sa = RegAlloc(44, 96)
    for n in ("w", "rg", "rb", "j", "typ", "col0", "soA", "soB", "so2", "so", "ofA", "ofB", "of2", "t", "t1", "t2", "t3", "pc",
              "rlo", "rls", "hs", "jt", "jt1", "r2", "c2", "sH", "sX", "sO", "nH", "nO", "rH", "rO", "p2A", "p2B", "tp1"):
        S[n] = sa.alloc(n)
    S["uo"] = sa.alloc("uo", 4)
    S["pa"] = sa.alloc("pa", 4)
    for n in ("ex", "m1", "m2"):
        S[n] = sa.alloc(n, 2, 2)
    S["fl"], S["t0"] = 10, 100
    SX, SW, SWS, SR, SAUX = 28, 32, 36, 40, 96

    l, Z, ITS, RS, IRS, L16, SMALL = 1, 2, 3, 4, 5, 6, 7
    ACC, T, BB = 24, 104, 152
    CMPA, SCA = SMALL, SMALL + 8
    vb = RegAlloc(BB, BB + 100)
    NRING = Cfg.nring
    FA = vb.alloc("fa", 16, 2)
    FB = vb.alloc("fb", 4 * NRING, 2)
    RA = vb.alloc("rA", 2)
    RA0 = vb.alloc("rA0")
    RB = vb.alloc("rB", 2)
    RB0 = vb.alloc("rB0")
    BIAS = vb.alloc("bias", 8)
    RLD = vb.alloc("rld")
    JX = vb.alloc("jx", 10, 2)
    WE, XE = T, T + 40
    RS1, IRS1 = 252, 253
    QSCA = SMALL + 4

    def srd(base, ptr, size):
        a(f"s_mov_b32 s{base}, s{ptr}\ns_mov_b32 s{base+1}, s{ptr+1}\ns_mov_b32 s{base+2}, {size}\ns_mov_b32 s{base+3}, 0x20000")

    DBGW = {3: 2, 13: 3, 15: 4, 20: 5, 21: 6, 22: 7, 24: 9}

    def stamp(lane):
        if Cfg.stamps == 5:
            if lane == Cfg.probe:
                a(f"{'s_memtime' if Cfg.probe_cyc else 's_memrealtime'} s[{S['t0']}:{S['t0']+1}]\ns_waitcnt lgkmcnt(0)\nv_writelane_b32 v{ITS}, s{S['t0']}, {lane}")
        elif Cfg.stamps == 4:
            if lane in DBGW:
                a(f"s_memrealtime s[{S['t0']}:{S['t0']+1}]\ns_waitcnt lgkmcnt(0)\nv_mov_b32 v{ITS}, s{S['t0']}\ns_mov_b64 exec, 1\n"
                  f"global_atomic_umax v{Z}, v{ITS}, s[22:23] offset:{4*DBGW[lane]}\ns_mov_b64 exec, -1")
        elif Cfg.stamps:
            a(f"{'s_memrealtime' if Cfg.stamps == 3 else 's_memtime'} s[{S['t0']}:{S['t0']+1}]\ns_waitcnt lgkmcnt(0)\nv_writelane_b32 v{ITS}, s{S['t0']}, {lane}")

    def poll_slow(check, err, sleep=24):
        lp, back = a.newlabel("PL"), a.newlabel("PB")
        a(f"s_cbranch_scc0 {lp}\n{back}:")

        def emit():
            l2 = a.newlabel("PL")
            a(f"{lp}:\ns_mov_b32 s{S['pc']}, 0\n{l2}:\ns_sleep {sleep}")
            if Cfg.stamps == 4 and err in (0x101, 0x104, 0x102, 0x105, 0x106, 0x107):
                wd = {0x101: 10, 0x104: 11, 0x102: 12, 0x105: 13, 0x106: 14, 0x107: 15}[err]
                a(f"v_mov_b32 v{ITS}, 1\ns_mov_b64 s[{S['t0']}:{S['t0']+1}], exec\ns_mov_b64 exec, 1\nglobal_atomic_add v{Z}, v{ITS}, s[22:23] offset:{4*wd}\ns_mov_b64 exec, s[{S['t0']}:{S['t0']+1}]")
            check()
            a(f"""
            s_cbranch_scc1 {back}
            s_add_u32 s{S['pc']}, s{S['pc']}, 1
            s_cmp_lt_u32 s{S['pc']}, 0x20000
            s_cbranch_scc1 {l2}
            v_mov_b32 v{IRS}, {err}
            global_store_dword v{Z}, v{IRS}, s[22:23] offset:32
            s_branch {back}
            """)
        ool.append(emit)

    a.label(KN)
    a(f"""
    s_cmp_ge_u32 s2, 256
    s_cbranch_scc1 END
    s_load_dwordx16 s[4:19], s[0:1], 0
    s_load_dwordx4 s[20:23], s[0:1], 64
    s_load_dwordx2 s[24:25], s[0:1], 80
    v_lshrrev_b32 v{T}, 6, v0
    v_and_b32 v{l}, 63, v0
    v_readfirstlane_b32 s{S['w']}, v{T}
    """)
    if Cfg.stamps:
        a(f"v_mov_b32 v{ITS}, 0\ns_memtime s[{S['t0']}:{S['t0']+1}]\ns_memrealtime s[{S['ex']}:{S['ex']+1}]")
    if Cfg.map1 == 0:
        a(f"""
        s_and_b32 s{S['t']}, s2, 3
        s_lshl_b32 s{S['t']}, s{S['t']}, 2
        s_bfe_u32 s{S['t1']}, s2, 0x20003
        s_add_u32 s{S['rb']}, s{S['t']}, s{S['t1']}
        s_bfe_u32 s{S['typ']}, s2, 0x10005
        s_bfe_u32 s{S['t']}, s2, 0x10002
        s_lshl_b32 s{S['t']}, s{S['t']}, 2
        s_bfe_u32 s{S['t1']}, s2, 0x20006
        s_add_u32 s{S['j']}, s{S['t']}, s{S['t1']}
        """)
    else:
        if Cfg.map1 == 1:
            a(f"s_and_b32 s{S['j']}, s2, 7\ns_bfe_u32 s{S['typ']}, s2, 0x10003\ns_lshr_b32 s{S['rb']}, s2, 4")
        else:
            a(f"s_and_b32 s{S['j']}, s2, 7\ns_lshr_b32 s{S['typ']}, s2, 7\ns_bfe_u32 s{S['rb']}, s2, 0x40003")
    a(f"""
    v_mov_b32 v{Z}, 0
    v_lshlrev_b32 v{L16}, 4, v{l}
    s_and_b32 s{S['rg']}, s{S['w']}, 3
    s_mul_i32 s{S['t']}, s{S['j']}, 7
    s_min_u32 s{S['t']}, s{S['t']}, 47
    s_lshl_b32 s{S['t']}, s{S['t']}, 5
    s_mul_i32 s{S['t1']}, s{S['j']}, 80
    s_cmp_eq_u32 s{S['typ']}, 0
    s_cselect_b32 s{S['col0']}, s{S['t1']}, s{S['t']}
    s_lshr_b32 s{S['t']}, s{S['w']}, 2
    s_lshl_b32 s{S['t1']}, s{S['typ']}, 1
    s_add_u32 s{S['t3']}, s{S['t']}, s{S['t1']}
    s_cmp_eq_u32 s{S['t3']}, 0
    s_cbranch_scc1 ROLE_KV
    s_cmp_eq_u32 s{S['t3']}, 2
    s_cbranch_scc1 ROLE_H0
    s_cmp_eq_u32 s{S['t3']}, 3
    s_cbranch_scc1 ROLE_H1
    """)

    TY = {0: dict(nt=5, stride=3840, wptr=6, qkv=True), 1: dict(nt=4, stride=3456, wptr=12, qkv=False)}
    JT, JT1 = S["jt"], S["jt1"]

    def after_kernarg():
        a("s_waitcnt lgkmcnt(0)")
        if Cfg.stamps == 4:
            a(f"s_not_b32 s{S['ex']}, s{S['ex']}\nv_mov_b32 v{ITS}, s{S['ex']}\ns_mov_b64 exec, 1\nglobal_atomic_umax v{Z}, v{ITS}, s[22:23] offset:4\ns_mov_b64 exec, -1")
        elif Cfg.stamps:
            a(f"v_writelane_b32 v{ITS}, s{S['t0']}, 0\nv_writelane_b32 v{ITS}, s{S['ex']}, 62")
        srd(SX, 4, 2048 * 1280)
        srd(SWS, 24, WS_SIZE)
        a(f"s_add_u32 s{S['fl']}, s24, {FLAG_OFF}\ns_addc_u32 s{S['fl']+1}, s25, 0")

    def emit_item(st, it):
        if it[0] == "atomic":
            for x in it[1]:
                emit_item(st, x)
        elif it[0] == "call":
            it[1]()
        else:
            st.emit(it)

    def emit_all(st, items):
        for x in items:
            emit_item(st, x)

    def p2_params():
        if Cfg.map2 == 0:
            a(f"""
            s_and_b32 s{S['t']}, s2, 3
            s_lshl_b32 s{S['t']}, s{S['t']}, 3
            s_bfe_u32 s{S['t1']}, s2, 0x30003
            s_add_u32 s{S['r2']}, s{S['t']}, s{S['t1']}
            s_bfe_u32 s{S['t']}, s2, 0x10002
            s_lshl_b32 s{S['t']}, s{S['t']}, 2
            s_lshr_b32 s{S['t1']}, s2, 6
            s_add_u32 s{S['c2']}, s{S['t']}, s{S['t1']}
            """)
        else:
            a(f"""
            s_and_b32 s{S['t']}, s2, 7
            s_lshl_b32 s{S['t']}, s{S['t']}, 2
            s_bfe_u32 s{S['t1']}, s2, 0x20003
            s_add_u32 s{S['r2']}, s{S['t']}, s{S['t1']}
            s_lshr_b32 s{S['c2']}, s2, 5
            """)
        NX = Cfg.nx
        a(f"""
        s_lshl_b32 s{S['t']}, s{S['rg']}, 3
        s_lshr_b32 s{S['sX']}, 0x302a231c, s{S['t']}
        s_and_b32 s{S['sX']}, s{S['sX']}, 255
        s_mul_i32 s{S['t']}, s{S['w']}, 7
        s_add_u32 s{S['t1']}, s{S['sX']}, {NX}
        s_cmp_lt_u32 s{S['w']}, 6
        s_cselect_b32 s{S['t2']}, {7 - NX}, {6 - NX}
        s_cmp_lt_u32 s{S['w']}, 4
        s_cselect_b32 s{S['sH']}, s{S['t']}, s{S['t1']}
        s_cselect_b32 s{S['nH']}, 7, s{S['t2']}
        s_and_b32 s{S['t']}, s{S['w']}, 1
        s_sub_u32 s{S['nO']}, 3, s{S['t']}
        s_mul_i32 s{S['t']}, s{S['t']}, 3
        s_lshr_b32 s{S['t1']}, s{S['w']}, 1
        s_mul_i32 s{S['t1']}, s{S['t1']}, 5
        s_add_u32 s{S['t']}, s{S['t']}, s{S['t1']}
        s_add_u32 s{S['sO']}, s{S['t']}, 54
        s_and_b32 s{S['t']}, s{S['c2']}, 3
        s_mul_i32 s{S['rH']}, s{S['t']}, {2 * Cfg.rot2}
        s_mul_i32 s{S['rO']}, s{S['t']}, {Cfg.rot2}
        s_cmp_lt_u32 s{S['w']}, 4
        s_cselect_b32 s{S['rH']}, s{S['rH']}, s{S['rO']}
        s_cmp_ge_u32 s{S['rO']}, s{S['nO']}
        s_cselect_b32 s{S['t']}, s{S['nO']}, 0
        s_sub_u32 s{S['rO']}, s{S['rO']}, s{S['t']}
        s_mul_i32 s{S['p2A']}, s{S['r2']}, {A2_RB}
        s_mul_i32 s{S['p2B']}, s{S['c2']}, {B2_C}
        s_add_u32 s{S['p2B']}, s{S['p2B']}, {B2_OFF}
        """)

    def relay_params(base):
        a(f"""
        s_lshl_b32 s{S['t']}, s{S['rg']}, 8
        s_add_u32 s{S['t3']}, s{S['t']}, s2
        s_mul_i32 s{S['t2']}, s{S['t3']}, 6554
        s_lshr_b32 s{S['t2']}, s{S['t2']}, 16
        s_mul_i32 s{S['t']}, s{S['t2']}, 10
        s_sub_u32 s{S['t1']}, s{S['t3']}, s{S['t']}
        s_min_u32 s{S['so']}, s{S['rg']}, 2
        s_lshl_b32 s{S['so']}, s{S['so']}, 12
        s_add_u32 s{S['rls']}, s{S['so']}, {base}
        """)

    def bias_setup(qkv, n, st, X):
        if not qkv:
            srd(SAUX, 14, 3456)
            a(f"""
            s_lshl_b32 s{S['t']}, s{S['tp1']}, 5
            s_add_u32 s{S['t']}, s{S['t']}, s{S['col0']}
            s_lshl_b32 s{S['t']}, s{S['t']}, 1
            v_and_b32 v{X}, 15, v{l}
            v_lshlrev_b32 v{X}, 1, v{X}
            """)
            for u in range(n):
                st.emit(("vm", f"buffer_load_ushort v{BIAS+u}, v{X}, s[{SAUX}:{SAUX+3}], s{S['t']} offen offset:{u*32}", "bias"))
        else:
            a(f"v_mov_b32 v{BIAS}, 0x3586")

    def vcol(reg, tmp):
        return I(f"""
        v_mov_b32 v{tmp}, 0
        v_mov_b32 v{tmp+1}, -16
        v_cmp_le_u32 vcc, 80, v{reg}
        v_cndmask_b32 v{tmp}, v{tmp}, v{tmp+1}, vcc
        v_mov_b32 v{tmp+1}, {640-96}
        v_cmp_le_u32 vcc, 96, v{reg}
        v_cndmask_b32 v{tmp}, v{tmp}, v{tmp+1}, vcc
        v_mov_b32 v{tmp+1}, {1280-176}
        v_cmp_le_u32 vcc, 176, v{reg}
        v_cndmask_b32 v{tmp}, v{tmp}, v{tmp+1}, vcc
        v_add_u32 v{reg}, v{reg}, v{tmp}
        """)

    def job_build_ext(n, bias_of):
        X = JX
        it = I(f"""
        v_and_b32 v{X}, 15, v{l}
        s_lshl_b32 s{JT}, s{S['rg']}, 5
        v_add_lshl_u32 v{X+1}, v{X}, s{JT}, 2
        v_add_u32 v{X+1}, {MISC}, v{X+1}
        s_lshl_b32 s{JT}, s{S['tp1']}, 7
        s_add_u32 s{JT}, s{JT}, {CSP}
        v_lshl_add_u32 v{X}, v{X}, 2, s{JT}
        """)
        for rt, (rs, irs) in enumerate(((RS, IRS), (RS1, IRS1))):
            for r, off in ((X + 2 + rt, ST_M), (rs, ST_RS), (irs, ST_IRS)):
                it.append(("ds", f"ds_read_b32 v{r}, v{X+1} offset:{off - MISC + 64*rt}", "bx"))
        for u in range(n):
            it.append(("ds", f"ds_read_b32 v{WE+4*u+3}, v{X} offset:{u*64}", "bx"))
            if u == 6:
                it.append(("wds", ["bx"]))
        it += I(f"s_mov_b32 s{S['m1']}, 0xffff\ns_mov_b32 s{S['m1']+1}, 0") + [("wds", ["bx"])]
        for rt, irs in enumerate((IRS, IRS1)):
            m, xe = X + 2 + rt, XE + 4 * rt
            it += I(f"""
            v_sub_f32 v{m}, 0, v{m}
            v_cvt_pk_bf16_f32 v{X+4}, v{m}, v{irs}
            v_lshlrev_b32 v{X+5}, 16, v{X+4}
            v_and_b32 v{X+6}, 0xffff0000, v{X+4}
            v_sub_f32 v{X+5}, v{m}, v{X+5}
            v_sub_f32 v{X+6}, v{irs}, v{X+6}
            v_cvt_pk_bf16_f32 v{X+5}, v{m}, v{X+5}
            v_cvt_pk_bf16_f32 v{X+6}, v{X+6}, v{Z}
            v_cndmask_b32 v{xe}, 0, v{X+5}, s[{S['m1']}:{S['m1']+1}]
            v_cndmask_b32 v{xe+1}, 0, v{X+4}, s[{S['m1']}:{S['m1']+1}]
            v_cndmask_b32 v{xe+2}, 0, v{X+6}, s[{S['m1']}:{S['m1']+1}]
            v_mov_b32 v{xe+3}, 0
            """)
        for u in range(n):
            w, b = WE + 4 * u, bias_of(u)
            it += I(f"""
            v_cvt_pk_bf16_f32 v{w}, v{w+3}, v{w+3}
            v_and_b32 v{w+1}, 0xffff0000, v{w}
            v_sub_f32 v{w+1}, v{w+3}, v{w+1}
            v_cvt_pk_bf16_f32 v{w+1}, v{w+1}, v{Z}
            v_lshl_or_b32 v{w+1}, v{b}, 16, v{w+1}
            v_mov_b32 v{w+2}, v{b}
            v_mov_b32 v{w+3}, 0
            """)
        return it

    def acc(u, rt):
        return ACC + 8 * u + 4 * rt

    def ext_mfma(n, tr):
        for u in range(n):
            for rt in range(2):
                w, xe, d = WE + 4 * u, XE + 4 * rt, acc(u, rt)
                x, y = (w, xe) if tr else (xe, w)
                a(f"v_mfma_f32_16x16x32_bf16 v[{d}:{d+3}], v[{x}:{x+3}], v[{y}:{y+3}], v[{d}:{d+3}]")

    def early_flag_jobs(V):
        NS = Cfg.shards
        sig = I(f"s_and_b32 s{JT}, s2, {NS-1}\ns_add_u32 s{JT}, s{JT}, {F_EARLY}\ns_lshl_b32 s{JT}, s{JT}, 7\nv_mov_b32 v{V}, s{JT}\nv_mov_b32 v{V+1}, 1") + [
            ("atomic", I(f"s_cmp_eq_u32 s{S['w']}, 0\ns_cselect_b32 exec_lo, 1, 0\ns_mov_b32 exec_hi, 0") +
             [("vm0", f"global_atomic_add v{V}, v{V+1}, s[{S['fl']}:{S['fl']+1}]", "sg")] + I("s_mov_b64 exec, -1"))]
        msk = hex((1 << NS) - 1) if NS < 32 else "-1"
        ldj = I(f"v_lshlrev_b32 v{V}, 7, v{l}\nv_add_u32 v{V}, {F_EARLY*128}, v{V}\nv_mov_b32 v{V+1}, {256//NS}") + [
            ("atomic", I(f"s_cmp_eq_u32 s{S['w']}, 0\ns_cselect_b32 exec_lo, {msk}, 0\ns_mov_b32 exec_hi, 0") +
             [("vm0", f"global_load_dword v{V+1}, v{V}, s[{S['fl']}:{S['fl']+1}] sc1", "fl")] + I("s_mov_b64 exec, -1"))]
        cmp_ = f"v_cmp_gt_u32 vcc, {256//NS}, v{V+1}\ns_cmp_eq_u64 vcc, 0"

        def chk():
            a(f"s_mov_b32 exec_lo, {msk}\ns_mov_b32 exec_hi, 0\nglobal_load_dword v{V+1}, v{V}, s[{S['fl']}:{S['fl']+1}] sc1\ns_mov_b64 exec, -1\ns_waitcnt vmcnt(0)\n{cmp_}")
        ck = [("wvm", ["fl"]), ("atomic", I(cmp_) + [("call", lambda: poll_slow(chk, 0x104))])]
        return sig, ldj, ck

    def row_publish(SQ, SM, Y):
        it = I(f"""
        s_mov_b32 s{S['m1']}, 0xaaaaaaaa
        s_mov_b32 s{S['m1']+1}, 0xaaaaaaaa
        s_mov_b32 s{S['m2']}, 0xcccccccc
        s_mov_b32 s{S['m2']+1}, 0xcccccccc
        """)
        for rt in range(2):
            q = SQ + 4 * rt
            it += I(f"""
            v_cndmask_b32 v{q}, v{q}, v{q+1}, s[{S['m1']}:{S['m1']+1}]
            v_cndmask_b32 v{q+2}, v{q+2}, v{q+3}, s[{S['m1']}:{S['m1']+1}]
            v_cndmask_b32 v{q}, v{q}, v{q+2}, s[{S['m2']}:{S['m2']+1}]
            """)
        it += I(f"""
        s_lshl_b32 s{JT}, s{S['rb']}, 2
        s_add_u32 s{JT}, s{JT}, s{S['rg']}
        s_lshl_b32 s{JT}, s{JT}, 7
        s_add_u32 s{JT}, s{JT}, {RS_OFF}
        s_lshl_b32 s{JT1}, s{S['j']}, 1
        s_add_u32 s{JT1}, s{JT1}, s{S['typ']}
        s_cmp_ge_u32 s{JT1}, 10
        s_cselect_b32 s{JT}, {OOB}, s{JT}
        v_permlane32_swap_b32 v{SM}, v{SQ}
        v_permlane32_swap_b32 v{SM+4}, v{SQ+4}
        v_and_b32 v{Y+4}, 31, v{l}
        v_lshrrev_b32 v{Y+5}, 5, v{l}
        v_add_f32 v{SM}, v{SM}, v{SQ}
        v_add_f32 v{SM+4}, v{SM+4}, v{SQ+4}
        v_lshlrev_b32 v{Y+5}, 13, v{Y+5}
        v_lshl_add_u32 v{Y+4}, v{Y+4}, 2, v{Y+5}
        v_permlane16_swap_b32 v{SM}, v{SM+4}
        v_add_f32 v{SM}, v{SM}, v{SM+4}
        """)
        it.append(("vm", f"buffer_atomic_add_f32 v{SM}, v{Y+4}, s[{SWS}:{SWS+3}], s{JT} offen", "stat"))
        return it

    def job_load_stats(qkv, Y):
        it = I(f"""
        v_and_b32 v{Y}, 31, v{l}
        s_lshl_b32 s{JT}, s{S['rb']}, 2
        s_add_u32 s{JT}, s{JT}, s{S['rg']}
        s_lshl_b32 s{JT}, s{JT}, 7
        s_add_u32 s{JT}, s{JT}, {RS_OFF}
        s_add_u32 s{JT1}, s{JT}, 8192
        v_lshlrev_b32 v{Y+1}, 2, v{Y}
        """)
        it.append(("vm", f"buffer_load_dword v{Y+2}, v{Y+1}, s[{SWS}:{SWS+3}], s{JT} offen sc1", "ls"))
        it.append(("vm", f"buffer_load_dword v{Y+3}, v{Y+1}, s[{SWS}:{SWS+3}], s{JT1} offen sc1", "ls"))
        it += I(f"s_lshl_b32 s{JT}, s{S['rg']}, 6\nv_add_u32 v{Y+1}, s{JT}, v{l}")
        if qkv:
            it += vcol(Y + 1, Y + 4) + I(f"s_lshl_b32 s{JT}, s{S['col0']}, 2\ns_add_u32 s{JT}, s{JT}, {CS_OFF}")
        else:
            it += I(f"s_lshl_b32 s{JT}, s{S['col0']}, 2\ns_add_u32 s{JT}, s{JT}, {CS_OFF + 1920*4}")
        it += I(f"v_lshlrev_b32 v{Y+1}, 2, v{Y+1}")
        it.append(("vm", f"buffer_load_dword v{Y+4}, v{Y+1}, s[{SWS}:{SWS+3}], s{JT} offen sc1", "ls"))
        return it

    def job_publish_stats(qkv, Y):
        it = I(f"""
        v_and_b32 v{Y+5}, 31, v{l}
        s_lshl_b32 s{JT}, s{S['rg']}, 5
        v_add_lshl_u32 v{Y+5}, v{Y+5}, s{JT}, 2
        v_add_u32 v{Y+5}, {MISC}, v{Y+5}
        s_lshl_b32 s{JT}, s{S['rg']}, 8
        s_add_u32 s{JT}, s{JT}, {CSP}
        v_lshl_add_u32 v{Y+6}, v{l}, 2, s{JT}
        """) + [("wvm", ["ls"])] + I(f"""
        v_mul_f32 v{Y+2}, {hx(1/640)}, v{Y+2}
        v_mul_f32 v{Y+3}, {hx(1/640)}, v{Y+3}
        v_fma_f32 v{Y+3}, -v{Y+2}, v{Y+2}, v{Y+3}
        v_max_f32 v{Y+3}, 0, v{Y+3}
        v_add_f32 v{Y}, {hx(1e-5)}, v{Y+3}
        """)
        if not qkv:
            it += I(f"v_mov_b32 v{Y+1}, {hx(1e-5)}\nv_fma_f32 v{Y}, v{Y}, v{Y+1}, v{Y+3}")
        it += I(f"v_sqrt_f32 v{Y+1}, v{Y}\nv_rsq_f32 v{Y}, v{Y}")
        for r, off in ((Y + 2, ST_M), (Y, ST_RS), (Y + 1, ST_IRS)):
            it.append(("ds", f"ds_write_b32 v{Y+5}, v{r} offset:{off-MISC}", "pub"))
        it.append(("ds", f"ds_write_b32 v{Y+6}, v{Y+4}", "pub"))
        return it

    def job_touch(V):
        ns = 8 if Cfg.map2 == 0 else 4
        per = 2960 // ns
        pw = -(-per // 128) * 32
        it = I(f"""
        s_and_b32 s{JT}, s{S['r2']}, {ns-1}
        s_mul_i32 s{JT}, s{JT}, {per*128}
        s_mul_i32 s{JT1}, s{S['rg']}, {pw*128}
        s_add_u32 s{JT}, s{JT}, s{JT1}
        s_add_u32 s{JT}, s{JT}, s{S['p2B']}
        v_lshlrev_b32 v{V+1}, 7, v{l}
        """)
        for k in range(0, pw, 64):
            ld_ = [("vm", f"buffer_load_dword v{V}, v{V+1}, s[{SWS}:{SWS+3}], s{JT} offen sc1", "tc")]
            if pw - k < 64:
                ld_ = I("s_mov_b32 exec_hi, 0") + ld_ + I("s_mov_b32 exec_hi, -1")
            it.append(("atomic", ld_ + I(f"s_add_u32 s{JT}, s{JT}, 8192")))
        return it

    def code_prefetch():
        if not Cfg.prefetch_code:
            return
        here = a.newlabel("PC")
        a(f"""
        s_getpc_b64 s[26:27]
        {here}:
        s_sub_u32 s26, s26, {here}-{KN}
        s_subb_u32 s27, s27, 0
        s_bfe_u32 s{S['t']}, s2, 0x20003
        s_lshl_b32 s{S['t']}, s{S['t']}, 14
        v_lshlrev_b32 v{T+2}, 6, v0
        v_add_u32 v{T+2}, s{S['t']}, v{T+2}
        v_min_u32 v{T+2}, CODE_END-{KN}-4, v{T+2}
        v_mov_b32 v{T+3}, s27
        v_add_co_u32 v{T+2}, vcc, s26, v{T+2}
        v_addc_co_u32 v{T+3}, vcc, 0, v{T+3}, vcc
        s_mov_b32 exec_lo, 0x55555555
        s_mov_b32 exec_hi, 0x55555555
        global_load_dword v{RS}, v[{T+2}:{T+3}], off
        s_mov_b64 exec, -1
        """)

    def zero_init():
        a(f"v_mov_b32 v{T+13}, {SYN}\nds_write_b128 v{T+13}, v[{T+8}:{T+11}]\nds_write_b128 v{T+13}, v[{T+8}:{T+11}] offset:16".replace("v_mov_b32", f"v_mov_b32 v{T+8}, 0\nv_mov_b32 v{T+9}, 0\nv_mov_b32 v{T+10}, 0\nv_mov_b32 v{T+11}, 0\nv_mov_b32", 1))
        lab = a.newlabel("NI")
        a(f"""
        s_cmp_lg_u32 s{S['rg']}, 3
        s_cbranch_scc1 {lab}
        s_cmp_ge_u32 s2, 32
        s_cbranch_scc1 {lab}
        v_mov_b32 v{T+8}, 0
        v_mov_b32 v{T+9}, 0
        v_mov_b32 v{T+10}, 0
        v_mov_b32 v{T+11}, 0
        s_mul_i32 s{S['t']}, s2, 4256
        s_add_u32 s{S['t']}, s{S['t']}, {KV_OFF}
        buffer_store_dwordx4 v[{T+8}:{T+11}], v{L16}, s[{SWS}:{SWS+3}], s{S['t']} offen sc1
        buffer_store_dwordx4 v[{T+8}:{T+11}], v{L16}, s[{SWS}:{SWS+3}], s{S['t']} offen offset:1024 sc1
        buffer_store_dwordx4 v[{T+8}:{T+11}], v{L16}, s[{SWS}:{SWS+3}], s{S['t']} offen offset:2048 sc1
        buffer_store_dwordx4 v[{T+8}:{T+11}], v{L16}, s[{SWS}:{SWS+3}], s{S['t']} offen offset:3072 sc1
        buffer_store_dwordx4 v[{T+8}:{T+11}], v{L16}, s[{SWS}:{SWS+3}], s{S['t']} offen offset:3232 sc1
        v_mov_b32 v{T+12}, 1
        s_waitcnt vmcnt(0)
        s_mov_b64 exec, 1
        global_atomic_add v{Z}, v{T+12}, s[22:23]
        s_mov_b64 exec, -1
        {lab}:
        """)

    def relay_issue(st, X, base):
        relay_params(base)
        a(f"""
        s_cmp_lt_u32 s{S['t2']}, 54
        s_cselect_b32 s{SR}, s16, s8
        s_cselect_b32 s{SR+1}, s17, s9
        s_mov_b32 s{SR+2}, {640*1280}
        s_cselect_b32 s{SR+2}, {1728*1280}, s{SR+2}
        s_mov_b32 s{SR+3}, 0x20000
        s_cselect_b32 s{S['t']}, 0, 54
        s_sub_u32 s{S['t']}, s{S['t2']}, s{S['t']}
        s_mul_i32 s{S['t']}, s{S['t']}, {32*1280}
        s_lshl_b32 s{S['so']}, s{S['t1']}, 7
        s_add_u32 s{S['rlo']}, s{S['t']}, s{S['so']}
        v_lshrrev_b32 v{X}, 3, v{l}
        v_mul_u32_u24 v{X}, 1280, v{X}
        v_and_b32 v{X+1}, 7, v{l}
        v_lshl_add_u32 v{RLD}, v{X+1}, 4, v{X}
        s_cmp_lt_u32 s{S['t3']}, 740
        s_cselect_b32 s{S['hs']}, -1, 0
        s_barrier
        """)
        if Cfg.rl_pos == 0:
            relay_dma(st)

    def relay_dma(st):
        a(f"s_mov_b32 exec_lo, s{S['hs']}\ns_mov_b32 exec_hi, s{S['hs']}")
        for i in range(4):
            a(f"s_add_u32 m0, s{S['rls']}, {i*1024}\ns_add_u32 s{JT}, s{S['rlo']}, {i*8*1280}")
            st.emit(("vm0", f"buffer_load_dwordx4 v{RLD}, s[{SR}:{SR+3}], s{JT} offen{' nt' if Cfg.rnt else ''} lds", "rl"))
        a("s_mov_b64 exec, -1")

    def job_init_load():
        return [("atomic", I(f"v_mov_b32 v{T+44}, 32\ns_cmp_eq_u32 s{S['rg']}, 3\ns_cselect_b32 exec_lo, 1, 0\ns_mov_b32 exec_hi, 0") +
                 [("vm0", f"global_load_dword v{T+44}, v{Z}, s[22:23] sc1", "il")] + I("s_mov_b64 exec, -1"))]

    def job_init_check():
        def chk():
            a(f"global_load_dword v{T+44}, v{Z}, s[22:23] sc1\ns_waitcnt vmcnt(0)\nv_readfirstlane_b32 s{JT}, v{T+44}\ns_cmp_ge_u32 s{JT}, 32")
        return [("wvm", ["il"]), ("atomic", I(f"v_readfirstlane_b32 s{JT}, v{T+44}\ns_cmp_ge_u32 s{JT}, 32") + [("call", lambda: poll_slow(chk, 0x101, sleep=32))])]

    def kloop(ld, qkv):
        st = Stream(a)
        NT, stride = (8, 3840) if qkv else (7, 3456)
        PITCH = NT * 256
        n, t0 = ((5, 0) if ld else (10, 3)) if qkv else ((6, 4) if ld else (8, 0))
        tr = ld or not qkv
        hv = RegAlloc(JX + 10, BB + 100)
        HDA, HDB, HRCS = hv.alloc("da"), hv.alloc("db", 7), hv.alloc("rcs", 2)
        HRLY = HDA
        X = T + 36
        SQ, SM, ONE, CSA, CF = T + 16, T + 24, T + 32, JX, T
        a(f"s_mov_b32 s{S['tp1']}, {t0}")

        def dma(s_):
            if Cfg.x_nodma:
                return []
            slot = (s_ % 3) * SLOT
            NTM = " nt" if (Cfg.wnt == 1 and s_ == 0) else ""
            A, B = [], []
            for m in range(4):
                A.append(I(f"s_add_u32 m0, s{S['ofA']}, {slot + m*4096}\ns_add_u32 s{S['so']}, s{S['soA']}, {m*32*1280}") +
                         [("vm", f"buffer_load_dwordx4 v{HDA}, s[{SX}:{SX+3}], s{S['so']} offen lds", ("S", s_))])
            for i in range(NT):
                if qkv:
                    B.append(I(f"s_add_u32 m0, s{S['ofB']}, {slot + i*4096}\ns_add_u32 s{S['so']}, s{S['soB']}, {i*8*3840}") +
                             [("vm", f"buffer_load_dwordx4 v{HDB + (i & 1)}, s[{SW}:{SW+3}], s{S['so']} offen{NTM} lds", ("S", s_))])
                else:
                    B.append(I(f"s_add_u32 m0, s{S['ofB']}, {slot + i*1024}") +
                             [("vm", f"buffer_load_dwordx4 v{HDB+i}, s[{SW}:{SW+3}], s{S['soB']} offen{NTM} lds", ("S", s_))])
            res = []
            while A or B:
                if B: res.append(B.pop(0))
                if A: res.append(A.pop(0))
                if B: res.append(B.pop(0))
            if s_ > 0:
                res[0] = I(f"""
                s_add_u32 s{S['soA']}, s{S['soA']}, 128
                s_add_u32 s{S['soB']}, s{S['soB']}, {64*stride}
                s_cmp_eq_u32 s{S['soA']}, 1280
                s_cselect_b32 s{S['soA']}, 0, s{S['soA']}
                s_cselect_b32 s{S['soB']}, 0, s{S['soB']}
                """) + res[0]
            return [("atomic", p) for p in res]

        def setup():
            a(f"""
            v_and_b32 v{X}, 15, v{l}
            s_lshl_b32 s{S['t']}, s{S['rg']}, 5
            v_add_u32 v{X}, s{S['t']}, v{X}
            v_bfe_u32 v{X+1}, v{X}, 1, 3
            v_lshrrev_b32 v{X+2}, 4, v{l}
            v_xor_b32 v{X+1}, v{X+1}, v{X+2}
            v_lshlrev_b32 v{X+1}, 4, v{X+1}
            v_lshl_add_u32 v{RA0}, v{X}, 7, v{X+1}
            v_mul_u32_u24 v{X}, {2*PITCH}, v{X+2}
            v_and_b32 v{X+2}, 1, v{X+2}
            v_lshl_add_u32 v{X}, v{X+2}, 5, v{X}
            v_bfe_u32 v{X+1}, v{l}, 2, 2
            v_lshl_add_u32 v{X}, v{X+1}, 6, v{X}
            v_and_b32 v{X+1}, 3, v{l}
            v_lshl_add_u32 v{X}, v{X+1}, 3, v{X}
            v_add_u32 v{RB0}, {16384 + t0*256}, v{X}
            s_min_u32 s{S['t']}, s{S['w']}, {NT-1}
            s_lshl_b32 s{S['t']}, s{S['t']}, 8
            s_add_u32 s{S['t']}, s{S['t']}, 16384
            v_add_u32 v{HRCS}, s{S['t']}, v{X}
            v_xor_b32 v{HRCS+1}, 32, v{HRCS}
            """)
            for k in range(4):
                a(f"v_mov_b32 v{ONE+k}, 0x3f803f80")
            p2_params()
            bias_setup(qkv, n, st, X)
            if qkv:
                kv_addr_setup(X)
                if ld:
                    scatter_setup(X)

        if ld:
            a(f"""
            v_lshrrev_b32 v{T}, 3, v{l}
            s_lshl_b32 s{S['t']}, s{S['rg']}, 3
            s_lshl_b32 s{S['t1']}, s{S['rb']}, 7
            s_add_u32 s{S['t']}, s{S['t']}, s{S['t1']}
            v_add_u32 v{T}, s{S['t']}, v{T}
            v_mul_u32_u24 v{HDA}, 1280, v{T}
            v_lshrrev_b32 v{T}, 1, v{T}
            v_xor_b32 v{T}, v{T}, v{l}
            v_and_b32 v{T}, 7, v{T}
            v_lshl_add_u32 v{HDA}, v{T}, 4, v{HDA}
            s_lshl_b32 s{S['ofA']}, s{S['rg']}, 10
            v_bfe_u32 v{T}, v{l}, 2, 2
            v_lshrrev_b32 v{T+1}, 4, v{l}
            v_and_b32 v{T+5}, 3, v{l}
            s_lshl_b32 s{S['t']}, s{S['j']}, 1
            s_add_u32 s{S['t']}, s{S['t']}, s{S['typ']}
            s_add_u32 s{S['t']}, s{S['t']}, s{S['rb']}
            s_mul_i32 s{S['t1']}, s{S['t']}, 26
            s_lshr_b32 s{S['t1']}, s{S['t1']}, 8
            s_mul_i32 s{S['t1']}, s{S['t1']}, 10
            s_sub_u32 s{S['t']}, s{S['t']}, s{S['t1']}
            s_lshl_b32 s{S['soA']}, s{S['t']}, 7
            s_mul_i32 s{S['soB']}, s{S['t']}, {64*stride}
            """)
            if qkv:
                a(f"""
                s_add_u32 s{S['ofB']}, s{S['ofA']}, 16384
                s_lshr_b32 s{S['t']}, s{S['rg']}, 1
                s_lshl_b32 s{S['t']}, s{S['t']}, 2
                v_add_u32 v{T}, s{S['t']}, v{T}
                v_mul_u32_u24 v{T}, 3840, v{T}
                s_and_b32 s{S['t']}, s{S['rg']}, 1
                s_lshl_b32 s{S['t']}, s{S['t']}, 4
                v_lshl_add_u32 v{T+5}, v{T+1}, 2, v{T+5}
                v_add_u32 v{T+8}, s{S['t']}, v{T+5}
                s_lshl_b32 s{S['t']}, s{S['col0']}, 1
                """)
                for par in range(2):
                    a(f"""
                    v_xor_b32 v{T+5}, {2*par}, v{T+8}
                    v_mov_b32 v{T+6}, 0
                    v_mov_b32 v{T+7}, {OOB}
                    v_cmp_le_u32 vcc, 10, v{T+5}
                    v_cndmask_b32 v{T+6}, v{T+6}, v{T+7}, vcc
                    v_mov_b32 v{T+7}, {1280 - 192}
                    v_cmp_le_u32 vcc, 12, v{T+5}
                    v_cndmask_b32 v{T+6}, v{T+6}, v{T+7}, vcc
                    v_mov_b32 v{T+7}, {2560 - 352}
                    v_cmp_le_u32 vcc, 22, v{T+5}
                    v_cndmask_b32 v{T+6}, v{T+6}, v{T+7}, vcc
                    v_lshl_add_u32 v{T+5}, v{T+5}, 4, v{T+6}
                    v_add3_u32 v{HDB+par}, v{T}, v{T+5}, s{S['t']}
                    """)
            else:
                a(f"""
                s_mul_i32 s{S['ofB']}, s{S['rg']}, 7168
                s_add_u32 s{S['ofB']}, s{S['ofB']}, 16384
                s_lshl_b32 s{S['t']}, s{S['rg']}, 4
                v_add_u32 v{T}, s{S['t']}, v{T}
                v_mul_u32_u24 v{T}, 3456, v{T}
                v_mov_b32 v{T+8}, v{T+5}
                s_lshl_b32 s{S['t']}, s{S['col0']}, 1
                v_add_u32 v{T}, s{S['t']}, v{T}
                s_mov_b32 s{S['t']}, {4*3456 - 448}
                """)
                for i in range(7):
                    a(f"""
                    v_add_u32 v{T+5}, {4*i}, v{T+1}
                    v_mul_u32_u24 v{T+6}, 37, v{T+5}
                    v_lshrrev_b32 v{T+6}, 8, v{T+6}
                    v_and_b32 v{T+7}, 2, v{T+6}
                    v_xor_b32 v{T+7}, v{T+7}, v{T+8}
                    v_mad_u32_u24 v{T+6}, v{T+6}, s{S['t']}, v{T}
                    v_lshl_add_u32 v{T+6}, v{T+7}, 4, v{T+6}
                    v_lshl_add_u32 v{HDB+i}, v{T+5}, 6, v{T+6}
                    """)
            after_kernarg()
            srd(SW, 6 if qkv else 12, 640 * stride)
            d0 = dma(0)
            emit_all(st, d0[:5])
            setup()
            emit_all(st, d0[5:])
            stamp(1)
            a("s_barrier")
            emit_all(st, dma(1))
            stamp(2)
        else:
            after_kernarg()
            zero_init()
            code_prefetch()
            relay_issue(st, X, RELAY)
            for ct in range(4):
                a(f"""
                s_lshl_b32 s{S['t']}, s{S['t1']}, 2
                s_add_u32 s{S['t']}, s{S['t']}, {ct}
                s_mul_i32 s{JT}, s{S['t']}, 52
                s_lshr_b32 s{JT}, s{JT}, 8
                s_mul_i32 s{JT}, s{JT}, {B2_C - 5*1024}
                s_lshl_b32 s{S['t']}, s{S['t']}, 10
                s_add_u32 s{S['t']}, s{S['t']}, s{JT}
                s_mul_i32 s{JT}, s{S['t2']}, 5120
                s_add_u32 s{S['t']}, s{S['t']}, s{JT}
                s_add_u32 s{S['t']}, s{S['t']}, {B2_OFF}
                s_cmp_lt_u32 s{S['t3']}, 740
                s_cselect_b32 s{S['uo']+ct}, s{S['t']}, {OOB}
                """)
            a(f"""
            v_lshrrev_b32 v{X}, 2, v{l}
            v_lshlrev_b32 v{X}, 7, v{X}
            v_and_b32 v{X+1}, 3, v{l}
            v_lshl_add_u32 v{X}, v{X+1}, 3, v{X}
            v_add_u32 v{HRLY}, s{S['rls']}, v{X}
            """)
            setup()

        def job_colsum():
            it = []
            for h in range(2):
                for kk in range(2):
                    for i in range(2):
                        r = CF + 8 * h + 4 * kk + 2 * i
                        it.append(("ds", f"ds_read_b64_tr_b16 v[{r}:{r+1}], v{HRCS+h} offset:{(8*kk+i)*PITCH}", ("cs", h, kk)))
            for h in range(2):
                for kk in range(2):
                    it.append(("wds", [("cs", h, kk)]))
                    d, r = CSA + 4 * h, CF + 8 * h + 4 * kk
                    c = "0" if kk == 0 else f"v[{d}:{d+3}]"
                    it += I(f"v_mfma_f32_16x16x32_bf16 v[{d}:{d+3}], v[{ONE}:{ONE+3}], v[{r}:{r+3}], {c}")
            return it

        def job_publish():
            it = I(f"""
            s_lshl_b32 s{JT}, s{S['w']}, 5
            v_add_u32 v{X}, s{JT}, v{l}
            s_mov_b32 s{S['m2']}, 0xffff0000
            s_mov_b32 s{S['m2']+1}, 0
            v_cndmask_b32 v{CSA}, v{CSA}, v{CSA+4}, s[{S['m2']}:{S['m2']+1}]
            s_mov_b32 s{S['m2']}, -1
            """)
            if qkv:
                it += I(f"s_cmp_eq_u32 s{S['w']}, 2\ns_cselect_b32 s{S['m2']}, 0xffff, s{S['m2']}") + vcol(X, X + 1)
                it += I(f"s_lshl_b32 s{JT}, s{S['col0']}, 2\ns_add_u32 s{JT}, s{JT}, {CS_OFF}")
            else:
                it += I(f"""
                s_lshl_b32 s{JT}, s{S['col0']}, 2
                s_add_u32 s{JT}, s{JT}, {CS_OFF + 1920*4}
                s_lshl_b32 s{JT1}, s{S['j']}, 3
                s_add_u32 s{JT1}, s{JT1}, s{S['w']}
                s_sub_u32 s{JT1}, s{JT1}, 56
                s_cmp_lt_u32 s{JT1}, 2
                s_cselect_b32 s{JT}, {OOB}, s{JT}
                s_cmp_eq_u32 s{S['w']}, 7
                s_cselect_b32 s{JT}, {OOB}, s{JT}
                """)
            it += I(f"""
            s_cmp_ge_u32 s{S['rb']}, 10
            s_cselect_b32 s{JT}, {OOB}, s{JT}
            v_lshlrev_b32 v{X}, 2, v{X}
            v_mov_b32 v{X+1}, {OOB}
            v_cndmask_b32 v{X}, v{X+1}, v{X}, s[{S['m2']}:{S['m2']+1}]
            """)
            it.append(("vm", f"buffer_atomic_add_f32 v{CSA}, v{X}, s[{SWS}:{SWS+3}], s{JT} offen", "stat"))
            if not ld:
                it += row_publish(SQ, SM, X)
            return it

        def job_relay_store():
            it = [("wvm", ["rl"])]
            for ct in range(4):
                it.append(("ds", f"ds_read_b64_tr_b16 v[{T+4*ct}:{T+4*ct+1}], v{HRLY} offset:{ct*32}", ("rl", ct)))
                it.append(("ds", f"ds_read_b64_tr_b16 v[{T+4*ct+2}:{T+4*ct+3}], v{HRLY} offset:{ct*32 + 2048}", ("rl", ct)))
            for ct in range(4):
                it.append(("wds", [("rl", ct)]))
                it.append(("vm", f"buffer_store_dwordx4 v[{T+4*ct}:{T+4*ct+3}], v{L16}, s[{SWS}:{SWS+3}], s{S['uo']+ct} offen sc1", "rs"))
            return it

        e_sig, e_ld, e_ck = early_flag_jobs(JX + 8)
        pi = Cfg.hpoll
        J = [(0, 0, 0, job_colsum()), (1, 0, 1, job_publish())]
        if not ld:
            if Cfg.ini_pro:
                emit_all(st, job_init_load())
            else:
                J.append((0, 0, 0, job_init_load()))
            J.append((0, 3, 0, job_init_check()))
            J.append((Cfg.rs_it, 2 if Cfg.rs_it == 0 else 1, Cfg.rs_it, job_relay_store()))
            J.append((Cfg.hsig - 1, 3, Cfg.hsig - 1, [("wvm", None)]))
            J.append((Cfg.hsig, 0, Cfg.hsig, e_sig))
            J.append((pi - Cfg.plead, 0 if Cfg.plead == 0 else 2, pi, e_ld))
            J.append((pi, 3, pi, e_ck))
            J.append((pi + 1, 0, pi + 1, job_load_stats(qkv, T + 38)))
            J.append((8, 3 if pi == 7 else 0, 8, job_publish_stats(qkv, T + 38)))
            if Cfg.touch:
                J.append((Cfg.touch_it, 1, 10, job_touch(JX + 8)))
        J.append((9, 0, 10, job_build_ext(n, (lambda u: BIAS + u) if not qkv else (lambda u: BIAS if u < 5 else Z))))
        J.sort(key=lambda x: (x[0], x[1]))
        pend = []

        def drain(n=None, deadline=None):
            k = 0
            while pend and (n is None or k < n):
                if deadline is not None and not any(p[0] <= deadline for p in pend):
                    break
                emit_item(st, pend.pop(0)[1])
                k += 1

        def addrs(s_):
            sl = (s_ % 3) * SLOT
            return I(f"""
            v_add_u32 v{RA}, {sl}, v{RA0}
            v_add_u32 v{RB}, {sl}, v{RB0}
            v_xor_b32 v{RA+1}, 64, v{RA}
            v_xor_b32 v{RB+1}, 32, v{RB}
            """)

        def rdA(s_, kk):
            return [("ds", f"ds_read_b128 v[{FA+8*kk+4*rt}:{FA+8*kk+4*rt+3}], v{RA+kk} offset:{rt*2048}", ("A", s_, kk)) for rt in range(2)]

        def rdB(g):
            s_, kk, u = g // (2 * n), (g // n) & 1, g % n
            f = FB + 4 * (g % NRING)
            return [("ds", f"ds_read_b64_tr_b16 v[{f+2*i}:{f+2*i+1}], v{RB+(u&1)} offset:{(8*kk+i)*PITCH + (u>>1)*256}", ("B", g)) for i in range(2)]

        emit_all(st, addrs(0))
        if ld:
            st.wait("vm", [("S", 0)])
            if Cfg.hprio:
                a("s_setprio 1")
        a("s_barrier")
        stamp(3)
        LA = NRING - 1
        emit_all(st, rdA(0, 0))
        nxt = 0
        while nxt < LA:
            emit_all(st, rdB(nxt))
            nxt += 1
        if not ld and Cfg.rl_pos == 1:
            relay_dma(st)
        dq = dma(2) if ld else []
        BP = Cfg.bleft
        gaps_left = 2 * n - BP
        for g in range(20 * n):
            s_, kk, u = g // (2 * n), (g // n) & 1, g % n
            pos = g - s_ * 2 * n
            quarter = (4 * pos) // (2 * n)
            while J and (J[0][0], J[0][1]) <= (s_, quarter):
                jb = J.pop(0)
                pend.extend([jb[2], x] for x in group_scc(jb[3]))
            if pos == 2 * n - BP:
                assert nxt == (s_ + 1) * 2 * n
                drain(deadline=s_)
                assert not dq
                st.wait2(None, [("S", s_ + 1)] + (["stat"] if s_ == Cfg.hsig - 1 else []) if ld else [])
                a("s_barrier")
                crossed = True
                if s_ < 9:
                    emit_all(st, rdA(s_ + 1, 0))
                    while nxt < g + LA:
                        emit_all(st, rdB(nxt))
                        nxt += 1
                if ld:
                    dq = dma(s_ + 3) if s_ + 3 <= 9 else []
                    gaps_left = 2 * n
                    if Cfg.hprio and s_ == 7:
                        a("s_setprio 0")
            W = Cfg.wgrp
            st.wait("ds", [("A", s_, kk)] + [("B", g + k) for k in range(W if (g % W == 0) else 1)])
            f = FB + 4 * (g % NRING)
            lim = (s_ + 1) * 2 * n if pos < 2 * n - BP else min(20 * n, (s_ + 2) * 2 * n)
            rds = []
            if nxt < min(lim, g + LA + (0 if Cfg.ilv else 1)):
                rds = rdB(nxt)
                nxt += 1
                if nxt == (s_ + 1) * 2 * n and s_ < 9:
                    rds = rds + addrs(s_ + 1)
            if kk == 0 and u == 0:
                rds = rdA(s_, 1) + rds
            for rt in range(2):
                fa, d = FA + 8 * kk + 4 * rt, acc(u, rt)
                c = "0" if g < n else f"v[{d}:{d+3}]"
                x, y = (f, fa) if tr else (fa, f)
                a(f"v_mfma_f32_16x16x32_bf16 v[{d}:{d+3}], v[{x}:{x+3}], v[{y}:{y+3}], {c}")
                if rt == 0 and Cfg.ilv and rds:
                    emit_item(st, rds.pop(0))
            if s_ == 0 and not ld and u < 4:
                rt, h = u >> 1, u & 1
                fa = FA + 8 * kk + 4 * rt + 2 * h
                c1 = "0" if (kk == 0 and h == 0) else f"v[{SQ+4*rt}:{SQ+4*rt+3}]"
                c2 = "0" if (kk == 0 and h == 0) else f"v[{SM+4*rt}:{SM+4*rt+3}]"
                a(f"v_mfma_f32_4x4x4_16b_bf16 v[{SQ+4*rt}:{SQ+4*rt+3}], v[{fa}:{fa+1}], v[{fa}:{fa+1}], {c1}")
                a(f"v_mfma_f32_4x4x4_16b_bf16 v[{SM+4*rt}:{SM+4*rt+3}], v[{ONE}:{ONE+1}], v[{fa}:{fa+1}], {c2}")
            emit_all(st, rds)
            if dq:
                k = -(-len(dq) // max(1, gaps_left - 1))
                for _ in range(min(k, len(dq))):
                    emit_item(st, dq.pop(0))
            gaps_left -= 1
            drain(Cfg.hfill)
            if pos == 2 * n - 1:
                stamp(4 + s_)
        drain()
        ext_mfma(n, tr)
        st.wait2(None, ["tc", "bias"])
        return st

    def kv_addr_setup(X):
        a(f"""
        v_mov_b32 v{X+8}, {CDUM}
        v_and_b32 v{X}, 15, v{l}
        v_lshrrev_b32 v{X+1}, 4, v{l}
        v_lshlrev_b32 v{X+1}, 2, v{X+1}
        v_cmp_eq_u32 s[{S['ex']}:{S['ex']+1}], 0, v{X}
        s_movk_i32 s{S['t3']}, 84
        """)
        for p in range(3):
            a(f"""
            s_lshl_b32 s{S['t']}, s{S['w']}, 1
            s_add_u32 s{S['t']}, s{S['t']}, {p - 10}
            s_cmp_lt_u32 s{S['w']}, 5
            s_cselect_b32 s{S['t1']}, s{S['w']}, s{S['t']}
            s_add_u32 s{S['t2']}, s{S['w']}, {p - 1}
            s_lshl_b32 s{S['t']}, s{S['t1']}, 4
            v_add_u32 v{X+2}, s{S['t']}, v{X+1}
            s_lshl_b32 s{S['t']}, s{S['t2']}, 4
            v_add_u32 v{X+3}, s{S['t']}, v{X}
            v_mul_u32_u24 v{X+4}, 3277, v{X+2}
            v_lshrrev_b32 v{X+4}, 16, v{X+4}
            v_mul_u32_u24 v{X+5}, 3277, v{X+3}
            v_lshrrev_b32 v{X+5}, 16, v{X+5}
            v_mul_u32_u24 v{X+6}, 20, v{X+5}
            v_sub_u32 v{X+6}, v{X+3}, v{X+6}
            v_cmp_eq_u32 vcc, v{X+4}, v{X+5}
            s_mov_b64 s[{S['m1']}:{S['m1']+1}], vcc
            v_cmp_gt_u32 vcc, 80, v{X+3}
            s_and_b64 s[{S['m1']}:{S['m1']+1}], s[{S['m1']}:{S['m1']+1}], vcc
            s_cmp_lt_u32 s{S['w']}, 5
            s_cselect_b64 s[{S['m1']}:{S['m1']+1}], s[{S['m1']}:{S['m1']+1}], {"0" if p == 2 else f"s[{S['ex']}:{S['ex']+1}]"}
            s_cselect_b64 s[{S['m2']}:{S['m2']+1}], 0, -1
            v_cndmask_b32 v{X+6}, v{X+6}, 20, s[{S['m2']}:{S['m2']+1}]
            v_cmp_gt_u32 vcc, 80, v{X+2}
            s_and_b64 vcc, vcc, s[{S['m1']}:{S['m1']+1}]
            v_lshlrev_b32 v{X+6}, 2, v{X+6}
            v_mad_u32_u24 v{X+6}, v{X+2}, s{S['t3']}, v{X+6}
            v_add_u32 v{X+6}, {CMP}, v{X+6}
            v_cndmask_b32 v{CMPA+p}, v{X+8}, v{X+6}, vcc
            """)

    def scatter_setup(X):
        for i in range(7):
            a(f"""
            v_add_u32 v{X}, {256*i - 256}, v0
            v_mul_u32_u24 v{X+1}, 3121, v{X}
            v_lshrrev_b32 v{X+1}, 16, v{X+1}
            v_mul_u32_u24 v{X+2}, 21, v{X+1}
            v_sub_u32 v{X+2}, v{X}, v{X+2}
            v_mul_u32_u24 v{X+3}, 3277, v{X+1}
            v_lshrrev_b32 v{X+3}, 16, v{X+3}
            v_mad_u32_u24 v{X+4}, v{X+3}, 20, v{X+2}
            v_lshrrev_b32 v{X+5}, 4, v{X+4}
            v_and_b32 v{X+4}, 15, v{X+4}
            v_cmp_le_u32 vcc, 3, v{X+5}
            v_cndmask_b32 v{X+6}, 1, 2, vcc
            v_lshlrev_b32 v{X+5}, 1, v{X+5}
            v_sub_u32 v{X+5}, v{X+5}, v{X+6}
            v_max_i32 v{X+5}, 0, v{X+5}
            v_cmp_eq_u32 vcc, 20, v{X+2}
            v_cndmask_b32 v{X+5}, v{X+5}, 9, vcc
            v_cndmask_b32 v{X+4}, v{X+4}, v{X+3}, vcc
            v_lshrrev_b32 v{X+6}, 5, v{X+1}
            v_add_u32 v{X+5}, v{X+5}, v{X+6}
            v_mul_u32_u24 v{X+6}, 52, v{X+5}
            v_lshrrev_b32 v{X+6}, 8, v{X+6}
            v_mad_u32_u24 v{X+5}, v{X+6}, 15, v{X+5}
            v_lshlrev_b32 v{X+5}, 10, v{X+5}
            v_bfe_u32 v{X+6}, v{X+1}, 2, 2
            v_lshl_add_u32 v{X+4}, v{X+6}, 4, v{X+4}
            v_lshl_add_u32 v{X+5}, v{X+4}, 4, v{X+5}
            v_bfe_u32 v{X+6}, v{X+1}, 4, 1
            v_and_b32 v{X+4}, 3, v{X+1}
            v_lshl_add_u32 v{X+4}, v{X+6}, 2, v{X+4}
            v_lshl_add_u32 v{X+5}, v{X+4}, 1, v{X+5}
            v_add_u32 v{X+5}, {FRG}, v{X+5}
            v_mov_b32 v{X+6}, {GAP}
            v_cmp_gt_u32 vcc, 1680, v{X}
            v_cndmask_b32 v{QSCA+i}, v{X+6}, v{X+5}, vcc
            """)

    NH = 7 + Cfg.nx
    O0 = NH
    NMIN = 6 - Cfg.nx

    def present(i):
        if i < NMIN or i in (O0, O0 + 1):
            return None
        if i < 7:
            return f"s_cmp_gt_u32 s{S['nH']}, {i}"
        if i < NH:
            return f"s_cmp_lt_u32 s{S['w']}, 4"
        return f"s_cmp_gt_u32 s{S['nO']}, 2"

    def step_off(i, dst, base, mul):
        if 7 <= i < NH:
            it = f"s_add_u32 s{dst}, s{S['sX']}, {i - 7}\n"
        else:
            n, r, s0, k = (S["nH"], S["rH"], S["sH"], i) if i < 7 else (S["nO"], S["rO"], S["sO"], i - O0)
            it = f"""
            s_add_u32 s{dst}, s{r}, {k}
            s_cmp_ge_u32 s{dst}, s{n}
            s_cselect_b32 s{S['pc']}, s{n}, 0
            s_sub_u32 s{dst}, s{dst}, s{S['pc']}
            s_add_u32 s{dst}, s{dst}, s{s0}
            """
        it += f"s_mul_i32 s{dst}, s{dst}, {mul}\ns_add_u32 s{dst}, s{dst}, s{base}\n"
        if present(i):
            it += f"{present(i)}\ns_cselect_b32 s{dst}, s{dst}, {OOB}"
        return I(it)

    def b_load(i, reg):
        pcs = []
        for ct in range(5):
            pre = step_off(i, JT, S["p2B"], 5120) if ct == 0 else (I(f"s_add_u32 s{JT}, s{JT}, 4096") if ct == 4 else [])
            pcs.append(pre + [("vm", f"buffer_load_dwordx4 v[{reg+4*ct}:{reg+4*ct+3}], v{L16}, s[{SWS}:{SWS+3}], s{JT} offen offset:{(ct&3)*1024} sc1", ("B", i))])
        return pcs

    def b_prefetch_regs(first=0):
        pcs = []
        for i in range(first, 5):
            pcs += b_load(i, BB + 20 * i)
        return pcs

    def b_prefetch_lds():
        pcs = []
        for i in (O0, O0 + 1, O0 + 2):
            for ct in range(5):
                pre = step_off(i, JT, S["p2B"], 5120) + I(f"s_mul_i32 s{JT1}, s{S['w']}, {PW}") if ct == 0 else I(f"s_add_u32 s{JT}, s{JT}, 1024")
                pcs.append(pre + I(f"s_add_u32 m0, s{JT1}, {(i-O0)*5120 + ct*1024}") +
                           [("vm", f"buffer_load_dwordx4 v{L16}, s[{SWS}:{SWS+3}], s{JT} offen sc1 lds", ("B", i))])
        return pcs

    P2S = S["so"]

    def areg(i):
        return T + 16 * (i % 3) if i < NH else BB + 20 * ((NH - 5 + i - O0) % 5)

    def breg(i):
        return BB + 20 * (i % 5) if i < NH else BB + 20 * ((NH - 2 + ((i - O0) & 1)) % 5)

    def a_load(i):
        f = areg(i)
        it = [("atomic", step_off(i, P2S, S["p2A"], 4096))]
        if Cfg.p2prio == 1:
            it += I(f"s_setprio {(3, 2, 1, 2, 2, 1, 1, 0, 0, 0)[i]}")
        if Cfg.p2prio == 2 and i < 3:
            it += I(f"s_setprio {3 - i}")
        for tt in range(4):
            it.append(("vm", f"buffer_load_dwordx4 v[{f+4*tt}:{f+4*tt+3}], v{L16}, s[{SWS}:{SWS+3}], s{P2S} offen offset:{tt*1024}{' sc1' if Cfg.p2sc else ''}", ("A", i)))
        return it

    def a2_addr(dst):
        a(f"""
        s_lshl_b32 s{S['t']}, s{S['rb']}, 1
        s_lshr_b32 s{S['t1']}, s{S['rg']}, 1
        s_add_u32 s{S['t']}, s{S['t']}, s{S['t1']}
        s_mul_i32 s{S['t']}, s{S['t']}, {A2_RB}
        s_and_b32 s{S['t1']}, s{S['rg']}, 1
        s_lshl_b32 s{S['t1']}, s{S['t1']}, 11
        s_add_u32 s{S['t']}, s{S['t']}, s{S['t1']}
        v_add_u32 v{dst}, s{S['t']}, v{L16}
        """)

    def signal(flag, idx_reg):
        a(f"""
        s_add_u32 s{S['t']}, s{idx_reg}, {flag}
        s_lshl_b32 s{S['t']}, s{S['t']}, 7
        v_mov_b32 v{T+46}, s{S['t']}
        v_mov_b32 v{T+47}, 1
        s_cmp_eq_u32 s{S['w']}, 0
        s_cselect_b32 exec_lo, 1, 0
        s_mov_b32 exec_hi, 0
        global_atomic_add v{T+46}, v{T+47}, s[{S['fl']}:{S['fl']+1}]
        s_mov_b64 exec, -1
        """)

    def lds_add(off):
        a(f"v_mov_b32 v{RS}, {SYN}\nv_mov_b32 v{IRS}, 1\ns_mov_b64 exec, 1\nds_add_u32 v{RS}, v{IRS} offset:{off}\ns_mov_b64 exec, -1")

    def lds_wait(off, target, err, tmp):
        def chk():
            a(f"ds_read_b32 v{tmp+1}, v{tmp} offset:{off}\ns_waitcnt lgkmcnt(0)\nv_readfirstlane_b32 s{S['t']}, v{tmp+1}\ns_cmp_ge_u32 s{S['t']}, {target}")
        a(f"v_mov_b32 v{tmp}, {SYN}")
        chk()
        poll_slow(chk, err, sleep=1)

    def own_flag(flag, target, err, two, blocking=True, fail=None):
        def chk():
            a(f"""
            global_load_dword v{IRS}, v{RS}, s[{S['fl']}:{S['fl']+1}] sc1
            s_waitcnt vmcnt(0)
            v_cmp_gt_u32 vcc, {target}, v{IRS}
            s_cmp_eq_u64 vcc, 0
            """)
        a(f"""
        s_lshr_b32 s{S['t']}, s{S['r2']}, 1
        s_lshl_b32 s{S['t']}, s{S['t']}, 3
        s_add_u32 s{S['t']}, s{S['t']}, s{S['w']}
        s_add_u32 s{S['t']}, s{S['t']}, {flag}
        {f"v_or_b32 v{RS}, s{S['t']}, v{l}" if two else f"v_lshlrev_b32 v{RS}, 2, v{l}"}
        {"" if two else f"v_or_b32 v{RS}, s{S['w']}, v{RS}"}
        {"" if two else f"s_sub_u32 s{S['t']}, s{S['t']}, s{S['w']}"}
        {"" if two else f"v_add_u32 v{RS}, s{S['t']}, v{RS}"}
        v_lshlrev_b32 v{RS}, 7, v{RS}
        s_mov_b64 exec, 3
        """)
        chk()
        if blocking:
            poll_slow(chk, err, sleep=Cfg.psleep)
            a("s_mov_b64 exec, -1")
        else:
            a(f"s_mov_b64 exec, -1\ns_cbranch_scc0 {fail}")

    def wait_flag(st, flag, target, err, line_expr, who=0, then=None):
        skip = a.newlabel("WF")

        def chk():
            a(f"""
            global_load_dword v{IRS}, v{RS}, s[{S['fl']}:{S['fl']+1}] sc1
            s_waitcnt vmcnt(0)
            v_readfirstlane_b32 s{S['t']}, v{IRS}
            s_cmp_ge_u32 s{S['t']}, {target}
            """)
        a(f"""
        s_cmp_lg_u32 s{S['w']}, {who}
        s_cbranch_scc1 {skip}
        {line_expr}
        s_add_u32 s{S['t']}, s{S['t']}, {flag}
        s_lshl_b32 s{S['t']}, s{S['t']}, 7
        v_mov_b32 v{RS}, s{S['t']}
        s_mov_b64 exec, 1
        """)
        chk()
        poll_slow(chk, err, sleep=4)
        a("s_mov_b64 exec, -1")
        if then is not None:
            lds_add(then)
        a.label(skip)

    def emit_pcs(st, pcs):
        for p in pcs:
            emit_all(st, p)

    def h_epilogue(nt, st):
        C = T
        AD = T + 18
        a2_addr(AD)
        for rt, (rs, irs) in enumerate(((RS, IRS), (RS1, IRS1))):
            c = C + 6 * rt
            a(f"""
            v_mul_f32 v{c}, {hx(GC1)}, v{rs}
            v_mul_f32 v{c+2}, v{rs}, v{rs}
            v_mul_f32 v{c+2}, v{c+2}, v{rs}
            v_mul_f32 v{c+2}, {hx(GC2)}, v{c+2}
            v_mov_b32 v{c+4}, v{irs}
            """)
        a(f"s_lshl_b32 s{S['t']}, s{S['col0']}, 7\ns_lshl_b32 s{S['t1']}, s{S['tp1']}, 12\ns_add_u32 s{S['t']}, s{S['t']}, s{S['t1']}")
        pf = b_prefetch_regs()
        W0 = T + 20
        if Cfg.eprio:
            a(f"s_setprio {Cfg.eprio if nt == 3 else 1}")
        for t in range(nt):
            for rt in range(2):
                c = C + 6 * rt
                o = T + 32 + 4 * ((2 * t + rt) % 3)
                ps = [acc(2 * t + (k >> 1), rt) + 2 * (k & 1) for k in range(4)]
                ws = [W0 + 2 * k for k in range(4)]
                seq = []
                seq.append([f"v_pk_mul_f32 v[{w}:{w+1}], v[{p}:{p+1}], v[{p}:{p+1}]" for p, w in zip(ps, ws)])
                seq.append([f"v_pk_fma_f32 v[{w}:{w+1}], v[{w}:{w+1}], v[{c+2}:{c+3}], v[{c}:{c+1}] op_sel_hi:[1,0,0]" for w in ws])
                seq.append([f"v_pk_mul_f32 v[{w}:{w+1}], v[{w}:{w+1}], v[{p}:{p+1}]" for p, w in zip(ps, ws)])
                seq.append([f"v_exp_f32 v{w+k}, v{w+k}" for w in ws for k in range(2)])
                seq.append([f"v_pk_fma_f32 v[{w}:{w+1}], v[{w}:{w+1}], v[{c+4}:{c+5}], v[{c+4}:{c+5}] op_sel_hi:[1,0,0]" for w in ws])
                seq.append([f"v_rcp_f32 v{w+k}, v{w+k}" for w in ws for k in range(2)])
                seq.append([f"v_pk_mul_f32 v[{w}:{w+1}], v[{w}:{w+1}], v[{p}:{p+1}]" for p, w in zip(ps, ws)])
                seq.append([f"v_cvt_pk_bf16_f32 v{o+k}, v{w}, v{w+1}" for k, w in enumerate(ws)])
                for gi, grp in enumerate(seq):
                    for x in grp:
                        a(x)
                    if gi in (1, 3, 5, 2, 4)[:Cfg.pf_h] and pf:
                        emit_all(st, pf.pop(0))
                st.emit(("vm", f"buffer_store_dwordx4 v[{o}:{o+3}], v{AD}, s[{SWS}:{SWS+3}], s{S['t']} offen offset:{rt*1024} sc1", "hst"))
            a(f"s_add_u32 s{S['t']}, s{S['t']}, 4096")
        stamp(14)
        pf = pf + (b_prefetch_lds() if Cfg.lds_pre else [])
        if nt == 3 and Cfg.pf_mid:
            a("s_setprio 0")
            emit_pcs(st, pf[:Cfg.pf_mid])
            pf = pf[Cfg.pf_mid:]
        st.wait("vm", ["hst"])
        stamp(15)
        a("s_setprio 0\ns_barrier")
        a(f"s_lshl_b32 s{S['t1']}, s{S['rb']}, 3\ns_add_u32 s{S['t1']}, s{S['t1']}, s{S['j']}")
        signal(F_H, S["t1"])
        emit_pcs(st, pf)

    def products_and_atomics(q, st):
        D = ACC + 40 if q else ACC
        PA, X = T, T + 40
        PB = [ACC + 52 + 4 * (k % 7) if q else ACC + 16 + 4 * k for k in range(12)]
        a(f"""
        s_lshl_b32 s{S['t']}, s{S['w']}, 1
        s_sub_u32 s{S['t']}, s{S['t']}, 10
        s_cmp_lt_u32 s{S['w']}, 5
        s_cselect_b32 s{S['t']}, s{S['w']}, s{S['t']}
        s_lshl_b32 s{S['t']}, s{S['t']}, 10
        v_add_u32 v{X}, s{S['t']}, v{L16}
        s_max_u32 s{S['t1']}, s{S['w']}, 1
        s_add_u32 s{S['t1']}, s{S['t1']}, 4
        s_lshl_b32 s{S['t1']}, s{S['t1']}, 10
        v_add_u32 v{X+1}, s{S['t1']}, v{L16}
        s_min_u32 s{S['t1']}, s{S['w']}, 3
        s_add_u32 s{S['t1']}, s{S['t1']}, 6
        s_lshl_b32 s{S['t1']}, s{S['t1']}, 10
        v_add_u32 v{X+3}, s{S['t1']}, v{L16}
        v_add_u32 v{X+2}, {5*1024}, v{X}
        s_waitcnt lgkmcnt(0)
        s_barrier
        """)
        st.q["ds"].clear()
        stamp(14)
        lz, ld_ = a.newlabel("PZ"), a.newlabel("PD")

        def band():
            s2 = Stream(a)
            for rg in range(4):
                s2.emit(("ds", f"ds_read_b128 v[{PA+4*rg}:{PA+4*rg+3}], v{X} offset:{rg*10240}", ("a", rg)))
            order = [(p, rg) for rg in range(4) for p in range(3)]
            ah = 7 if q else 11

            def rb(k):
                p, rg = order[k]
                s2.emit(("ds", f"ds_read_b128 v[{PB[k]}:{PB[k]+3}], v{X+1+p} offset:{rg*10240}", ("b", k)))
            for k in range(ah):
                rb(k)
            for k, (p, rg) in enumerate(order):
                s2.wait("ds", [("a", rg), ("b", k)])
                d = D + 4 * p
                c = "0" if rg == 0 else f"v[{d}:{d+3}]"
                a(f"v_mfma_f32_16x16x32_bf16 v[{d}:{d+3}], v[{PA+4*rg}:{PA+4*rg+3}], v[{PB[k]}:{PB[k]+3}], {c}")
                if k + ah < 12:
                    rb(k + ah)

        def zsum():
            s2 = Stream(a)
            for k in range(8):
                s2.emit(("ds", f"ds_read_b128 v[{PA+4*k}:{PA+4*k+3}], v{X} offset:{(k>>1)*10240 + (k&1)*1024}", k))
            for k in range(4):
                a(f"v_mov_b32 v{PB[0]+k}, 0x3f803f80")
            for k in range(8):
                s2.wait("ds", [k])
                d = D + 4 * (k & 1)
                c = "0" if k < 2 else f"v[{d}:{d+3}]"
                a(f"v_mfma_f32_16x16x32_bf16 v[{d}:{d+3}], v[{PA+4*k}:{PA+4*k+3}], v[{PB[0]}:{PB[0]+3}], {c}")
        if q:
            a(f"s_cmp_ge_u32 s{S['w']}, 5\ns_cbranch_scc1 {lz}")
            band()
            a(f"s_branch {ld_}\n{lz}:")
            zsum()
            a.label(ld_)
        else:
            band()
        a(f"""
        s_lshl_b32 s{S['t']}, s{S['j']}, 13
        s_add_u32 s96, s24, s{S['t']}
        s_addc_u32 s97, s25, 0
        s_add_u32 s96, s96, {KV_OFF}
        s_addc_u32 s97, s97, 0
        v_lshlrev_b32 v{X}, 2, v0
        v_add_u32 v{X+1}, 4096, v{X}
        v_add_u32 v{X+2}, {CMP}, v{X}
        v_cmp_gt_u32 vcc, 144, v0
        """)
        for r in range(12):
            a(f"ds_write_b32 v{CMPA + (r >> 2)}, v{D+r} offset:{(r & 3)*84}")
        a("s_waitcnt lgkmcnt(0)\ns_barrier")
        stamp(25)
        for i in range(4):
            a(f"ds_read_b32 v{T+32+i}, v{X+2} offset:{i*2048}")
        for i in range(4):
            a(f"s_waitcnt lgkmcnt({3-i})")
            if i == 3:
                a("s_mov_b64 exec, vcc")
            st.emit(("vm0" if i == 3 else "vm", f"global_atomic_add_f32 v{X+(i>>1)}, v{T+32+i}, s[96:97] offset:{(i&1)*2048}", "kva"))
        a("s_mov_b64 exec, -1")

    st = kloop(True, True)
    a(f"""
    v_mov_b32 v{T+8}, 0
    v_mov_b32 v{T+9}, 0
    v_mov_b32 v{T+10}, 0
    v_mov_b32 v{T+11}, 0
    v_lshlrev_b32 v{T+7}, 4, v0
    v_add_u32 v{T+6}, {FRG - 4096}, v{T+7}
    ds_write_b128 v{T+6}, v[{T+8}:{T+11}]
    ds_write_b128 v{T+6}, v[{T+8}:{T+11}] offset:1024
    ds_write_b128 v{T+6}, v[{T+8}:{T+11}] offset:{PW}
    ds_write_b128 v{T+6}, v[{T+8}:{T+11}] offset:{PW + 1024}
    ds_write_b128 v{T+6}, v[{T+8}:{T+11}] offset:{2*PW}
    """)
    pfq = b_prefetch_regs() + (b_prefetch_lds() if Cfg.lds_pre else [])
    emit_pcs(st, pfq[:Cfg.pf_q1])
    pfq = pfq[Cfg.pf_q1:]
    if Cfg.cprio:
        a("s_setprio 3")
    products_and_atomics(True, st)
    PQ = ACC + 40
    KC = T + 8
    for rt, (rs, irs) in enumerate(((RS, IRS), (RS1, IRS1))):
        c = KC + 4 * rt
        a(f"v_mul_f32 v{c}, {hx(LOG2E)}, v{rs}\nv_mul_f32 v{c+1}, {hx(EPS6)}, v{irs}\nv_mov_b32 v{c+2}, v{rs}")
    blocks = [(0, 0), (0, 1), (1, 0), (1, 1), (2, None)]
    for bi, (ks, rt_) in enumerate(blocks):
        if ks < 2:
            prs = [(acc(2 * ks + (k >> 1), rt_) + 2 * (k & 1), rt_, PQ + 12 * rt_ + 4 * ks + k) for k in range(4)]
        else:
            prs = [(acc(4, k >> 1) + 2 * (k & 1), k >> 1, PQ + 12 * (k >> 1) + 8 + (k & 1)) for k in range(4)]
        for k, (p, rt, o) in enumerate(prs):
            a(f"v_pk_mul_f32 v[{T+2*k}:{T+2*k+1}], v[{p}:{p+1}], v[{KC+4*rt}:{KC+4*rt+1}] op_sel_hi:[1,0]")
        for k in range(8):
            a(f"v_exp_f32 v{T+k}, v{T+k} clamp")
        for k, (p, rt, o) in enumerate(prs):
            a(f"v_max_f32 v{p}, v{p}, v{KC+4*rt+1}\nv_max_f32 v{p+1}, v{p+1}, v{KC+4*rt+1}")
        for k, (p, rt, o) in enumerate(prs):
            a(f"v_pk_fma_f32 v[{T+2*k}:{T+2*k+1}], v[{p}:{p+1}], v[{KC+4*rt+2}:{KC+4*rt+3}], v[{T+2*k}:{T+2*k+1}] op_sel_hi:[1,0,1]")
        for k, (p, rt, o) in enumerate(prs):
            a(f"v_cvt_pk_bf16_f32 v{o}, v{T+2*k}, v{T+2*k+1}")
        if bi == Cfg.phi_n - 1:
            st.wait("vm", ["kva"])
            stamp(26)
            a("s_barrier")
            stamp(15)
    for rt in range(2):
        a(f"v_mov_b32 v{PQ+12*rt+10}, 0\nv_mov_b32 v{PQ+12*rt+11}, 0")
    AD = T + 44
    a2_addr(AD)
    a(f"""
    v_add_u32 v{T+46}, {FRG}, v{L16}
    v_lshlrev_b32 v{T+8}, 2, v0
    v_subrev_u32 v{T+8}, 1024, v{T+8}
    v_add_u32 v{T+9}, 4096, v{T+8}
    """)
    if Cfg.pf_q2:
        a("s_setprio 0")
        emit_pcs(st, pfq[:Cfg.pf_q2])
        pfq = pfq[Cfg.pf_q2:]
        if Cfg.cprio:
            a("s_setprio 3")
    wait_flag(st, F_KV, 16, 0x102, f"s_mov_b32 s{S['t']}, s{S['j']}", who=4, then=0)
    lds_wait(0, 1, 0x109, RS)
    stamp(16)
    for i in range(7):
        st.emit(("vm", f"global_load_dword v{T+i}, v{T+8+(i>>2)}, s[96:97] offset:{(i&3)*1024} sc1", ("g", i)))
    for i in range(7):
        a(f"v_cmp_le_u32 vcc, {frg(9)}, v{QSCA+i}")
        st.wait("vm", [("g", i)])
        a(f"""
        v_cvt_pk_bf16_f32 v{T+i}, v{T+i}, v{T+i}
        ds_write_b16 v{QSCA+i}, v{T+i}
        s_mov_b64 exec, vcc
        ds_write_b16 v{QSCA+i}, v{T+i} offset:64
        ds_write_b16 v{QSCA+i}, v{T+i} offset:128
        ds_write_b16 v{QSCA+i}, v{T+i} offset:192
        s_mov_b64 exec, -1
        """)
    a("s_waitcnt lgkmcnt(0)")
    lds_add(4)
    lds_wait(4, 4, 0x10a, RS)
    stamp(17)
    DEN = ACC + 64
    prods = [(9 + ks, ks, None) for ks in range(3)] + [(fi, ks, et) for fi, (et, ks) in enumerate(((0, 0), (1, 0), (1, 1), (2, 0), (2, 1), (3, 1), (3, 2), (4, 1), (4, 2)))]
    FRS = [T + 4 * i for i in range(11)]

    def frd(i):
        r = FRS[i % 11]
        st.emit(("ds", f"ds_read_b128 v[{r}:{r+3}], v{T+46} offset:{frg(prods[i][0])-FRG}", ("f", i)))
    for i in range(11):
        frd(i)
    seen = set()
    for i, (fi, ks, et) in enumerate(prods):
        st.wait("ds", [("f", i)])
        r = FRS[i % 11]
        for rt in range(2):
            D = DEN + 4 * rt if et is None else acc(et, rt)
            c = f"v[{D}:{D+3}]" if D in seen else "0"
            seen.add(D)
            a(f"v_mfma_f32_16x16x32_bf16 v[{D}:{D+3}], v[{r}:{r+3}], v[{PQ+12*rt+4*ks}:{PQ+12*rt+4*ks+3}], {c}")
        if i == 0:
            frd(11)
        if i == 6:
            for h in range(8):
                a(f"v_add_f32 v{DEN+h}, {hx(1e-6)}, v{DEN+h}")
            for h in range(8):
                a(f"v_rcp_f32 v{DEN+h}, v{DEN+h}")
    a(f"""
    s_mov_b32 s{S['m1']}, 0xffff0000
    s_mov_b32 s{S['m1']+1}, -1
    s_mov_b32 s{S['m2']}, 0
    s_mov_b32 s{S['m2']+1}, -1
    s_mov_b32 s{S['ex']}, 0
    s_mov_b32 s{S['ex']+1}, 0xffff0000
    """)
    for rt in range(2):
        for k, m in enumerate(("m1", "m2", "ex")):
            a(f"v_cndmask_b32 v{DEN+8+3*rt+k}, v{DEN+4*rt+k}, v{DEN+4*rt+k+1}, s[{S[m]}:{S[m]+1}]")
    OO = ACC + 40
    for rt in range(2):
        for et in range(5):
            dr = (DEN + 4 * rt, DEN + 8 + 3 * rt, DEN + 9 + 3 * rt, DEN + 10 + 3 * rt, DEN + 4 * rt + 3)[et]
            p = acc(et, rt)
            for k in range(4):
                a(f"v_mul_f32 v{p+k}, v{p+k}, v{dr}")
            for k in range(2):
                a(f"v_cvt_pk_bf16_f32 v{OO+10*rt+2*et+k}, v{p+2*k}, v{p+2*k+1}")
    a(f"""
    s_mul_i32 s{S['t']}, s{S['j']}, 5
    s_lshr_b32 s{S['t']}, s{S['t']}, 1
    s_add_u32 s{S['t']}, s{S['t']}, 54
    s_lshl_b32 s{S['t']}, s{S['t']}, 12
    s_add_u32 s{S['t1']}, s{S['t']}, 4096
    s_add_u32 s{S['t2']}, s{S['t']}, 8192
    s_bitcmp1_b32 s{S['j']}, 0
    s_cbranch_scc1 O_ODD
    """)
    for odd in range(2):
        if odd:
            a("s_branch O_DONE\nO_ODD:")
        for rt in range(2):
            o = OO + 10 * rt
            lst = ((o, 4, "t", 0), (o + 4, 4, "t1", 0), (o + 8, 2, "t2", 0)) if not odd else ((o, 2, "t", 8), (o + 2, 4, "t1", 0), (o + 6, 4, "t2", 0))
            for r, nd, so, off in lst:
                a(f"buffer_store_dwordx{nd} v[{r}:{r+nd-1}], v{AD}, s[{SWS}:{SWS+3}], s{S[so]} offen offset:{rt*1024 + off} sc1")
    a("O_DONE:")
    stamp(18)
    a(f"""
    s_lshl_b32 s{S['t']}, s{S['rb']}, 3
    s_add_u32 s{S['t']}, s{S['t']}, s{S['j']}
    s_add_u32 s{S['t']}, s{S['t']}, {F_O}
    s_lshl_b32 s{S['t']}, s{S['t']}, 7
    v_mov_b32 v{T+46}, s{S['t']}
    v_mov_b32 v{T+47}, 1
    """)
    own_flag(F_H, 1, 0x10b, False)
    a(f"""
    s_mov_b64 exec, 1
    global_atomic_add v{T+46}, v{T+47}, s[{S['fl']}:{S['fl']+1}]
    s_mov_b64 exec, -1
    """)
    emit_pcs(st, pfq)
    for i in range(3):
        emit_all(st, a_load(i))
    a(f"s_setprio {Cfg.qprio}\ns_branch PHASE2C")

    a.label("ROLE_KV")
    st = kloop(False, True)
    if Cfg.cprio:
        a("s_setprio 3")
    RT, RL2, E = BB, BB + 8, BB + 16
    X = BB + 24
    a(f"""
    v_lshrrev_b32 v{X}, 4, v{l}
    v_lshlrev_b32 v{X}, 4, v{X}
    s_lshl_b32 s{S['t']}, s{S['rg']}, 7
    s_add_u32 s{S['t']}, s{S['t']}, {ST_RS}
    v_add_u32 v{X}, s{S['t']}, v{X}
    ds_read_b128 v[{RT}:{RT+3}], v{X}
    ds_read_b128 v[{RT+4}:{RT+7}], v{X} offset:64
    s_mul_i32 s{S['t']}, s{S['rg']}, 10240
    v_add_u32 v{X+1}, s{S['t']}, v{L16}
    v_mov_b32 v{X+2}, {hx(LOG2E)}
    v_mov_b32 v{X+3}, {hx(EPS6)}
    s_waitcnt lgkmcnt(0)
    """)
    for k in range(4):
        a(f"v_pk_mul_f32 v[{RL2+2*k}:{RL2+2*k+1}], v[{RT+2*k}:{RT+2*k+1}], v[{X+2}:{X+3}] op_sel_hi:[1,0]")
    pfk = b_prefetch_regs()
    for u in range(10):
        base = acc(u, 0)
        if u < 5:
            for k in range(4):
                a(f"v_pk_mul_f32 v[{E+2*k}:{E+2*k+1}], v[{base+2*k}:{base+2*k+1}], v[{RL2+2*k}:{RL2+2*k+1}]")
        for k in range(4):
            a(f"v_pk_mul_f32 v[{base+2*k}:{base+2*k+1}], v[{base+2*k}:{base+2*k+1}], v[{RT+2*k}:{RT+2*k+1}]")
        if u < 5:
            for k in range(8):
                a(f"v_exp_f32 v{E+k}, v{E+k} clamp")
            for k in range(8):
                a(f"v_max_f32 v{base+k}, v{X+3}, v{base+k}")
            for k in range(4):
                a(f"v_pk_add_f32 v[{base+2*k}:{base+2*k+1}], v[{base+2*k}:{base+2*k+1}], v[{E+2*k}:{E+2*k+1}]")
        for k in range(4):
            a(f"v_cvt_pk_bf16_f32 v{base+k}, v{base+2*k}, v{base+2*k+1}")
        a(f"ds_write_b128 v{X+1}, v[{base}:{base+3}] offset:{u*1024}")
    products_and_atomics(False, st)
    st.wait("vm", ["kva"])
    stamp(26)
    a("s_barrier")
    stamp(15)
    signal(F_KV, S["j"])
    a("s_setprio 0")
    emit_pcs(st, pfk + (b_prefetch_lds() if Cfg.lds_pre else []))
    stamp(16)
    a("s_branch PHASE2")

    a.label("ROLE_H0")
    st = kloop(False, False)
    h_epilogue(4, st)
    a("s_branch PHASE2")
    a.label("ROLE_H1")
    st = kloop(True, False)
    h_epilogue(3, st)

    a.label("PHASE2")
    stamp(19)
    st = Stream(a)
    own_flag(F_H, 1, 0x105, False)
    stamp(20)

    OA, RAD, WA, CB = SMALL, SMALL + 3, SMALL + 6, SMALL + 14
    XAT = max(k for k in range(NH) if k % 3 == 1)
    XR = [T + 16 + 2 * k for k in range(3)]
    BR = [T + 22 + 2 * k for k in range(3)]

    def epi_setup():
        X = RS
        it = I(f"""
        s_mov_b32 s{SR}, s20
        s_mov_b32 s{SR+1}, s21
        s_mov_b32 s{SR+2}, {2048*1280}
        s_mov_b32 s{SR+3}, 0x20000
        s_mov_b32 s{SAUX}, s18
        s_mov_b32 s{SAUX+1}, s19
        s_mov_b32 s{SAUX+2}, 1280
        s_mov_b32 s{SAUX+3}, 0x20000
        s_mul_i32 s{JT}, s{S['r2']}, {64*1280}
        s_mul_i32 s{JT1}, s{S['c2']}, 160
        s_add_u32 s{JT}, s{JT}, s{JT1}
        """)
        Y = SMALL + 7
        for i in range(3):
            it += I(f"""
            v_add_u32 v{Y}, {512*i}, v0
            v_mul_u32_u24 v{Y+1}, 3277, v{Y}
            v_lshrrev_b32 v{Y+1}, 16, v{Y+1}
            v_mul_u32_u24 v{Y+2}, 20, v{Y+1}
            v_sub_u32 v{Y+2}, v{Y}, v{Y+2}
            v_mul_u32_u24 v{Y+3}, 1280, v{Y+1}
            v_lshl_add_u32 v{Y+3}, v{Y+2}, 3, v{Y+3}
            v_add_u32 v{Y+3}, s{JT}, v{Y+3}
            v_cmp_gt_u32 vcc, 1280, v{Y}
            v_mov_b32 v{Y+4}, {OOB}
            v_cndmask_b32 v{OA+i}, v{Y+4}, v{Y+3}, vcc
            v_bfe_u32 v{Y+4}, v{Y+1}, 1, 2
            v_xor_b32 v{Y+4}, v{Y+4}, v{Y+2}
            v_mul_u32_u24 v{Y+5}, 320, v{Y+1}
            v_lshl_add_u32 v{Y+5}, v{Y+4}, 4, v{Y+5}
            v_cndmask_b32 v{RAD+i}, 0, v{Y+5}, vcc
            v_lshlrev_b32 v{CB+i}, 3, v{Y+2}
            """)
        it += I(f"""
        v_and_b32 v{Y}, 15, v{l}
        v_mul_u32_u24 v{Y}, 320, v{Y}
        v_lshrrev_b32 v{Y+1}, 4, v{l}
        v_bfe_u32 v{Y+2}, v{l}, 1, 2
        v_xor_b32 v{Y+1}, v{Y+1}, v{Y+2}
        v_lshl_add_u32 v{Y}, v{Y+1}, 4, v{Y}
        s_mul_i32 s{JT}, s{S['w']}, {PW}
        v_add_u32 v{WA}, s{JT}, v{Y}
        v_add_u32 v{Y+6}, s{JT}, v{L16}
        """)
        return it

    def epi_loads():
        it = I(f"s_mul_i32 s{JT1}, s{S['c2']}, 160")
        for i in range(3):
            it.append(("vm", f"buffer_load_dwordx2 v[{XR[i]}:{XR[i]+1}], v{OA+i}, s[{SX}:{SX+3}], 0 offen", "x"))
            it.append(("vm", f"buffer_load_dwordx2 v[{BR[i]}:{BR[i]+1}], v{CB+i}, s[{SAUX}:{SAUX+3}], s{JT1} offen", "x"))
        return it

    LB = SMALL + 13

    def p2_step(i, fill):
        st.wait("vm", [("A", i), ("B", i)])
        st.wait("ds", [("B", i)])
        f, b = areg(i), breg(i)
        opt = present(i) is not None
        if opt:
            emit_all(st, fill)
            fill = []
            lab = a.newlabel("OPT")
            a(f"{present(i)}\ns_cbranch_scc0 {lab}")
        k = 0
        for tt in range(4):
            for ct in range(5):
                acc = ACC + 4 * (tt * 5 + ct)
                c = "0" if i == 0 else f"v[{acc}:{acc+3}]"
                if not Cfg.x_p2n or (tt == 0 and ct == 0):
                    a(f"v_mfma_f32_16x16x32_bf16 v[{acc}:{acc+3}], v[{b+4*ct}:{b+4*ct+3}], v[{f+4*tt}:{f+4*tt+3}], {c}")
                k += 1
                n = -(-len(fill) // max(1, Cfg.p2span + 1 - k)) if fill else 0
                for _ in range(min(n, len(fill))):
                    emit_item(st, fill.pop(0))
        if opt:
            a.label(lab)

    def lds_b(i):
        r = breg(i)
        return [("wvm", [("B", i)])] + [("ds", f"ds_read_b128 v[{r+4*ct}:{r+4*ct+3}], v{LB} offset:{(i-O0)*5120 + ct*1024}", ("B", i)) for ct in range(5)]

    def o_loads(s2):
        for k in (O0, O0 + 1, O0 + 2):
            emit_all(s2, a_load(k))

    def o_peek():
        a(f"""
        s_lshr_b32 s{S['t']}, s{S['r2']}, 1
        s_lshl_b32 s{S['t']}, s{S['t']}, 3
        s_add_u32 s{S['t']}, s{S['t']}, s{S['w']}
        s_add_u32 s{S['t']}, s{S['t']}, {F_O}
        v_or_b32 v{RS}, s{S['t']}, v{l}
        v_lshlrev_b32 v{RS}, 7, v{RS}
        s_mov_b64 exec, 3
        """)
        st.emit(("vm", f"global_load_dword v{IRS}, v{RS}, s[{S['fl']}:{S['fl']+1}] sc1", "of"))
        a("s_mov_b64 exec, -1")

    def o_try():
        l1 = a.newlabel("OT")
        st.wait("vm", ["of"])
        a(f"""
        s_mov_b32 s{S['hs']}, 0
        v_cmp_gt_u32 vcc, 4, v{IRS}
        s_and_b32 s{S['t']}, vcc_lo, 3
        s_cbranch_scc1 {l1}
        s_mov_b32 s{S['hs']}, 1
        """)
        o_loads(Stream(a))
        a.label(l1)

    def o_wait():
        done = a.newlabel("OW")
        if Cfg.o_try >= 0:
            a(f"s_cmp_eq_u32 s{S['hs']}, 1\ns_cbranch_scc1 {done}")
        own_flag(F_O, 4, 0x106, True)
        o_loads(st)
        a.label(done)
        stamp(21)

    def after_step(i):
        it = []
        if i + 3 < NH:
            it += a_load(i + 3)
        if i + 5 < NH:
            for p in b_load(i + 5, breg(i)):
                it.append(("atomic", p))
        if i in (0, 1, 2) and not Cfg.lds_pre:
            it += [("atomic", p) for p in b_prefetch_lds()[5 * i:5 * i + 5]]
        if i == NH - 4 and Cfg.o_try >= 0:
            it.append(("call", o_peek))
        if i == NH - 2 and Cfg.o_try >= 0:
            it.append(("call", o_try))
        if i == NH - 1:
            it.append(("call", o_wait))
        if i == XAT:
            it += epi_loads()
        if i in (NH - 2, NH - 1, NH):
            it = lds_b(i + 2) + it
        return it

    for i in range(3):
        emit_all(st, a_load(i))
    a("s_setprio 0")
    a.label("PHASE2C")
    carry = group_scc(epi_setup())
    for i in range(NH + 3):
        if i == NH:
            emit_all(st, carry)
            carry = []
        p2_step(i, carry)
        if i == Cfg.qtill:
            a("s_setprio 0")
        stamp(27 + i)
        carry = after_step(i)
    st.wait2(None, None)
    a.label("P2_RED")
    stamp(22)
    for tt in range(4):
        for ct in range(5):
            acc = ACC + 4 * (tt * 5 + ct)
            a(f"ds_write_b128 v{WA}, v[{acc}:{acc+3}] offset:{tt*5120 + ct*64}")
    a("s_waitcnt lgkmcnt(0)\ns_barrier")
    stamp(23)
    FIN = [ACC, ACC + 32, BB]
    for i in range(2):
        a(f"v_add_u32 v{T+8}, {4*PW}, v{RAD+i}")
        for w in range(8):
            src, off = (RAD + i, w * PW) if w < 4 else (T + 8, (w - 4) * PW)
            st.emit(("ds", f"ds_read_b128 v[{FIN[i]+4*w}:{FIN[i]+4*w+3}], v{src} offset:{off}", ("r", i, w)))
            if i > 0 and w == 6:
                st.wait("ds", [("r", i - 1, 7)])
    for i in range(3):
        if i == 2:
            a(f"s_cmp_ge_u32 s{S['w']}, 4\ns_cbranch_scc1 FIN")
        f = FIN[i]
        if i == 0:
            lab = a.newlabel("R2")
            a(f"s_cmp_ge_u32 s{S['w']}, 4\ns_cbranch_scc1 {lab}\ns_waitcnt lgkmcnt(7)\nv_add_u32 v{T+9}, {4*PW}, v{RAD+2}")
            for w in range(8):
                src, off = (RAD + 2, w * PW) if w < 4 else (T + 9, (w - 4) * PW)
                a(f"ds_read_b128 v[{FIN[2]+4*w}:{FIN[2]+4*w+3}], v{src} offset:{off}")
            a.label(lab)
        if i == 2:
            a("s_waitcnt lgkmcnt(0)")
        x, b = XR[i], BR[i]
        a(f"""
        v_lshlrev_b32 v{T}, 16, v{x}
        v_and_b32 v{T+1}, 0xffff0000, v{x}
        v_lshlrev_b32 v{T+2}, 16, v{x+1}
        v_and_b32 v{T+3}, 0xffff0000, v{x+1}
        v_lshlrev_b32 v{T+4}, 16, v{b}
        v_and_b32 v{T+5}, 0xffff0000, v{b}
        v_lshlrev_b32 v{T+6}, 16, v{b+1}
        v_and_b32 v{T+7}, 0xffff0000, v{b+1}
        v_pk_add_f32 v[{T}:{T+1}], v[{T}:{T+1}], v[{T+4}:{T+5}]
        v_pk_add_f32 v[{T+2}:{T+3}], v[{T+2}:{T+3}], v[{T+6}:{T+7}]
        """)
        for w in range(8):
            st.wait("ds", [("r", i, w)])
            a(f"""
            v_pk_add_f32 v[{T}:{T+1}], v[{T}:{T+1}], v[{f+4*w}:{f+4*w+1}]
            v_pk_add_f32 v[{T+2}:{T+3}], v[{T+2}:{T+3}], v[{f+4*w+2}:{f+4*w+3}]
            """)
        a(f"""
        v_cvt_pk_bf16_f32 v{T+10+2*i}, v{T}, v{T+1}
        v_cvt_pk_bf16_f32 v{T+11+2*i}, v{T+2}, v{T+3}
        buffer_store_dwordx2 v[{T+10+2*i}:{T+11+2*i}], v{OA+i}, s[{SR}:{SR+3}], 0 offen
        """)
    a.label("FIN")
    stamp(24)
    if Cfg.stamps == 5:
        a(f"""
        s_cmp_lg_u32 s2, {Cfg.probe_wg}
        s_cbranch_scc1 END
        s_cmp_lg_u32 s{S['w']}, {Cfg.probe_w}
        s_cbranch_scc1 END
        v_readlane_b32 s{S['t']}, v{ITS}, {Cfg.probe}
        v_readlane_b32 s{S['t1']}, v{ITS}, {0 if Cfg.probe_cyc else 62}
        s_sub_u32 s{S['t']}, s{S['t']}, s{S['t1']}
        s_{'lshr' if Cfg.probe_cyc else 'lshl'}_b32 s{S['t']}, s{S['t']}, {3 if Cfg.probe_cyc else 2}
        s_min_u32 s{S['t']}, s{S['t']}, 100000
        v_mov_b32 v{T}, s{S['t']}
        global_store_dword v{Z}, v{T}, s[22:23] offset:4
        s_memrealtime s[{S['t0']}:{S['t0']+1}]
        s_waitcnt lgkmcnt(0)
        s_mov_b32 s{S['t1']}, s{S['t0']}
        SPIN:
        s_memrealtime s[{S['t0']}:{S['t0']+1}]
        s_waitcnt lgkmcnt(0)
        s_sub_u32 s{S['t2']}, s{S['t0']}, s{S['t1']}
        s_cmp_lt_u32 s{S['t2']}, s{S['t']}
        s_cbranch_scc1 SPIN
        """)
    elif Cfg.stamps and Cfg.stamps != 4:
        a(f"""
        s_memrealtime s[{S['t0']}:{S['t0']+1}]
        s_waitcnt lgkmcnt(0)
        v_writelane_b32 v{ITS}, s{S['t0']}, 63
        s_lshl_b32 s{S['t']}, s2, 3
        s_add_u32 s{S['t']}, s{S['t']}, s{S['w']}
        s_lshl_b32 s{S['t']}, s{S['t']}, 8
        s_add_u32 s{S['t']}, s{S['t']}, {STAMP_OFF}
        v_lshlrev_b32 v{T+20}, 2, v{l}
        v_add_u32 v{T+20}, s{S['t']}, v{T+20}
        global_store_dword v{T+20}, v{ITS}, s[24:25]
        """)
    a.label("END")
    a("s_endpgm")
    for f in ool:
        f()
    a.label("CODE_END")
    a("s_endpgm")
    return a.L


def sizes(L):
    import subprocess, re
    src = '.amdgcn_target "amdgcn-amd-amdhsa--gfx950"\n.text\n' + "\n".join(L) + "\n"
    r = subprocess.run(["llvm-mc", "-triple=amdgcn-amd-amdhsa", "-mcpu=gfx950", "-show-encoding"], input=src, capture_output=True, text=True)
    enc = re.findall(r"encoding: \[(.*?)\]", r.stdout)
    out, k = [], 0
    for x in L:
        if x.endswith(":") or x.startswith("."):
            out.append(0)
        else:
            out.append(len(enc[k].split(",")))
            k += 1
    assert k == len(enc)
    return out


def align_pass(L):
    import re
    sz = sizes(L)
    out, addr, last4 = [], 0, None
    nw = npad = 0
    for x, n_ in zip(L, sz):
        if n_ == 8 and addr % 8 == 4:
            if last4 is not None:
                op, rest = out[last4].split(None, 1)
                out[last4] = f"{op}_e64 {rest}"
                addr += 4
                nw += 1
            elif Cfg.align == 2:
                out.append("s_nop 0")
                addr += 4
                npad += 1
        if n_ == 4:
            wid = re.match(r"v_(mov|add|sub|subrev|mul|max|min|and|or|xor|lshlrev|lshrrev|exp|rcp|rsq|sqrt)_(b32|u32|f32|u32_u24)\b", x) and "_e64" not in x
            last4 = len(out) if (wid and addr % 8 == 0) else (last4 if addr % 8 == 4 and False else None)
        elif n_ == 8:
            last4 = None
        out.append(x)
        addr += n_
    print("align: widened", nw, "padded", npad, file=sys.stderr)
    return out


def build():
    head = open("cdna_kernels/%s.s.ref" % NAME).read().split("; Override launch")[0]
    out = head + "; @launch grid=(256,1,1) block=(512,1,1) lds=163840\n"
    out += '.amdgcn_target "amdgcn-amd-amdhsa--gfx950"\n.text\n'
    L, n = fix_hazards(gen())
    if Cfg.align:
        L = align_pass(L)
    out += f".globl {KN}\n.p2align 8\n.type {KN},@function\n"
    out += "\n".join(x if x.endswith(":") else "    " + x for x in L) + "\n"
    print("instrs", len(L), "nops inserted", n, file=sys.stderr)
    out += f""".section .rodata,"a"
.p2align 6
.amdhsa_kernel {KN}
  .amdhsa_next_free_vgpr 256
  .amdhsa_next_free_sgpr 102
  .amdhsa_accum_offset 256
  .amdhsa_group_segment_fixed_size 0
  .amdhsa_kernarg_size 88
  .amdhsa_user_sgpr_count 2
  .amdhsa_user_sgpr_kernarg_segment_ptr 1
  .amdhsa_system_sgpr_workgroup_id_x 1
  .amdhsa_float_denorm_mode_32 3
.end_amdhsa_kernel
"""
    return out


if __name__ == "__main__":
    for arg in sys.argv[2:]:
        k, v = arg.split("=")
        assert hasattr(Cfg, k), k
        setattr(Cfg, k, int(v))
    open(sys.argv[1], "w").write(build())
```

```python
import sys, struct
from asmlib import Asm, fix_hazards, RegAlloc

NAME = "parallel_sum__linear_attn_block__mixer_channel_mlp__prompt"
KN = NAME + "_kernel"

A2_OFF = 0
A2_RB = 74 * 4096
B2_OFF = 32 * A2_RB
B2_C = 74 * 5120
KV_OFF = B2_OFF + 8 * B2_C
CS_OFF = KV_OFF + 8 * 8192
FLAG_OFF = CS_OFF + 16384
RS_OFF = FLAG_OFF + 37888
WS_SIZE = RS_OFF + 16384
F_KV, F_H, F_O, F_EARLY = 0, 8, 136, 264
ZERO_BYTES = 65536 + 16384 + 37888 + 16384
STAMP_OFF = WS_SIZE + 65536
OOB = 0x7f000000

SLOT = 49152
MISC = 3 * SLOT
RELAY = MISC
ST_M, ST_RS, ST_IRS, CSP = MISC + 12288, MISC + 12800, MISC + 13312, MISC + 14336
SYN = MISC + 15360
PW = 20480
GAP = 15360
KVX = 0
CMP = 40960
CDUM = CMP + 6720
ONES = CMP + 7232
FRG = 4 * PW + GAP


def frg(fi):
    return FRG + fi * 1024 + (fi // 5) * GAP


LOG2E = 1.4426950408889634
GC1 = -2.0 * 0.7978845608028654 * LOG2E
GC2 = GC1 * 0.044715
EPS6 = 9.98377799987793e-07


def hx(x):
    return "0x%08x" % struct.unpack("<I", struct.pack("<f", x))[0]


class Cfg:
    stamps = 0
    cnt = 0
    esleep = 24
    isleep = 32
    probe = 24
    probe_wg = 200
    probe_w = 0
    probe_cyc = 0
    prefetch_code = 1
    x_nodma = 0
    bpos = 1
    map1 = 2
    map2 = 0
    wnt = 0
    rnt = 1
    p2prio = 2
    prio = 0
    prio2 = 1
    cprio = 1
    nfirst = 4
    poll_it = 7
    touch = 1
    fine = 0
    fill = 2
    pf_h = 0
    pf_q1 = 25
    pf_k1 = 10
    pf_k0 = 0
    phi_n = 3
    pf_l = 1
    hbar = 6
    hbar_chunk = 5
    gelu_pk0 = 0
    kv_pk = 1
    h_early = 1
    rot2 = 1
    o_at = 6
    o_try = 5
    o_peek = 3
    yprio = 0
    ytill = 9
    psleep = 6
    zdup = 1
    x_p2n = 0
    lds_pre = 1
    rl_pos = 0
    epi_at = 4
    p2span = 20
    p2sc = 1
    qprio = 0
    hpass = 1
    rs_it = 0
    hpoll = 7
    hsig = 3
    ini_pro = 1
    q16 = 0
    pf_mid = 25
    pf_q2 = 0
    nx = 0
    qtill = 99
    shards = 32
    plead = 1
    bsig = 3
    bpoll = 6
    touch_it = 8
    hfill = 3
    hprio = 1
    early_lds = 0
    dfirst = 1
    qb3 = 2
    qb4 = 5
    sig_it = 4
    eprio = 2


def typ_of(ids):
    return {0: (ids >> 5) & 1, 1: (ids >> 3) & 1, 2: ids >> 7}[Cfg.map1]


class Stream:
    def __init__(self, a):
        self.a = a
        self.q = {"ds": [], "vm": []}

    def emit(self, it):
        k = it[0]
        if k == "i":
            self.a(it[1])
        elif k in ("ds", "vm"):
            self.a(it[1])
            self.q[k].append(it[2])
        elif k == "vm0":
            self.a(it[1])
            self.q["vm"].append(("*", it[2]))
        elif k in ("wds", "wvm"):
            self.wait(k[1:], it[1])
        else:
            raise ValueError(it)

    def count(self, k, tags):
        q = self.q[k]
        def star(t):
            return isinstance(t, tuple) and t[0] == "*"
        idx = max([i for i, t in enumerate(q) if tags is None or t in tags or (star(t) and t[1] in tags)], default=-1)
        if idx < 0:
            return None
        left = sum(1 for t in q[idx + 1:] if not star(t))
        del q[:idx + 1]
        return min(left, 15 if k == "ds" else 63)

    def wait(self, k, tags):
        n = self.count(k, tags)
        if n is not None:
            self.a(f"s_waitcnt {'lgkmcnt' if k == 'ds' else 'vmcnt'}({n})")

    def wait2(self, dtags, vtags):
        nd, nv = self.count("ds", dtags), self.count("vm", vtags) if vtags != [] else None
        p = []
        if nv is not None:
            p.append(f"vmcnt({nv})")
        if nd is not None:
            p.append(f"lgkmcnt({nd})")
        if p:
            self.a("s_waitcnt " + " ".join(p))


def I(text):
    return [("i", x.strip()) for x in text.strip().split("\n") if x.strip()]


def group_scc(items):
    out, i = [], 0
    while i < len(items):
        it = items[i]
        if it[0] == "i" and it[1].startswith("s_cmp"):
            j = i + 1
            while j < len(items) and items[j][0] == "i" and items[j][1].startswith("s_cselect"):
                j += 1
            out.append(("atomic", items[i:j]))
            i = j
        else:
            out.append(it)
            i += 1
    return out


def gen():
    a = Asm()
    ool = []
    S = {}
    sa = RegAlloc(44, 96)
    for n in ("w", "rg", "rb", "j", "typ", "col0", "soA", "soB", "so2", "so", "ofA", "ofB", "of2", "t", "t1", "t2", "t3", "pc",
              "rlo", "rls", "hs", "jt", "jt1", "r2", "c2", "sH", "sX", "sO", "nH", "nO", "rH", "rO", "p2A", "p2B", "tp1"):
        S[n] = sa.alloc(n)
    S["uo"] = sa.alloc("uo", 4)
    S["pa"] = sa.alloc("pa", 4)
    for n in ("ex", "m1", "m2"):
        S[n] = sa.alloc(n, 2, 2)
    S["fl"], S["t0"] = 10, 100
    SX, SW, SWS, SR, SAUX = 28, 32, 36, 40, 96

    l, Z, ITS, RS, IRS, L16, SMALL = 1, 2, 3, 4, 5, 6, 7
    ACC, T, BB = 24, 104, 152
    CMPA, SCA = SMALL, SMALL + 8
    vb = RegAlloc(BB, BB + 100)
    FA = vb.alloc("fa", 8, 2)
    FB = vb.alloc("fb", 40, 2)
    XE = vb.alloc("xe", 4, 2)
    WE = vb.alloc("we", 20, 2)
    RA = vb.alloc("rA", 4)
    RA0 = vb.alloc("rA0")
    RB = vb.alloc("rB")
    RB0 = vb.alloc("rB0")
    BIAS = vb.alloc("bias", 5)
    RLD = vb.alloc("rld")
    QSCA = SMALL + 4

    def srd(base, ptr, size):
        a(f"s_mov_b32 s{base}, s{ptr}\ns_mov_b32 s{base+1}, s{ptr+1}\ns_mov_b32 s{base+2}, {size}\ns_mov_b32 s{base+3}, 0x20000")

    DBGW = {3: 2, 13: 3, 15: 4, 20: 5, 21: 6, 22: 7, 24: 9}

    def stamp(lane):
        if Cfg.stamps == 6:
            return
        if Cfg.stamps == 5:
            if lane == Cfg.probe:
                a(f"{'s_memtime' if Cfg.probe_cyc else 's_memrealtime'} s[{S['t0']}:{S['t0']+1}]\ns_waitcnt lgkmcnt(0)\nv_writelane_b32 v{ITS}, s{S['t0']}, {lane}")
        elif Cfg.stamps == 4:
            if lane in DBGW:
                a(f"s_memrealtime s[{S['t0']}:{S['t0']+1}]\ns_waitcnt lgkmcnt(0)\nv_mov_b32 v{ITS}, s{S['t0']}\ns_mov_b64 exec, 1\n"
                  f"global_atomic_umax v{Z}, v{ITS}, s[22:23] offset:{4*DBGW[lane]}\ns_mov_b64 exec, -1")
        elif Cfg.stamps:
            a(f"{'s_memrealtime' if Cfg.stamps == 3 else 's_memtime'} s[{S['t0']}:{S['t0']+1}]\ns_waitcnt lgkmcnt(0)\nv_writelane_b32 v{ITS}, s{S['t0']}, {lane}")

    def poll_slow(check, err, sleep=24):
        lp, back = a.newlabel("PL"), a.newlabel("PB")
        a(f"s_cbranch_scc0 {lp}\n{back}:")

        def emit():
            l2 = a.newlabel("PL")
            a(f"{lp}:\ns_mov_b32 s{S['pc']}, 0\n{l2}:\ns_sleep {sleep}")
            if Cfg.cnt and err in (0x101, 0x104, 0x102, 0x105, 0x106, 0x10b):
                wd = {0x101: 10, 0x104: 11, 0x102: 12, 0x105: 13, 0x106: 14, 0x10b: 15}[err]
                a(f"v_mov_b32 v{ITS}, 1\ns_mov_b64 s[{S['t0']}:{S['t0']+1}], exec\ns_mov_b64 exec, 1\nglobal_atomic_add v{Z}, v{ITS}, s[22:23] offset:{4*wd}\ns_mov_b64 exec, s[{S['t0']}:{S['t0']+1}]")
            check()
            a(f"""
            s_cbranch_scc1 {back}
            s_add_u32 s{S['pc']}, s{S['pc']}, 1
            s_cmp_lt_u32 s{S['pc']}, 0x20000
            s_cbranch_scc1 {l2}
            v_mov_b32 v{IRS}, {err}
            global_store_dword v{Z}, v{IRS}, s[22:23] offset:32
            s_branch {back}
            """)
        ool.append(emit)

    a.label(KN)
    a(f"""
    s_cmp_ge_u32 s2, 256
    s_cbranch_scc1 END
    s_load_dwordx16 s[4:19], s[0:1], 0
    s_load_dwordx4 s[20:23], s[0:1], 64
    s_load_dwordx2 s[24:25], s[0:1], 80
    v_lshrrev_b32 v{T}, 6, v0
    v_and_b32 v{l}, 63, v0
    v_readfirstlane_b32 s{S['w']}, v{T}
    """)
    if Cfg.stamps:
        a(f"v_mov_b32 v{ITS}, 0\ns_memtime s[{S['t0']}:{S['t0']+1}]\ns_memrealtime s[{S['ex']}:{S['ex']+1}]")
    if Cfg.map1 == 0:
        a(f"""
        s_and_b32 s{S['t']}, s2, 3
        s_lshl_b32 s{S['t']}, s{S['t']}, 2
        s_bfe_u32 s{S['t1']}, s2, 0x20003
        s_add_u32 s{S['rb']}, s{S['t']}, s{S['t1']}
        s_bfe_u32 s{S['typ']}, s2, 0x10005
        s_bfe_u32 s{S['t']}, s2, 0x10002
        s_lshl_b32 s{S['t']}, s{S['t']}, 2
        s_bfe_u32 s{S['t1']}, s2, 0x20006
        s_add_u32 s{S['j']}, s{S['t']}, s{S['t1']}
        """)
    else:
        if Cfg.map1 == 1:
            a(f"s_and_b32 s{S['j']}, s2, 7\ns_bfe_u32 s{S['typ']}, s2, 0x10003\ns_lshr_b32 s{S['rb']}, s2, 4")
        else:
            a(f"s_and_b32 s{S['j']}, s2, 7\ns_lshr_b32 s{S['typ']}, s2, 7\ns_bfe_u32 s{S['rb']}, s2, 0x40003")
    a(f"""
    v_mov_b32 v{Z}, 0
    v_lshlrev_b32 v{L16}, 4, v{l}
    s_and_b32 s{S['rg']}, s{S['w']}, 3
    s_mul_i32 s{S['t']}, s{S['j']}, 7
    s_min_u32 s{S['t']}, s{S['t']}, 47
    s_lshl_b32 s{S['t']}, s{S['t']}, 5
    s_mul_i32 s{S['t1']}, s{S['j']}, 80
    s_cmp_eq_u32 s{S['typ']}, 0
    s_cselect_b32 s{S['col0']}, s{S['t1']}, s{S['t']}
    s_lshr_b32 s{S['t']}, s{S['w']}, 2
    s_lshl_b32 s{S['t1']}, s{S['typ']}, 1
    s_add_u32 s{S['t3']}, s{S['t']}, s{S['t1']}
    s_cmp_eq_u32 s{S['t3']}, 0
    s_cbranch_scc1 ROLE_KV
    s_cmp_eq_u32 s{S['t3']}, 2
    s_cbranch_scc1 ROLE_H0
    s_cmp_eq_u32 s{S['t3']}, 3
    s_cbranch_scc1 ROLE_H1
    """)

    TY = {0: dict(nt=5, stride=3840, wptr=6, qkv=True), 1: dict(nt=4, stride=3456, wptr=12, qkv=False)}
    JT, JT1 = S["jt"], S["jt1"]

    def after_kernarg():
        a("s_waitcnt lgkmcnt(0)")
        if Cfg.stamps == 4:
            a(f"s_not_b32 s{S['ex']}, s{S['ex']}\nv_mov_b32 v{ITS}, s{S['ex']}\ns_mov_b64 exec, 1\nglobal_atomic_umax v{Z}, v{ITS}, s[22:23] offset:4\ns_mov_b64 exec, -1")
        elif Cfg.stamps:
            a(f"v_writelane_b32 v{ITS}, s{S['t0']}, 0\nv_writelane_b32 v{ITS}, s{S['ex']}, 62")
        srd(SX, 4, 2048 * 1280)
        srd(SWS, 24, WS_SIZE)
        a(f"s_add_u32 s{S['fl']}, s24, {FLAG_OFF}\ns_addc_u32 s{S['fl']+1}, s25, 0")

    def emit_item(st, it):
        if it[0] == "atomic":
            for x in it[1]:
                emit_item(st, x)
        elif it[0] == "call":
            it[1]()
        else:
            st.emit(it)

    def emit_all(st, items):
        for x in items:
            emit_item(st, x)

    def p2_params():
        if Cfg.map2 == 0:
            a(f"""
            s_and_b32 s{S['t']}, s2, 3
            s_lshl_b32 s{S['t']}, s{S['t']}, 3
            s_bfe_u32 s{S['t1']}, s2, 0x30003
            s_add_u32 s{S['r2']}, s{S['t']}, s{S['t1']}
            s_bfe_u32 s{S['t']}, s2, 0x10002
            s_lshl_b32 s{S['t']}, s{S['t']}, 2
            s_lshr_b32 s{S['t1']}, s2, 6
            s_add_u32 s{S['c2']}, s{S['t']}, s{S['t1']}
            """)
        else:
            a(f"""
            s_and_b32 s{S['t']}, s2, 7
            s_lshl_b32 s{S['t']}, s{S['t']}, 2
            s_bfe_u32 s{S['t1']}, s2, 0x20003
            s_add_u32 s{S['r2']}, s{S['t']}, s{S['t1']}
            s_lshr_b32 s{S['c2']}, s2, 5
            """)
        NX = Cfg.nx
        a(f"""
        s_lshl_b32 s{S['t']}, s{S['rg']}, 3
        s_lshr_b32 s{S['sX']}, 0x302a231c, s{S['t']}
        s_and_b32 s{S['sX']}, s{S['sX']}, 255
        s_mul_i32 s{S['t']}, s{S['w']}, 7
        s_add_u32 s{S['t1']}, s{S['sX']}, {NX}
        s_cmp_lt_u32 s{S['w']}, 6
        s_cselect_b32 s{S['t2']}, {7 - NX}, {6 - NX}
        s_cmp_lt_u32 s{S['w']}, 4
        s_cselect_b32 s{S['sH']}, s{S['t']}, s{S['t1']}
        s_cselect_b32 s{S['nH']}, 7, s{S['t2']}
        s_and_b32 s{S['t']}, s{S['w']}, 1
        s_sub_u32 s{S['nO']}, 3, s{S['t']}
        s_mul_i32 s{S['t']}, s{S['t']}, 3
        s_lshr_b32 s{S['t1']}, s{S['w']}, 1
        s_mul_i32 s{S['t1']}, s{S['t1']}, 5
        s_add_u32 s{S['t']}, s{S['t']}, s{S['t1']}
        s_add_u32 s{S['sO']}, s{S['t']}, 54
        s_and_b32 s{S['t']}, s{S['c2']}, 3
        s_mul_i32 s{S['rH']}, s{S['t']}, {2 * Cfg.rot2}
        s_mul_i32 s{S['rO']}, s{S['t']}, {Cfg.rot2}
        s_cmp_lt_u32 s{S['w']}, 4
        s_cselect_b32 s{S['rH']}, s{S['rH']}, s{S['rO']}
        s_cmp_ge_u32 s{S['rO']}, s{S['nO']}
        s_cselect_b32 s{S['t']}, s{S['nO']}, 0
        s_sub_u32 s{S['rO']}, s{S['rO']}, s{S['t']}
        s_mul_i32 s{S['p2A']}, s{S['r2']}, {A2_RB}
        s_mul_i32 s{S['p2B']}, s{S['c2']}, {B2_C}
        s_add_u32 s{S['p2B']}, s{S['p2B']}, {B2_OFF}
        """)

    def relay_params(base):
        a(f"""
        s_lshl_b32 s{S['t']}, s{S['rg']}, 8
        s_add_u32 s{S['t3']}, s{S['t']}, s2
        s_mul_i32 s{S['t2']}, s{S['t3']}, 6554
        s_lshr_b32 s{S['t2']}, s{S['t2']}, 16
        s_mul_i32 s{S['t']}, s{S['t2']}, 10
        s_sub_u32 s{S['t1']}, s{S['t3']}, s{S['t']}
        s_min_u32 s{S['so']}, s{S['rg']}, 2
        s_lshl_b32 s{S['so']}, s{S['so']}, 12
        s_add_u32 s{S['rls']}, s{S['so']}, {base}
        """)

    def frag_addr_a(dst, X):
        a(f"""
        v_and_b32 v{X}, 31, v{l}
        s_lshl_b32 s{S['t']}, s{S['rg']}, 5
        v_add_u32 v{X}, s{S['t']}, v{X}
        v_bfe_u32 v{X+1}, v{X}, 1, 3
        v_lshrrev_b32 v{X+2}, 5, v{l}
        v_xor_b32 v{X+1}, v{X+1}, v{X+2}
        v_lshlrev_b32 v{X+1}, 4, v{X+1}
        v_lshl_add_u32 v{dst}, v{X}, 7, v{X+1}
        """)

    def frag_addr_b_low(dst, X):
        a(f"""
        v_bfe_u32 v{X}, v{l}, 2, 2
        v_lshlrev_b32 v{dst}, 6, v{X}
        v_bfe_u32 v{X}, v{l}, 4, 1
        v_lshl_add_u32 v{dst}, v{X}, 5, v{dst}
        v_and_b32 v{X}, 3, v{l}
        v_lshl_add_u32 v{dst}, v{X}, 3, v{dst}
        """)

    def bias_setup(R, regs, n, tp, second, st, X):
        if not R["qkv"]:
            srd(SAUX, 14, 3456)
            a(f"""
            s_lshl_b32 s{S['t']}, s{tp}, 5
            s_add_u32 s{S['t']}, s{S['t']}, s{S['col0']}
            s_lshl_b32 s{S['t']}, s{S['t']}, 1
            v_and_b32 v{X}, 31, v{l}
            v_lshlrev_b32 v{X}, 1, v{X}
            """)
            for t in range(n):
                st.emit(("vm", f"buffer_load_ushort v{regs+t}, v{X}, s[{SAUX}:{SAUX+3}], s{S['t']} offen offset:{t*64}", "bias"))
        elif second:
            for t in range(3):
                a(f"v_mov_b32 v{regs+t}, 0x3586")
        else:
            a(f"""
            v_mov_b32 v{regs}, 0x3586
            v_mov_b32 v{regs+1}, 0x3586
            s_mov_b32 s{S['m2']}, 0x0000ffff
            s_mov_b32 s{S['m2']+1}, 0x0000ffff
            v_cndmask_b32 v{regs+2}, 0, v{regs}, s[{S['m2']}:{S['m2']+1}]
            v_mov_b32 v{regs+3}, 0
            v_mov_b32 v{regs+4}, 0
            """)

    def vcol(reg, tmp):
        return I(f"""
        v_mov_b32 v{tmp}, 0
        v_mov_b32 v{tmp+1}, -16
        v_cmp_le_u32 vcc, 80, v{reg}
        v_cndmask_b32 v{tmp}, v{tmp}, v{tmp+1}, vcc
        v_mov_b32 v{tmp+1}, {640-96}
        v_cmp_le_u32 vcc, 96, v{reg}
        v_cndmask_b32 v{tmp}, v{tmp}, v{tmp+1}, vcc
        v_mov_b32 v{tmp+1}, {1280-176}
        v_cmp_le_u32 vcc, 176, v{reg}
        v_cndmask_b32 v{tmp}, v{tmp}, v{tmp+1}, vcc
        v_add_u32 v{reg}, v{reg}, v{tmp}
        """)

    def job_build_ext(nt, tp, xe, we, bias, X):
        it = I(f"""
        v_and_b32 v{X}, 31, v{l}
        s_lshl_b32 s{JT}, s{S['rg']}, 5
        v_add_lshl_u32 v{X+1}, v{X}, s{JT}, 2
        v_add_u32 v{X+1}, {MISC}, v{X+1}
        s_lshl_b32 s{JT}, s{tp}, 7
        s_add_u32 s{JT}, s{JT}, {CSP}
        v_lshl_add_u32 v{X}, v{X}, 2, s{JT}
        """)
        for r, off in ((X + 2, ST_M), (RS, ST_RS), (IRS, ST_IRS)):
            it.append(("ds", f"ds_read_b32 v{r}, v{X+1} offset:{off-MISC}", "bx"))
        for t in range(nt):
            it.append(("ds", f"ds_read_b32 v{we+4*t+3}, v{X} offset:{t*128}", "bx"))
        it += I(f"s_mov_b32 s{S['m1']}, -1\ns_mov_b32 s{S['m1']+1}, 0") + [("wds", ["bx"])] + I(f"""
        v_sub_f32 v{X+2}, 0, v{X+2}
        v_cvt_pk_bf16_f32 v{X+3}, v{X+2}, v{IRS}
        v_lshlrev_b32 v{X+4}, 16, v{X+3}
        v_and_b32 v{X+5}, 0xffff0000, v{X+3}
        v_sub_f32 v{X+4}, v{X+2}, v{X+4}
        v_sub_f32 v{X+5}, v{IRS}, v{X+5}
        v_cvt_pk_bf16_f32 v{X+4}, v{X+2}, v{X+4}
        v_cvt_pk_bf16_f32 v{X+5}, v{X+5}, v{Z}
        v_cndmask_b32 v{xe}, 0, v{X+4}, s[{S['m1']}:{S['m1']+1}]
        v_cndmask_b32 v{xe+1}, 0, v{X+3}, s[{S['m1']}:{S['m1']+1}]
        v_cndmask_b32 v{xe+2}, 0, v{X+5}, s[{S['m1']}:{S['m1']+1}]
        v_mov_b32 v{xe+3}, 0
        """)
        for t in range(nt):
            w, b = we + 4 * t, bias + t
            it += I(f"""
            v_cvt_pk_bf16_f32 v{w}, v{w+3}, v{w+3}
            v_and_b32 v{w+1}, 0xffff0000, v{w}
            v_sub_f32 v{w+1}, v{w+3}, v{w+1}
            v_cvt_pk_bf16_f32 v{w+1}, v{w+1}, v{Z}
            v_lshl_or_b32 v{w+1}, v{b}, 16, v{w+1}
            v_mov_b32 v{w+2}, v{b}
            v_mov_b32 v{w+3}, 0
            """)
        return it

    def ext_mfma(nt, xe, we, tr):
        for t in range(nt):
            w, acc = we + 4 * t, ACC + 16 * t
            x, y = (w, xe) if tr else (xe, w)
            a(f"v_mfma_f32_32x32x16_bf16 v[{acc}:{acc+15}], v[{x}:{x+3}], v[{y}:{y+3}], v[{acc}:{acc+15}]")

    def early_flag_jobs(V):
        NS = Cfg.shards
        sig = I(f"s_and_b32 s{JT}, s2, {NS-1}\ns_add_u32 s{JT}, s{JT}, {F_EARLY}\ns_lshl_b32 s{JT}, s{JT}, 7\nv_mov_b32 v{V}, s{JT}\nv_mov_b32 v{V+1}, 1") + [
            ("atomic", I(f"s_cmp_eq_u32 s{S['w']}, 0\ns_cselect_b32 exec_lo, 1, 0\ns_mov_b32 exec_hi, 0") +
             [("vm0", f"global_atomic_add v{V}, v{V+1}, s[{S['fl']}:{S['fl']+1}]", "sg")] + I("s_mov_b64 exec, -1"))]
        msk = hex((1 << NS) - 1) if NS < 32 else "-1"
        ldj = I(f"v_lshlrev_b32 v{V}, 7, v{l}\nv_add_u32 v{V}, {F_EARLY*128}, v{V}\nv_mov_b32 v{V+1}, {256//NS}") + [
            ("atomic", I(f"s_cmp_eq_u32 s{S['w']}, 0\ns_cselect_b32 exec_lo, {msk}, 0\ns_mov_b32 exec_hi, 0") +
             [("vm0", f"global_load_dword v{V+1}, v{V}, s[{S['fl']}:{S['fl']+1}] sc1", "fl")] + I("s_mov_b64 exec, -1"))]
        cmp_ = f"v_cmp_gt_u32 vcc, {256//NS}, v{V+1}\ns_cmp_eq_u64 vcc, 0"

        def chk():
            a(f"s_mov_b32 exec_lo, {msk}\ns_mov_b32 exec_hi, 0\nglobal_load_dword v{V+1}, v{V}, s[{S['fl']}:{S['fl']+1}] sc1\ns_mov_b64 exec, -1\ns_waitcnt vmcnt(0)\n{cmp_}")
        ck = [("wvm", ["fl"]), ("atomic", I(cmp_) + [("call", lambda: poll_slow(chk, 0x104, sleep=Cfg.esleep))])]
        return sig, ldj, ck

    def row_publish(SQ, SM, Y):
        it = I(f"""
        s_mov_b32 s{S['m1']}, 0xaaaaaaaa
        s_mov_b32 s{S['m1']+1}, 0xaaaaaaaa
        s_mov_b32 s{S['m2']}, 0xcccccccc
        s_mov_b32 s{S['m2']+1}, 0xcccccccc
        v_cndmask_b32 v{Y+2}, v{SQ}, v{SQ+1}, s[{S['m1']}:{S['m1']+1}]
        v_cndmask_b32 v{Y+3}, v{SQ+2}, v{SQ+3}, s[{S['m1']}:{S['m1']+1}]
        v_cndmask_b32 v{Y+2}, v{Y+2}, v{Y+3}, s[{S['m2']}:{S['m2']+1}]
        s_lshl_b32 s{JT}, s{S['rb']}, 2
        s_add_u32 s{JT}, s{JT}, s{S['rg']}
        s_lshl_b32 s{JT}, s{JT}, 7
        s_add_u32 s{JT}, s{JT}, {RS_OFF}
        s_lshl_b32 s{JT1}, s{S['j']}, 1
        s_add_u32 s{JT1}, s{JT1}, s{S['typ']}
        s_cmp_ge_u32 s{JT1}, 10
        s_cselect_b32 s{JT}, {OOB}, s{JT}
        v_and_b32 v{Y+4}, 31, v{l}
        v_lshrrev_b32 v{Y+5}, 5, v{l}
        v_lshlrev_b32 v{Y+5}, 13, v{Y+5}
        v_permlane32_swap_b32 v{SM}, v{Y+2}
        v_lshl_add_u32 v{Y+4}, v{Y+4}, 2, v{Y+5}
        v_add_f32 v{Y+2}, v{Y+2}, v{SM}
        """)
        it.append(("vm", f"buffer_atomic_add_f32 v{Y+2}, v{Y+4}, s[{SWS}:{SWS+3}], s{JT} offen", "stat"))
        return it


    def job_load_stats(qkv, Y):
        it = I(f"""
        v_and_b32 v{Y}, 31, v{l}
        s_lshl_b32 s{JT}, s{S['rb']}, 2
        s_add_u32 s{JT}, s{JT}, s{S['rg']}
        s_lshl_b32 s{JT}, s{JT}, 7
        s_add_u32 s{JT}, s{JT}, {RS_OFF}
        s_add_u32 s{JT1}, s{JT}, 8192
        v_lshlrev_b32 v{Y+1}, 2, v{Y}
        """)
        it.append(("vm", f"buffer_load_dword v{Y+2}, v{Y+1}, s[{SWS}:{SWS+3}], s{JT} offen sc1", "ls"))
        it.append(("vm", f"buffer_load_dword v{Y+3}, v{Y+1}, s[{SWS}:{SWS+3}], s{JT1} offen sc1", "ls"))
        it += I(f"s_lshl_b32 s{JT}, s{S['rg']}, 6\nv_add_u32 v{Y+1}, s{JT}, v{l}")
        if qkv:
            it += vcol(Y + 1, Y + 4) + I(f"s_lshl_b32 s{JT}, s{S['col0']}, 2\ns_add_u32 s{JT}, s{JT}, {CS_OFF}")
        else:
            it += I(f"s_lshl_b32 s{JT}, s{S['col0']}, 2\ns_add_u32 s{JT}, s{JT}, {CS_OFF + 1920*4}")
        it += I(f"v_lshlrev_b32 v{Y+1}, 2, v{Y+1}")
        it.append(("vm", f"buffer_load_dword v{Y+4}, v{Y+1}, s[{SWS}:{SWS+3}], s{JT} offen sc1", "ls"))
        return it

    def job_publish_stats(qkv, Y):
        it = I(f"""
        v_and_b32 v{Y+5}, 31, v{l}
        s_lshl_b32 s{JT}, s{S['rg']}, 5
        v_add_lshl_u32 v{Y+5}, v{Y+5}, s{JT}, 2
        v_add_u32 v{Y+5}, {MISC}, v{Y+5}
        s_lshl_b32 s{JT}, s{S['rg']}, 8
        s_add_u32 s{JT}, s{JT}, {CSP}
        v_lshl_add_u32 v{Y+6}, v{l}, 2, s{JT}
        """) + [("wvm", ["ls"])] + I(f"""
        v_mul_f32 v{Y+2}, {hx(1/640)}, v{Y+2}
        v_mul_f32 v{Y+3}, {hx(1/640)}, v{Y+3}
        v_fma_f32 v{Y+3}, -v{Y+2}, v{Y+2}, v{Y+3}
        v_max_f32 v{Y+3}, 0, v{Y+3}
        v_add_f32 v{Y}, {hx(1e-5)}, v{Y+3}
        """)
        if not qkv:
            it += I(f"v_mov_b32 v{Y+1}, {hx(1e-5)}\nv_fma_f32 v{Y}, v{Y}, v{Y+1}, v{Y+3}")
        it += I(f"v_sqrt_f32 v{Y+1}, v{Y}\nv_rsq_f32 v{Y}, v{Y}")
        for r, off in ((Y + 2, ST_M), (Y, ST_RS), (Y + 1, ST_IRS)):
            it.append(("ds", f"ds_write_b32 v{Y+5}, v{r} offset:{off-MISC}", "pub"))
        it.append(("ds", f"ds_write_b32 v{Y+6}, v{Y+4}", "pub"))
        return it

    def job_touch(V):
        ns = 8 if Cfg.map2 == 0 else 4
        per = 2960 // ns
        pw = -(-per // 128) * 32
        it = I(f"""
        s_and_b32 s{JT}, s{S['r2']}, {ns-1}
        s_mul_i32 s{JT}, s{JT}, {per*128}
        s_mul_i32 s{JT1}, s{S['rg']}, {pw*128}
        s_add_u32 s{JT}, s{JT}, s{JT1}
        s_add_u32 s{JT}, s{JT}, s{S['p2B']}
        v_lshlrev_b32 v{V+1}, 7, v{l}
        """)
        for k in range(0, pw, 64):
            ld_ = [("vm", f"buffer_load_dword v{V}, v{V+1}, s[{SWS}:{SWS+3}], s{JT} offen sc1", "tc")]
            if pw - k < 64:
                ld_ = I("s_mov_b32 exec_hi, 0") + ld_ + I("s_mov_b32 exec_hi, -1")
            it.append(("atomic", ld_ + I(f"s_add_u32 s{JT}, s{JT}, 8192")))
        return it

    def code_prefetch():
        if not Cfg.prefetch_code:
            return
        here = a.newlabel("PC")
        a(f"""
        s_getpc_b64 s[26:27]
        {here}:
        s_sub_u32 s26, s26, {here}-{KN}
        s_subb_u32 s27, s27, 0
        s_bfe_u32 s{S['t']}, s2, 0x20003
        s_lshl_b32 s{S['t']}, s{S['t']}, 14
        v_lshlrev_b32 v{T+2}, 6, v0
        v_add_u32 v{T+2}, s{S['t']}, v{T+2}
        v_min_u32 v{T+2}, CODE_END-{KN}-4, v{T+2}
        v_mov_b32 v{T+3}, s27
        v_add_co_u32 v{T+2}, vcc, s26, v{T+2}
        v_addc_co_u32 v{T+3}, vcc, 0, v{T+3}, vcc
        s_mov_b32 exec_lo, 0x55555555
        s_mov_b32 exec_hi, 0x55555555
        global_load_dword v{RS}, v[{T+2}:{T+3}], off
        s_mov_b64 exec, -1
        """)

    def zero_init():
        a(f"v_mov_b32 v{T+13}, {SYN}\nds_write_b128 v{T+13}, v[{T+8}:{T+11}]\nds_write_b128 v{T+13}, v[{T+8}:{T+11}] offset:16".replace("v_mov_b32", f"v_mov_b32 v{T+8}, 0\nv_mov_b32 v{T+9}, 0\nv_mov_b32 v{T+10}, 0\nv_mov_b32 v{T+11}, 0\nv_mov_b32", 1))
        lab = a.newlabel("NI")
        a(f"""
        s_cmp_lg_u32 s{S['rg']}, 3
        s_cbranch_scc1 {lab}
        s_cmp_ge_u32 s2, 32
        s_cbranch_scc1 {lab}
        v_mov_b32 v{T+8}, 0
        v_mov_b32 v{T+9}, 0
        v_mov_b32 v{T+10}, 0
        v_mov_b32 v{T+11}, 0
        s_mul_i32 s{S['t']}, s2, 4256
        s_add_u32 s{S['t']}, s{S['t']}, {KV_OFF}
        buffer_store_dwordx4 v[{T+8}:{T+11}], v{L16}, s[{SWS}:{SWS+3}], s{S['t']} offen sc1
        buffer_store_dwordx4 v[{T+8}:{T+11}], v{L16}, s[{SWS}:{SWS+3}], s{S['t']} offen offset:1024 sc1
        buffer_store_dwordx4 v[{T+8}:{T+11}], v{L16}, s[{SWS}:{SWS+3}], s{S['t']} offen offset:2048 sc1
        buffer_store_dwordx4 v[{T+8}:{T+11}], v{L16}, s[{SWS}:{SWS+3}], s{S['t']} offen offset:3072 sc1
        buffer_store_dwordx4 v[{T+8}:{T+11}], v{L16}, s[{SWS}:{SWS+3}], s{S['t']} offen offset:3232 sc1
        v_mov_b32 v{T+12}, 1
        s_waitcnt vmcnt(0)
        s_mov_b64 exec, 1
        global_atomic_add v{Z}, v{T+12}, s[22:23]
        s_mov_b64 exec, -1
        {lab}:
        """)

    def relay_issue(st, X, base):
        relay_params(base)
        a(f"""
        s_cmp_lt_u32 s{S['t2']}, 54
        s_cselect_b32 s{SR}, s16, s8
        s_cselect_b32 s{SR+1}, s17, s9
        s_mov_b32 s{SR+2}, {640*1280}
        s_cselect_b32 s{SR+2}, {1728*1280}, s{SR+2}
        s_mov_b32 s{SR+3}, 0x20000
        s_cselect_b32 s{S['t']}, 0, 54
        s_sub_u32 s{S['t']}, s{S['t2']}, s{S['t']}
        s_mul_i32 s{S['t']}, s{S['t']}, {32*1280}
        s_lshl_b32 s{S['so']}, s{S['t1']}, 7
        s_add_u32 s{S['rlo']}, s{S['t']}, s{S['so']}
        v_lshrrev_b32 v{X}, 3, v{l}
        v_mul_u32_u24 v{X}, 1280, v{X}
        v_and_b32 v{X+1}, 7, v{l}
        v_lshl_add_u32 v{RLD}, v{X+1}, 4, v{X}
        s_cmp_lt_u32 s{S['t3']}, 740
        s_cselect_b32 s{S['hs']}, -1, 0
        s_barrier
        """)
        if Cfg.rl_pos == 0:
            relay_dma(st)

    def relay_dma(st):
        a(f"s_mov_b32 exec_lo, s{S['hs']}\ns_mov_b32 exec_hi, s{S['hs']}")
        for i in range(4):
            a(f"s_add_u32 m0, s{S['rls']}, {i*1024}\ns_add_u32 s{JT}, s{S['rlo']}, {i*8*1280}")
            st.emit(("vm0", f"buffer_load_dwordx4 v{RLD}, s[{SR}:{SR+3}], s{JT} offen{' nt' if Cfg.rnt else ''} lds", "rl"))
        a("s_mov_b64 exec, -1")

    def job_init_load():
        return [("atomic", I(f"v_mov_b32 v{T+44}, 32\ns_cmp_eq_u32 s{S['rg']}, 3\ns_cselect_b32 exec_lo, 1, 0\ns_mov_b32 exec_hi, 0") +
                 [("vm0", f"global_load_dword v{T+44}, v{Z}, s[22:23] sc1", "il")] + I("s_mov_b64 exec, -1"))]

    def job_init_check():
        def chk():
            a(f"global_load_dword v{T+44}, v{Z}, s[22:23] sc1\ns_waitcnt vmcnt(0)\nv_readfirstlane_b32 s{JT}, v{T+44}\ns_cmp_ge_u32 s{JT}, 32")
        return [("wvm", ["il"]), ("atomic", I(f"v_readfirstlane_b32 s{JT}, v{T+44}\ns_cmp_ge_u32 s{JT}, 32") + [("call", lambda: poll_slow(chk, 0x101, sleep=Cfg.isleep))])]

    def kloop(ld, qkv):
        st = Stream(a)
        NT, stride = (8, 3840) if qkv else (7, 3456)
        PITCH = NT * 256
        nt, t0 = ((3, 0) if ld else (5, 3)) if qkv else ((3, 4) if ld else (4, 0))
        tr = ld or not qkv
        q16 = bool(qkv and ld and Cfg.q16)
        nm = 2 if q16 else nt
        A16, B16, R16 = [FB + 8, FB + 28], FB + 12, FB + 16
        hv = RegAlloc(RLD + 1, BB + 100)
        HDA, HDB, HRCS = hv.alloc("da"), hv.alloc("db", 7), hv.alloc("rcs")
        HRLY = HDA
        X = T + 32
        SQ, SM, ONE, CSA, CF = T + 20, T + 24, T + 28, T + 16, T
        a(f"s_mov_b32 s{S['tp1']}, {t0}")

        def dma(s_):
            if Cfg.x_nodma:
                return []
            slot = (s_ % 3) * SLOT
            NTM = " nt" if (Cfg.wnt == 1 and s_ == 0) else ""
            A, B = [], []
            for m in range(4):
                A.append(I(f"s_add_u32 m0, s{S['ofA']}, {slot + m*4096}\ns_add_u32 s{S['so']}, s{S['soA']}, {m*32*1280}") +
                         [("vm", f"buffer_load_dwordx4 v{HDA}, s[{SX}:{SX+3}], s{S['so']} offen lds", ("S", s_))])
            for i in range(NT):
                if qkv:
                    B.append(I(f"s_add_u32 m0, s{S['ofB']}, {slot + i*4096}\ns_add_u32 s{S['so']}, s{S['soB']}, {i*8*3840}") +
                             [("vm", f"buffer_load_dwordx4 v{HDB}, s[{SW}:{SW+3}], s{S['so']} offen{NTM} lds", ("S", s_))])
                else:
                    B.append(I(f"s_add_u32 m0, s{S['ofB']}, {slot + i*1024}") +
                             [("vm", f"buffer_load_dwordx4 v{HDB+i}, s[{SW}:{SW+3}], s{S['soB']} offen{NTM} lds", ("S", s_))])
            res = []
            while A or B:
                if B: res.append(B.pop(0))
                if A: res.append(A.pop(0))
                if B: res.append(B.pop(0))
            if s_ > 0:
                res[0] = I(f"""
                s_add_u32 s{S['soA']}, s{S['soA']}, 128
                s_add_u32 s{S['soB']}, s{S['soB']}, {64*stride}
                s_cmp_eq_u32 s{S['soA']}, 1280
                s_cselect_b32 s{S['soA']}, 0, s{S['soA']}
                s_cselect_b32 s{S['soB']}, 0, s{S['soB']}
                """) + res[0]
            return [("atomic", p) for p in res]

        def setup():
            frag_addr_a(RA0, X)
            frag_addr_b_low(RB0, X)
            a(f"""
            v_lshrrev_b32 v{X}, 5, v{l}
            v_mul_u32_u24 v{X}, {2*PITCH}, v{X}
            v_add_u32 v{X}, v{X}, v{RB0}
            v_add_u32 v{RB0}, {16384 + t0*256}, v{X}
            s_min_u32 s{S['t']}, s{S['w']}, {NT-1}
            s_lshl_b32 s{S['t']}, s{S['t']}, 8
            s_add_u32 s{S['t']}, s{S['t']}, 16384
            v_add_u32 v{HRCS}, s{S['t']}, v{X}
            v_mov_b32 v{ONE}, 0x3f803f80
            v_mov_b32 v{ONE+1}, 0x3f803f80
            s_mov_b32 s{S['m1']}, 0x00020001
            s_mov_b32 s{S['m1']+1}, 0x00020001
            """)
            for k in range(4):
                a(f"v_cndmask_b32 v{XE+k}, 0, v{ONE}, s[{S['m1']}:{S['m1']+1}]")
            if q16:
                a(f"""
                v_and_b32 v{X}, 15, v{l}
                s_lshl_b32 s{S['t']}, s{S['rg']}, 5
                v_add_u32 v{X}, s{S['t']}, v{X}
                v_bfe_u32 v{X+1}, v{X}, 1, 3
                v_lshrrev_b32 v{X+2}, 4, v{l}
                v_xor_b32 v{X+1}, v{X+1}, v{X+2}
                v_lshlrev_b32 v{X+1}, 4, v{X+1}
                v_lshl_add_u32 v{R16}, v{X}, 7, v{X+1}
                v_mul_u32_u24 v{X+2}, {2*PITCH}, v{X+2}
                v_bfe_u32 v{X}, v{l}, 2, 2
                v_lshl_add_u32 v{X+2}, v{X}, 6, v{X+2}
                v_and_b32 v{X}, 3, v{l}
                v_lshl_add_u32 v{X+2}, v{X}, 3, v{X+2}
                v_add_u32 v{R16+3}, {16384 + 512}, v{X+2}
                """)
            p2_params()
            bias_setup(TY[0 if qkv else 1], BIAS, nt, S["tp1"], ld, st, X)
            if qkv:
                kv_addr_setup(X)
                if ld:
                    scatter_setup(X)

        if ld:
            a(f"""
            v_lshrrev_b32 v{T}, 3, v{l}
            s_lshl_b32 s{S['t']}, s{S['rg']}, 3
            s_lshl_b32 s{S['t1']}, s{S['rb']}, 7
            s_add_u32 s{S['t']}, s{S['t']}, s{S['t1']}
            v_add_u32 v{T}, s{S['t']}, v{T}
            v_mul_u32_u24 v{HDA}, 1280, v{T}
            v_lshrrev_b32 v{T}, 1, v{T}
            v_xor_b32 v{T}, v{T}, v{l}
            v_and_b32 v{T}, 7, v{T}
            v_lshl_add_u32 v{HDA}, v{T}, 4, v{HDA}
            s_lshl_b32 s{S['ofA']}, s{S['rg']}, 10
            v_bfe_u32 v{T}, v{l}, 2, 2
            v_lshrrev_b32 v{T+1}, 4, v{l}
            v_and_b32 v{T+5}, 3, v{l}
            s_lshl_b32 s{S['t']}, s{S['j']}, 1
            s_add_u32 s{S['t']}, s{S['t']}, s{S['typ']}
            s_add_u32 s{S['t']}, s{S['t']}, s{S['rb']}
            s_mul_i32 s{S['t1']}, s{S['t']}, 26
            s_lshr_b32 s{S['t1']}, s{S['t1']}, 8
            s_mul_i32 s{S['t1']}, s{S['t1']}, 10
            s_sub_u32 s{S['t']}, s{S['t']}, s{S['t1']}
            s_lshl_b32 s{S['soA']}, s{S['t']}, 7
            s_mul_i32 s{S['soB']}, s{S['t']}, {64*stride}
            """)
            if qkv:
                a(f"""
                s_add_u32 s{S['ofB']}, s{S['ofA']}, 16384
                s_lshr_b32 s{S['t']}, s{S['rg']}, 1
                s_lshl_b32 s{S['t']}, s{S['t']}, 2
                v_add_u32 v{T}, s{S['t']}, v{T}
                v_mul_u32_u24 v{T}, 3840, v{T}
                s_and_b32 s{S['t']}, s{S['rg']}, 1
                s_lshl_b32 s{S['t']}, s{S['t']}, 4
                v_lshl_add_u32 v{T+5}, v{T+1}, 2, v{T+5}
                v_add_u32 v{T+5}, s{S['t']}, v{T+5}
                v_mov_b32 v{T+6}, 0
                v_mov_b32 v{T+7}, {OOB if Cfg.zdup else -32}
                v_cmp_le_u32 vcc, 10, v{T+5}
                v_cndmask_b32 v{T+6}, v{T+6}, v{T+7}, vcc
                v_mov_b32 v{T+7}, {1280 - 192}
                v_cmp_le_u32 vcc, 12, v{T+5}
                v_cndmask_b32 v{T+6}, v{T+6}, v{T+7}, vcc
                v_mov_b32 v{T+7}, {2560 - 352}
                v_cmp_le_u32 vcc, 22, v{T+5}
                v_cndmask_b32 v{T+6}, v{T+6}, v{T+7}, vcc
                v_lshl_add_u32 v{T+5}, v{T+5}, 4, v{T+6}
                s_lshl_b32 s{S['t']}, s{S['col0']}, 1
                v_add3_u32 v{HDB}, v{T}, v{T+5}, s{S['t']}
                """)
            else:
                a(f"""
                s_mul_i32 s{S['ofB']}, s{S['rg']}, 7168
                s_add_u32 s{S['ofB']}, s{S['ofB']}, 16384
                s_lshl_b32 s{S['t']}, s{S['rg']}, 4
                v_add_u32 v{T}, s{S['t']}, v{T}
                v_mul_u32_u24 v{T}, 3456, v{T}
                v_lshl_add_u32 v{T}, v{T+5}, 4, v{T}
                s_lshl_b32 s{S['t']}, s{S['col0']}, 1
                v_add_u32 v{T}, s{S['t']}, v{T}
                s_mov_b32 s{S['t']}, {4*3456 - 448}
                """)
                for i in range(7):
                    a(f"""
                    v_add_u32 v{T+5}, {4*i}, v{T+1}
                    v_mul_u32_u24 v{T+6}, 37, v{T+5}
                    v_lshrrev_b32 v{T+6}, 8, v{T+6}
                    v_mad_u32_u24 v{T+6}, v{T+6}, s{S['t']}, v{T}
                    v_lshl_add_u32 v{HDB+i}, v{T+5}, 6, v{T+6}
                    """)
            after_kernarg()
            srd(SW, 6 if qkv else 12, 640 * stride)
            d0 = dma(0)
            emit_all(st, d0[:5])
            setup()
            emit_all(st, d0[5:])
            stamp(1)
            a("s_barrier")
            emit_all(st, dma(1))
            stamp(2)
        else:
            after_kernarg()
            zero_init()
            code_prefetch()
            relay_issue(st, X, RELAY)
            for ct in range(4):
                a(f"""
                s_lshl_b32 s{S['t']}, s{S['t1']}, 2
                s_add_u32 s{S['t']}, s{S['t']}, {ct}
                s_mul_i32 s{JT}, s{S['t']}, 52
                s_lshr_b32 s{JT}, s{JT}, 8
                s_mul_i32 s{JT}, s{JT}, {B2_C - 5*1024}
                s_lshl_b32 s{S['t']}, s{S['t']}, 10
                s_add_u32 s{S['t']}, s{S['t']}, s{JT}
                s_mul_i32 s{JT}, s{S['t2']}, 5120
                s_add_u32 s{S['t']}, s{S['t']}, s{JT}
                s_add_u32 s{S['t']}, s{S['t']}, {B2_OFF}
                s_cmp_lt_u32 s{S['t3']}, 740
                s_cselect_b32 s{S['uo']+ct}, s{S['t']}, {OOB}
                """)
            a(f"""
            v_lshrrev_b32 v{X}, 5, v{l}
            v_lshlrev_b32 v{X}, 4, v{X}
            v_bfe_u32 v{X+1}, v{l}, 4, 1
            v_lshl_add_u32 v{X}, v{X+1}, 2, v{X}
            v_bfe_u32 v{X+1}, v{l}, 2, 2
            v_add_u32 v{X}, v{X}, v{X+1}
            v_lshlrev_b32 v{X}, 7, v{X}
            v_and_b32 v{X+1}, 3, v{l}
            v_lshl_add_u32 v{X}, v{X+1}, 3, v{X}
            v_add_u32 v{HRLY}, s{S['rls']}, v{X}
            """)
            setup()

        def job_colsum():
            it = []
            for ks in range(4):
                for i in range(2):
                    it.append(("ds", f"ds_read_b64_tr_b16 v[{CF+4*ks+2*i}:{CF+4*ks+2*i+1}], v{HRCS} offset:{(4*ks+i)*PITCH}", ("cs", ks)))
            for ks in range(4):
                it.append(("wds", [("cs", ks)]))
                c = "0" if ks == 0 else f"v[{CSA}:{CSA+3}]"
                it += I(f"v_mfma_f32_16x16x32_bf16 v[{CSA}:{CSA+3}], v[{XE}:{XE+3}], v[{CF+4*ks}:{CF+4*ks+3}], {c}")
            return it

        def job_publish():
            it = I(f"""
            s_lshl_b32 s{JT}, s{S['w']}, 5
            v_add_u32 v{X}, s{JT}, v{l}
            v_permlane16_swap_b32 v{CSA}, v{CSA+1}
            s_mov_b32 s{S['m2']}, -1
            s_mov_b32 s{S['m2']+1}, 0
            """)
            if qkv:
                it += I(f"s_cmp_eq_u32 s{S['w']}, 2\ns_cselect_b32 s{S['m2']}, 0xffff, s{S['m2']}") + vcol(X, X + 1)
                it += I(f"s_lshl_b32 s{JT}, s{S['col0']}, 2\ns_add_u32 s{JT}, s{JT}, {CS_OFF}")
            else:
                it += I(f"""
                s_lshl_b32 s{JT}, s{S['col0']}, 2
                s_add_u32 s{JT}, s{JT}, {CS_OFF + 1920*4}
                s_lshl_b32 s{JT1}, s{S['j']}, 3
                s_add_u32 s{JT1}, s{JT1}, s{S['w']}
                s_sub_u32 s{JT1}, s{JT1}, 56
                s_cmp_lt_u32 s{JT1}, 2
                s_cselect_b32 s{JT}, {OOB}, s{JT}
                s_cmp_eq_u32 s{S['w']}, 7
                s_cselect_b32 s{JT}, {OOB}, s{JT}
                """)
            it += I(f"""
            s_cmp_ge_u32 s{S['rb']}, 10
            s_cselect_b32 s{JT}, {OOB}, s{JT}
            v_lshlrev_b32 v{X}, 2, v{X}
            v_mov_b32 v{X+1}, {OOB}
            v_cndmask_b32 v{X}, v{X+1}, v{X}, s[{S['m2']}:{S['m2']+1}]
            """)
            it.append(("vm", f"buffer_atomic_add_f32 v{CSA}, v{X}, s[{SWS}:{SWS+3}], s{JT} offen", "stat"))
            if not ld:
                it += row_publish(SQ, SM, X)
            return it

        def job_relay_store():
            it = [("wvm", ["rl"])]
            for ct in range(4):
                it.append(("ds", f"ds_read_b64_tr_b16 v[{T+4*ct}:{T+4*ct+1}], v{HRLY} offset:{ct*32}", ("rl", ct)))
                it.append(("ds", f"ds_read_b64_tr_b16 v[{T+4*ct+2}:{T+4*ct+3}], v{HRLY} offset:{ct*32 + 1024}", ("rl", ct)))
            for ct in range(4):
                it.append(("wds", [("rl", ct)]))
                it.append(("vm", f"buffer_store_dwordx4 v[{T+4*ct}:{T+4*ct+3}], v{L16}, s[{SWS}:{SWS+3}], s{S['uo']+ct} offen sc1", "rs"))
            return it

        e_sig, e_ld, e_ck = early_flag_jobs(T + 46)
        pi = Cfg.hpoll
        J = [(0, 0, 0, job_colsum()), (1, 0, 1, job_publish())]
        if not ld:
            if Cfg.ini_pro:
                emit_all(st, job_init_load())
            else:
                J.append((0, 0, 0, job_init_load()))
            J.append((0, 3, 0, job_init_check()))
            J.append((Cfg.rs_it, 2 if Cfg.rs_it == 0 else 1, Cfg.rs_it, job_relay_store()))
            J.append((Cfg.hsig - 1, 3, Cfg.hsig - 1, [("wvm", None)]))
            J.append((Cfg.hsig, 0, Cfg.hsig, e_sig))
            J.append((pi - Cfg.plead, 0 if Cfg.plead == 0 else 2, pi, e_ld))
            J.append((pi, 3, pi, e_ck))
            J.append((pi + 1, 0, pi + 1, job_load_stats(qkv, T + 38)))
            J.append((8, 3 if pi == 7 else 0, 8, job_publish_stats(qkv, T + 38)))
            if Cfg.touch:
                J.append((Cfg.touch_it, 1, 10, job_touch(T + 46)))
        J.append((9, 0, 10, job_build_ext(nt, S["tp1"], XE, WE, BIAS, X)))
        lq = [("atomic", p) for p in b_prefetch_lds()] if (ld and Cfg.early_lds) else []
        J.sort(key=lambda x: (x[0], x[1]))
        pend = []

        def drain(n=None, deadline=None):
            k = 0
            while pend and (n is None or k < n):
                if deadline is not None and not any(p[0] <= deadline for p in pend):
                    break
                emit_item(st, pend.pop(0)[1])
                k += 1

        def addrs(s_):
            sl = (s_ % 3) * SLOT
            return I(f"""
            v_add_u32 v{RA}, {sl}, v{RA0}
            v_add_u32 v{RB}, {sl}, v{RB0}
            v_xor_b32 v{RA+1}, 32, v{RA}
            v_xor_b32 v{RA+2}, 64, v{RA}
            v_xor_b32 v{RA+3}, 0x60, v{RA}
            """) + (I(f"v_add_u32 v{R16+1}, {sl}, v{R16}\nv_add_u32 v{FB+32}, {sl}, v{R16+3}\nv_xor_b32 v{R16+2}, 64, v{R16+1}") if q16 else [])

        def reads(s_, ks):
            b = ks & 1
            out = [("ds", f"ds_read_b128 v[{FA+4*b}:{FA+4*b+3}], v{RA+ks}", ("A", s_, ks))]
            for t in range(nm):
                f = FB + 20 * b + 4 * t
                for i in range(2):
                    out.append(("ds", f"ds_read_b64_tr_b16 v[{f+2*i}:{f+2*i+1}], v{RB} offset:{(4*ks+i)*PITCH + t*256}", (t, s_, ks)))
            if q16 and b:
                kk = ks >> 1
                for i in range(2):
                    out.append(("ds", f"ds_read_b64_tr_b16 v[{B16+2*i}:{B16+2*i+1}], v{FB+32} offset:{(8*kk+i)*PITCH}", (2, s_, ks)))
                for rt in range(2):
                    out.append(("ds", f"ds_read_b128 v[{A16[rt]}:{A16[rt]+3}], v{R16+1+kk} offset:{rt*2048}", (2, s_, ks)))
            return out

        emit_all(st, addrs(0))
        if ld:
            st.wait("vm", [("S", 0)])
            if Cfg.hprio:
                a("s_setprio 1")
        a("s_barrier")
        stamp(3)
        emit_all(st, reads(0, 0))
        if not ld and Cfg.rl_pos == 1:
            relay_dma(st)
        dq = dma(2) if ld else []
        gaps_left = 3 * nt + Cfg.bpos
        for s_ in range(10):
            for ks in range(4):
                while J and (J[0][0], J[0][1]) <= (s_, ks):
                    jb = J.pop(0)
                    pend.extend([jb[2], x] for x in group_scc(jb[3]))
                last = ks == 3
                rd = reads(s_, ks + 1) if not last else (reads(s_ + 1, 0) if s_ < 9 else [])
                gaps = nt if not last else nt - Cfg.bpos
                for t in range(nt):
                    if last and t == Cfg.bpos:
                        drain(deadline=s_)
                        assert not dq
                        st.wait2(None, [("S", s_ + 1)] + (["stat"] if s_ == Cfg.hsig - 1 else []) if ld else [])
                        a("s_barrier")
                        if ld:
                            dq = dma(s_ + 3) if s_ + 3 <= 9 else []
                            gaps_left = 4 * nt
                            if Cfg.hprio and s_ == 7:
                                a("s_setprio 0")
                    b = ks & 1
                    fa, f, acc = FA + 4 * b, FB + 20 * b + 4 * t, ACC + 16 * t
                    st.wait("ds", [("A", s_, ks), (t, s_, ks)])
                    c = "0" if (s_ == 0 and ks == 0) else f"v[{acc}:{acc+15}]"
                    x, y = (f, fa) if tr else (fa, f)
                    if t < nm:
                        a(f"v_mfma_f32_32x32x16_bf16 v[{acc}:{acc+15}], v[{x}:{x+3}], v[{y}:{y+3}], {c}")
                    elif b:
                        for rt in range(2):
                            d = acc + 4 * rt
                            c = "0" if (s_ == 0 and ks == 1) else f"v[{d}:{d+3}]"
                            a(f"v_mfma_f32_16x16x32_bf16 v[{d}:{d+3}], v[{B16}:{B16+3}], v[{A16[rt]}:{A16[rt]+3}], {c}")
                    if s_ == 0 and not ld and t < 2:
                        c1 = "0" if (ks == 0 and t == 0) else f"v[{SQ}:{SQ+3}]"
                        c2 = "0" if (ks == 0 and t == 0) else f"v[{SM}:{SM+3}]"
                        a(f"v_mfma_f32_4x4x4_16b_bf16 v[{SQ}:{SQ+3}], v[{fa+2*t}:{fa+2*t+1}], v[{fa+2*t}:{fa+2*t+1}], {c1}")
                        a(f"v_mfma_f32_4x4x4_16b_bf16 v[{SM}:{SM+3}], v[{ONE}:{ONE+1}], v[{fa+2*t}:{fa+2*t+1}], {c2}")
                    g = t if not last else t - Cfg.bpos
                    if g >= 0:
                        emit_all(st, rd[(len(rd) * g) // gaps:(len(rd) * (g + 1)) // gaps])
                    if dq:
                        k = -(-len(dq) // max(1, gaps_left - Cfg.bpos))
                        for _ in range(min(k, len(dq))):
                            emit_item(st, dq.pop(0))
                    gaps_left -= 1
                    if ks == 2 and t == nt - 1 and s_ < 9:
                        emit_all(st, addrs(s_ + 1))
                    drain(Cfg.hfill)
                    if s_ == 9 and lq and not pend:
                        for _ in range(Cfg.early_lds):
                            if lq:
                                emit_item(st, lq.pop(0))
                if Cfg.fine and s_ in (0, 1, 2, 7, 8, 9):
                    stamp(39 + 4 * (0, 1, 2, 0, 0, 0, 0, 3, 4, 5)[s_] + ks)
            stamp(4 + s_)
        drain()
        ext_mfma(nm, XE, WE, tr)
        if q16:
            for k in range(4):
                a(f"v_mov_b32 v{FA+k}, 0")
            for k in range(3):
                a(f"v_permlane16_swap_b32 v{XE+k}, v{FA+k}")
            for rt, xe in enumerate((XE, FA)):
                d = ACC + 32 + 4 * rt
                a(f"v_mfma_f32_16x16x32_bf16 v[{d}:{d+3}], v[{WE+8}:{WE+11}], v[{xe}:{xe+3}], v[{d}:{d+3}]")
        emit_all(st, lq)
        st.wait2(None, ["tc", "bias"])
        return st

    def kv_addr_setup(X):
        a(f"v_mov_b32 v{X+8}, {CDUM}")
        for h in range(1):
            a(f"""
            s_mov_b32 s{JT}, s{S['w']}
            s_lshl_b32 s{S['t']}, s{JT}, 2
            s_lshr_b32 s{S['t1']}, 0x21021100, s{S['t']}
            s_and_b32 s{S['t1']}, s{S['t1']}, 15
            s_lshr_b32 s{S['t2']}, 0x00044332, s{S['t']}
            s_and_b32 s{S['t2']}, s{S['t2']}, 15
            v_and_b32 v{X}, 31, v{l}
            s_lshl_b32 s{S['t3']}, s{S['t2']}, 5
            s_sub_u32 s{S['t3']}, s{S['t3']}, 80
            v_add_u32 v{X+1}, s{S['t3']}, v{X}
            v_mul_u32_u24 v{X+2}, 3277, v{X+1}
            v_lshrrev_b32 v{X+2}, 16, v{X+2}
            v_mul_u32_u24 v{X+3}, 20, v{X+2}
            v_sub_u32 v{X+3}, v{X+1}, v{X+3}
            v_cmp_gt_u32 vcc, 80, v{X+1}
            v_cmp_eq_u32 s[{S['ex']}:{S['ex']+1}], 0, v{X}
            s_cmp_ge_u32 s{JT}, 5
            s_cselect_b64 s[{S['m1']}:{S['m1']+1}], s[{S['ex']}:{S['ex']+1}], vcc
            s_cselect_b64 s[{S['ex']}:{S['ex']+1}], -1, 0
            v_cndmask_b32 v{X+3}, v{X+3}, 20, s[{S['ex']}:{S['ex']+1}]
            v_lshlrev_b32 v{X+3}, 2, v{X+3}
            v_add_u32 v{X+3}, {CMP}, v{X+3}
            v_lshrrev_b32 v{X+4}, 5, v{l}
            v_lshlrev_b32 v{X+4}, 2, v{X+4}
            s_lshl_b32 s{S['t3']}, s{S['t1']}, 5
            v_add_u32 v{X+4}, s{S['t3']}, v{X+4}
            s_movk_i32 s{S['t3']}, 84
            """)
            for qd in range(4):
                a(f"""
                v_add_u32 v{X+5}, {8*qd}, v{X+4}
                v_mul_u32_u24 v{X+6}, 3277, v{X+5}
                v_lshrrev_b32 v{X+6}, 16, v{X+6}
                v_mad_u32_u24 v{X+7}, v{X+5}, s{S['t3']}, v{X+3}
                v_cmp_eq_u32 vcc, v{X+6}, v{X+2}
                s_or_b64 vcc, vcc, s[{S['ex']}:{S['ex']+1}]
                s_and_b64 s[{S['m2']}:{S['m2']+1}], vcc, s[{S['m1']}:{S['m1']+1}]
                v_cmp_gt_u32 vcc, 80, v{X+5}
                s_and_b64 vcc, vcc, s[{S['m2']}:{S['m2']+1}]
                v_cndmask_b32 v{CMPA+4*h+qd}, v{X+8}, v{X+7}, vcc
                """)
            a(f"""
            s_lshl_b32 s{S['pa']}, s{S['t1']}, 11
            s_lshl_b32 s{S['t3']}, s{S['t2']}, 11
            s_cmp_ge_u32 s{S['w']}, 5
            s_cselect_b32 s{S['pa']+1}, {ONES}, s{S['t3']}
            """)

    def scatter_setup(X):
        for i in range(7):
            a(f"""
            v_add_u32 v{X}, {256*i - 256}, v0
            v_mul_u32_u24 v{X+1}, 3121, v{X}
            v_lshrrev_b32 v{X+1}, 16, v{X+1}
            v_mul_u32_u24 v{X+2}, 21, v{X+1}
            v_sub_u32 v{X+2}, v{X}, v{X+2}
            v_mul_u32_u24 v{X+3}, 3277, v{X+1}
            v_lshrrev_b32 v{X+3}, 16, v{X+3}
            v_mad_u32_u24 v{X+4}, v{X+3}, 20, v{X+2}
            v_lshrrev_b32 v{X+5}, 5, v{X+4}
            v_lshlrev_b32 v{X+5}, 1, v{X+5}
            v_and_b32 v{X+4}, 31, v{X+4}
            v_cmp_eq_u32 vcc, 20, v{X+2}
            v_cndmask_b32 v{X+5}, v{X+5}, 9, vcc
            v_cndmask_b32 v{X+4}, v{X+4}, v{X+3}, vcc
            v_lshrrev_b32 v{X+6}, 4, v{X+1}
            v_add_u32 v{X+5}, v{X+5}, v{X+6}
            v_mul_u32_u24 v{X+6}, 52, v{X+5}
            v_lshrrev_b32 v{X+6}, 8, v{X+6}
            v_mad_u32_u24 v{X+5}, v{X+6}, 15, v{X+5}
            v_lshlrev_b32 v{X+5}, 10, v{X+5}
            v_bfe_u32 v{X+6}, v{X+1}, 2, 1
            v_lshl_add_u32 v{X+4}, v{X+6}, 5, v{X+4}
            v_lshl_add_u32 v{X+5}, v{X+4}, 4, v{X+5}
            v_bfe_u32 v{X+6}, v{X+1}, 3, 1
            v_and_b32 v{X+4}, 3, v{X+1}
            v_lshl_add_u32 v{X+4}, v{X+6}, 2, v{X+4}
            v_lshl_add_u32 v{X+5}, v{X+4}, 1, v{X+5}
            v_add_u32 v{X+5}, {FRG}, v{X+5}
            v_mov_b32 v{X+6}, {GAP}
            v_cmp_gt_u32 vcc, 1680, v{X}
            v_cndmask_b32 v{QSCA+i}, v{X+6}, v{X+5}, vcc
            """)

    NH = 7 + Cfg.nx
    O0 = NH
    NMIN = 6 - Cfg.nx

    def present(i):
        if i < NMIN or i in (O0, O0 + 1):
            return None
        if i < 7:
            return f"s_cmp_gt_u32 s{S['nH']}, {i}"
        if i < NH:
            return f"s_cmp_lt_u32 s{S['w']}, 4"
        return f"s_cmp_gt_u32 s{S['nO']}, 2"

    def step_off(i, dst, base, mul):
        if 7 <= i < NH:
            it = f"s_add_u32 s{dst}, s{S['sX']}, {i - 7}\n"
        else:
            n, r, s0, k = (S["nH"], S["rH"], S["sH"], i) if i < 7 else (S["nO"], S["rO"], S["sO"], i - O0)
            it = f"""
            s_add_u32 s{dst}, s{r}, {k}
            s_cmp_ge_u32 s{dst}, s{n}
            s_cselect_b32 s{S['pc']}, s{n}, 0
            s_sub_u32 s{dst}, s{dst}, s{S['pc']}
            s_add_u32 s{dst}, s{dst}, s{s0}
            """
        it += f"s_mul_i32 s{dst}, s{dst}, {mul}\ns_add_u32 s{dst}, s{dst}, s{base}\n"
        if present(i):
            it += f"{present(i)}\ns_cselect_b32 s{dst}, s{dst}, {OOB}"
        return I(it)

    def b_load(i, reg):
        pcs = []
        for ct in range(5):
            pre = step_off(i, JT, S["p2B"], 5120) if ct == 0 else (I(f"s_add_u32 s{JT}, s{JT}, 4096") if ct == 4 else [])
            pcs.append(pre + [("vm", f"buffer_load_dwordx4 v[{reg+4*ct}:{reg+4*ct+3}], v{L16}, s[{SWS}:{SWS+3}], s{JT} offen offset:{(ct&3)*1024} sc1", ("B", i))])
        return pcs

    def b_prefetch_regs(first=0):
        pcs = []
        for i in range(first, 5):
            pcs += b_load(i, BB + 20 * i)
        return pcs

    def b_prefetch_lds():
        pcs = []
        for i in (O0, O0 + 1, O0 + 2):
            for ct in range(5):
                pre = step_off(i, JT, S["p2B"], 5120) + I(f"s_mul_i32 s{JT1}, s{S['w']}, {PW}") if ct == 0 else I(f"s_add_u32 s{JT}, s{JT}, 1024")
                pcs.append(pre + I(f"s_add_u32 m0, s{JT1}, {(i-O0)*5120 + ct*1024}") +
                           [("vm", f"buffer_load_dwordx4 v{L16}, s[{SWS}:{SWS+3}], s{JT} offen sc1 lds", ("B", i))])
        return pcs

    P2S = S["so"]

    def areg(i):
        return T + 16 * (i % 3) if i < NH else BB + 20 * ((NH - 5 + i - O0) % 5)

    def breg(i):
        return BB + 20 * (i % 5) if i < NH else BB + 20 * ((NH - 2 + ((i - O0) & 1)) % 5)

    def a_load(i):
        f = areg(i)
        it = [("atomic", step_off(i, P2S, S["p2A"], 4096))]
        if Cfg.p2prio == 1:
            it += I(f"s_setprio {(3, 2, 1, 2, 2, 1, 1, 0, 0, 0)[i]}")
        if Cfg.p2prio == 2 and i < 3:
            it += I(f"s_setprio {3 - i}")
        for tt in range(4):
            it.append(("vm", f"buffer_load_dwordx4 v[{f+4*tt}:{f+4*tt+3}], v{L16}, s[{SWS}:{SWS+3}], s{P2S} offen offset:{tt*1024}{' sc1' if Cfg.p2sc else ''}", ("A", i)))
        return it

    def a2_addr(dst):
        a(f"""
        s_lshl_b32 s{S['t']}, s{S['rb']}, 1
        s_lshr_b32 s{S['t1']}, s{S['rg']}, 1
        s_add_u32 s{S['t']}, s{S['t']}, s{S['t1']}
        s_mul_i32 s{S['t']}, s{S['t']}, {A2_RB}
        s_and_b32 s{S['t1']}, s{S['rg']}, 1
        s_lshl_b32 s{S['t1']}, s{S['t1']}, 11
        s_add_u32 s{S['t']}, s{S['t']}, s{S['t1']}
        v_bfe_u32 v{dst}, v{l}, 4, 1
        v_lshlrev_b32 v{dst}, 10, v{dst}
        v_lshrrev_b32 v{dst+1}, 5, v{l}
        v_lshl_add_u32 v{dst}, v{dst+1}, 8, v{dst}
        v_and_b32 v{dst+1}, 15, v{l}
        v_lshl_add_u32 v{dst}, v{dst+1}, 4, v{dst}
        v_add_u32 v{dst}, s{S['t']}, v{dst}
        """)

    def signal(flag, idx_reg):
        a(f"""
        s_add_u32 s{S['t']}, s{idx_reg}, {flag}
        s_lshl_b32 s{S['t']}, s{S['t']}, 7
        v_mov_b32 v{T+46}, s{S['t']}
        v_mov_b32 v{T+47}, 1
        s_cmp_eq_u32 s{S['w']}, 0
        s_cselect_b32 exec_lo, 1, 0
        s_mov_b32 exec_hi, 0
        global_atomic_add v{T+46}, v{T+47}, s[{S['fl']}:{S['fl']+1}]
        s_mov_b64 exec, -1
        """)

    def lds_add(off):
        a(f"v_mov_b32 v{RS}, {SYN}\nv_mov_b32 v{IRS}, 1\ns_mov_b64 exec, 1\nds_add_u32 v{RS}, v{IRS} offset:{off}\ns_mov_b64 exec, -1")

    def lds_wait(off, target, err, tmp):
        def chk():
            a(f"ds_read_b32 v{tmp+1}, v{tmp} offset:{off}\ns_waitcnt lgkmcnt(0)\nv_readfirstlane_b32 s{S['t']}, v{tmp+1}\ns_cmp_ge_u32 s{S['t']}, {target}")
        a(f"v_mov_b32 v{tmp}, {SYN}")
        chk()
        poll_slow(chk, err, sleep=1)

    def own_flag(flag, target, err, two, blocking=True, fail=None):
        def chk():
            a(f"""
            global_load_dword v{IRS}, v{RS}, s[{S['fl']}:{S['fl']+1}] sc1
            s_waitcnt vmcnt(0)
            v_cmp_gt_u32 vcc, {target}, v{IRS}
            s_cmp_eq_u64 vcc, 0
            """)
        a(f"""
        s_lshr_b32 s{S['t']}, s{S['r2']}, 1
        s_lshl_b32 s{S['t']}, s{S['t']}, 3
        s_add_u32 s{S['t']}, s{S['t']}, s{S['w']}
        s_add_u32 s{S['t']}, s{S['t']}, {flag}
        {f"v_or_b32 v{RS}, s{S['t']}, v{l}" if two else f"v_lshlrev_b32 v{RS}, 2, v{l}"}
        {"" if two else f"v_or_b32 v{RS}, s{S['w']}, v{RS}"}
        {"" if two else f"s_sub_u32 s{S['t']}, s{S['t']}, s{S['w']}"}
        {"" if two else f"v_add_u32 v{RS}, s{S['t']}, v{RS}"}
        v_lshlrev_b32 v{RS}, 7, v{RS}
        s_mov_b64 exec, 3
        """)
        chk()
        if blocking:
            poll_slow(chk, err, sleep=Cfg.psleep)
            a("s_mov_b64 exec, -1")
        else:
            a(f"s_mov_b64 exec, -1\ns_cbranch_scc0 {fail}")

    def wait_flag(st, flag, target, err, line_expr, who=0, then=None):
        skip = a.newlabel("WF")

        def chk():
            a(f"""
            global_load_dword v{IRS}, v{RS}, s[{S['fl']}:{S['fl']+1}] sc1
            s_waitcnt vmcnt(0)
            v_readfirstlane_b32 s{S['t']}, v{IRS}
            s_cmp_ge_u32 s{S['t']}, {target}
            """)
        a(f"""
        s_cmp_lg_u32 s{S['w']}, {who}
        s_cbranch_scc1 {skip}
        {line_expr}
        s_add_u32 s{S['t']}, s{S['t']}, {flag}
        s_lshl_b32 s{S['t']}, s{S['t']}, 7
        v_mov_b32 v{RS}, s{S['t']}
        s_mov_b64 exec, 1
        """)
        chk()
        poll_slow(chk, err, sleep=4)
        a("s_mov_b64 exec, -1")
        if then is not None:
            lds_add(then)
        a.label(skip)

    def emit_pcs(st, pcs):
        for p in pcs:
            emit_all(st, p)

    def h_epilogue(nt, tp, st, first, lds_done=False):
        C = T + 12
        a(f"""
        v_mul_f32 v{C}, {hx(GC1)}, v{RS}
        v_mul_f32 v{C+2}, v{RS}, v{RS}
        v_mul_f32 v{C+2}, v{C+2}, v{RS}
        v_mul_f32 v{C+2}, {hx(GC2)}, v{C+2}
        v_mov_b32 v{C+4}, v{IRS}
        """)
        AD = T + 18
        a2_addr(AD)
        a(f"s_lshl_b32 s{S['t']}, s{S['col0']}, 7\ns_lshl_b32 s{S['t1']}, s{tp}, 12\ns_add_u32 s{S['t']}, s{S['t']}, s{S['t1']}")
        pf = b_prefetch_regs()
        W0 = T + 20
        pk = Cfg.gelu_pk0 if first else 1
        if Cfg.eprio:
            a(f"s_setprio {Cfg.eprio if nt == 3 else 1}")
        for t in range(nt):
            acc = ACC + 16 * t
            for c in range(2):
                o = T + 32 + 4 * ((2 * t + c) % 3)
                ps = [acc + 8 * c + 2 * k for k in range(4)]
                ws = [W0 + 2 * k for k in range(4)]
                seq = []
                if pk:
                    seq.append([f"v_pk_mul_f32 v[{w}:{w+1}], v[{p}:{p+1}], v[{p}:{p+1}]" for p, w in zip(ps, ws)])
                    seq.append([f"v_pk_fma_f32 v[{w}:{w+1}], v[{w}:{w+1}], v[{C+2}:{C+3}], v[{C}:{C+1}] op_sel_hi:[1,0,0]" for w in ws])
                    seq.append([f"v_pk_mul_f32 v[{w}:{w+1}], v[{w}:{w+1}], v[{p}:{p+1}]" for p, w in zip(ps, ws)])
                else:
                    seq.append([f"v_mul_f32 v{w+k}, v{p+k}, v{p+k}" for p, w in zip(ps, ws) for k in range(2)])
                    seq.append([f"v_fma_f32 v{w+k}, v{w+k}, v{C+2}, v{C}" for w in ws for k in range(2)])
                    seq.append([f"v_mul_f32 v{w+k}, v{w+k}, v{p+k}" for p, w in zip(ps, ws) for k in range(2)])
                seq.append([f"v_exp_f32 v{w+k}, v{w+k}" for w in ws for k in range(2)])
                if pk:
                    seq.append([f"v_pk_fma_f32 v[{w}:{w+1}], v[{w}:{w+1}], v[{C+4}:{C+5}], v[{C+4}:{C+5}] op_sel_hi:[1,0,0]" for w in ws])
                else:
                    seq.append([f"v_fma_f32 v{w+k}, v{w+k}, v{C+4}, v{C+4}" for w in ws for k in range(2)])
                seq.append([f"v_rcp_f32 v{w+k}, v{w+k}" for w in ws for k in range(2)])
                if pk:
                    seq.append([f"v_pk_mul_f32 v[{w}:{w+1}], v[{w}:{w+1}], v[{p}:{p+1}]" for p, w in zip(ps, ws)])
                else:
                    seq.append([f"v_mul_f32 v{w+k}, v{w+k}, v{p+k}" for p, w in zip(ps, ws) for k in range(2)])
                seq.append([f"v_cvt_pk_bf16_f32 v{o+k}, v{w}, v{w+1}" for k, w in enumerate(ws)])
                for gi, grp in enumerate(seq):
                    for x in grp:
                        a(x)
                    if not first and gi in (1, 3, 5, 2, 4)[:Cfg.pf_h] and pf:
                        emit_all(st, pf.pop(0))
                st.emit(("vm", f"buffer_store_dwordx4 v[{o}:{o+3}], v{AD}, s[{SWS}:{SWS+3}], s{S['t']} offen offset:{c*512} sc1", "hst"))
                if first and 2 * t + c + 1 == Cfg.hbar_chunk:
                    a("s_barrier")
            a(f"s_add_u32 s{S['t']}, s{S['t']}, 4096")
        stamp(14)
        pf = pf + (b_prefetch_lds() if Cfg.lds_pre and not (nt == 3 and Cfg.early_lds) else [])
        if nt == 3 and Cfg.pf_mid:
            a("s_setprio 0")
            emit_pcs(st, pf[:Cfg.pf_mid])
            pf = pf[Cfg.pf_mid:]
        st.wait("vm", ["hst"])
        stamp(15)
        a("s_setprio 0\ns_barrier")
        a(f"s_lshl_b32 s{S['t1']}, s{S['rb']}, 3\ns_add_u32 s{S['t1']}, s{S['t1']}, s{S['j']}")
        signal(F_H, S["t1"])
        emit_pcs(st, pf)

    def products_and_atomics(q, st):
        D = ACC + 48 if q else ACC
        PA, X = T, T + 40
        pb = [(ACC + 64 + 4 * (s_ & 3)) if q else (ACC + 16 + 4 * s_) for s_ in range(8)]
        a(f"""
        v_add_u32 v{X}, s{S['pa']}, v{L16}
        v_add_u32 v{X+1}, s{S['pa']+1}, v{L16}
        s_cmp_ge_u32 s{S['w']}, 5
        s_cselect_b32 s{S['t']}, 0, 1024
        s_cselect_b32 s{S['t1']}, 0, 10240
        v_add_u32 v{X+2}, s{S['t']}, v{X+1}
        s_waitcnt lgkmcnt(0)
        s_barrier
        """)
        st.q["ds"].clear()
        stamp(14)

        def rd(s_):
            st.emit(("ds", f"ds_read_b128 v[{PA+4*s_}:{PA+4*s_+3}], v{X} offset:{(s_ >> 1) * 10240 + (s_ & 1) * 1024}", ("p", s_)))
            st.emit(("ds", f"ds_read_b128 v[{pb[s_]}:{pb[s_]+3}], v{X+1+(s_&1)}", ("p", s_)))
            if s_ & 1 and s_ < 7:
                a(f"v_add_u32 v{X+1}, s{S['t1']}, v{X+1}\nv_add_u32 v{X+2}, s{S['t1']}, v{X+2}")
        ahead = 4 if q else 7
        for s_ in range(ahead):
            rd(s_)
        for s_ in range(8):
            st.wait("ds", [("p", s_)])
            c = "0" if s_ == 0 else f"v[{D}:{D+15}]"
            a(f"v_mfma_f32_32x32x16_bf16 v[{D}:{D+15}], v[{PA+4*s_}:{PA+4*s_+3}], v[{pb[s_]}:{pb[s_]+3}], {c}")
            if s_ + ahead < 8:
                rd(s_ + ahead)
        a(f"""
        s_lshl_b32 s{S['t']}, s{S['j']}, 13
        s_add_u32 s96, s24, s{S['t']}
        s_addc_u32 s97, s25, 0
        s_add_u32 s96, s96, {KV_OFF}
        s_addc_u32 s97, s97, 0
        v_lshlrev_b32 v{X}, 2, v0
        v_add_u32 v{X+1}, 4096, v{X}
        v_add_u32 v{X+2}, {CMP}, v{X}
        v_cmp_gt_u32 vcc, 144, v0
        """)
        for r in range(16):
            a(f"ds_write_b32 v{CMPA + (r >> 2)}, v{D+r} offset:{(r & 3)*84}")
        a("s_waitcnt lgkmcnt(0)\ns_barrier")
        stamp(25)
        for i in range(4):
            a(f"ds_read_b32 v{T+32+i}, v{X+2} offset:{i*2048}")
        for i in range(4):
            a(f"s_waitcnt lgkmcnt({3-i})")
            if i == 3:
                a("s_mov_b64 exec, vcc")
            st.emit(("vm0" if i == 3 else "vm", f"global_atomic_add_f32 v{X+(i>>1)}, v{T+32+i}, s[96:97] offset:{(i&1)*2048}", "kva"))
        a("s_mov_b64 exec, -1")

    st = kloop(True, True)
    a(f"""
    v_mov_b32 v{T+8}, 0
    v_mov_b32 v{T+9}, 0
    v_mov_b32 v{T+10}, 0
    v_mov_b32 v{T+11}, 0
    v_lshlrev_b32 v{T+7}, 4, v0
    v_add_u32 v{T+6}, {FRG - 4096}, v{T+7}
    ds_write_b128 v{T+6}, v[{T+8}:{T+11}]
    ds_write_b128 v{T+6}, v[{T+8}:{T+11}] offset:1024
    ds_write_b128 v{T+6}, v[{T+8}:{T+11}] offset:{PW}
    ds_write_b128 v{T+6}, v[{T+8}:{T+11}] offset:{PW + 1024}
    ds_write_b128 v{T+6}, v[{T+8}:{T+11}] offset:{2*PW}
    v_lshlrev_b32 v{T+7}, 2, v0
    v_add_u32 v{T+7}, {ONES - 1024}, v{T+7}
    v_mov_b32 v{T+12}, 0x3f803f80
    ds_write_b32 v{T+7}, v{T+12}
    """)
    pfq = b_prefetch_regs() + (b_prefetch_lds() if Cfg.lds_pre and not Cfg.early_lds else [])
    emit_pcs(st, pfq[:Cfg.pf_q1])
    pfq = pfq[Cfg.pf_q1:]
    if Cfg.cprio:
        a("s_setprio 3")
    products_and_atomics(True, st)
    PQ = ACC + 48
    a(f"v_mul_f32 v{T+44}, {hx(LOG2E)}, v{RS}\nv_mul_f32 v{T+45}, {hx(EPS6)}, v{IRS}")
    for f in range(5):
        base = ACC + 8 * f
        if f == 4 and Cfg.q16:
            C = T + 8
            a(f"""
            v_mov_b32 v{C}, v{RS}
            v_mov_b32 v{C+4}, v{RS}
            v_mov_b32 v{C+2}, v{T+45}
            v_mov_b32 v{C+6}, v{T+45}
            v_permlane16_swap_b32 v{C}, v{C+4}
            v_permlane16_swap_b32 v{C+2}, v{C+6}
            v_mul_f32 v{C+1}, {hx(LOG2E)}, v{C}
            v_mul_f32 v{C+5}, {hx(LOG2E)}, v{C+4}
            """)
            for k in range(8):
                a(f"v_mul_f32 v{T+k}, v{C+1+4*(k>>2)}, v{base+k}")
            for k in range(8):
                a(f"v_exp_f32 v{T+k}, v{T+k} clamp")
            for k in range(8):
                a(f"v_max_f32 v{base+k}, v{base+k}, v{C+2+4*(k>>2)}")
            for k in range(8):
                a(f"v_fma_f32 v{T+k}, v{base+k}, v{C+4*(k>>2)}, v{T+k}")
            for k in range(4):
                a(f"v_cvt_pk_bf16_f32 v{PQ+16+k}, v{T+2*k}, v{T+2*k+1}")
            for k in range(2):
                a(f"v_permlane16_swap_b32 v{PQ+16+k}, v{PQ+18+k}")
            for k in range(2):
                a(f"v_permlane32_swap_b32 v{PQ+16+k}, v{PQ+18+k}")
            if Cfg.phi_n == 5:
                st.wait("vm", ["kva"])
                a("s_barrier")
            continue
        for k in range(4):
            a(f"v_pk_mul_f32 v[{T+2*k}:{T+2*k+1}], v[{base+2*k}:{base+2*k+1}], v[{T+44}:{T+45}] op_sel_hi:[1,0]")
        for k in range(8):
            a(f"v_exp_f32 v{T+k}, v{T+k} clamp")
        for k in range(8):
            a(f"v_max_f32 v{base+k}, v{base+k}, v{T+45}")
        for k in range(4):
            a(f"v_pk_fma_f32 v[{T+2*k}:{T+2*k+1}], v[{base+2*k}:{base+2*k+1}], v[{RS}:{RS+1}], v[{T+2*k}:{T+2*k+1}] op_sel_hi:[1,0,1]")
        for k in range(4):
            a(f"v_cvt_pk_bf16_f32 v{PQ+4*f+k}, v{T+2*k}, v{T+2*k+1}")
        if f == Cfg.phi_n - 1:
            st.wait("vm", ["kva"])
            stamp(26)
            a("s_barrier")
            stamp(15)
    AD = T + 44
    a2_addr(AD)
    a(f"""
    v_add_u32 v{T+46}, {FRG}, v{L16}
    v_lshlrev_b32 v{T+8}, 2, v0
    v_subrev_u32 v{T+8}, 1024, v{T+8}
    v_add_u32 v{T+9}, 4096, v{T+8}
    """)
    if Cfg.pf_q2:
        a("s_setprio 0")
        emit_pcs(st, pfq[:Cfg.pf_q2])
        pfq = pfq[Cfg.pf_q2:]
        if Cfg.cprio:
            a("s_setprio 3")
    wait_flag(st, F_KV, 16, 0x102, f"s_mov_b32 s{S['t']}, s{S['j']}", who=4, then=0)
    lds_wait(0, 1, 0x109, RS)
    stamp(16)
    for i in range(7):
        st.emit(("vm", f"global_load_dword v{T+i}, v{T+8+(i>>2)}, s[96:97] offset:{(i&3)*1024} sc1", ("g", i)))
    for i in range(7):
        a(f"v_cmp_le_u32 vcc, {frg(9)}, v{QSCA+i}")
        st.wait("vm", [("g", i)])
        a(f"""
        v_cvt_pk_bf16_f32 v{T+i}, v{T+i}, v{T+i}
        ds_write_b16 v{QSCA+i}, v{T+i}
        s_mov_b64 exec, vcc
        ds_write_b16 v{QSCA+i}, v{T+i} offset:64
        s_mov_b64 exec, -1
        """)
    a("s_waitcnt lgkmcnt(0)")
    lds_add(4)
    lds_wait(4, 4, 0x10a, RS)
    stamp(17)
    NUM, DEN = ACC, T + 28
    prods = [(9 + ks, ks, DEN) for ks in range(5)] + [(ks + 2 * Tt, ks, NUM + 16 * Tt) for Tt, kss in ((0, (0, 1, 2)), (1, (1, 2, 3, 4)), (2, (3, 4))) for ks in kss]
    FRS = [T + 4 * i for i in range(7)] + [ACC + 68 + 4 * i for i in range(3)]

    def frd(i):
        fi = prods[i][0]
        r = FRS[i % 10]
        st.emit(("ds", f"ds_read_b128 v[{r}:{r+3}], v{T+46} offset:{frg(fi)-FRG}", ("f", i)))
    for i in range(10):
        frd(i)
    seen = set()
    for i, (fi, ks, D) in enumerate(prods):
        st.wait("ds", [("f", i)])
        c = f"v[{D}:{D+15}]" if D in seen else "0"
        seen.add(D)
        r = FRS[i % 10]
        a(f"v_mfma_f32_32x32x16_bf16 v[{D}:{D+15}], v[{r}:{r+3}], v[{PQ+4*ks}:{PQ+4*ks+3}], {c}")
        if i + 10 < 14:
            frd(i + 10)
        if i == 8:
            for h in range(4):
                a(f"v_add_f32 v{DEN+h}, {hx(1e-6)}, v{DEN+h}")
            for h in range(4):
                a(f"v_rcp_f32 v{DEN+h}, v{DEN+h}")
    a(f"""
    s_mov_b32 s{S['m1']}, 0
    s_mov_b32 s{S['m1']+1}, -1
    v_cndmask_b32 v{DEN+4}, v{DEN}, v{DEN+1}, s[{S['m1']}:{S['m1']+1}]
    v_cndmask_b32 v{DEN+5}, v{DEN+2}, v{DEN+3}, s[{S['m1']}:{S['m1']+1}]
    s_mul_i32 s{S['t2']}, s{S['j']}, 5
    """)
    for p2 in range(5):
        for k in range(8):
            qd = 2 * p2 + (k >> 2)
            h0, h1 = (2 * qd) // 5, (2 * qd + 1) // 5
            dr = DEN + h0 if h0 == h1 else (DEN + 4 if h0 == 0 else DEN + 5)
            a(f"v_mul_f32 v{NUM+8*p2+k}, v{NUM+8*p2+k}, v{dr}")
        o = ACC + 48 + 4 * p2
        a(f"""
        s_add_u32 s{S['t']}, s{S['t2']}, {p2}
        s_lshr_b32 s{S['t1']}, s{S['t']}, 1
        s_lshl_b32 s{S['t1']}, s{S['t1']}, 12
        s_and_b32 s{S['t']}, s{S['t']}, 1
        s_lshl_b32 s{S['t']}, s{S['t']}, 9
        s_add_u32 s{S['t']}, s{S['t']}, s{S['t1']}
        s_add_u32 s{S['t']}, s{S['t']}, {54*4096}
        """)
        for k in range(4):
            a(f"v_cvt_pk_bf16_f32 v{o+k}, v{NUM+8*p2+2*k}, v{NUM+8*p2+2*k+1}")
        a(f"buffer_store_dwordx4 v[{o}:{o+3}], v{AD}, s[{SWS}:{SWS+3}], s{S['t']} offen sc1")
    stamp(18)
    a(f"""
    s_lshl_b32 s{S['t']}, s{S['rb']}, 3
    s_add_u32 s{S['t']}, s{S['t']}, s{S['j']}
    s_add_u32 s{S['t']}, s{S['t']}, {F_O}
    s_lshl_b32 s{S['t']}, s{S['t']}, 7
    v_mov_b32 v{T+46}, s{S['t']}
    v_mov_b32 v{T+47}, 1
    """)
    own_flag(F_H, 1, 0x10b, False)
    a(f"""
    s_mov_b64 exec, 1
    global_atomic_add v{T+46}, v{T+47}, s[{S['fl']}:{S['fl']+1}]
    s_mov_b64 exec, -1
    """)
    emit_pcs(st, pfq)
    for i in range(3):
        emit_all(st, a_load(i))
    a(f"s_setprio {Cfg.qprio}\ns_branch PHASE2C")

    a.label("ROLE_KV")
    st = kloop(False, True)
    if Cfg.cprio:
        a("s_setprio 3")
    RT, RL2, E = T, T + 16, T + 32
    X = T + 40
    a(f"""
    v_lshrrev_b32 v{X}, 5, v{l}
    v_lshlrev_b32 v{X}, 4, v{X}
    s_lshl_b32 s{S['t']}, s{S['rg']}, 7
    s_add_u32 s{S['t']}, s{S['t']}, {ST_RS}
    v_add_u32 v{X}, s{S['t']}, v{X}
    """)
    for i in range(4):
        a(f"ds_read_b128 v[{RT+4*i}:{RT+4*i+3}], v{X} offset:{i*32}")
    a(f"""
    s_mul_i32 s{S['t']}, s{S['rg']}, 10240
    v_add_u32 v{X+1}, s{S['t']}, v{L16}
    s_mov_b32 s{S['m2']}, 0x0000ffff
    s_mov_b32 s{S['m2']+1}, 0x0000ffff
    v_mov_b32 v{X+2}, {hx(LOG2E)}
    v_mov_b32 v{X+3}, {hx(EPS6)}
    v_mov_b32 v{X+4}, 0xff800000
    v_cndmask_b32 v{X+5}, v{X+4}, v{X+3}, s[{S['m2']}:{S['m2']+1}]
    v_cndmask_b32 v{X+4}, v{X+4}, 0, s[{S['m2']}:{S['m2']+1}]
    s_waitcnt lgkmcnt(0)
    """)
    for k in range(8):
        a(f"v_pk_mul_f32 v[{RL2+2*k}:{RL2+2*k+1}], v[{RT+2*k}:{RT+2*k+1}], v[{X+2}:{X+3}] op_sel_hi:[1,0]")
    pfk = b_prefetch_regs()
    for t in range(5):
        for hf in range(2):
            base = ACC + 16 * t + 8 * hf
            o = base
            if Cfg.kv_pk:
                if t <= 2:
                    for k in range(4):
                        p, r = f"v[{base+2*k}:{base+2*k+1}]", f"v[{RL2+8*hf+2*k}:{RL2+8*hf+2*k+1}]"
                        if t < 2:
                            a(f"v_pk_mul_f32 v[{E+2*k}:{E+2*k+1}], {p}, {r}")
                        else:
                            a(f"v_pk_fma_f32 v[{E+2*k}:{E+2*k+1}], {p}, {r}, v[{X+4}:{X+5}] op_sel_hi:[1,1,0]")
                for k in range(4):
                    a(f"v_pk_mul_f32 v[{base+2*k}:{base+2*k+1}], v[{base+2*k}:{base+2*k+1}], v[{RT+8*hf+2*k}:{RT+8*hf+2*k+1}]")
            else:
                if t <= 2:
                    for k in range(8):
                        if t < 2:
                            a(f"v_mul_f32 v{E+k}, v{base+k}, v{RL2+8*hf+k}")
                        else:
                            a(f"v_fma_f32 v{E+k}, v{base+k}, v{RL2+8*hf+k}, v{X+4}")
                for k in range(8):
                    a(f"v_mul_f32 v{base+k}, v{base+k}, v{RT+8*hf+k}")
            if t <= 2:
                for k in range(8):
                    a(f"v_exp_f32 v{E+k}, v{E+k} clamp")
                for k in range(8):
                    a(f"v_max_f32 v{base+k}, v{X+3 if t < 2 else X+5}, v{base+k}")
                if Cfg.kv_pk:
                    for k in range(4):
                        a(f"v_pk_add_f32 v[{base+2*k}:{base+2*k+1}], v[{base+2*k}:{base+2*k+1}], v[{E+2*k}:{E+2*k+1}]")
                else:
                    for k in range(8):
                        a(f"v_add_f32 v{base+k}, v{base+k}, v{E+k}")
            for k in range(4):
                a(f"v_cvt_pk_bf16_f32 v{o+k}, v{base+2*k}, v{base+2*k+1}")
            a(f"ds_write_b128 v{X+1}, v[{o}:{o+3}] offset:{t*2048 + hf*1024}")
            for _ in range(Cfg.pf_k0):
                if pfk:
                    emit_all(st, pfk.pop(0))
    products_and_atomics(False, st)
    st.wait("vm", ["kva"])
    stamp(26)
    a("s_barrier")
    stamp(15)
    signal(F_KV, S["j"])
    a("s_setprio 0")
    emit_pcs(st, pfk + (b_prefetch_lds() if Cfg.lds_pre else []))
    stamp(16)
    a("s_branch PHASE2")

    a.label("ROLE_H0")
    st = kloop(False, False)
    h_epilogue(4, S["tp1"], st, False)
    a("s_branch PHASE2")
    a.label("ROLE_H1")
    st = kloop(True, False)
    h_epilogue(3, S["tp1"], st, False, Cfg.early_lds)

    a.label("PHASE2")
    stamp(19)
    st = Stream(a)
    own_flag(F_H, 1, 0x105, False)
    stamp(20)

    OA, RAD, WA, CB = SMALL, SMALL + 3, SMALL + 6, SMALL + 14
    XAT = max(k for k in range(NH) if k % 3 == 1)
    XR = [T + 16 + 2 * k for k in range(3)]
    BR = [T + 22 + 2 * k for k in range(3)]

    def epi_setup():
        X = RS
        it = I(f"""
        s_mov_b32 s{SR}, s20
        s_mov_b32 s{SR+1}, s21
        s_mov_b32 s{SR+2}, {2048*1280}
        s_mov_b32 s{SR+3}, 0x20000
        s_mov_b32 s{SAUX}, s18
        s_mov_b32 s{SAUX+1}, s19
        s_mov_b32 s{SAUX+2}, 1280
        s_mov_b32 s{SAUX+3}, 0x20000
        s_mul_i32 s{JT}, s{S['r2']}, {64*1280}
        s_mul_i32 s{JT1}, s{S['c2']}, 160
        s_add_u32 s{JT}, s{JT}, s{JT1}
        """)
        Y = SMALL + 7
        for i in range(3):
            it += I(f"""
            v_add_u32 v{Y}, {512*i}, v0
            v_mul_u32_u24 v{Y+1}, 3277, v{Y}
            v_lshrrev_b32 v{Y+1}, 16, v{Y+1}
            v_mul_u32_u24 v{Y+2}, 20, v{Y+1}
            v_sub_u32 v{Y+2}, v{Y}, v{Y+2}
            v_mul_u32_u24 v{Y+3}, 1280, v{Y+1}
            v_lshl_add_u32 v{Y+3}, v{Y+2}, 3, v{Y+3}
            v_add_u32 v{Y+3}, s{JT}, v{Y+3}
            v_cmp_gt_u32 vcc, 1280, v{Y}
            v_mov_b32 v{Y+4}, {OOB}
            v_cndmask_b32 v{OA+i}, v{Y+4}, v{Y+3}, vcc
            v_bfe_u32 v{Y+4}, v{Y+1}, 1, 2
            v_xor_b32 v{Y+4}, v{Y+4}, v{Y+2}
            v_mul_u32_u24 v{Y+5}, 320, v{Y+1}
            v_lshl_add_u32 v{Y+5}, v{Y+4}, 4, v{Y+5}
            v_cndmask_b32 v{RAD+i}, 0, v{Y+5}, vcc
            v_lshlrev_b32 v{CB+i}, 3, v{Y+2}
            """)
        it += I(f"""
        v_and_b32 v{Y}, 15, v{l}
        v_mul_u32_u24 v{Y}, 320, v{Y}
        v_lshrrev_b32 v{Y+1}, 4, v{l}
        v_bfe_u32 v{Y+2}, v{l}, 1, 2
        v_xor_b32 v{Y+1}, v{Y+1}, v{Y+2}
        v_lshl_add_u32 v{Y}, v{Y+1}, 4, v{Y}
        s_mul_i32 s{JT}, s{S['w']}, {PW}
        v_add_u32 v{WA}, s{JT}, v{Y}
        v_add_u32 v{Y+6}, s{JT}, v{L16}
        """)
        return it

    def epi_loads():
        it = I(f"s_mul_i32 s{JT1}, s{S['c2']}, 160")
        for i in range(3):
            it.append(("vm", f"buffer_load_dwordx2 v[{XR[i]}:{XR[i]+1}], v{OA+i}, s[{SX}:{SX+3}], 0 offen", "x"))
            it.append(("vm", f"buffer_load_dwordx2 v[{BR[i]}:{BR[i]+1}], v{CB+i}, s[{SAUX}:{SAUX+3}], s{JT1} offen", "x"))
        return it

    LB = SMALL + 13

    def p2_step(i, fill):
        st.wait("vm", [("A", i), ("B", i)])
        st.wait("ds", [("B", i)])
        f, b = areg(i), breg(i)
        opt = present(i) is not None
        if opt:
            emit_all(st, fill)
            fill = []
            lab = a.newlabel("OPT")
            a(f"{present(i)}\ns_cbranch_scc0 {lab}")
        k = 0
        for tt in range(4):
            for ct in range(5):
                acc = ACC + 4 * (tt * 5 + ct)
                c = "0" if i == 0 else f"v[{acc}:{acc+3}]"
                if not Cfg.x_p2n or (tt == 0 and ct == 0):
                    a(f"v_mfma_f32_16x16x32_bf16 v[{acc}:{acc+3}], v[{b+4*ct}:{b+4*ct+3}], v[{f+4*tt}:{f+4*tt+3}], {c}")
                k += 1
                n = -(-len(fill) // max(1, Cfg.p2span + 1 - k)) if fill else 0
                for _ in range(min(n, len(fill))):
                    emit_item(st, fill.pop(0))
        if opt:
            a.label(lab)

    def lds_b(i):
        r = breg(i)
        return [("wvm", [("B", i)])] + [("ds", f"ds_read_b128 v[{r+4*ct}:{r+4*ct+3}], v{LB} offset:{(i-O0)*5120 + ct*1024}", ("B", i)) for ct in range(5)]

    def o_loads(s2):
        for k in (O0, O0 + 1, O0 + 2):
            emit_all(s2, a_load(k))

    def o_peek():
        a(f"""
        s_lshr_b32 s{S['t']}, s{S['r2']}, 1
        s_lshl_b32 s{S['t']}, s{S['t']}, 3
        s_add_u32 s{S['t']}, s{S['t']}, s{S['w']}
        s_add_u32 s{S['t']}, s{S['t']}, {F_O}
        v_or_b32 v{RS}, s{S['t']}, v{l}
        v_lshlrev_b32 v{RS}, 7, v{RS}
        s_mov_b64 exec, 3
        """)
        st.emit(("vm", f"global_load_dword v{IRS}, v{RS}, s[{S['fl']}:{S['fl']+1}] sc1", "of"))
        a("s_mov_b64 exec, -1")

    def o_try():
        l1 = a.newlabel("OT")
        st.wait("vm", ["of"])
        a(f"""
        s_mov_b32 s{S['hs']}, 0
        v_cmp_gt_u32 vcc, 4, v{IRS}
        s_and_b32 s{S['t']}, vcc_lo, 3
        s_cbranch_scc1 {l1}
        s_mov_b32 s{S['hs']}, 1
        """)
        o_loads(Stream(a))
        a.label(l1)

    def o_wait():
        done = a.newlabel("OW")
        if Cfg.o_try >= 0:
            a(f"s_cmp_eq_u32 s{S['hs']}, 1\ns_cbranch_scc1 {done}")
        own_flag(F_O, 4, 0x106, True)
        o_loads(st)
        a.label(done)
        stamp(21)

    def after_step(i):
        it = []
        if i + 3 < NH:
            it += a_load(i + 3)
        if i + 5 < NH:
            for p in b_load(i + 5, breg(i)):
                it.append(("atomic", p))
        if i in (0, 1, 2) and not Cfg.lds_pre:
            it += [("atomic", p) for p in b_prefetch_lds()[5 * i:5 * i + 5]]
        if i == NH - 4 and Cfg.o_try >= 0:
            it.append(("call", o_peek))
        if i == NH - 2 and Cfg.o_try >= 0:
            it.append(("call", o_try))
        if i == NH - 1:
            it.append(("call", o_wait))
        if i == XAT:
            it += epi_loads()
        if i in (NH - 2, NH - 1, NH):
            it = lds_b(i + 2) + it
        return it

    for i in range(3):
        emit_all(st, a_load(i))
    a("s_setprio 0")
    a.label("PHASE2C")
    carry = group_scc(epi_setup())
    for i in range(NH + 3):
        if i == NH:
            emit_all(st, carry)
            carry = []
        p2_step(i, carry)
        if i == Cfg.qtill:
            a("s_setprio 0")
        stamp(27 + i)
        carry = after_step(i)
    st.wait2(None, None)
    a.label("P2_RED")
    stamp(22)
    for tt in range(4):
        for ct in range(5):
            acc = ACC + 4 * (tt * 5 + ct)
            a(f"ds_write_b128 v{WA}, v[{acc}:{acc+3}] offset:{tt*5120 + ct*64}")
    a("s_waitcnt lgkmcnt(0)\ns_barrier")
    stamp(23)
    FIN = [ACC, ACC + 32, BB]
    for i in range(2):
        a(f"v_add_u32 v{T+8}, {4*PW}, v{RAD+i}")
        for w in range(8):
            src, off = (RAD + i, w * PW) if w < 4 else (T + 8, (w - 4) * PW)
            st.emit(("ds", f"ds_read_b128 v[{FIN[i]+4*w}:{FIN[i]+4*w+3}], v{src} offset:{off}", ("r", i, w)))
            if i > 0 and w == 6:
                st.wait("ds", [("r", i - 1, 7)])
    for i in range(3):
        if i == 2:
            a(f"s_cmp_ge_u32 s{S['w']}, 4\ns_cbranch_scc1 FIN")
        f = FIN[i]
        if i == 0:
            lab = a.newlabel("R2")
            a(f"s_cmp_ge_u32 s{S['w']}, 4\ns_cbranch_scc1 {lab}\ns_waitcnt lgkmcnt(7)\nv_add_u32 v{T+9}, {4*PW}, v{RAD+2}")
            for w in range(8):
                src, off = (RAD + 2, w * PW) if w < 4 else (T + 9, (w - 4) * PW)
                a(f"ds_read_b128 v[{FIN[2]+4*w}:{FIN[2]+4*w+3}], v{src} offset:{off}")
            a.label(lab)
        if i == 2:
            a("s_waitcnt lgkmcnt(0)")
        x, b = XR[i], BR[i]
        a(f"""
        v_lshlrev_b32 v{T}, 16, v{x}
        v_and_b32 v{T+1}, 0xffff0000, v{x}
        v_lshlrev_b32 v{T+2}, 16, v{x+1}
        v_and_b32 v{T+3}, 0xffff0000, v{x+1}
        v_lshlrev_b32 v{T+4}, 16, v{b}
        v_and_b32 v{T+5}, 0xffff0000, v{b}
        v_lshlrev_b32 v{T+6}, 16, v{b+1}
        v_and_b32 v{T+7}, 0xffff0000, v{b+1}
        v_pk_add_f32 v[{T}:{T+1}], v[{T}:{T+1}], v[{T+4}:{T+5}]
        v_pk_add_f32 v[{T+2}:{T+3}], v[{T+2}:{T+3}], v[{T+6}:{T+7}]
        """)
        for w in range(8):
            st.wait("ds", [("r", i, w)])
            a(f"""
            v_pk_add_f32 v[{T}:{T+1}], v[{T}:{T+1}], v[{f+4*w}:{f+4*w+1}]
            v_pk_add_f32 v[{T+2}:{T+3}], v[{T+2}:{T+3}], v[{f+4*w+2}:{f+4*w+3}]
            """)
        a(f"""
        v_cvt_pk_bf16_f32 v{T+10+2*i}, v{T}, v{T+1}
        v_cvt_pk_bf16_f32 v{T+11+2*i}, v{T+2}, v{T+3}
        buffer_store_dwordx2 v[{T+10+2*i}:{T+11+2*i}], v{OA+i}, s[{SR}:{SR+3}], 0 offen
        """)
    a.label("FIN")
    stamp(24)
    if Cfg.stamps == 5:
        a(f"""
        s_cmp_lg_u32 s2, {Cfg.probe_wg}
        s_cbranch_scc1 END
        s_cmp_lg_u32 s{S['w']}, {Cfg.probe_w}
        s_cbranch_scc1 END
        v_readlane_b32 s{S['t']}, v{ITS}, {Cfg.probe}
        v_readlane_b32 s{S['t1']}, v{ITS}, {0 if Cfg.probe_cyc else 62}
        s_sub_u32 s{S['t']}, s{S['t']}, s{S['t1']}
        s_{'lshr' if Cfg.probe_cyc else 'lshl'}_b32 s{S['t']}, s{S['t']}, {3 if Cfg.probe_cyc else 2}
        s_min_u32 s{S['t']}, s{S['t']}, 100000
        v_mov_b32 v{T}, s{S['t']}
        global_store_dword v{Z}, v{T}, s[22:23] offset:4
        s_memrealtime s[{S['t0']}:{S['t0']+1}]
        s_waitcnt lgkmcnt(0)
        s_mov_b32 s{S['t1']}, s{S['t0']}
        SPIN:
        s_memrealtime s[{S['t0']}:{S['t0']+1}]
        s_waitcnt lgkmcnt(0)
        s_sub_u32 s{S['t2']}, s{S['t0']}, s{S['t1']}
        s_cmp_lt_u32 s{S['t2']}, s{S['t']}
        s_cbranch_scc1 SPIN
        """)
    elif Cfg.stamps and Cfg.stamps != 4:
        a(f"""
        s_memrealtime s[{S['t0']}:{S['t0']+1}]
        s_waitcnt lgkmcnt(0)
        v_writelane_b32 v{ITS}, s{S['t0']}, 63
        s_lshl_b32 s{S['t']}, s2, 3
        s_add_u32 s{S['t']}, s{S['t']}, s{S['w']}
        s_lshl_b32 s{S['t']}, s{S['t']}, 8
        s_add_u32 s{S['t']}, s{S['t']}, {STAMP_OFF}
        v_lshlrev_b32 v{T+20}, 2, v{l}
        v_add_u32 v{T+20}, s{S['t']}, v{T+20}
        global_store_dword v{T+20}, v{ITS}, s[24:25]
        """)
    a.label("END")
    a("s_endpgm")
    for f in ool:
        f()
    a.label("CODE_END")
    a("s_endpgm")
    return a.L


def build():
    head = open("cdna_kernels/%s.s.ref" % NAME).read().split("; Override launch")[0]
    out = head + "; @launch grid=(256,1,1) block=(512,1,1) lds=163840\n"
    out += '.amdgcn_target "amdgcn-amd-amdhsa--gfx950"\n.text\n'
    L, n = fix_hazards(gen())
    out += f".globl {KN}\n.p2align 8\n.type {KN},@function\n"
    out += "\n".join(x if x.endswith(":") else "    " + x for x in L) + "\n"
    print("instrs", len(L), "nops inserted", n, file=sys.stderr)
    out += f""".section .rodata,"a"
.p2align 6
.amdhsa_kernel {KN}
  .amdhsa_next_free_vgpr 256
  .amdhsa_next_free_sgpr 102
  .amdhsa_accum_offset 256
  .amdhsa_group_segment_fixed_size 0
  .amdhsa_kernarg_size 88
  .amdhsa_user_sgpr_count 2
  .amdhsa_user_sgpr_kernarg_segment_ptr 1
  .amdhsa_system_sgpr_workgroup_id_x 1
  .amdhsa_float_denorm_mode_32 3
.end_amdhsa_kernel
"""
    return out


if __name__ == "__main__":
    for arg in sys.argv[2:]:
        k, v = arg.split("=")
        assert hasattr(Cfg, k), k
        setattr(Cfg, k, int(v))
    open(sys.argv[1], "w").write(build())
```

```python
import sys, struct
from asmlib import Asm, fix_hazards, RegAlloc

NAME = "parallel_sum__linear_attn_block__mixer_channel_mlp__prompt"
KN = NAME + "_kernel"

A2_OFF = 0
A2_RB = 74 * 4096
B2_OFF = 32 * A2_RB
B2_C = 74 * 5120
KV_OFF = B2_OFF + 8 * B2_C
CS_OFF = KV_OFF + 8 * 8192
FLAG_OFF = CS_OFF + 16384
RS_OFF = FLAG_OFF + 37888
WS_SIZE = RS_OFF + 16384
F_KV, F_H, F_O, F_EARLY = 0, 8, 136, 264
ZERO_BYTES = 65536 + 16384 + 37888 + 16384
STAMP_OFF = WS_SIZE + 65536
OOB = 0x7f000000

SLOT = 49152
MISC = 3 * SLOT
RELAY = MISC
ST_M, ST_RS, ST_IRS, CSP = MISC + 12288, MISC + 12800, MISC + 13312, MISC + 14336
SYN = MISC + 15360
PW = 20480
GAP = 15360
KVX = 0
CMP = 40960
CDUM = CMP + 6720
ONES = CMP + 7232
FRG = 4 * PW + GAP


def frg(fi):
    return FRG + fi * 1024 + (fi // 5) * GAP


LOG2E = 1.4426950408889634
GC1 = -2.0 * 0.7978845608028654 * LOG2E
GC2 = GC1 * 0.044715
EPS6 = 9.98377799987793e-07


def hx(x):
    return "0x%08x" % struct.unpack("<I", struct.pack("<f", x))[0]


class Cfg:
    stamps = 0
    cnt = 0
    touch_q = 2
    pub_it = 1
    ini_q = 0
    ini_early = 1
    esleep = 8
    isleep = 8
    probe = 24
    probe_wg = 200
    probe_w = 0
    probe_cyc = 0
    prefetch_code = 1
    x_nodma = 0
    bpos = 1
    map1 = 2
    map2 = 0
    wnt = 0
    rnt = 1
    p2prio = 2
    prio = 0
    prio2 = 1
    cprio = 1
    nfirst = 4
    poll_it = 7
    touch = 1
    fine = 0
    fill = 2
    pf_h = 0
    pf_q1 = 25
    pf_k1 = 10
    pf_k0 = 0
    phi_n = 0
    nkq = 0
    qfast = 0
    pf_a = 0
    tdump = 1
    nx_all = 0
    pf_b = 0
    pf_qw = 0
    pf_l = 1
    hbar = 6
    hbar_chunk = 5
    gelu_pk0 = 0
    kv_pk = 1
    h_early = 1
    rot2 = 1
    o_at = 6
    o_try = 5
    o_peek = 3
    yprio = 0
    ytill = 9
    psleep = 3
    zdup = 1
    x_p2n = 0
    lds_pre = 1
    rl_pos = 0
    epi_at = 4
    p2span = 20
    p2sc = 1
    qprio = 0
    hpass = 1
    rs_it = 0
    hpoll = 7
    hsig = 3
    ini_pro = 1
    q16 = 0
    pf_mid = 25
    pf_q2 = 0
    nx = 0
    bleft = 3
    k1 = 99
    lazy = 0
    mimic = 1
    wgrp = 1
    ilv = 1
    nring = 6
    align = 0
    qtill = 99
    shards = 32
    plead = 1
    bsig = 3
    bpoll = 6
    touch_it = 8
    hfill = 3
    hprio = 1
    early_lds = 0
    dfirst = 1
    qb3 = 2
    qb4 = 5
    sig_it = 4
    eprio = 2


def kperm_feature(g, j):
    return 4 * g + (j & 3) + 16 * (j >> 2)


def typ_of(ids):
    return {0: (ids >> 5) & 1, 1: (ids >> 3) & 1, 2: ids >> 7, 3: (ids >> 2) & 1}[Cfg.map1]


class Stream:
    def __init__(self, a):
        self.a = a
        self.q = {"ds": [], "vm": []}

    def emit(self, it):
        k = it[0]
        if k == "i":
            self.a(it[1])
        elif k in ("ds", "vm"):
            self.a(it[1])
            self.q[k].append(it[2])
        elif k == "vm0":
            self.a(it[1])
            self.q["vm"].append(("*", it[2]))
        elif k in ("wds", "wvm"):
            self.wait(k[1:], it[1])
        else:
            raise ValueError(it)

    def count(self, k, tags):
        q = self.q[k]
        def star(t):
            return isinstance(t, tuple) and t[0] == "*"
        idx = max([i for i, t in enumerate(q) if tags is None or t in tags or (star(t) and t[1] in tags)], default=-1)
        if idx < 0:
            return None
        left = sum(1 for t in q[idx + 1:] if not star(t))
        del q[:idx + 1]
        return min(left, 15 if k == "ds" else 63)

    def wait(self, k, tags):
        n = self.count(k, tags)
        if n is not None:
            self.a(f"s_waitcnt {'lgkmcnt' if k == 'ds' else 'vmcnt'}({n})")

    def wait2(self, dtags, vtags):
        nd, nv = self.count("ds", dtags), self.count("vm", vtags) if vtags != [] else None
        p = []
        if nv is not None:
            p.append(f"vmcnt({nv})")
        if nd is not None:
            p.append(f"lgkmcnt({nd})")
        if p:
            self.a("s_waitcnt " + " ".join(p))


def I(text):
    return [("i", x.strip()) for x in text.strip().split("\n") if x.strip()]


def group_scc(items):
    out, i = [], 0
    while i < len(items):
        it = items[i]
        if it[0] == "i" and it[1].startswith("s_cmp"):
            j = i + 1
            while j < len(items) and items[j][0] == "i" and items[j][1].startswith("s_cselect"):
                j += 1
            out.append(("atomic", items[i:j]))
            i = j
        else:
            out.append(it)
            i += 1
    return out


def gen():
    a = Asm()
    ool = []
    S = {}
    sa = RegAlloc(44, 96)
    for n in ("w", "rg", "rb", "j", "typ", "col0", "soA", "soB", "so2", "so", "ofA", "ofB", "of2", "t", "t1", "t2", "t3", "pc",
              "rlo", "rls", "hs", "jt", "jt1", "r2", "c2", "sH", "sX", "nX", "sO", "nH", "nO", "rH", "rO", "p2A", "p2B", "tp1"):
        S[n] = sa.alloc(n)
    S["uo"] = sa.alloc("uo", 4)
    S["pa"] = sa.alloc("pa", 2)
    for n in ("ex", "m1", "m2"):
        S[n] = sa.alloc(n, 2, 2)
    S["fl"], S["t0"] = 10, 100
    SX, SW, SWS, SR, SAUX = 28, 32, 36, 40, 96

    l, Z, ITS, RS, IRS, L16, SMALL = 1, 2, 3, 4, 5, 6, 7
    ACC, T, BB = 24, 104, 152
    CMPA, SCA = SMALL, SMALL + 8
    vb = RegAlloc(BB, BB + 100)
    NRING = Cfg.nring
    FA = vb.alloc("fa", 16, 2)
    FB = vb.alloc("fb", 4 * NRING, 2)
    RA = vb.alloc("rA", 2)
    RA0 = vb.alloc("rA0")
    RB = vb.alloc("rB", 2)
    RB0 = vb.alloc("rB0")
    BIAS = vb.alloc("bias", 8)
    RLD = vb.alloc("rld")
    JX = vb.alloc("jx", 10, 2)
    WE, XE = T, T + 40
    RS1, IRS1 = 252, 253
    QSCA = SMALL + 4

    def srd(base, ptr, size):
        a(f"s_mov_b32 s{base}, s{ptr}\ns_mov_b32 s{base+1}, s{ptr+1}\ns_mov_b32 s{base+2}, {size}\ns_mov_b32 s{base+3}, 0x20000")

    DBGW = {3: 2, 13: 3, 15: 4, 20: 5, 21: 6, 22: 7, 24: 9}

    def stamp(lane):
        if Cfg.stamps == 6:
            return
        if Cfg.stamps == 5:
            if lane == Cfg.probe:
                a(f"{'s_memtime' if Cfg.probe_cyc else 's_memrealtime'} s[{S['t0']}:{S['t0']+1}]\ns_waitcnt lgkmcnt(0)\nv_writelane_b32 v{ITS}, s{S['t0']}, {lane}")
        elif Cfg.stamps == 4:
            if lane in DBGW:
                a(f"s_memrealtime s[{S['t0']}:{S['t0']+1}]\ns_waitcnt lgkmcnt(0)\nv_mov_b32 v{ITS}, s{S['t0']}\ns_mov_b64 exec, 1\n"
                  f"global_atomic_umax v{Z}, v{ITS}, s[22:23] offset:{4*DBGW[lane]}\ns_mov_b64 exec, -1")
        elif Cfg.stamps:
            a(f"{'s_memrealtime' if Cfg.stamps == 3 else 's_memtime'} s[{S['t0']}:{S['t0']+1}]\ns_waitcnt lgkmcnt(0)\nv_writelane_b32 v{ITS}, s{S['t0']}, {lane}")

    def poll_slow(check, err, sleep=24):
        lp, back = a.newlabel("PL"), a.newlabel("PB")
        a(f"s_cbranch_scc0 {lp}\n{back}:")

        def emit():
            l2 = a.newlabel("PL")
            a(f"{lp}:\ns_mov_b32 s{S['pc']}, 0\n{l2}:\ns_sleep {sleep}")
            if Cfg.cnt and err in (0x101, 0x104, 0x102, 0x105, 0x106, 0x10b):
                wd = {0x101: 10, 0x104: 11, 0x102: 12, 0x105: 13, 0x106: 14, 0x10b: 15}[err]
                a(f"v_mov_b32 v{ITS}, 1\ns_mov_b64 s[{S['t0']}:{S['t0']+1}], exec\ns_mov_b64 exec, 1\nglobal_atomic_add v{Z}, v{ITS}, s[22:23] offset:{4*wd}\ns_mov_b64 exec, s[{S['t0']}:{S['t0']+1}]")
            check()
            a(f"""
            s_cbranch_scc1 {back}
            s_add_u32 s{S['pc']}, s{S['pc']}, 1
            s_cmp_lt_u32 s{S['pc']}, 0x20000
            s_cbranch_scc1 {l2}
            v_mov_b32 v{IRS}, {err}
            global_store_dword v{Z}, v{IRS}, s[22:23] offset:32
            s_branch {back}
            """)
        ool.append(emit)

    a.label(KN)
    a(f"""
    s_cmp_ge_u32 s2, 256
    s_cbranch_scc1 END
    s_load_dwordx16 s[4:19], s[0:1], 0
    s_load_dwordx4 s[20:23], s[0:1], 64
    s_load_dwordx2 s[24:25], s[0:1], 80
    v_lshrrev_b32 v{T}, 6, v0
    v_and_b32 v{l}, 63, v0
    v_readfirstlane_b32 s{S['w']}, v{T}
    """)
    if Cfg.stamps:
        a(f"v_mov_b32 v{ITS}, 0\ns_memtime s[{S['t0']}:{S['t0']+1}]\ns_memrealtime s[{S['ex']}:{S['ex']+1}]")
    if Cfg.map1 == 0:
        a(f"""
        s_and_b32 s{S['t']}, s2, 3
        s_lshl_b32 s{S['t']}, s{S['t']}, 2
        s_bfe_u32 s{S['t1']}, s2, 0x20003
        s_add_u32 s{S['rb']}, s{S['t']}, s{S['t1']}
        s_bfe_u32 s{S['typ']}, s2, 0x10005
        s_bfe_u32 s{S['t']}, s2, 0x10002
        s_lshl_b32 s{S['t']}, s{S['t']}, 2
        s_bfe_u32 s{S['t1']}, s2, 0x20006
        s_add_u32 s{S['j']}, s{S['t']}, s{S['t1']}
        """)
    else:
        if Cfg.map1 == 1:
            a(f"s_and_b32 s{S['j']}, s2, 7\ns_bfe_u32 s{S['typ']}, s2, 0x10003\ns_lshr_b32 s{S['rb']}, s2, 4")
        elif Cfg.map1 == 2:
            a(f"s_and_b32 s{S['j']}, s2, 7\ns_lshr_b32 s{S['typ']}, s2, 7\ns_bfe_u32 s{S['rb']}, s2, 0x40003")
        else:
            a(f"""
            s_bfe_u32 s{S['typ']}, s2, 0x10002
            s_and_b32 s{S['t']}, s2, 3
            s_lshl_b32 s{S['t']}, s{S['t']}, 1
            s_bfe_u32 s{S['t1']}, s2, 0x10003
            s_add_u32 s{S['j']}, s{S['t']}, s{S['t1']}
            s_lshr_b32 s{S['rb']}, s2, 4
            """)
    a(f"""
    v_mov_b32 v{Z}, 0
    v_lshlrev_b32 v{L16}, 4, v{l}
    s_and_b32 s{S['rg']}, s{S['w']}, 3
    s_mul_i32 s{S['t']}, s{S['j']}, 7
    s_min_u32 s{S['t']}, s{S['t']}, 47
    s_lshl_b32 s{S['t']}, s{S['t']}, 5
    s_mul_i32 s{S['t1']}, s{S['j']}, 80
    s_cmp_eq_u32 s{S['typ']}, 0
    s_cselect_b32 s{S['col0']}, s{S['t1']}, s{S['t']}
    s_lshr_b32 s{S['t']}, s{S['w']}, 2
    s_lshl_b32 s{S['t1']}, s{S['typ']}, 1
    s_add_u32 s{S['t3']}, s{S['t']}, s{S['t1']}
    s_cmp_eq_u32 s{S['t3']}, 0
    s_cbranch_scc1 ROLE_KV
    s_cmp_eq_u32 s{S['t3']}, 2
    s_cbranch_scc1 ROLE_H0
    s_cmp_eq_u32 s{S['t3']}, 3
    s_cbranch_scc1 ROLE_H1
    """)

    TY = {0: dict(nt=5, stride=3840, wptr=6, qkv=True), 1: dict(nt=4, stride=3456, wptr=12, qkv=False)}
    JT, JT1 = S["jt"], S["jt1"]

    def after_kernarg():
        a("s_waitcnt lgkmcnt(0)")
        if Cfg.stamps == 4:
            a(f"s_not_b32 s{S['ex']}, s{S['ex']}\nv_mov_b32 v{ITS}, s{S['ex']}\ns_mov_b64 exec, 1\nglobal_atomic_umax v{Z}, v{ITS}, s[22:23] offset:4\ns_mov_b64 exec, -1")
        elif Cfg.stamps:
            a(f"v_writelane_b32 v{ITS}, s{S['t0']}, 0\nv_writelane_b32 v{ITS}, s{S['ex']}, 62")
        srd(SX, 4, 2048 * 1280)
        srd(SWS, 24, WS_SIZE)
        a(f"s_add_u32 s{S['fl']}, s24, {FLAG_OFF}\ns_addc_u32 s{S['fl']+1}, s25, 0")

    def emit_item(st, it):
        if it[0] == "atomic":
            for x in it[1]:
                emit_item(st, x)
        elif it[0] == "call":
            it[1]()
        else:
            st.emit(it)

    def emit_all(st, items):
        for x in items:
            emit_item(st, x)

    def p2_params():
        if Cfg.map2 == 0:
            a(f"""
            s_and_b32 s{S['t']}, s2, 3
            s_lshl_b32 s{S['t']}, s{S['t']}, 3
            s_bfe_u32 s{S['t1']}, s2, 0x30003
            s_add_u32 s{S['r2']}, s{S['t']}, s{S['t1']}
            s_bfe_u32 s{S['t']}, s2, 0x10002
            s_lshl_b32 s{S['t']}, s{S['t']}, 2
            s_lshr_b32 s{S['t1']}, s2, 6
            s_add_u32 s{S['c2']}, s{S['t']}, s{S['t1']}
            """)
        else:
            a(f"""
            s_and_b32 s{S['t']}, s2, 7
            s_lshl_b32 s{S['t']}, s{S['t']}, 2
            s_bfe_u32 s{S['t1']}, s2, 0x20003
            s_add_u32 s{S['r2']}, s{S['t']}, s{S['t1']}
            s_lshr_b32 s{S['c2']}, s2, 5
            """)
        NX = Cfg.nx
        a(f"""
        s_lshl_b32 s{S['t']}, s{S['rg']}, 3
        s_lshr_b32 s{S['sX']}, 0x302a231c, s{S['t']}
        s_and_b32 s{S['sX']}, s{S['sX']}, 255
        s_cmp_eq_u32 s{S['typ']}, 0
        s_cselect_b32 s{S['t3']}, {NX}, {NX if Cfg.nx_all else 0}
        s_mul_i32 s{S['t']}, s{S['w']}, 7
        s_add_u32 s{S['t1']}, s{S['sX']}, s{S['t3']}
        s_cmp_lt_u32 s{S['w']}, 6
        s_cselect_b32 s{S['t2']}, 7, 6
        s_sub_u32 s{S['t2']}, s{S['t2']}, s{S['t3']}
        s_cmp_lt_u32 s{S['w']}, 4
        s_cselect_b32 s{S['sH']}, s{S['t']}, s{S['t1']}
        s_cselect_b32 s{S['nH']}, 7, s{S['t2']}
        s_cselect_b32 s{S['nX']}, s{S['t3']}, 0
        s_and_b32 s{S['t']}, s{S['w']}, 1
        s_sub_u32 s{S['nO']}, 3, s{S['t']}
        s_mul_i32 s{S['t']}, s{S['t']}, 3
        s_lshr_b32 s{S['t1']}, s{S['w']}, 1
        s_mul_i32 s{S['t1']}, s{S['t1']}, 5
        s_add_u32 s{S['t']}, s{S['t']}, s{S['t1']}
        s_add_u32 s{S['sO']}, s{S['t']}, 54
        s_and_b32 s{S['t']}, s{S['c2']}, {3 if Cfg.map2 == 0 else 7}
        s_mul_i32 s{S['rH']}, s{S['t']}, {(2 if Cfg.map2 == 0 else 1) * Cfg.rot2}
        s_mul_i32 s{S['rO']}, s{S['t']}, {Cfg.rot2}
        s_cmp_ge_u32 s{S['rH']}, s{S['nH']}
        s_cselect_b32 s{S['t']}, s{S['nH']}, 0
        s_sub_u32 s{S['rH']}, s{S['rH']}, s{S['t']}
        s_cmp_ge_u32 s{S['rH']}, s{S['nH']}
        s_cselect_b32 s{S['t']}, s{S['nH']}, 0
        s_sub_u32 s{S['rH']}, s{S['rH']}, s{S['t']}
        s_cmp_ge_u32 s{S['rO']}, s{S['nO']}
        s_cselect_b32 s{S['t']}, s{S['nO']}, 0
        s_sub_u32 s{S['rO']}, s{S['rO']}, s{S['t']}
        s_cmp_ge_u32 s{S['rO']}, s{S['nO']}
        s_cselect_b32 s{S['t']}, s{S['nO']}, 0
        s_sub_u32 s{S['rO']}, s{S['rO']}, s{S['t']}
        s_cmp_ge_u32 s{S['rO']}, s{S['nO']}
        s_cselect_b32 s{S['t']}, s{S['nO']}, 0
        s_sub_u32 s{S['rO']}, s{S['rO']}, s{S['t']}
        s_mul_i32 s{S['p2A']}, s{S['r2']}, {A2_RB}
        s_mul_i32 s{S['p2B']}, s{S['c2']}, {B2_C}
        s_add_u32 s{S['p2B']}, s{S['p2B']}, {B2_OFF}
        """)

    def relay_params(base):
        a(f"""
        s_lshl_b32 s{S['t']}, s{S['rg']}, 8
        s_add_u32 s{S['t3']}, s{S['t']}, s2
        s_mul_i32 s{S['t2']}, s{S['t3']}, 6554
        s_lshr_b32 s{S['t2']}, s{S['t2']}, 16
        s_mul_i32 s{S['t']}, s{S['t2']}, 10
        s_sub_u32 s{S['t1']}, s{S['t3']}, s{S['t']}
        s_min_u32 s{S['so']}, s{S['rg']}, 2
        s_lshl_b32 s{S['so']}, s{S['so']}, 12
        s_add_u32 s{S['rls']}, s{S['so']}, {base}
        """)

    def bias_setup(qkv, n, st, X):
        if not qkv:
            srd(SAUX, 14, 3456)
            a(f"""
            s_lshl_b32 s{S['t']}, s{S['tp1']}, 5
            s_add_u32 s{S['t']}, s{S['t']}, s{S['col0']}
            s_lshl_b32 s{S['t']}, s{S['t']}, 1
            v_and_b32 v{X}, 15, v{l}
            v_lshlrev_b32 v{X}, 1, v{X}
            """)
            for u in range(n):
                st.emit(("vm", f"buffer_load_ushort v{BIAS+u}, v{X}, s[{SAUX}:{SAUX+3}], s{S['t']} offen offset:{u*32}", "bias"))
        else:
            a(f"v_mov_b32 v{BIAS}, 0x3586")

    def vcol(reg, tmp):
        return I(f"""
        v_mov_b32 v{tmp}, 0
        v_mov_b32 v{tmp+1}, -16
        v_cmp_le_u32 vcc, 80, v{reg}
        v_cndmask_b32 v{tmp}, v{tmp}, v{tmp+1}, vcc
        v_mov_b32 v{tmp+1}, {640-96}
        v_cmp_le_u32 vcc, 96, v{reg}
        v_cndmask_b32 v{tmp}, v{tmp}, v{tmp+1}, vcc
        v_mov_b32 v{tmp+1}, {1280-176}
        v_cmp_le_u32 vcc, 176, v{reg}
        v_cndmask_b32 v{tmp}, v{tmp}, v{tmp+1}, vcc
        v_add_u32 v{reg}, v{reg}, v{tmp}
        """)

    def job_build_ext(tiles, bias_of):
        X, n = JX, len(tiles)
        it = I(f"""
        v_and_b32 v{X}, 15, v{l}
        s_lshl_b32 s{JT}, s{S['rg']}, 5
        v_add_lshl_u32 v{X+1}, v{X}, s{JT}, 2
        v_add_u32 v{X+1}, {MISC}, v{X+1}
        s_lshl_b32 s{JT}, s{S['tp1']}, 7
        s_add_u32 s{JT}, s{JT}, {CSP}
        v_lshl_add_u32 v{X}, v{X}, 2, s{JT}
        """)
        for rt, (rs, irs) in enumerate(((RS, IRS), (RS1, IRS1))):
            for r, off in ((X + 2 + rt, ST_M), (rs, ST_RS), (irs, ST_IRS)):
                it.append(("ds", f"ds_read_b32 v{r}, v{X+1} offset:{off - MISC + 64*rt}", "bx"))
        for u in range(n):
            it.append(("ds", f"ds_read_b32 v{WE+4*u+3}, v{X} offset:{tiles[u][0]*64}", "bx"))
            if u == 6:
                it.append(("wds", ["bx"]))
        it += I(f"s_mov_b32 s{S['m1']}, 0xffff\ns_mov_b32 s{S['m1']+1}, 0") + [("wds", ["bx"])]
        for rt, irs in enumerate((IRS, IRS1)):
            m, xe = X + 2 + rt, XE + 4 * rt
            it += I(f"""
            v_sub_f32 v{m}, 0, v{m}
            v_cvt_pk_bf16_f32 v{X+4}, v{m}, v{irs}
            v_lshlrev_b32 v{X+5}, 16, v{X+4}
            v_and_b32 v{X+6}, 0xffff0000, v{X+4}
            v_sub_f32 v{X+5}, v{m}, v{X+5}
            v_sub_f32 v{X+6}, v{irs}, v{X+6}
            v_cvt_pk_bf16_f32 v{X+5}, v{m}, v{X+5}
            v_cvt_pk_bf16_f32 v{X+6}, v{X+6}, v{Z}
            v_cndmask_b32 v{xe}, 0, v{X+5}, s[{S['m1']}:{S['m1']+1}]
            v_cndmask_b32 v{xe+1}, 0, v{X+4}, s[{S['m1']}:{S['m1']+1}]
            v_cndmask_b32 v{xe+2}, 0, v{X+6}, s[{S['m1']}:{S['m1']+1}]
            v_mov_b32 v{xe+3}, 0
            """)
        for u in range(n):
            w, b = WE + 4 * u, bias_of(u)
            it += I(f"""
            v_cvt_pk_bf16_f32 v{w}, v{w+3}, v{w+3}
            v_and_b32 v{w+1}, 0xffff0000, v{w}
            v_sub_f32 v{w+1}, v{w+3}, v{w+1}
            v_cvt_pk_bf16_f32 v{w+1}, v{w+1}, v{Z}
            v_lshl_or_b32 v{w+1}, v{b}, 16, v{w+1}
            v_mov_b32 v{w+2}, v{b}
            v_mov_b32 v{w+3}, 0
            """)
        return it

    def acc(u, rt):
        return ACC + 8 * u + 4 * rt

    def ext_mfma(tiles):
        for u, (_, tr) in reversed(list(enumerate(tiles))) if Cfg.nkq else enumerate(tiles):
            for rt in range(2):
                w, xe, d = WE + 4 * u, XE + 4 * rt, acc(u, rt)
                x, y = (w, xe) if tr else (xe, w)
                a(f"v_mfma_f32_16x16x32_bf16 v[{d}:{d+3}], v[{x}:{x+3}], v[{y}:{y+3}], v[{d}:{d+3}]")

    def early_flag_jobs(V):
        NS = Cfg.shards
        sig = I(f"s_and_b32 s{JT}, s2, {NS-1}\ns_add_u32 s{JT}, s{JT}, {F_EARLY}\ns_lshl_b32 s{JT}, s{JT}, 7\nv_mov_b32 v{V}, s{JT}\nv_mov_b32 v{V+1}, 1") + [
            ("atomic", I(f"s_cmp_eq_u32 s{S['w']}, 0\ns_cselect_b32 exec_lo, 1, 0\ns_mov_b32 exec_hi, 0") +
             [("vm0", f"global_atomic_add v{V}, v{V+1}, s[{S['fl']}:{S['fl']+1}]", "sg")] + I("s_mov_b64 exec, -1"))]
        msk = hex((1 << NS) - 1) if NS < 32 else "-1"
        ldj = I(f"v_lshlrev_b32 v{V}, 7, v{l}\nv_add_u32 v{V}, {F_EARLY*128}, v{V}\nv_mov_b32 v{V+1}, {256//NS}") + [
            ("atomic", I(f"s_cmp_eq_u32 s{S['w']}, 0\ns_cselect_b32 exec_lo, {msk}, 0\ns_mov_b32 exec_hi, 0") +
             [("vm0", f"global_load_dword v{V+1}, v{V}, s[{S['fl']}:{S['fl']+1}] sc1", "fl")] + I("s_mov_b64 exec, -1"))]
        cmp_ = f"v_cmp_gt_u32 vcc, {256//NS}, v{V+1}\ns_cmp_eq_u64 vcc, 0"

        def chk():
            a(f"s_mov_b32 exec_lo, {msk}\ns_mov_b32 exec_hi, 0\nglobal_load_dword v{V+1}, v{V}, s[{S['fl']}:{S['fl']+1}] sc1\ns_mov_b64 exec, -1\ns_waitcnt vmcnt(0)\n{cmp_}")
        ck = [("wvm", ["fl"]), ("atomic", I(cmp_) + [("call", lambda: poll_slow(chk, 0x104, sleep=Cfg.esleep))])]
        return sig, ldj, ck

    def row_publish(SQ, SM, Y):
        it = I(f"""
        s_mov_b32 s{S['m1']}, 0xaaaaaaaa
        s_mov_b32 s{S['m1']+1}, 0xaaaaaaaa
        s_mov_b32 s{S['m2']}, 0xcccccccc
        s_mov_b32 s{S['m2']+1}, 0xcccccccc
        """)
        for rt in range(2):
            q = SQ + 4 * rt
            it += I(f"""
            v_cndmask_b32 v{q}, v{q}, v{q+1}, s[{S['m1']}:{S['m1']+1}]
            v_cndmask_b32 v{q+2}, v{q+2}, v{q+3}, s[{S['m1']}:{S['m1']+1}]
            v_cndmask_b32 v{q}, v{q}, v{q+2}, s[{S['m2']}:{S['m2']+1}]
            """)
        it += I(f"""
        s_lshl_b32 s{JT}, s{S['rb']}, 2
        s_add_u32 s{JT}, s{JT}, s{S['rg']}
        s_lshl_b32 s{JT}, s{JT}, 7
        s_add_u32 s{JT}, s{JT}, {RS_OFF}
        s_lshl_b32 s{JT1}, s{S['j']}, 1
        s_add_u32 s{JT1}, s{JT1}, s{S['typ']}
        s_cmp_ge_u32 s{JT1}, 10
        s_cselect_b32 s{JT}, {OOB}, s{JT}
        v_permlane32_swap_b32 v{SM}, v{SQ}
        v_permlane32_swap_b32 v{SM+4}, v{SQ+4}
        v_and_b32 v{Y+4}, 31, v{l}
        v_lshrrev_b32 v{Y+5}, 5, v{l}
        v_add_f32 v{SM}, v{SM}, v{SQ}
        v_add_f32 v{SM+4}, v{SM+4}, v{SQ+4}
        v_lshlrev_b32 v{Y+5}, 13, v{Y+5}
        v_lshl_add_u32 v{Y+4}, v{Y+4}, 2, v{Y+5}
        v_permlane16_swap_b32 v{SM}, v{SM+4}
        v_add_f32 v{SM}, v{SM}, v{SM+4}
        """)
        it.append(("vm", f"buffer_atomic_add_f32 v{SM}, v{Y+4}, s[{SWS}:{SWS+3}], s{JT} offen", "stat"))
        return it

    def job_load_stats(qkv, Y):
        it = I(f"""
        v_and_b32 v{Y}, 31, v{l}
        s_lshl_b32 s{JT}, s{S['rb']}, 2
        s_add_u32 s{JT}, s{JT}, s{S['rg']}
        s_lshl_b32 s{JT}, s{JT}, 7
        s_add_u32 s{JT}, s{JT}, {RS_OFF}
        s_add_u32 s{JT1}, s{JT}, 8192
        v_lshlrev_b32 v{Y+1}, 2, v{Y}
        """)
        it.append(("vm", f"buffer_load_dword v{Y+2}, v{Y+1}, s[{SWS}:{SWS+3}], s{JT} offen sc1", "ls"))
        it.append(("vm", f"buffer_load_dword v{Y+3}, v{Y+1}, s[{SWS}:{SWS+3}], s{JT1} offen sc1", "ls"))
        it += I(f"s_lshl_b32 s{JT}, s{S['rg']}, 6\nv_add_u32 v{Y+1}, s{JT}, v{l}")
        if qkv:
            it += vcol(Y + 1, Y + 4) + I(f"s_lshl_b32 s{JT}, s{S['col0']}, 2\ns_add_u32 s{JT}, s{JT}, {CS_OFF}")
        else:
            it += I(f"s_lshl_b32 s{JT}, s{S['col0']}, 2\ns_add_u32 s{JT}, s{JT}, {CS_OFF + 1920*4}")
        it += I(f"v_lshlrev_b32 v{Y+1}, 2, v{Y+1}")
        it.append(("vm", f"buffer_load_dword v{Y+4}, v{Y+1}, s[{SWS}:{SWS+3}], s{JT} offen sc1", "ls"))
        return it

    def job_publish_stats(qkv, Y):
        it = I(f"""
        v_and_b32 v{Y+5}, 31, v{l}
        s_lshl_b32 s{JT}, s{S['rg']}, 5
        v_add_lshl_u32 v{Y+5}, v{Y+5}, s{JT}, 2
        v_add_u32 v{Y+5}, {MISC}, v{Y+5}
        s_lshl_b32 s{JT}, s{S['rg']}, 8
        s_add_u32 s{JT}, s{JT}, {CSP}
        v_lshl_add_u32 v{Y+6}, v{l}, 2, s{JT}
        """) + [("wvm", ["ls"])] + I(f"""
        v_mul_f32 v{Y+2}, {hx(1/640)}, v{Y+2}
        v_mul_f32 v{Y+3}, {hx(1/640)}, v{Y+3}
        v_fma_f32 v{Y+3}, -v{Y+2}, v{Y+2}, v{Y+3}
        v_max_f32 v{Y+3}, 0, v{Y+3}
        """)

        def rnd(d, x):
            return I(f"v_cvt_pk_bf16_f32 v{d}, v{x}, v{x}\nv_and_b32 v{d}, 0xffff0000, v{d}")
        if Cfg.mimic:
            it += rnd(Y, Y + 3) + I(f"v_add_f32 v{Y}, {hx(1e-5)}, v{Y}") + rnd(Y, Y) + I(f"v_sqrt_f32 v{Y+1}, v{Y}") + rnd(Y + 1, Y + 1)
            if qkv:
                it += rnd(Y + 2, Y + 2)
            else:
                it += I(f"v_mul_f32 v{Y}, v{Y+1}, v{Y+1}\nv_rcp_f32 v{Y}, v{Y}\nv_mul_f32 v{Y}, v{Y}, v{Y+3}") + rnd(Y, Y)
                it += I(f"v_add_f32 v{Y}, {hx(1e-5)}, v{Y}") + rnd(Y, Y) + I(f"v_sqrt_f32 v{Y}, v{Y}") + rnd(Y, Y)
                it += I(f"v_mul_f32 v{Y+1}, v{Y+1}, v{Y}")
            it += I(f"v_rcp_f32 v{Y}, v{Y+1}")
        else:
            it += I(f"v_add_f32 v{Y}, {hx(1e-5)}, v{Y+3}")
            if not qkv:
                it += I(f"v_mov_b32 v{Y+1}, {hx(1e-5)}\nv_fma_f32 v{Y}, v{Y}, v{Y+1}, v{Y+3}")
            it += I(f"v_sqrt_f32 v{Y+1}, v{Y}\nv_rsq_f32 v{Y}, v{Y}")
        for r, off in ((Y + 2, ST_M), (Y, ST_RS), (Y + 1, ST_IRS)):
            it.append(("ds", f"ds_write_b32 v{Y+5}, v{r} offset:{off-MISC}", "pub"))
        it.append(("ds", f"ds_write_b32 v{Y+6}, v{Y+4}", "pub"))
        return it

    def job_touch(V, part=None):
        ns = 8 if Cfg.map2 == 0 else 4
        per = 2960 // ns
        pw = -(-per // 128) * 32
        it = I(f"""
        s_and_b32 s{JT}, s{S['r2']}, {ns-1}
        s_mul_i32 s{JT}, s{JT}, {per*128}
        s_mul_i32 s{JT1}, s{S['rg']}, {pw*128}
        s_add_u32 s{JT}, s{JT}, s{JT1}
        s_add_u32 s{JT}, s{JT}, s{S['p2B']}
        v_lshlrev_b32 v{V+1}, 7, v{l}
        """)
        ks_ = list(range(0, pw, 64))
        if part is not None:
            h = (len(ks_) + 1) // 2
            if part == 1:
                it += I(f"s_add_u32 s{JT}, s{JT}, {8192*h}")
            ks_ = ks_[:h] if part == 0 else ks_[h:]
        for k in ks_:
            ld_ = [("vm", f"buffer_load_dword v{V}, v{V+1}, s[{SWS}:{SWS+3}], s{JT} offen sc1", "tc")]
            if pw - k < 64:
                ld_ = I("s_mov_b32 exec_hi, 0") + ld_ + I("s_mov_b32 exec_hi, -1")
            it.append(("atomic", ld_ + I(f"s_add_u32 s{JT}, s{JT}, 8192")))
        return it

    def code_prefetch():
        if not Cfg.prefetch_code:
            return
        here = a.newlabel("PC")
        a(f"""
        s_getpc_b64 s[26:27]
        {here}:
        s_sub_u32 s26, s26, {here}-{KN}
        s_subb_u32 s27, s27, 0
        s_bfe_u32 s{S['t']}, s2, 0x20003
        s_lshl_b32 s{S['t']}, s{S['t']}, 14
        v_lshlrev_b32 v{T+2}, 6, v0
        v_add_u32 v{T+2}, s{S['t']}, v{T+2}
        v_min_u32 v{T+2}, CODE_END-{KN}-4, v{T+2}
        v_mov_b32 v{T+3}, s27
        v_add_co_u32 v{T+2}, vcc, s26, v{T+2}
        v_addc_co_u32 v{T+3}, vcc, 0, v{T+3}, vcc
        s_mov_b32 exec_lo, 0x55555555
        s_mov_b32 exec_hi, 0x55555555
        global_load_dword v{RS}, v[{T+2}:{T+3}], off
        s_mov_b64 exec, -1
        """)

    def zero_init():
        a(f"v_mov_b32 v{T+13}, {SYN}\nds_write_b128 v{T+13}, v[{T+8}:{T+11}]\nds_write_b128 v{T+13}, v[{T+8}:{T+11}] offset:16".replace("v_mov_b32", f"v_mov_b32 v{T+8}, 0\nv_mov_b32 v{T+9}, 0\nv_mov_b32 v{T+10}, 0\nv_mov_b32 v{T+11}, 0\nv_mov_b32", 1))
        lab = a.newlabel("NI")
        a(f"""
        s_cmp_lg_u32 s{S['rg']}, 3
        s_cbranch_scc1 {lab}
        s_and_b32 s{S['t']}, s2, {0xc4 if Cfg.ini_early else 0xe0}
        s_cbranch_scc1 {lab}
        v_mov_b32 v{T+8}, 0
        v_mov_b32 v{T+9}, 0
        v_mov_b32 v{T+10}, 0
        v_mov_b32 v{T+11}, 0
        s_lshr_b32 s{S['t']}, s2, 3
        s_lshl_b32 s{S['t']}, s{S['t']}, 2
        s_and_b32 s{S['t1']}, s2, 3
        s_add_u32 s{S['t']}, s{S['t']}, s{S['t1']}
        s_mul_i32 s{S['t']}, {f"s{S['t']}" if Cfg.ini_early else "s2"}, 4256
        s_add_u32 s{S['t']}, s{S['t']}, {KV_OFF}
        buffer_store_dwordx4 v[{T+8}:{T+11}], v{L16}, s[{SWS}:{SWS+3}], s{S['t']} offen sc1
        buffer_store_dwordx4 v[{T+8}:{T+11}], v{L16}, s[{SWS}:{SWS+3}], s{S['t']} offen offset:1024 sc1
        buffer_store_dwordx4 v[{T+8}:{T+11}], v{L16}, s[{SWS}:{SWS+3}], s{S['t']} offen offset:2048 sc1
        buffer_store_dwordx4 v[{T+8}:{T+11}], v{L16}, s[{SWS}:{SWS+3}], s{S['t']} offen offset:3072 sc1
        buffer_store_dwordx4 v[{T+8}:{T+11}], v{L16}, s[{SWS}:{SWS+3}], s{S['t']} offen offset:3232 sc1
        v_mov_b32 v{T+12}, 1
        s_waitcnt vmcnt(0)
        s_mov_b64 exec, 1
        global_atomic_add v{Z}, v{T+12}, s[22:23]
        s_mov_b64 exec, -1
        {lab}:
        """)

    def relay_issue(st, X, base):
        relay_params(base)
        a(f"""
        s_cmp_lt_u32 s{S['t2']}, 54
        s_cselect_b32 s{SR}, s16, s8
        s_cselect_b32 s{SR+1}, s17, s9
        s_mov_b32 s{SR+2}, {640*1280}
        s_cselect_b32 s{SR+2}, {1728*1280}, s{SR+2}
        s_mov_b32 s{SR+3}, 0x20000
        s_cselect_b32 s{S['t']}, 0, 54
        s_sub_u32 s{S['t']}, s{S['t2']}, s{S['t']}
        s_mul_i32 s{S['t']}, s{S['t']}, {32*1280}
        s_lshl_b32 s{S['so']}, s{S['t1']}, 7
        s_add_u32 s{S['rlo']}, s{S['t']}, s{S['so']}
        v_lshrrev_b32 v{X}, 3, v{l}
        v_mul_u32_u24 v{X}, 1280, v{X}
        v_and_b32 v{X+1}, 7, v{l}
        v_lshl_add_u32 v{RLD}, v{X+1}, 4, v{X}
        s_cmp_lt_u32 s{S['t3']}, 740
        s_cselect_b32 s{S['hs']}, -1, 0
        s_barrier
        """)
        if Cfg.rl_pos == 0:
            relay_dma(st)

    def relay_dma(st):
        a(f"s_mov_b32 exec_lo, s{S['hs']}\ns_mov_b32 exec_hi, s{S['hs']}")
        for i in range(4):
            a(f"s_add_u32 m0, s{S['rls']}, {i*1024}\ns_add_u32 s{JT}, s{S['rlo']}, {i*8*1280}")
            st.emit(("vm0", f"buffer_load_dwordx4 v{RLD}, s[{SR}:{SR+3}], s{JT} offen{' nt' if Cfg.rnt else ''} lds", "rl"))
        a("s_mov_b64 exec, -1")

    def job_init_load():
        return [("atomic", I(f"v_mov_b32 v{T+44}, 32\ns_cmp_eq_u32 s{S['rg']}, 3\ns_cselect_b32 exec_lo, 1, 0\ns_mov_b32 exec_hi, 0") +
                 [("vm0", f"global_load_dword v{T+44}, v{Z}, s[22:23] sc1", "il")] + I("s_mov_b64 exec, -1"))]

    def job_init_check():
        def chk():
            a(f"global_load_dword v{T+44}, v{Z}, s[22:23] sc1\ns_waitcnt vmcnt(0)\nv_readfirstlane_b32 s{JT}, v{T+44}\ns_cmp_ge_u32 s{JT}, 32")
        return [("wvm", ["il"]), ("atomic", I(f"v_readfirstlane_b32 s{JT}, v{T+44}\ns_cmp_ge_u32 s{JT}, 32") + [("call", lambda: poll_slow(chk, 0x101, sleep=Cfg.isleep))])]

    def kloop(ld, qkv):
        st = Stream(a)
        NT, stride = (8, 3840) if qkv else (7, 3456)
        PITCH = NT * 256
        t0 = 0 if qkv else (4 if ld else 0)
        if qkv:
            tiles = [(u, True) for u in range(5)] + [(6 + u, False) for u in range(Cfg.nkq)] if ld else [(u, False) for u in range(6 + Cfg.nkq, 16)]
        else:
            tiles = [(u, True) for u in range(6 if ld else 8)]
        n = len(tiles)
        hv = RegAlloc(JX + 10, BB + 100)
        HDA, HDB, HRCS = hv.alloc("da"), hv.alloc("db", 7), hv.alloc("rcs", 2)
        HRLY = HDA
        X = T + 36
        SQ, SM, ONE, CSA, CF = T + 16, T + 24, T + 32, JX, T
        a(f"s_mov_b32 s{S['tp1']}, {t0}")

        def dma(s_):
            if Cfg.x_nodma:
                return []
            slot = (s_ % 3) * SLOT
            NTM = " nt" if (Cfg.wnt == 1 and s_ == 0) else ""
            A, B = [], []
            for m in range(4):
                A.append(I(f"s_add_u32 m0, s{S['ofA']}, {slot + m*4096}\ns_add_u32 s{S['so']}, s{S['soA']}, {m*32*1280}") +
                         [("vm", f"buffer_load_dwordx4 v{HDA}, s[{SX}:{SX+3}], s{S['so']} offen lds", ("S", s_))])
            for i in range(NT):
                if qkv:
                    B.append(I(f"s_add_u32 m0, s{S['ofB']}, {slot + i*4096}\ns_add_u32 s{S['so']}, s{S['soB']}, {i*8*3840}") +
                             [("vm", f"buffer_load_dwordx4 v{HDB + (i & 1)}, s[{SW}:{SW+3}], s{S['so']} offen{NTM} lds", ("S", s_))])
                else:
                    B.append(I(f"s_add_u32 m0, s{S['ofB']}, {slot + i*1024}") +
                             [("vm", f"buffer_load_dwordx4 v{HDB+i}, s[{SW}:{SW+3}], s{S['soB']} offen{NTM} lds", ("S", s_))])
            res = []
            while A or B:
                if B: res.append(B.pop(0))
                if A: res.append(A.pop(0))
                if B: res.append(B.pop(0))
            if s_ > 0:
                res[0] = I(f"""
                s_add_u32 s{S['soA']}, s{S['soA']}, 128
                s_add_u32 s{S['soB']}, s{S['soB']}, {64*stride}
                s_cmp_eq_u32 s{S['soA']}, 1280
                s_cselect_b32 s{S['soA']}, 0, s{S['soA']}
                s_cselect_b32 s{S['soB']}, 0, s{S['soB']}
                """) + res[0]
            return [("atomic", p) for p in res]

        def setup():
            a(f"""
            v_and_b32 v{X}, 15, v{l}
            s_lshl_b32 s{S['t']}, s{S['rg']}, 5
            v_add_u32 v{X}, s{S['t']}, v{X}
            v_bfe_u32 v{X+1}, v{X}, 1, 3
            v_lshrrev_b32 v{X+2}, 4, v{l}
            v_xor_b32 v{X+1}, v{X+1}, v{X+2}
            v_lshlrev_b32 v{X+1}, 4, v{X+1}
            v_lshl_add_u32 v{RA0}, v{X}, 7, v{X+1}
            v_mul_u32_u24 v{X}, {2*PITCH}, v{X+2}
            v_and_b32 v{X+2}, 1, v{X+2}
            v_lshl_add_u32 v{X}, v{X+2}, 5, v{X}
            v_bfe_u32 v{X+1}, v{l}, 2, 2
            v_lshl_add_u32 v{X}, v{X+1}, 6, v{X}
            v_and_b32 v{X+1}, 3, v{l}
            v_lshl_add_u32 v{X}, v{X+1}, 3, v{X}
            v_add_u32 v{RB0}, {16384 + t0*256}, v{X}
            s_min_u32 s{S['t']}, s{S['w']}, {NT-1}
            s_lshl_b32 s{S['t']}, s{S['t']}, 8
            s_add_u32 s{S['t']}, s{S['t']}, 16384
            v_add_u32 v{HRCS}, s{S['t']}, v{X}
            v_xor_b32 v{HRCS+1}, 32, v{HRCS}
            """)
            for k in range(4):
                a(f"v_mov_b32 v{ONE+k}, 0x3f803f80")
            p2_params()
            bias_setup(qkv, n, st, X)
            if qkv:
                kv_addr_setup(X)
                if ld:
                    scatter_setup(X)

        if ld:
            a(f"""
            v_lshrrev_b32 v{T}, 3, v{l}
            s_lshl_b32 s{S['t']}, s{S['rg']}, 3
            s_lshl_b32 s{S['t1']}, s{S['rb']}, 7
            s_add_u32 s{S['t']}, s{S['t']}, s{S['t1']}
            v_add_u32 v{T}, s{S['t']}, v{T}
            v_mul_u32_u24 v{HDA}, 1280, v{T}
            v_lshrrev_b32 v{T}, 1, v{T}
            v_xor_b32 v{T}, v{T}, v{l}
            v_and_b32 v{T}, 7, v{T}
            v_lshl_add_u32 v{HDA}, v{T}, 4, v{HDA}
            s_lshl_b32 s{S['ofA']}, s{S['rg']}, 10
            v_bfe_u32 v{T}, v{l}, 2, 2
            v_lshrrev_b32 v{T+1}, 4, v{l}
            v_and_b32 v{T+5}, 3, v{l}
            s_lshl_b32 s{S['t']}, s{S['j']}, 1
            s_add_u32 s{S['t']}, s{S['t']}, s{S['typ']}
            s_add_u32 s{S['t']}, s{S['t']}, s{S['rb']}
            s_mul_i32 s{S['t1']}, s{S['t']}, 26
            s_lshr_b32 s{S['t1']}, s{S['t1']}, 8
            s_mul_i32 s{S['t1']}, s{S['t1']}, 10
            s_sub_u32 s{S['t']}, s{S['t']}, s{S['t1']}
            s_lshl_b32 s{S['soA']}, s{S['t']}, 7
            s_mul_i32 s{S['soB']}, s{S['t']}, {64*stride}
            """)
            if qkv:
                a(f"""
                s_add_u32 s{S['ofB']}, s{S['ofA']}, 16384
                s_lshr_b32 s{S['t']}, s{S['rg']}, 1
                s_lshl_b32 s{S['t']}, s{S['t']}, 2
                v_add_u32 v{T}, s{S['t']}, v{T}
                v_mul_u32_u24 v{T}, 3840, v{T}
                s_and_b32 s{S['t']}, s{S['rg']}, 1
                s_lshl_b32 s{S['t']}, s{S['t']}, 4
                v_lshl_add_u32 v{T+5}, v{T+1}, 2, v{T+5}
                v_add_u32 v{T+8}, s{S['t']}, v{T+5}
                s_lshl_b32 s{S['t']}, s{S['col0']}, 1
                """)
                for par in range(2):
                    a(f"""
                    v_xor_b32 v{T+5}, {2*par}, v{T+8}
                    v_mov_b32 v{T+6}, 0
                    v_mov_b32 v{T+7}, {OOB}
                    v_cmp_le_u32 vcc, 10, v{T+5}
                    v_cndmask_b32 v{T+6}, v{T+6}, v{T+7}, vcc
                    v_mov_b32 v{T+7}, {1280 - 192}
                    v_cmp_le_u32 vcc, 12, v{T+5}
                    v_cndmask_b32 v{T+6}, v{T+6}, v{T+7}, vcc
                    v_mov_b32 v{T+7}, {2560 - 352}
                    v_cmp_le_u32 vcc, 22, v{T+5}
                    v_cndmask_b32 v{T+6}, v{T+6}, v{T+7}, vcc
                    v_lshl_add_u32 v{T+5}, v{T+5}, 4, v{T+6}
                    v_add3_u32 v{HDB+par}, v{T}, v{T+5}, s{S['t']}
                    """)
            else:
                a(f"""
                s_mul_i32 s{S['ofB']}, s{S['rg']}, 7168
                s_add_u32 s{S['ofB']}, s{S['ofB']}, 16384
                s_lshl_b32 s{S['t']}, s{S['rg']}, 4
                v_add_u32 v{T}, s{S['t']}, v{T}
                v_mul_u32_u24 v{T}, 3456, v{T}
                v_mov_b32 v{T+8}, v{T+5}
                s_lshl_b32 s{S['t']}, s{S['col0']}, 1
                v_add_u32 v{T}, s{S['t']}, v{T}
                s_mov_b32 s{S['t']}, {4*3456 - 448}
                """)
                for i in range(7):
                    a(f"""
                    v_add_u32 v{T+5}, {4*i}, v{T+1}
                    v_mul_u32_u24 v{T+6}, 37, v{T+5}
                    v_lshrrev_b32 v{T+6}, 8, v{T+6}
                    v_and_b32 v{T+7}, 2, v{T+6}
                    v_xor_b32 v{T+7}, v{T+7}, v{T+8}
                    v_mad_u32_u24 v{T+6}, v{T+6}, s{S['t']}, v{T}
                    v_lshl_add_u32 v{T+6}, v{T+7}, 4, v{T+6}
                    v_lshl_add_u32 v{HDB+i}, v{T+5}, 6, v{T+6}
                    """)
            after_kernarg()
            srd(SW, 6 if qkv else 12, 640 * stride)
            d0 = dma(0)
            emit_all(st, d0[:5])
            setup()
            emit_all(st, d0[5:])
            stamp(1)
            a("s_barrier")
            d1 = dma(1)
            emit_all(st, d1[:Cfg.k1])
            stamp(2)
        else:
            after_kernarg()
            zero_init()
            code_prefetch()
            relay_issue(st, X, RELAY)
            for ct in range(4):
                a(f"""
                s_lshl_b32 s{S['t']}, s{S['t1']}, 2
                s_add_u32 s{S['t']}, s{S['t']}, {ct}
                s_mul_i32 s{JT}, s{S['t']}, 52
                s_lshr_b32 s{JT}, s{JT}, 8
                s_mul_i32 s{JT}, s{JT}, {B2_C - 5*1024}
                s_lshl_b32 s{S['t']}, s{S['t']}, 10
                s_add_u32 s{S['t']}, s{S['t']}, s{JT}
                s_mul_i32 s{JT}, s{S['t2']}, 5120
                s_add_u32 s{S['t']}, s{S['t']}, s{JT}
                s_add_u32 s{S['t']}, s{S['t']}, {B2_OFF}
                s_cmp_lt_u32 s{S['t3']}, 740
                s_cselect_b32 s{S['uo']+ct}, s{S['t']}, {OOB}
                """)
            a(f"""
            v_lshrrev_b32 v{X}, 2, v{l}
            v_lshlrev_b32 v{X}, 7, v{X}
            v_and_b32 v{X+1}, 3, v{l}
            v_lshl_add_u32 v{X}, v{X+1}, 3, v{X}
            v_add_u32 v{HRLY}, s{S['rls']}, v{X}
            """)
            setup()

        def job_colsum():
            it = []
            for h in range(2):
                for kk in range(2):
                    for i in range(2):
                        r = CF + 8 * h + 4 * kk + 2 * i
                        it.append(("ds", f"ds_read_b64_tr_b16 v[{r}:{r+1}], v{HRCS+h} offset:{(8*kk+i)*PITCH}", ("cs", h, kk)))
            for h in range(2):
                for kk in range(2):
                    it.append(("wds", [("cs", h, kk)]))
                    d, r = CSA + 4 * h, CF + 8 * h + 4 * kk
                    c = "0" if kk == 0 else f"v[{d}:{d+3}]"
                    it += I(f"v_mfma_f32_16x16x32_bf16 v[{d}:{d+3}], v[{ONE}:{ONE+3}], v[{r}:{r+3}], {c}")
            return it

        def job_publish():
            it = I(f"""
            s_lshl_b32 s{JT}, s{S['w']}, 5
            v_add_u32 v{X}, s{JT}, v{l}
            s_mov_b32 s{S['m2']}, 0xffff0000
            s_mov_b32 s{S['m2']+1}, 0
            v_cndmask_b32 v{CSA}, v{CSA}, v{CSA+4}, s[{S['m2']}:{S['m2']+1}]
            s_mov_b32 s{S['m2']}, -1
            """)
            if qkv:
                it += I(f"s_cmp_eq_u32 s{S['w']}, 2\ns_cselect_b32 s{S['m2']}, 0xffff, s{S['m2']}") + vcol(X, X + 1)
                it += I(f"s_lshl_b32 s{JT}, s{S['col0']}, 2\ns_add_u32 s{JT}, s{JT}, {CS_OFF}")
            else:
                it += I(f"""
                s_lshl_b32 s{JT}, s{S['col0']}, 2
                s_add_u32 s{JT}, s{JT}, {CS_OFF + 1920*4}
                s_lshl_b32 s{JT1}, s{S['j']}, 3
                s_add_u32 s{JT1}, s{JT1}, s{S['w']}
                s_sub_u32 s{JT1}, s{JT1}, 56
                s_cmp_lt_u32 s{JT1}, 2
                s_cselect_b32 s{JT}, {OOB}, s{JT}
                s_cmp_eq_u32 s{S['w']}, 7
                s_cselect_b32 s{JT}, {OOB}, s{JT}
                """)
            it += I(f"""
            s_cmp_ge_u32 s{S['rb']}, 10
            s_cselect_b32 s{JT}, {OOB}, s{JT}
            v_lshlrev_b32 v{X}, 2, v{X}
            v_mov_b32 v{X+1}, {OOB}
            v_cndmask_b32 v{X}, v{X+1}, v{X}, s[{S['m2']}:{S['m2']+1}]
            """)
            it.append(("vm", f"buffer_atomic_add_f32 v{CSA}, v{X}, s[{SWS}:{SWS+3}], s{JT} offen", "stat"))
            if not ld:
                it += row_publish(SQ, SM, X)
            return it

        def job_relay_store():
            it = [("wvm", ["rl"])]
            for ct in range(4):
                it.append(("ds", f"ds_read_b64_tr_b16 v[{T+4*ct}:{T+4*ct+1}], v{HRLY} offset:{ct*32}", ("rl", ct)))
                it.append(("ds", f"ds_read_b64_tr_b16 v[{T+4*ct+2}:{T+4*ct+3}], v{HRLY} offset:{ct*32 + 2048}", ("rl", ct)))
            for ct in range(4):
                it.append(("wds", [("rl", ct)]))
                it.append(("vm", f"buffer_store_dwordx4 v[{T+4*ct}:{T+4*ct+3}], v{L16}, s[{SWS}:{SWS+3}], s{S['uo']+ct} offen sc1", "rs"))
            return it

        e_sig, e_ld, e_ck = early_flag_jobs(JX + 8)
        pi = Cfg.hpoll
        J = [(0, 0, 0, job_colsum()), (Cfg.pub_it, 0, Cfg.pub_it, job_publish())]
        if not ld:
            if Cfg.ini_pro:
                emit_all(st, job_init_load())
            else:
                J.append((0, Cfg.ini_q, 0, job_init_load()))
            J.append((Cfg.pub_it - 1, 3, Cfg.pub_it - 1, job_init_check()))
            J.append((Cfg.rs_it, 2 if Cfg.rs_it == 0 else 1, Cfg.rs_it, job_relay_store()))
            J.append((Cfg.hsig - 1, 3, Cfg.hsig - 1, [("wvm", None)]))
            J.append((Cfg.hsig, 0, Cfg.hsig, e_sig))
            J.append((pi - Cfg.plead, 0 if Cfg.plead == 0 else 2, pi, e_ld))
            J.append((pi, 3, pi, e_ck))
            J.append((pi + 1, 0, pi + 1, job_load_stats(qkv, T + 38)))
            J.append((8, 3 if pi == 7 else 0, 8, job_publish_stats(qkv, T + 38)))
            if Cfg.touch:
                J.append((Cfg.touch_it, 1, 10, job_touch(JX + 8, 0 if Cfg.touch == 2 else None)))
                if Cfg.touch == 2:
                    J.append((9, Cfg.touch_q, 10, job_touch(JX + 8, 1)))
        J.append((9, 0, 10, job_build_ext(tiles, (lambda u: BIAS + u) if not qkv else (lambda u: BIAS if tiles[u][0] < 11 else Z))))
        J.sort(key=lambda x: (x[0], x[1]))
        pend = []

        def drain(n=None, deadline=None):
            k = 0
            while pend and (n is None or k < n):
                if deadline is not None and not any(p[0] <= deadline for p in pend):
                    break
                emit_item(st, pend.pop(0)[1])
                k += 1

        def addrs(s_):
            sl = (s_ % 3) * SLOT
            return I(f"""
            v_add_u32 v{RA}, {sl}, v{RA0}
            v_add_u32 v{RB}, {sl}, v{RB0}
            v_xor_b32 v{RA+1}, 64, v{RA}
            v_xor_b32 v{RB+1}, 32, v{RB}
            """)

        def rdA(s_, kk):
            return [("ds", f"ds_read_b128 v[{FA+8*kk+4*rt}:{FA+8*kk+4*rt+3}], v{RA+kk} offset:{rt*2048}", ("A", s_, kk)) for rt in range(2)]

        def rdB(g):
            s_, kk, u = g // (2 * n), (g // n) & 1, g % n
            f = FB + 4 * (g % NRING)
            u = tiles[u][0]
            return [("ds", f"ds_read_b64_tr_b16 v[{f+2*i}:{f+2*i+1}], v{RB+(u&1)} offset:{(8*kk+i)*PITCH + (u>>1)*256}", ("B", g)) for i in range(2)]

        emit_all(st, addrs(0))
        if ld:
            st.wait("vm", [("S", 0)])
            if Cfg.hprio:
                a("s_setprio 1")
        a("s_barrier")
        stamp(3)
        LA = NRING - 1
        emit_all(st, rdA(0, 0))
        nxt = 0
        while nxt < LA:
            emit_all(st, rdB(nxt))
            nxt += 1
        if not ld and Cfg.rl_pos == 1:
            relay_dma(st)
        dq = [(1, p) for p in d1[Cfg.k1:]] + [(2, p) for p in dma(2)] if ld else []
        BP = Cfg.bleft
        gaps_left = 2 * n - BP
        cur = 0
        for g in range(20 * n):
            s_, kk, u = g // (2 * n), (g // n) & 1, g % n
            pos = g - s_ * 2 * n
            quarter = (4 * pos) // (2 * n)
            while J and (J[0][0], J[0][1]) <= (s_, quarter):
                jb = J.pop(0)
                pend.extend([jb[2], x] for x in group_scc(jb[3]))
            if pos == 2 * n - BP:
                assert nxt == (s_ + 1) * 2 * n
                drain(deadline=s_)
                assert not any(x[0] <= s_ + 1 for x in dq)
                st.wait2(None, [("S", s_ + 1)] + (["stat"] if s_ == Cfg.hsig - 1 else []) if ld else [])
                a("s_barrier")
                crossed = True
                if s_ < 9:
                    emit_all(st, rdA(s_ + 1, 0))
                    while nxt < g + LA:
                        emit_all(st, rdB(nxt))
                        nxt += 1
                if ld:
                    dq += [(s_ + 3, p) for p in dma(s_ + 3)] if s_ + 3 <= 9 else []
                    gaps_left = 2 * n
                    cur = s_ + 1
                    if Cfg.hprio and s_ == 7:
                        a("s_setprio 0")
            W = Cfg.wgrp
            st.wait("ds", [("A", s_, kk)] + [("B", g + k) for k in range(W if (g % W == 0) else 1)])
            f = FB + 4 * (g % NRING)
            lim = (s_ + 1) * 2 * n if pos < 2 * n - BP else min(20 * n, (s_ + 2) * 2 * n)
            rds = []
            if nxt < min(lim, g + LA + (0 if Cfg.ilv else 1)):
                rds = rdB(nxt)
                nxt += 1
                if nxt == (s_ + 1) * 2 * n and s_ < 9:
                    rds = rds + addrs(s_ + 1)
            if kk == 0 and u == 0:
                rds = rdA(s_, 1) + rds
            for rt in range(2):
                fa, d = FA + 8 * kk + 4 * rt, acc(u, rt)
                c = "0" if g < n else f"v[{d}:{d+3}]"
                x, y = (f, fa) if tiles[u][1] else (fa, f)
                a(f"v_mfma_f32_16x16x32_bf16 v[{d}:{d+3}], v[{x}:{x+3}], v[{y}:{y+3}], {c}")
                if rt == 0 and Cfg.ilv and rds:
                    emit_item(st, rds.pop(0))
            if s_ == 0 and not ld and u < 4:
                rt, h = u >> 1, u & 1
                fa = FA + 8 * kk + 4 * rt + 2 * h
                c1 = "0" if (kk == 0 and h == 0) else f"v[{SQ+4*rt}:{SQ+4*rt+3}]"
                c2 = "0" if (kk == 0 and h == 0) else f"v[{SM+4*rt}:{SM+4*rt+3}]"
                a(f"v_mfma_f32_4x4x4_16b_bf16 v[{SQ+4*rt}:{SQ+4*rt+3}], v[{fa}:{fa+1}], v[{fa}:{fa+1}], {c1}")
                a(f"v_mfma_f32_4x4x4_16b_bf16 v[{SM+4*rt}:{SM+4*rt+3}], v[{ONE}:{ONE+1}], v[{fa}:{fa+1}], {c2}")
            emit_all(st, rds)
            if dq:
                must = sum(1 for x in dq if x[0] <= cur + 1)
                k = -(-len(dq) // max(1, gaps_left - 1))
                if cur < Cfg.lazy:
                    k = max(-(-must // max(1, (gaps_left - 1) // 2)) if must else 0, 1)
                for _ in range(min(k, len(dq))):
                    emit_item(st, dq.pop(0)[1])
            gaps_left -= 1
            drain(Cfg.hfill)
            if pos == 2 * n - 1:
                stamp(4 + s_)
        drain()
        ext_mfma(tiles)
        st.wait2(None, ["tc", "bias"])
        return st

    def kv_addr_setup(X):
        a(f"""
        v_mov_b32 v{X+8}, {CDUM}
        v_and_b32 v{X}, 15, v{l}
        v_lshrrev_b32 v{X+1}, 4, v{l}
        v_lshlrev_b32 v{X+1}, 2, v{X+1}
        v_cmp_eq_u32 s[{S['ex']}:{S['ex']+1}], 0, v{X}
        s_movk_i32 s{S['t3']}, 84
        """)
        for p in range(3):
            a(f"""
            s_lshl_b32 s{S['t']}, s{S['w']}, 1
            s_add_u32 s{S['t']}, s{S['t']}, {p - 10}
            s_cmp_lt_u32 s{S['w']}, 5
            s_cselect_b32 s{S['t1']}, s{S['w']}, s{S['t']}
            s_add_u32 s{S['t2']}, s{S['w']}, {p - 1}
            s_lshl_b32 s{S['t']}, s{S['t1']}, 4
            v_add_u32 v{X+2}, s{S['t']}, v{X+1}
            s_lshl_b32 s{S['t']}, s{S['t2']}, 4
            v_add_u32 v{X+3}, s{S['t']}, v{X}
            v_mul_u32_u24 v{X+4}, 3277, v{X+2}
            v_lshrrev_b32 v{X+4}, 16, v{X+4}
            v_mul_u32_u24 v{X+5}, 3277, v{X+3}
            v_lshrrev_b32 v{X+5}, 16, v{X+5}
            v_mul_u32_u24 v{X+6}, 20, v{X+5}
            v_sub_u32 v{X+6}, v{X+3}, v{X+6}
            v_cmp_eq_u32 vcc, v{X+4}, v{X+5}
            s_mov_b64 s[{S['m1']}:{S['m1']+1}], vcc
            v_cmp_gt_u32 vcc, 80, v{X+3}
            s_and_b64 s[{S['m1']}:{S['m1']+1}], s[{S['m1']}:{S['m1']+1}], vcc
            s_cmp_lt_u32 s{S['w']}, 5
            s_cselect_b64 s[{S['m1']}:{S['m1']+1}], s[{S['m1']}:{S['m1']+1}], {"0" if p == 2 else f"s[{S['ex']}:{S['ex']+1}]"}
            s_cselect_b64 s[{S['m2']}:{S['m2']+1}], 0, -1
            v_cndmask_b32 v{X+6}, v{X+6}, 20, s[{S['m2']}:{S['m2']+1}]
            v_cmp_gt_u32 vcc, 80, v{X+2}
            s_and_b64 vcc, vcc, s[{S['m1']}:{S['m1']+1}]
            v_lshlrev_b32 v{X+6}, 2, v{X+6}
            v_mad_u32_u24 v{X+6}, v{X+2}, s{S['t3']}, v{X+6}
            v_add_u32 v{X+6}, {CMP}, v{X+6}
            v_cndmask_b32 v{CMPA+p}, v{X+8}, v{X+6}, vcc
            """)

    def scatter_setup(X):
        for i in range(7):
            a(f"""
            v_add_u32 v{X}, {256*i - 256}, v0
            v_mul_u32_u24 v{X+1}, 3121, v{X}
            v_lshrrev_b32 v{X+1}, 16, v{X+1}
            v_mul_u32_u24 v{X+2}, 21, v{X+1}
            v_sub_u32 v{X+2}, v{X}, v{X+2}
            v_mul_u32_u24 v{X+3}, 3277, v{X+1}
            v_lshrrev_b32 v{X+3}, 16, v{X+3}
            v_mad_u32_u24 v{X+4}, v{X+3}, 20, v{X+2}
            v_lshrrev_b32 v{X+5}, 4, v{X+4}
            v_and_b32 v{X+4}, 15, v{X+4}
            v_cmp_le_u32 vcc, 3, v{X+5}
            v_cndmask_b32 v{X+6}, 1, 2, vcc
            v_lshlrev_b32 v{X+5}, 1, v{X+5}
            v_sub_u32 v{X+5}, v{X+5}, v{X+6}
            v_max_i32 v{X+5}, 0, v{X+5}
            v_cmp_eq_u32 vcc, 20, v{X+2}
            v_cndmask_b32 v{X+5}, v{X+5}, 9, vcc
            v_cndmask_b32 v{X+4}, v{X+4}, v{X+3}, vcc
            v_lshrrev_b32 v{X+6}, 5, v{X+1}
            v_add_u32 v{X+5}, v{X+5}, v{X+6}
            v_mul_u32_u24 v{X+6}, 52, v{X+5}
            v_lshrrev_b32 v{X+6}, 8, v{X+6}
            v_mad_u32_u24 v{X+5}, v{X+6}, 15, v{X+5}
            v_lshlrev_b32 v{X+5}, 10, v{X+5}
            v_bfe_u32 v{X+6}, v{X+1}, 2, 2
            v_lshl_add_u32 v{X+4}, v{X+6}, 4, v{X+4}
            v_lshl_add_u32 v{X+5}, v{X+4}, 4, v{X+5}
            v_bfe_u32 v{X+6}, v{X+1}, 4, 1
            v_and_b32 v{X+4}, 3, v{X+1}
            v_lshl_add_u32 v{X+4}, v{X+6}, 2, v{X+4}
            v_lshl_add_u32 v{X+5}, v{X+4}, 1, v{X+5}
            v_add_u32 v{X+5}, {FRG}, v{X+5}
            v_mov_b32 v{X+6}, {GAP}
            v_cmp_gt_u32 vcc, 1680, v{X}
            v_cndmask_b32 v{QSCA+i}, v{X+6}, v{X+5}, vcc
            """)

    NH = 7 + Cfg.nx
    O0 = NH
    NMIN = 6 - Cfg.nx

    def present(i):
        if i < NMIN or i in (O0, O0 + 1):
            return None
        if i < 7:
            return f"s_cmp_gt_u32 s{S['nH']}, {i}"
        if i < NH:
            return f"s_cmp_gt_u32 s{S['nX']}, {i - 7}"
        return f"s_cmp_gt_u32 s{S['nO']}, 2"

    def step_off(i, dst, base, mul):
        if 7 <= i < NH:
            it = f"s_add_u32 s{dst}, s{S['sX']}, {i - 7}\n"
        else:
            n, r, s0, k = (S["nH"], S["rH"], S["sH"], i) if i < 7 else (S["nO"], S["rO"], S["sO"], i - O0)
            it = f"""
            s_add_u32 s{dst}, s{r}, {k}
            s_cmp_ge_u32 s{dst}, s{n}
            s_cselect_b32 s{S['pc']}, s{n}, 0
            s_sub_u32 s{dst}, s{dst}, s{S['pc']}
            s_add_u32 s{dst}, s{dst}, s{s0}
            """
        it += f"s_mul_i32 s{dst}, s{dst}, {mul}\ns_add_u32 s{dst}, s{dst}, s{base}\n"
        if present(i):
            it += f"{present(i)}\ns_cselect_b32 s{dst}, s{dst}, {OOB}"
        return I(it)

    def b_load(i, reg):
        pcs = []
        for ct in range(5):
            pre = step_off(i, JT, S["p2B"], 5120) if ct == 0 else (I(f"s_add_u32 s{JT}, s{JT}, 4096") if ct == 4 else [])
            pcs.append(pre + [("vm", f"buffer_load_dwordx4 v[{reg+4*ct}:{reg+4*ct+3}], v{L16}, s[{SWS}:{SWS+3}], s{JT} offen offset:{(ct&3)*1024} sc1", ("B", i))])
        return pcs

    def b_prefetch_regs(first=0):
        pcs = []
        for i in range(first, 5):
            pcs += b_load(i, BB + 20 * i)
        return pcs

    def b_prefetch_lds():
        pcs = []
        for i in (O0, O0 + 1, O0 + 2):
            for ct in range(5):
                pre = step_off(i, JT, S["p2B"], 5120) + I(f"s_mul_i32 s{JT1}, s{S['w']}, {PW}") if ct == 0 else I(f"s_add_u32 s{JT}, s{JT}, 1024")
                pcs.append(pre + I(f"s_add_u32 m0, s{JT1}, {(i-O0)*5120 + ct*1024}") +
                           [("vm", f"buffer_load_dwordx4 v{L16}, s[{SWS}:{SWS+3}], s{JT} offen sc1 lds", ("B", i))])
        return pcs

    P2S = S["so"]

    def areg(i):
        return T + 16 * (i % 3) if i < NH else BB + 20 * ((NH - 5 + i - O0) % 5)

    def breg(i):
        return BB + 20 * (i % 5) if i < NH else BB + 20 * ((NH - 2 + ((i - O0) & 1)) % 5)

    def a_load(i):
        f = areg(i)
        it = [("atomic", step_off(i, P2S, S["p2A"], 4096))]
        if Cfg.p2prio == 1:
            it += I(f"s_setprio {(3, 2, 1, 2, 2, 1, 1, 0, 0, 0)[i]}")
        if Cfg.p2prio == 2 and i < 3:
            it += I(f"s_setprio {3 - i}")
        for tt in range(4):
            it.append(("vm", f"buffer_load_dwordx4 v[{f+4*tt}:{f+4*tt+3}], v{L16}, s[{SWS}:{SWS+3}], s{P2S} offen offset:{tt*1024}{' sc1' if Cfg.p2sc else ''}", ("A", i)))
        return it

    def a2_addr(dst):
        a(f"""
        s_lshl_b32 s{S['t']}, s{S['rb']}, 1
        s_lshr_b32 s{S['t1']}, s{S['rg']}, 1
        s_add_u32 s{S['t']}, s{S['t']}, s{S['t1']}
        s_mul_i32 s{S['t']}, s{S['t']}, {A2_RB}
        s_and_b32 s{S['t1']}, s{S['rg']}, 1
        s_lshl_b32 s{S['t1']}, s{S['t1']}, 11
        s_add_u32 s{S['t']}, s{S['t']}, s{S['t1']}
        v_add_u32 v{dst}, s{S['t']}, v{L16}
        """)

    def signal(flag, idx_reg):
        a(f"""
        s_add_u32 s{S['t']}, s{idx_reg}, {flag}
        s_lshl_b32 s{S['t']}, s{S['t']}, 7
        v_mov_b32 v{T+46}, s{S['t']}
        v_mov_b32 v{T+47}, 1
        s_cmp_eq_u32 s{S['w']}, 0
        s_cselect_b32 exec_lo, 1, 0
        s_mov_b32 exec_hi, 0
        global_atomic_add v{T+46}, v{T+47}, s[{S['fl']}:{S['fl']+1}]
        s_mov_b64 exec, -1
        """)

    def lds_add(off):
        a(f"v_mov_b32 v{RS}, {SYN}\nv_mov_b32 v{IRS}, 1\ns_mov_b64 exec, 1\nds_add_u32 v{RS}, v{IRS} offset:{off}\ns_mov_b64 exec, -1")

    def lds_wait(off, target, err, tmp):
        def chk():
            a(f"ds_read_b32 v{tmp+1}, v{tmp} offset:{off}\ns_waitcnt lgkmcnt(0)\nv_readfirstlane_b32 s{S['t']}, v{tmp+1}\ns_cmp_ge_u32 s{S['t']}, {target}")
        a(f"v_mov_b32 v{tmp}, {SYN}")
        chk()
        poll_slow(chk, err, sleep=1)

    def own_flag(flag, target, err, two, blocking=True, fail=None):
        def chk():
            a(f"""
            global_load_dword v{IRS}, v{RS}, s[{S['fl']}:{S['fl']+1}] sc1
            s_waitcnt vmcnt(0)
            v_cmp_gt_u32 vcc, {target}, v{IRS}
            s_cmp_eq_u64 vcc, 0
            """)
        a(f"""
        s_lshr_b32 s{S['t']}, s{S['r2']}, 1
        s_lshl_b32 s{S['t']}, s{S['t']}, 3
        s_add_u32 s{S['t']}, s{S['t']}, s{S['w']}
        s_add_u32 s{S['t']}, s{S['t']}, {flag}
        {f"v_or_b32 v{RS}, s{S['t']}, v{l}" if two else f"v_lshlrev_b32 v{RS}, 2, v{l}"}
        {"" if two else f"v_or_b32 v{RS}, s{S['w']}, v{RS}"}
        {"" if two else f"s_sub_u32 s{S['t']}, s{S['t']}, s{S['w']}"}
        {"" if two else f"v_add_u32 v{RS}, s{S['t']}, v{RS}"}
        v_lshlrev_b32 v{RS}, 7, v{RS}
        s_mov_b64 exec, 3
        """)
        chk()
        if blocking:
            poll_slow(chk, err, sleep=Cfg.psleep)
            a("s_mov_b64 exec, -1")
        else:
            a(f"s_mov_b64 exec, -1\ns_cbranch_scc0 {fail}")

    def wait_flag(st, flag, target, err, line_expr, who=0, then=None):
        skip = a.newlabel("WF")

        def chk():
            a(f"""
            global_load_dword v{IRS}, v{RS}, s[{S['fl']}:{S['fl']+1}] sc1
            s_waitcnt vmcnt(0)
            v_readfirstlane_b32 s{S['t']}, v{IRS}
            s_cmp_ge_u32 s{S['t']}, {target}
            """)
        a(f"""
        s_cmp_lg_u32 s{S['w']}, {who}
        s_cbranch_scc1 {skip}
        {line_expr}
        s_add_u32 s{S['t']}, s{S['t']}, {flag}
        s_lshl_b32 s{S['t']}, s{S['t']}, 7
        v_mov_b32 v{RS}, s{S['t']}
        s_mov_b64 exec, 1
        """)
        chk()
        poll_slow(chk, err, sleep=4)
        a("s_mov_b64 exec, -1")
        if then is not None:
            lds_add(then)
        a.label(skip)

    def emit_pcs(st, pcs):
        for p in pcs:
            emit_all(st, p)

    def h_epilogue(nt, st):
        C = T
        AD = T + 18
        a2_addr(AD)
        for rt, (rs, irs) in enumerate(((RS, IRS), (RS1, IRS1))):
            c = C + 6 * rt
            a(f"""
            v_mul_f32 v{c}, {hx(GC1)}, v{rs}
            v_mul_f32 v{c+2}, v{rs}, v{rs}
            v_mul_f32 v{c+2}, v{c+2}, v{rs}
            v_mul_f32 v{c+2}, {hx(GC2)}, v{c+2}
            v_mov_b32 v{c+4}, v{irs}
            """)
        a(f"s_lshl_b32 s{S['t']}, s{S['col0']}, 7\ns_lshl_b32 s{S['t1']}, s{S['tp1']}, 12\ns_add_u32 s{S['t']}, s{S['t']}, s{S['t1']}")
        pf = b_prefetch_regs()
        W0 = T + 20
        if Cfg.eprio:
            a(f"s_setprio {Cfg.eprio if nt == 3 else 1}")
        for t in range(nt):
            for rt in range(2):
                c = C + 6 * rt
                o = T + 32 + 4 * ((2 * t + rt) % 3)
                ps = [acc(2 * t + (k >> 1), rt) + 2 * (k & 1) for k in range(4)]
                ws = [W0 + 2 * k for k in range(4)]
                seq = []
                seq.append([f"v_pk_mul_f32 v[{w}:{w+1}], v[{p}:{p+1}], v[{p}:{p+1}]" for p, w in zip(ps, ws)])
                seq.append([f"v_pk_fma_f32 v[{w}:{w+1}], v[{w}:{w+1}], v[{c+2}:{c+3}], v[{c}:{c+1}] op_sel_hi:[1,0,0]" for w in ws])
                seq.append([f"v_pk_mul_f32 v[{w}:{w+1}], v[{w}:{w+1}], v[{p}:{p+1}]" for p, w in zip(ps, ws)])
                seq.append([f"v_exp_f32 v{w+k}, v{w+k}" for w in ws for k in range(2)])
                seq.append([f"v_pk_fma_f32 v[{w}:{w+1}], v[{w}:{w+1}], v[{c+4}:{c+5}], v[{c+4}:{c+5}] op_sel_hi:[1,0,0]" for w in ws])
                seq.append([f"v_rcp_f32 v{w+k}, v{w+k}" for w in ws for k in range(2)])
                seq.append([f"v_pk_mul_f32 v[{w}:{w+1}], v[{w}:{w+1}], v[{p}:{p+1}]" for p, w in zip(ps, ws)])
                seq.append([f"v_cvt_pk_bf16_f32 v{o+k}, v{w}, v{w+1}" for k, w in enumerate(ws)])
                for gi, grp in enumerate(seq):
                    for x in grp:
                        a(x)
                    if gi in (1, 3, 5, 2, 4)[:Cfg.pf_h] and pf:
                        emit_all(st, pf.pop(0))
                st.emit(("vm", f"buffer_store_dwordx4 v[{o}:{o+3}], v{AD}, s[{SWS}:{SWS+3}], s{S['t']} offen offset:{rt*1024} sc1", "hst"))
            a(f"s_add_u32 s{S['t']}, s{S['t']}, 4096")
        stamp(14)
        pf = pf + (b_prefetch_lds() if Cfg.lds_pre else [])
        if nt == 3 and Cfg.pf_mid:
            a("s_setprio 0")
            emit_pcs(st, pf[:Cfg.pf_mid])
            pf = pf[Cfg.pf_mid:]
        st.wait("vm", ["hst"])
        stamp(15)
        a("s_setprio 0\ns_barrier")
        a(f"s_lshl_b32 s{S['t1']}, s{S['rb']}, 3\ns_add_u32 s{S['t1']}, s{S['t1']}, s{S['j']}")
        signal(F_H, S["t1"])
        emit_pcs(st, pf)

    def kv_epilogue(lst, st, weave):
        RT, RL2, E, X = T, T + 8, T + 16, T + 24
        a(f"""
        v_lshrrev_b32 v{X}, 4, v{l}
        v_lshlrev_b32 v{X}, 4, v{X}
        s_lshl_b32 s{S['t']}, s{S['rg']}, 7
        s_add_u32 s{S['t']}, s{S['t']}, {ST_RS}
        v_add_u32 v{X}, s{S['t']}, v{X}
        ds_read_b128 v[{RT}:{RT+3}], v{X}
        ds_read_b128 v[{RT+4}:{RT+7}], v{X} offset:64
        s_mul_i32 s{S['t']}, s{S['rg']}, 10240
        v_add_u32 v{X+1}, s{S['t']}, v{L16}
        v_mov_b32 v{X+2}, {hx(LOG2E)}
        v_mov_b32 v{X+3}, {hx(EPS6)}
        s_waitcnt lgkmcnt(0)
        """)
        for k in range(4):
            a(f"v_pk_mul_f32 v[{RL2+2*k}:{RL2+2*k+1}], v[{RT+2*k}:{RT+2*k+1}], v[{X+2}:{X+3}] op_sel_hi:[1,0]")
        for u, kt in reversed(lst):
            base = acc(u, 0)
            if kt < 5:
                for k in range(4):
                    a(f"v_pk_mul_f32 v[{E+2*k}:{E+2*k+1}], v[{base+2*k}:{base+2*k+1}], v[{RL2+2*k}:{RL2+2*k+1}]")
            for k in range(4):
                a(f"v_pk_mul_f32 v[{base+2*k}:{base+2*k+1}], v[{base+2*k}:{base+2*k+1}], v[{RT+2*k}:{RT+2*k+1}]")
            if kt < 5:
                for k in range(8):
                    a(f"v_exp_f32 v{E+k}, v{E+k} clamp")
                for k in range(8):
                    a(f"v_max_f32 v{base+k}, v{X+3}, v{base+k}")
                for k in range(4):
                    a(f"v_pk_add_f32 v[{base+2*k}:{base+2*k+1}], v[{base+2*k}:{base+2*k+1}], v[{E+2*k}:{E+2*k+1}]")
            for k in range(4):
                a(f"v_cvt_pk_bf16_f32 v{base+k}, v{base+2*k}, v{base+2*k+1}")
            a(f"ds_write_b128 v{X+1}, v[{base}:{base+3}] offset:{kt*1024}")

    def products_and_atomics(q, st, pf):
        D = ACC + 40 if q else ACC
        PA, X = T, T + 40
        PB = [ACC + 52 + 4 * (k % 7) if q else ACC + 16 + 4 * k for k in range(12)]
        a(f"""
        s_lshl_b32 s{S['t']}, s{S['w']}, 1
        s_sub_u32 s{S['t']}, s{S['t']}, 10
        s_cmp_lt_u32 s{S['w']}, 5
        s_cselect_b32 s{S['t']}, s{S['w']}, s{S['t']}
        s_lshl_b32 s{S['t']}, s{S['t']}, 10
        v_add_u32 v{X}, s{S['t']}, v{L16}
        s_max_u32 s{S['t1']}, s{S['w']}, 1
        s_add_u32 s{S['t1']}, s{S['t1']}, 4
        s_lshl_b32 s{S['t1']}, s{S['t1']}, 10
        v_add_u32 v{X+1}, s{S['t1']}, v{L16}
        s_min_u32 s{S['t1']}, s{S['w']}, 3
        s_add_u32 s{S['t1']}, s{S['t1']}, 6
        s_lshl_b32 s{S['t1']}, s{S['t1']}, 10
        v_add_u32 v{X+3}, s{S['t1']}, v{L16}
        v_add_u32 v{X+2}, {5*1024}, v{X}
        s_waitcnt lgkmcnt(0)
        s_barrier
        """)
        st.q["ds"].clear()
        stamp(14)
        for _ in range(min(Cfg.pf_a, len(pf))):
            emit_all(st, pf.pop(0))
        lz, ld_ = a.newlabel("PZ"), a.newlabel("PD")

        def band():
            s2 = Stream(a)
            for rg in range(4):
                s2.emit(("ds", f"ds_read_b128 v[{PA+4*rg}:{PA+4*rg+3}], v{X} offset:{rg*10240}", ("a", rg)))
            order = [(p, rg) for rg in range(4) for p in range(3)]
            ah = 7 if q else 11

            def rb(k):
                p, rg = order[k]
                s2.emit(("ds", f"ds_read_b128 v[{PB[k]}:{PB[k]+3}], v{X+1+p} offset:{rg*10240}", ("b", k)))
            for k in range(ah):
                rb(k)
            for k, (p, rg) in enumerate(order):
                s2.wait("ds", [("a", rg), ("b", k)])
                d = D + 4 * p
                c = "0" if rg == 0 else f"v[{d}:{d+3}]"
                a(f"v_mfma_f32_16x16x32_bf16 v[{d}:{d+3}], v[{PA+4*rg}:{PA+4*rg+3}], v[{PB[k]}:{PB[k]+3}], {c}")
                if k + ah < 12:
                    rb(k + ah)

        def zsum():
            s2 = Stream(a)
            for k in range(8):
                s2.emit(("ds", f"ds_read_b128 v[{PA+4*k}:{PA+4*k+3}], v{X} offset:{(k>>1)*10240 + (k&1)*1024}", k))
            for k in range(4):
                a(f"v_mov_b32 v{PB[0]+k}, 0x3f803f80")
            for k in range(8):
                s2.wait("ds", [k])
                d = D + 4 * (k & 1)
                c = "0" if k < 2 else f"v[{d}:{d+3}]"
                a(f"v_mfma_f32_16x16x32_bf16 v[{d}:{d+3}], v[{PA+4*k}:{PA+4*k+3}], v[{PB[0]}:{PB[0]+3}], {c}")
        if q:
            a(f"s_cmp_ge_u32 s{S['w']}, 5\ns_cbranch_scc1 {lz}")
            band()
            a(f"s_branch {ld_}\n{lz}:")
            zsum()
            a.label(ld_)
        else:
            band()
        a(f"""
        s_lshl_b32 s{S['t']}, s{S['j']}, 13
        s_add_u32 s96, s24, s{S['t']}
        s_addc_u32 s97, s25, 0
        s_add_u32 s96, s96, {KV_OFF}
        s_addc_u32 s97, s97, 0
        v_lshlrev_b32 v{X}, 2, v0
        v_add_u32 v{X+1}, 4096, v{X}
        v_add_u32 v{X+2}, {CMP}, v{X}
        v_cmp_gt_u32 vcc, 144, v0
        """)
        for r in range(12):
            a(f"ds_write_b32 v{CMPA + (r >> 2)}, v{D+r} offset:{(r & 3)*84}")
        a("s_waitcnt lgkmcnt(0)\ns_barrier")
        stamp(25)
        for i in range(4):
            a(f"ds_read_b32 v{T+32+i}, v{X+2} offset:{i*2048}")
        for i in range(4):
            a(f"s_waitcnt lgkmcnt({3-i})")
            if i == 3:
                a("s_mov_b64 exec, vcc")
            st.emit(("vm0" if i == 3 else "vm", f"global_atomic_add_f32 v{X+(i>>1)}, v{T+32+i}, s[96:97] offset:{(i&1)*2048}", "kva"))
        a("s_mov_b64 exec, -1")
        for _ in range(min(Cfg.pf_b, len(pf))):
            emit_all(st, pf.pop(0))

    st = kloop(True, True)
    a(f"s_mov_b32 s{S['rls']}, 1")
    if Cfg.nkq:
        kv_epilogue([(5 + u, u) for u in range(Cfg.nkq)], st, [])
    a(f"""
    v_mov_b32 v{T+8}, 0
    v_mov_b32 v{T+9}, 0
    v_mov_b32 v{T+10}, 0
    v_mov_b32 v{T+11}, 0
    v_lshlrev_b32 v{T+7}, 4, v0
    v_add_u32 v{T+6}, {FRG - 4096}, v{T+7}
    ds_write_b128 v{T+6}, v[{T+8}:{T+11}]
    ds_write_b128 v{T+6}, v[{T+8}:{T+11}] offset:1024
    ds_write_b128 v{T+6}, v[{T+8}:{T+11}] offset:{PW}
    ds_write_b128 v{T+6}, v[{T+8}:{T+11}] offset:{PW + 1024}
    ds_write_b128 v{T+6}, v[{T+8}:{T+11}] offset:{2*PW}
    """)
    pfq = b_prefetch_regs() + (b_prefetch_lds() if Cfg.lds_pre and not Cfg.qfast else [])
    emit_pcs(st, pfq[:Cfg.pf_q1])
    pfq = pfq[Cfg.pf_q1:]
    if Cfg.cprio:
        a("s_setprio 3")
    stamp(19)
    products_and_atomics(True, st, pfq)
    PQ = ACC + 40
    KC = T + 8
    for rt, (rs, irs) in enumerate(((RS, IRS), (RS1, IRS1))):
        c = KC + 4 * rt
        a(f"v_mul_f32 v{c}, {hx(LOG2E)}, v{rs}\nv_mul_f32 v{c+1}, {hx(EPS6)}, v{irs}\nv_mov_b32 v{c+2}, v{rs}")
    if Cfg.phi_n == 0:
        st.wait("vm", ["kva"])
        stamp(26)
        a("s_barrier")
        stamp(15)
    blocks = [(0, 0), (0, 1), (1, 0), (1, 1), (2, None)]
    for bi, (ks, rt_) in enumerate(blocks):
        if ks < 2:
            prs = [(acc(2 * ks + (k >> 1), rt_) + 2 * (k & 1), rt_, PQ + 12 * rt_ + 4 * ks + k) for k in range(4)]
        else:
            prs = [(acc(4, k >> 1) + 2 * (k & 1), k >> 1, PQ + 12 * (k >> 1) + 8 + (k & 1)) for k in range(4)]
        for k, (p, rt, o) in enumerate(prs):
            a(f"v_pk_mul_f32 v[{T+2*k}:{T+2*k+1}], v[{p}:{p+1}], v[{KC+4*rt}:{KC+4*rt+1}] op_sel_hi:[1,0]")
        for k in range(8):
            a(f"v_exp_f32 v{T+k}, v{T+k} clamp")
        for k, (p, rt, o) in enumerate(prs):
            a(f"v_max_f32 v{p}, v{p}, v{KC+4*rt+1}\nv_max_f32 v{p+1}, v{p+1}, v{KC+4*rt+1}")
        for k, (p, rt, o) in enumerate(prs):
            a(f"v_pk_fma_f32 v[{T+2*k}:{T+2*k+1}], v[{p}:{p+1}], v[{KC+4*rt+2}:{KC+4*rt+3}], v[{T+2*k}:{T+2*k+1}] op_sel_hi:[1,0,1]")
        for k, (p, rt, o) in enumerate(prs):
            a(f"v_cvt_pk_bf16_f32 v{o}, v{T+2*k}, v{T+2*k+1}")
        if bi == Cfg.phi_n - 1:
            st.wait("vm", ["kva"])
            stamp(26)
            a("s_barrier")
            stamp(15)
    for rt in range(2):
        a(f"v_mov_b32 v{PQ+12*rt+10}, 0\nv_mov_b32 v{PQ+12*rt+11}, 0")
    AD = T + 44
    a2_addr(AD)
    a(f"""
    v_add_u32 v{T+46}, {FRG}, v{L16}
    v_lshlrev_b32 v{T+8}, 2, v0
    v_subrev_u32 v{T+8}, 1024, v{T+8}
    v_add_u32 v{T+9}, 4096, v{T+8}
    """)
    if Cfg.pf_q2:
        a("s_setprio 0")
        emit_pcs(st, pfq[:Cfg.pf_q2])
        pfq = pfq[Cfg.pf_q2:]
        if Cfg.cprio:
            a("s_setprio 3")
    wait_flag(st, F_KV, 16, 0x102, f"s_mov_b32 s{S['t']}, s{S['j']}", who=4, then=0)
    lds_wait(0, 1, 0x109, RS)
    stamp(16)
    for i in range(7):
        st.emit(("vm", f"global_load_dword v{T+i}, v{T+8+(i>>2)}, s[96:97] offset:{(i&3)*1024} sc1", ("g", i)))
    if Cfg.qfast:
        a(f"""
        s_lshr_b32 s{S['t']}, s{S['r2']}, 1
        s_lshl_b32 s{S['t']}, s{S['t']}, 3
        s_add_u32 s{S['t']}, s{S['t']}, s{S['w']}
        s_add_u32 s{S['t']}, s{S['t']}, {F_H}
        s_lshl_b32 s{S['t']}, s{S['t']}, 7
        v_mov_b32 v{T+10}, s{S['t']}
        s_mov_b64 exec, 1
        """)
        st.emit(("vm", f"global_load_dword v{T+11}, v{T+10}, s[{S['fl']}:{S['fl']+1}] sc1", "hp"))
        a("s_mov_b64 exec, -1")
    for i in range(7):
        a(f"v_cmp_le_u32 vcc, {frg(9)}, v{QSCA+i}")
        st.wait("vm", [("g", i)])
        a(f"""
        v_cvt_pk_bf16_f32 v{T+i}, v{T+i}, v{T+i}
        ds_write_b16 v{QSCA+i}, v{T+i}
        s_mov_b64 exec, vcc
        ds_write_b16 v{QSCA+i}, v{T+i} offset:64
        ds_write_b16 v{QSCA+i}, v{T+i} offset:128
        ds_write_b16 v{QSCA+i}, v{T+i} offset:192
        s_mov_b64 exec, -1
        """)
    a("s_waitcnt lgkmcnt(0)")
    lds_add(4)
    if Cfg.qfast:
        st.wait("vm", ["hp"])
        a(f"v_readfirstlane_b32 s{S['rlo']}, v{T+11}")
    lds_wait(4, 4, 0x10a, RS)
    stamp(17)
    DEN = ACC + 64
    prods = [(9 + ks, ks, None) for ks in range(3)] + [(fi, ks, et) for fi, (et, ks) in enumerate(((0, 0), (1, 0), (1, 1), (2, 0), (2, 1), (3, 1), (3, 2), (4, 1), (4, 2)))]
    FRS = [T + 4 * i for i in range(11)]

    def frd(i):
        r = FRS[i % 11]
        st.emit(("ds", f"ds_read_b128 v[{r}:{r+3}], v{T+46} offset:{frg(prods[i][0])-FRG}", ("f", i)))
    for i in range(11):
        frd(i)
    seen = set()
    for i, (fi, ks, et) in enumerate(prods):
        st.wait("ds", [("f", i)])
        r = FRS[i % 11]
        for rt in range(2):
            D = DEN + 4 * rt if et is None else acc(et, rt)
            c = f"v[{D}:{D+3}]" if D in seen else "0"
            seen.add(D)
            a(f"v_mfma_f32_16x16x32_bf16 v[{D}:{D+3}], v[{r}:{r+3}], v[{PQ+12*rt+4*ks}:{PQ+12*rt+4*ks+3}], {c}")
        if i == 0:
            frd(11)
        if i == 6:
            for h in range(8):
                a(f"v_add_f32 v{DEN+h}, {hx(1e-6)}, v{DEN+h}")
            for h in range(8):
                a(f"v_rcp_f32 v{DEN+h}, v{DEN+h}")
    a(f"""
    s_mov_b32 s{S['m1']}, 0xffff0000
    s_mov_b32 s{S['m1']+1}, -1
    s_mov_b32 s{S['m2']}, 0
    s_mov_b32 s{S['m2']+1}, -1
    s_mov_b32 s{S['ex']}, 0
    s_mov_b32 s{S['ex']+1}, 0xffff0000
    """)
    for rt in range(2):
        for k, m in enumerate(("m1", "m2", "ex")):
            a(f"v_cndmask_b32 v{DEN+8+3*rt+k}, v{DEN+4*rt+k}, v{DEN+4*rt+k+1}, s[{S[m]}:{S[m]+1}]")
    OO = ACC + 40
    for rt in range(2):
        for et in range(5):
            dr = (DEN + 4 * rt, DEN + 8 + 3 * rt, DEN + 9 + 3 * rt, DEN + 10 + 3 * rt, DEN + 4 * rt + 3)[et]
            p = acc(et, rt)
            for k in range(4):
                a(f"v_mul_f32 v{p+k}, v{p+k}, v{dr}")
            for k in range(2):
                a(f"v_cvt_pk_bf16_f32 v{OO+10*rt+2*et+k}, v{p+2*k}, v{p+2*k+1}")
    a(f"""
    s_mul_i32 s{S['t']}, s{S['j']}, 5
    s_lshr_b32 s{S['t']}, s{S['t']}, 1
    s_add_u32 s{S['t']}, s{S['t']}, 54
    s_lshl_b32 s{S['t']}, s{S['t']}, 12
    s_add_u32 s{S['t1']}, s{S['t']}, 4096
    s_add_u32 s{S['t2']}, s{S['t']}, 8192
    s_bitcmp1_b32 s{S['j']}, 0
    s_cbranch_scc1 O_ODD
    """)
    for odd in range(2):
        if odd:
            a("s_branch O_DONE\nO_ODD:")
        for rt in range(2):
            o = OO + 10 * rt
            lst = ((o, 4, "t", 0), (o + 4, 4, "t1", 0), (o + 8, 2, "t2", 0)) if not odd else ((o, 2, "t", 8), (o + 2, 4, "t1", 0), (o + 6, 4, "t2", 0))
            for r, nd, so, off in lst:
                a(f"buffer_store_dwordx{nd} v[{r}:{r+nd-1}], v{AD}, s[{SWS}:{SWS+3}], s{S[so]} offen offset:{rt*1024 + off} sc1")
    a("O_DONE:")
    stamp(18)
    a(f"""
    s_lshl_b32 s{S['t']}, s{S['rb']}, 3
    s_add_u32 s{S['t']}, s{S['t']}, s{S['j']}
    s_add_u32 s{S['t']}, s{S['t']}, {F_O}
    s_lshl_b32 s{S['t']}, s{S['t']}, 7
    v_mov_b32 v{RS1}, s{S['t']}
    v_mov_b32 v{IRS1}, 1
    """)
    sig_o = f"s_mov_b64 exec, 1\nglobal_atomic_add v{RS1}, v{IRS1}, s[{S['fl']}:{S['fl']+1}]\ns_mov_b64 exec, -1"
    if Cfg.qfast:
        a(f"s_cmp_eq_u32 s{S['rlo']}, 0\ns_cbranch_scc1 Q_SLOW")
        emit_pcs(st, pfq)
        nq = sum(1 for p in pfq for x in p if x[0] == "vm")
        for i in range(3):
            emit_all(st, a_load(i))
        a(f"s_waitcnt vmcnt({12 + nq})\n{sig_o}\ns_setprio {Cfg.qprio}\ns_branch PHASE2C\nQ_SLOW:")
    a(f"s_waitcnt vmcnt(0)\n{sig_o}")
    own_flag(F_H, 1, 0x10b, False)
    emit_pcs(st, pfq)
    for i in range(3):
        emit_all(st, a_load(i))
    a(f"s_setprio {Cfg.qprio}\ns_branch PHASE2C")

    a.label("ROLE_KV")
    st = kloop(False, True)
    if Cfg.cprio:
        a("s_setprio 3")
    kv_epilogue([(u, Cfg.nkq + u) for u in range(10 - Cfg.nkq)], st, [])
    pfk = b_prefetch_regs()
    stamp(17)
    products_and_atomics(False, st, pfk)
    st.wait("vm", ["kva"])
    stamp(26)
    a("s_barrier")
    stamp(15)
    signal(F_KV, S["j"])
    a("s_setprio 0")
    emit_pcs(st, pfk + (b_prefetch_lds() if Cfg.lds_pre else []))
    stamp(16)
    a("s_branch PHASE2")

    a.label("ROLE_H0")
    st = kloop(False, False)
    h_epilogue(4, st)
    a("s_branch PHASE2")
    a.label("ROLE_H1")
    st = kloop(True, False)
    h_epilogue(3, st)

    a.label("PHASE2")
    a(f"s_mov_b32 s{S['rls']}, 0")
    stamp(19)
    st = Stream(a)
    own_flag(F_H, 1, 0x105, False)
    stamp(20)

    OA, RAD, WA, CB = SMALL, SMALL + 3, SMALL + 6, SMALL + 14
    XAT = max(k for k in range(NH) if k % 3 == 1)
    XR = [T + 16 + 2 * k for k in range(3)]
    BR = [T + 22 + 2 * k for k in range(3)]

    def epi_setup():
        X = RS
        it = I(f"""
        s_mov_b32 s{SR}, s20
        s_mov_b32 s{SR+1}, s21
        s_mov_b32 s{SR+2}, {2048*1280}
        s_mov_b32 s{SR+3}, 0x20000
        s_mov_b32 s{SAUX}, s18
        s_mov_b32 s{SAUX+1}, s19
        s_mov_b32 s{SAUX+2}, 1280
        s_mov_b32 s{SAUX+3}, 0x20000
        s_mul_i32 s{JT}, s{S['r2']}, {64*1280}
        s_mul_i32 s{JT1}, s{S['c2']}, 160
        s_add_u32 s{JT}, s{JT}, s{JT1}
        """)
        Y = SMALL + 7
        for i in range(3):
            it += I(f"""
            v_add_u32 v{Y}, {512*i}, v0
            v_mul_u32_u24 v{Y+1}, 3277, v{Y}
            v_lshrrev_b32 v{Y+1}, 16, v{Y+1}
            v_mul_u32_u24 v{Y+2}, 20, v{Y+1}
            v_sub_u32 v{Y+2}, v{Y}, v{Y+2}
            v_mul_u32_u24 v{Y+3}, 1280, v{Y+1}
            v_lshl_add_u32 v{Y+3}, v{Y+2}, 3, v{Y+3}
            v_add_u32 v{Y+3}, s{JT}, v{Y+3}
            v_cmp_gt_u32 vcc, 1280, v{Y}
            v_mov_b32 v{Y+4}, {OOB}
            v_cndmask_b32 v{OA+i}, v{Y+4}, v{Y+3}, vcc
            v_bfe_u32 v{Y+4}, v{Y+1}, 1, 2
            v_xor_b32 v{Y+4}, v{Y+4}, v{Y+2}
            v_mul_u32_u24 v{Y+5}, 320, v{Y+1}
            v_lshl_add_u32 v{Y+5}, v{Y+4}, 4, v{Y+5}
            v_cndmask_b32 v{RAD+i}, 0, v{Y+5}, vcc
            v_lshlrev_b32 v{CB+i}, 3, v{Y+2}
            """)
        it += I(f"""
        v_and_b32 v{Y}, 15, v{l}
        v_mul_u32_u24 v{Y}, 320, v{Y}
        v_lshrrev_b32 v{Y+1}, 4, v{l}
        v_bfe_u32 v{Y+2}, v{l}, 1, 2
        v_xor_b32 v{Y+1}, v{Y+1}, v{Y+2}
        v_lshl_add_u32 v{Y}, v{Y+1}, 4, v{Y}
        s_mul_i32 s{JT}, s{S['w']}, {PW}
        v_add_u32 v{WA}, s{JT}, v{Y}
        v_add_u32 v{Y+6}, s{JT}, v{L16}
        """)
        return it

    def epi_loads():
        it = I(f"s_mul_i32 s{JT1}, s{S['c2']}, 160")
        for i in range(3):
            it.append(("vm", f"buffer_load_dwordx2 v[{XR[i]}:{XR[i]+1}], v{OA+i}, s[{SX}:{SX+3}], 0 offen", "x"))
            it.append(("vm", f"buffer_load_dwordx2 v[{BR[i]}:{BR[i]+1}], v{CB+i}, s[{SAUX}:{SAUX+3}], s{JT1} offen", "x"))
        return it

    LB = SMALL + 13

    def p2_step(i, fill, dump=False, force=False):
        st.wait("vm", [("A", i), ("B", i)])
        st.wait("ds", [("B", i)])
        f, b = areg(i), breg(i)
        opt = present(i) is not None and not force
        if opt:
            emit_all(st, fill)
            fill = []
            lab = a.newlabel("OPT")
            a(f"{present(i)}\ns_cbranch_scc0 {lab}")
        k = 0
        for tt in range(4):
            for ct in range(5):
                acc = ACC + 4 * (tt * 5 + ct)
                c = "0" if i == 0 else f"v[{acc}:{acc+3}]"
                if not Cfg.x_p2n or (tt == 0 and ct == 0):
                    a(f"v_mfma_f32_16x16x32_bf16 v[{acc}:{acc+3}], v[{b+4*ct}:{b+4*ct+3}], v[{f+4*tt}:{f+4*tt+3}], {c}")
                k += 1
                n = -(-len(fill) // max(1, Cfg.p2span + 1 - k)) if fill else 0
                for _ in range(min(n, len(fill))):
                    emit_item(st, fill.pop(0))
                if dump and tt > 0 and (tt * 5 + ct) >= 8:
                    dump_tile(tt * 5 + ct - 8)
        if dump:
            for t_ in range(12, 20):
                dump_tile(t_)
        if opt:
            a.label(lab)

    def dump_tile(t_):
        r = ACC + 4 * t_
        a(f"ds_write_b128 v{WA}, v[{r}:{r+3}] offset:{(t_ // 5)*5120 + (t_ % 5)*64}")

    def lds_b(i):
        r = breg(i)
        return [("wvm", [("B", i)])] + [("ds", f"ds_read_b128 v[{r+4*ct}:{r+4*ct+3}], v{LB} offset:{(i-O0)*5120 + ct*1024}", ("B", i)) for ct in range(5)]

    def o_loads(s2):
        for k in (O0, O0 + 1, O0 + 2):
            emit_all(s2, a_load(k))

    def o_peek():
        a(f"""
        s_lshr_b32 s{S['t']}, s{S['r2']}, 1
        s_lshl_b32 s{S['t']}, s{S['t']}, 3
        s_add_u32 s{S['t']}, s{S['t']}, s{S['w']}
        s_add_u32 s{S['t']}, s{S['t']}, {F_O}
        v_or_b32 v{RS}, s{S['t']}, v{l}
        v_lshlrev_b32 v{RS}, 7, v{RS}
        s_mov_b64 exec, 3
        """)
        st.emit(("vm", f"global_load_dword v{IRS}, v{RS}, s[{S['fl']}:{S['fl']+1}] sc1", "of"))
        a("s_mov_b64 exec, -1")

    def o_try():
        l1 = a.newlabel("OT")
        st.wait("vm", ["of"])
        a(f"""
        s_mov_b32 s{S['hs']}, 0
        v_cmp_gt_u32 vcc, 4, v{IRS}
        s_and_b32 s{S['t']}, vcc_lo, 3
        s_cbranch_scc1 {l1}
        s_mov_b32 s{S['hs']}, 1
        """)
        o_loads(Stream(a))
        a.label(l1)

    def o_wait():
        done = a.newlabel("OW")
        if Cfg.o_try >= 0:
            a(f"s_cmp_eq_u32 s{S['hs']}, 1\ns_cbranch_scc1 {done}")
        own_flag(F_O, 4, 0x106, True)
        o_loads(st)
        a.label(done)
        stamp(21)

    def after_step(i):
        it = []
        if i + 3 < NH:
            it += a_load(i + 3)
        if i + 5 < NH:
            for p in b_load(i + 5, breg(i)):
                it.append(("atomic", p))
        if i in (0, 1, 2) and not Cfg.lds_pre:
            it += [("atomic", p) for p in b_prefetch_lds()[5 * i:5 * i + 5]]
        elif i in (0, 1, 2) and Cfg.qfast:
            lab = a.newlabel("EL")
            flat = [(("vm0",) + x[1:]) if x[0] == "vm" else x for p in b_prefetch_lds()[5 * i:5 * i + 5] for x in p]
            it.append(("atomic", I(f"s_cmp_eq_u32 s{S['rls']}, 0\ns_cbranch_scc1 {lab}") + flat + I(f"{lab}:")))
        if i == NH - 4 and Cfg.o_try >= 0:
            it.append(("call", o_peek))
        if i == NH - 2 and Cfg.o_try >= 0:
            it.append(("call", o_try))
        if i == NH - 1:
            it.append(("call", o_wait))
        if i == XAT:
            it += epi_loads()
        if i in (NH - 2, NH - 1, NH):
            it = lds_b(i + 2) + it
        return it

    for i in range(3):
        emit_all(st, a_load(i))
    a("s_setprio 0")
    a.label("PHASE2C")
    carry = group_scc(epi_setup())
    for i in range(NH + 3):
        if i == NH:
            emit_all(st, carry)
            carry = []
        if Cfg.tdump and i == O0 + 1:
            break
        p2_step(i, carry)
        if i == Cfg.qtill:
            a("s_setprio 0")
        stamp(27 + i)
        carry = after_step(i)
    if Cfg.tdump:
        import copy
        emit_all(st, carry)
        q0 = copy.deepcopy(st.q)
        a(f"{present(O0 + 2)}\ns_cbranch_scc1 P2_THREE")
        st.wait("ds", None)
        p2_step(O0 + 1, [], dump=True)
        a("s_branch P2_RED\nP2_THREE:")
        st.q = q0
        p2_step(O0 + 1, [])
        st.wait("ds", None)
        p2_step(O0 + 2, [], dump=True, force=True)
        a.label("P2_RED")
        stamp(22)
        a("s_waitcnt vmcnt(0)")
    else:
        st.wait2(None, None)
        a.label("P2_RED")
        stamp(22)
        for t_ in range(20):
            dump_tile(t_)
    a("s_waitcnt lgkmcnt(0)\ns_barrier")
    stamp(23)
    FIN = [ACC, ACC + 32, BB]
    for i in range(2):
        a(f"v_add_u32 v{T+8}, {4*PW}, v{RAD+i}")
        for w in range(8):
            src, off = (RAD + i, w * PW) if w < 4 else (T + 8, (w - 4) * PW)
            st.emit(("ds", f"ds_read_b128 v[{FIN[i]+4*w}:{FIN[i]+4*w+3}], v{src} offset:{off}", ("r", i, w)))
            if i > 0 and w == 6:
                st.wait("ds", [("r", i - 1, 7)])
    for i in range(3):
        if i == 2:
            a(f"s_cmp_ge_u32 s{S['w']}, 4\ns_cbranch_scc1 FIN")
        f = FIN[i]
        if i == 0:
            lab = a.newlabel("R2")
            a(f"s_cmp_ge_u32 s{S['w']}, 4\ns_cbranch_scc1 {lab}\ns_waitcnt lgkmcnt(7)\nv_add_u32 v{T+9}, {4*PW}, v{RAD+2}")
            for w in range(8):
                src, off = (RAD + 2, w * PW) if w < 4 else (T + 9, (w - 4) * PW)
                a(f"ds_read_b128 v[{FIN[2]+4*w}:{FIN[2]+4*w+3}], v{src} offset:{off}")
            a.label(lab)
        if i == 2:
            a("s_waitcnt lgkmcnt(0)")
        x, b = XR[i], BR[i]
        a(f"""
        v_lshlrev_b32 v{T}, 16, v{x}
        v_and_b32 v{T+1}, 0xffff0000, v{x}
        v_lshlrev_b32 v{T+2}, 16, v{x+1}
        v_and_b32 v{T+3}, 0xffff0000, v{x+1}
        v_lshlrev_b32 v{T+4}, 16, v{b}
        v_and_b32 v{T+5}, 0xffff0000, v{b}
        v_lshlrev_b32 v{T+6}, 16, v{b+1}
        v_and_b32 v{T+7}, 0xffff0000, v{b+1}
        v_pk_add_f32 v[{T}:{T+1}], v[{T}:{T+1}], v[{T+4}:{T+5}]
        v_pk_add_f32 v[{T+2}:{T+3}], v[{T+2}:{T+3}], v[{T+6}:{T+7}]
        """)
        for w in range(8):
            st.wait("ds", [("r", i, w)])
            a(f"""
            v_pk_add_f32 v[{T}:{T+1}], v[{T}:{T+1}], v[{f+4*w}:{f+4*w+1}]
            v_pk_add_f32 v[{T+2}:{T+3}], v[{T+2}:{T+3}], v[{f+4*w+2}:{f+4*w+3}]
            """)
        a(f"""
        v_cvt_pk_bf16_f32 v{T+10+2*i}, v{T}, v{T+1}
        v_cvt_pk_bf16_f32 v{T+11+2*i}, v{T+2}, v{T+3}
        buffer_store_dwordx2 v[{T+10+2*i}:{T+11+2*i}], v{OA+i}, s[{SR}:{SR+3}], 0 offen
        """)
    a.label("FIN")
    stamp(24)
    if Cfg.stamps == 5:
        a(f"""
        s_cmp_lg_u32 s2, {Cfg.probe_wg}
        s_cbranch_scc1 END
        s_cmp_lg_u32 s{S['w']}, {Cfg.probe_w}
        s_cbranch_scc1 END
        v_readlane_b32 s{S['t']}, v{ITS}, {Cfg.probe}
        v_readlane_b32 s{S['t1']}, v{ITS}, {0 if Cfg.probe_cyc else 62}
        s_sub_u32 s{S['t']}, s{S['t']}, s{S['t1']}
        s_{'lshr' if Cfg.probe_cyc else 'lshl'}_b32 s{S['t']}, s{S['t']}, {3 if Cfg.probe_cyc else 2}
        s_min_u32 s{S['t']}, s{S['t']}, 100000
        v_mov_b32 v{T}, s{S['t']}
        global_store_dword v{Z}, v{T}, s[22:23] offset:4
        s_memrealtime s[{S['t0']}:{S['t0']+1}]
        s_waitcnt lgkmcnt(0)
        s_mov_b32 s{S['t1']}, s{S['t0']}
        SPIN:
        s_memrealtime s[{S['t0']}:{S['t0']+1}]
        s_waitcnt lgkmcnt(0)
        s_sub_u32 s{S['t2']}, s{S['t0']}, s{S['t1']}
        s_cmp_lt_u32 s{S['t2']}, s{S['t']}
        s_cbranch_scc1 SPIN
        """)
    elif Cfg.stamps and Cfg.stamps != 4:
        a(f"""
        s_memrealtime s[{S['t0']}:{S['t0']+1}]
        s_waitcnt lgkmcnt(0)
        v_writelane_b32 v{ITS}, s{S['t0']}, 63
        s_lshl_b32 s{S['t']}, s2, 3
        s_add_u32 s{S['t']}, s{S['t']}, s{S['w']}
        s_lshl_b32 s{S['t']}, s{S['t']}, 8
        s_add_u32 s{S['t']}, s{S['t']}, {STAMP_OFF}
        v_lshlrev_b32 v{T+20}, 2, v{l}
        v_add_u32 v{T+20}, s{S['t']}, v{T+20}
        global_store_dword v{T+20}, v{ITS}, s[24:25]
        """)
    a.label("END")
    a("s_endpgm")
    for f in ool:
        f()
    a.label("CODE_END")
    a("s_endpgm")
    return a.L


def sizes(L):
    import subprocess, re
    src = '.amdgcn_target "amdgcn-amd-amdhsa--gfx950"\n.text\n' + "\n".join(L) + "\n"
    r = subprocess.run(["llvm-mc", "-triple=amdgcn-amd-amdhsa", "-mcpu=gfx950", "-show-encoding"], input=src, capture_output=True, text=True)
    enc = re.findall(r"encoding: \[(.*?)\]", r.stdout)
    out, k = [], 0
    for x in L:
        if x.endswith(":") or x.startswith("."):
            out.append(0)
        else:
            out.append(len(enc[k].split(",")))
            k += 1
    assert k == len(enc)
    return out


def align_pass(L):
    import re
    sz = sizes(L)
    out, addr, last4 = [], 0, None
    nw = npad = 0
    for x, n_ in zip(L, sz):
        if n_ == 8 and addr % 8 == 4:
            if last4 is not None:
                op, rest = out[last4].split(None, 1)
                out[last4] = f"{op}_e64 {rest}"
                addr += 4
                nw += 1
            elif Cfg.align == 2:
                out.append("s_nop 0")
                addr += 4
                npad += 1
        if n_ == 4:
            wid = re.match(r"v_(mov|add|sub|subrev|mul|max|min|and|or|xor|lshlrev|lshrrev|exp|rcp|rsq|sqrt)_(b32|u32|f32|u32_u24)\b", x) and "_e64" not in x
            last4 = len(out) if (wid and addr % 8 == 0) else (last4 if addr % 8 == 4 and False else None)
        elif n_ == 8:
            last4 = None
        out.append(x)
        addr += n_
    print("align: widened", nw, "padded", npad, file=sys.stderr)
    return out


def build():
    head = open("cdna_kernels/%s.s.ref" % NAME).read().split("; Override launch")[0]
    out = head + "; @launch grid=(256,1,1) block=(512,1,1) lds=163840\n"
    out += '.amdgcn_target "amdgcn-amd-amdhsa--gfx950"\n.text\n'
    L, n = fix_hazards(gen())
    if Cfg.align:
        L = align_pass(L)
    out += f".globl {KN}\n.p2align 8\n.type {KN},@function\n"
    out += "\n".join(x if x.endswith(":") else "    " + x for x in L) + "\n"
    print("instrs", len(L), "nops inserted", n, file=sys.stderr)
    out += f""".section .rodata,"a"
.p2align 6
.amdhsa_kernel {KN}
  .amdhsa_next_free_vgpr 256
  .amdhsa_next_free_sgpr 102
  .amdhsa_accum_offset 256
  .amdhsa_group_segment_fixed_size 0
  .amdhsa_kernarg_size 88
  .amdhsa_user_sgpr_count 2
  .amdhsa_user_sgpr_kernarg_segment_ptr 1
  .amdhsa_system_sgpr_workgroup_id_x 1
  .amdhsa_float_denorm_mode_32 3
.end_amdhsa_kernel
"""
    return out


if __name__ == "__main__":
    for arg in sys.argv[2:]:
        k, v = arg.split("=")
        assert hasattr(Cfg, k), k
        setattr(Cfg, k, int(v))
    open(sys.argv[1], "w").write(build())
```

```python
import sys, struct
from asmlib import Asm, fix_hazards, RegAlloc

NAME = "parallel_sum__linear_attn_block__mixer_channel_mlp__prompt"
KN = NAME + "_kernel"

A2_OFF = 0
A2_RB = 74 * 4096
B2_OFF = 32 * A2_RB
B2_C = 74 * 5120
KV_OFF = B2_OFF + 8 * B2_C
CS_OFF = KV_OFF + 8 * 8192
FLAG_OFF = CS_OFF + 16384
RS_OFF = FLAG_OFF + 37888
WS_SIZE = RS_OFF + 16384
F_KV, F_H, F_O, F_EARLY = 0, 8, 136, 264
ZERO_BYTES = 65536 + 16384 + 37888 + 16384
STAMP_OFF = WS_SIZE + 65536
OOB = 0x7f000000

SLOT = 49152
MISC = 3 * SLOT
RELAY = MISC
ST_M, ST_RS, ST_IRS, CSP = MISC + 12288, MISC + 12800, MISC + 13312, MISC + 14336
SYN = MISC + 15360
PW = 20480
GAP = 15360
KVX = 0
CMP = 40960
CDUM = CMP + 6720
ONES = CMP + 7232
FRG = 4 * PW + GAP


def frg(fi):
    return FRG + fi * 1024 + (fi // 5) * GAP


LOG2E = 1.4426950408889634
GC1 = -2.0 * 0.7978845608028654 * LOG2E
GC2 = GC1 * 0.044715
EPS6 = 9.98377799987793e-07


def hx(x):
    return "0x%08x" % struct.unpack("<I", struct.pack("<f", x))[0]


class Cfg:
    stamps = 0
    cnt = 0
    touch_q = 2
    pub_it = 1
    ini_q = 0
    ini_early = 1
    esleep = 8
    isleep = 8
    probe = 24
    probe_wg = 200
    probe_w = 0
    probe_cyc = 0
    prefetch_code = 1
    x_nodma = 0
    bpos = 1
    map1 = 2
    map2 = 0
    wnt = 0
    rnt = 1
    p2prio = 2
    prio = 0
    prio2 = 1
    cprio = 1
    nfirst = 4
    poll_it = 7
    touch = 1
    fine = 0
    fill = 2
    pf_h = 0
    pf_q1 = 25
    pf_k1 = 10
    pf_k0 = 0
    phi_n = 0
    nkq = 0
    qfast = 0
    pf_a = 0
    tlb = 0
    tdump = 1
    nx_all = 0
    pf_b = 0
    pf_qw = 0
    pf_l = 1
    hbar = 6
    hbar_chunk = 5
    gelu_pk0 = 0
    kv_pk = 1
    h_early = 1
    rot2 = 1
    o_at = 6
    o_try = 5
    o_peek = 3
    yprio = 0
    ytill = 9
    psleep = 3
    zdup = 1
    x_p2n = 0
    lds_pre = 1
    rl_pos = 0
    epi_at = 4
    p2span = 20
    p2sc = 1
    qprio = 0
    hpass = 1
    rs_it = 0
    hpoll = 7
    hsig = 3
    ini_pro = 1
    q16 = 0
    pf_mid = 25
    pf_q2 = 0
    nx = 0
    bleft = 3
    k1 = 99
    lazy = 0
    mimic = 1
    wgrp = 1
    ilv = 1
    nring = 6
    align = 0
    qtill = 99
    shards = 32
    plead = 1
    bsig = 3
    bpoll = 6
    touch_it = 8
    hfill = 3
    hprio = 1
    early_lds = 0
    dfirst = 1
    qb3 = 2
    qb4 = 5
    sig_it = 4
    eprio = 2


def kperm_feature(g, j):
    return 4 * g + (j & 3) + 16 * (j >> 2)


def typ_of(ids):
    return {0: (ids >> 5) & 1, 1: (ids >> 3) & 1, 2: ids >> 7, 3: (ids >> 2) & 1}[Cfg.map1]


class Stream:
    def __init__(self, a):
        self.a = a
        self.q = {"ds": [], "vm": []}

    def emit(self, it):
        k = it[0]
        if k == "i":
            self.a(it[1])
        elif k in ("ds", "vm"):
            self.a(it[1])
            self.q[k].append(it[2])
        elif k == "vm0":
            self.a(it[1])
            self.q["vm"].append(("*", it[2]))
        elif k in ("wds", "wvm"):
            self.wait(k[1:], it[1])
        else:
            raise ValueError(it)

    def count(self, k, tags):
        q = self.q[k]
        def star(t):
            return isinstance(t, tuple) and t[0] == "*"
        idx = max([i for i, t in enumerate(q) if tags is None or t in tags or (star(t) and t[1] in tags)], default=-1)
        if idx < 0:
            return None
        left = sum(1 for t in q[idx + 1:] if not star(t))
        del q[:idx + 1]
        return min(left, 15 if k == "ds" else 63)

    def wait(self, k, tags):
        n = self.count(k, tags)
        if n is not None:
            self.a(f"s_waitcnt {'lgkmcnt' if k == 'ds' else 'vmcnt'}({n})")

    def wait2(self, dtags, vtags):
        nd, nv = self.count("ds", dtags), self.count("vm", vtags) if vtags != [] else None
        p = []
        if nv is not None:
            p.append(f"vmcnt({nv})")
        if nd is not None:
            p.append(f"lgkmcnt({nd})")
        if p:
            self.a("s_waitcnt " + " ".join(p))


def I(text):
    return [("i", x.strip()) for x in text.strip().split("\n") if x.strip()]


def group_scc(items):
    out, i = [], 0
    while i < len(items):
        it = items[i]
        if it[0] == "i" and it[1].startswith("s_cmp"):
            j = i + 1
            while j < len(items) and items[j][0] == "i" and items[j][1].startswith("s_cselect"):
                j += 1
            out.append(("atomic", items[i:j]))
            i = j
        else:
            out.append(it)
            i += 1
    return out


def gen():
    a = Asm()
    ool = []
    S = {}
    sa = RegAlloc(44, 96)
    for n in ("w", "rg", "rb", "j", "typ", "col0", "soA", "soB", "so2", "so", "ofA", "ofB", "of2", "t", "t1", "t2", "t3", "pc",
              "rlo", "rls", "hs", "jt", "jt1", "r2", "c2", "sH", "sX", "nX", "sO", "nH", "nO", "rH", "rO", "p2A", "p2B", "tp1"):
        S[n] = sa.alloc(n)
    S["uo"] = sa.alloc("uo", 4)
    S["pa"] = sa.alloc("pa", 2)
    for n in ("ex", "m1", "m2"):
        S[n] = sa.alloc(n, 2, 2)
    S["fl"], S["t0"] = 10, 100
    SX, SW, SWS, SR, SAUX = 28, 32, 36, 40, 96

    l, Z, ITS, RS, IRS, L16, SMALL = 1, 2, 3, 4, 5, 6, 7
    ACC, T, BB = 24, 104, 152
    CMPA, SCA = SMALL, SMALL + 8
    vb = RegAlloc(BB, BB + 100)
    NRING = Cfg.nring
    FA = vb.alloc("fa", 16, 2)
    FB = vb.alloc("fb", 4 * NRING, 2)
    RA = vb.alloc("rA", 2)
    RA0 = vb.alloc("rA0")
    RB = vb.alloc("rB", 2)
    RB0 = vb.alloc("rB0")
    BIAS = vb.alloc("bias", 8)
    RLD = vb.alloc("rld")
    JX = vb.alloc("jx", 10, 2)
    WE, XE = T, T + 40
    RS1, IRS1 = 252, 253
    QSCA = SMALL + 4

    def srd(base, ptr, size):
        a(f"s_mov_b32 s{base}, s{ptr}\ns_mov_b32 s{base+1}, s{ptr+1}\ns_mov_b32 s{base+2}, {size}\ns_mov_b32 s{base+3}, 0x20000")

    DBGW = {3: 2, 13: 3, 15: 4, 20: 5, 21: 6, 22: 7, 24: 9}

    def stamp(lane):
        if Cfg.stamps == 6:
            return
        if Cfg.stamps == 5:
            if lane == Cfg.probe:
                a(f"{'s_memtime' if Cfg.probe_cyc else 's_memrealtime'} s[{S['t0']}:{S['t0']+1}]\ns_waitcnt lgkmcnt(0)\nv_writelane_b32 v{ITS}, s{S['t0']}, {lane}")
        elif Cfg.stamps == 4:
            if lane in DBGW:
                a(f"s_memrealtime s[{S['t0']}:{S['t0']+1}]\ns_waitcnt lgkmcnt(0)\nv_mov_b32 v{ITS}, s{S['t0']}\ns_mov_b64 exec, 1\n"
                  f"global_atomic_umax v{Z}, v{ITS}, s[22:23] offset:{4*DBGW[lane]}\ns_mov_b64 exec, -1")
        elif Cfg.stamps:
            a(f"{'s_memrealtime' if Cfg.stamps == 3 else 's_memtime'} s[{S['t0']}:{S['t0']+1}]\ns_waitcnt lgkmcnt(0)\nv_writelane_b32 v{ITS}, s{S['t0']}, {lane}")

    def poll_slow(check, err, sleep=24):
        lp, back = a.newlabel("PL"), a.newlabel("PB")
        a(f"s_cbranch_scc0 {lp}\n{back}:")

        def emit():
            l2 = a.newlabel("PL")
            a(f"{lp}:\ns_mov_b32 s{S['pc']}, 0\n{l2}:\ns_sleep {sleep}")
            if Cfg.cnt and err in (0x101, 0x104, 0x102, 0x105, 0x106, 0x10b):
                wd = {0x101: 10, 0x104: 11, 0x102: 12, 0x105: 13, 0x106: 14, 0x10b: 15}[err]
                a(f"v_mov_b32 v{ITS}, 1\ns_mov_b64 s[{S['t0']}:{S['t0']+1}], exec\ns_mov_b64 exec, 1\nglobal_atomic_add v{Z}, v{ITS}, s[22:23] offset:{4*wd}\ns_mov_b64 exec, s[{S['t0']}:{S['t0']+1}]")
            check()
            a(f"""
            s_cbranch_scc1 {back}
            s_add_u32 s{S['pc']}, s{S['pc']}, 1
            s_cmp_lt_u32 s{S['pc']}, 0x20000
            s_cbranch_scc1 {l2}
            v_mov_b32 v{IRS}, {err}
            global_store_dword v{Z}, v{IRS}, s[22:23] offset:32
            s_branch {back}
            """)
        ool.append(emit)

    a.label(KN)
    a(f"""
    s_cmp_ge_u32 s2, 256
    s_cbranch_scc1 END
    s_load_dwordx16 s[4:19], s[0:1], 0
    s_load_dwordx4 s[20:23], s[0:1], 64
    s_load_dwordx2 s[24:25], s[0:1], 80
    v_lshrrev_b32 v{T}, 6, v0
    v_and_b32 v{l}, 63, v0
    v_readfirstlane_b32 s{S['w']}, v{T}
    """)
    if Cfg.stamps:
        a(f"v_mov_b32 v{ITS}, 0\ns_memtime s[{S['t0']}:{S['t0']+1}]\ns_memrealtime s[{S['ex']}:{S['ex']+1}]")
    if Cfg.map1 == 0:
        a(f"""
        s_and_b32 s{S['t']}, s2, 3
        s_lshl_b32 s{S['t']}, s{S['t']}, 2
        s_bfe_u32 s{S['t1']}, s2, 0x20003
        s_add_u32 s{S['rb']}, s{S['t']}, s{S['t1']}
        s_bfe_u32 s{S['typ']}, s2, 0x10005
        s_bfe_u32 s{S['t']}, s2, 0x10002
        s_lshl_b32 s{S['t']}, s{S['t']}, 2
        s_bfe_u32 s{S['t1']}, s2, 0x20006
        s_add_u32 s{S['j']}, s{S['t']}, s{S['t1']}
        """)
    else:
        if Cfg.map1 == 1:
            a(f"s_and_b32 s{S['j']}, s2, 7\ns_bfe_u32 s{S['typ']}, s2, 0x10003\ns_lshr_b32 s{S['rb']}, s2, 4")
        elif Cfg.map1 == 2:
            a(f"s_and_b32 s{S['j']}, s2, 7\ns_lshr_b32 s{S['typ']}, s2, 7\ns_bfe_u32 s{S['rb']}, s2, 0x40003")
        else:
            a(f"""
            s_bfe_u32 s{S['typ']}, s2, 0x10002
            s_and_b32 s{S['t']}, s2, 3
            s_lshl_b32 s{S['t']}, s{S['t']}, 1
            s_bfe_u32 s{S['t1']}, s2, 0x10003
            s_add_u32 s{S['j']}, s{S['t']}, s{S['t1']}
            s_lshr_b32 s{S['rb']}, s2, 4
            """)
    a(f"""
    v_mov_b32 v{Z}, 0
    v_lshlrev_b32 v{L16}, 4, v{l}
    s_and_b32 s{S['rg']}, s{S['w']}, 3
    s_mul_i32 s{S['t']}, s{S['j']}, 7
    s_min_u32 s{S['t']}, s{S['t']}, 47
    s_lshl_b32 s{S['t']}, s{S['t']}, 5
    s_mul_i32 s{S['t1']}, s{S['j']}, 80
    s_cmp_eq_u32 s{S['typ']}, 0
    s_cselect_b32 s{S['col0']}, s{S['t1']}, s{S['t']}
    s_lshr_b32 s{S['t']}, s{S['w']}, 2
    s_lshl_b32 s{S['t1']}, s{S['typ']}, 1
    s_add_u32 s{S['t3']}, s{S['t']}, s{S['t1']}
    s_cmp_eq_u32 s{S['t3']}, 0
    s_cbranch_scc1 ROLE_KV
    s_cmp_eq_u32 s{S['t3']}, 2
    s_cbranch_scc1 ROLE_H0
    s_cmp_eq_u32 s{S['t3']}, 3
    s_cbranch_scc1 ROLE_H1
    """)

    TY = {0: dict(nt=5, stride=3840, wptr=6, qkv=True), 1: dict(nt=4, stride=3456, wptr=12, qkv=False)}
    JT, JT1 = S["jt"], S["jt1"]

    def after_kernarg():
        a("s_waitcnt lgkmcnt(0)")
        if Cfg.stamps == 4:
            a(f"s_not_b32 s{S['ex']}, s{S['ex']}\nv_mov_b32 v{ITS}, s{S['ex']}\ns_mov_b64 exec, 1\nglobal_atomic_umax v{Z}, v{ITS}, s[22:23] offset:4\ns_mov_b64 exec, -1")
        elif Cfg.stamps:
            a(f"v_writelane_b32 v{ITS}, s{S['t0']}, 0\nv_writelane_b32 v{ITS}, s{S['ex']}, 62")
        srd(SX, 4, 2048 * 1280)
        srd(SWS, 24, WS_SIZE)
        a(f"s_add_u32 s{S['fl']}, s24, {FLAG_OFF}\ns_addc_u32 s{S['fl']+1}, s25, 0")

    def emit_item(st, it):
        if it[0] == "atomic":
            for x in it[1]:
                emit_item(st, x)
        elif it[0] == "call":
            it[1]()
        else:
            st.emit(it)

    def emit_all(st, items):
        for x in items:
            emit_item(st, x)

    def p2_params():
        if Cfg.map2 == 0:
            a(f"""
            s_and_b32 s{S['t']}, s2, 3
            s_lshl_b32 s{S['t']}, s{S['t']}, 3
            s_bfe_u32 s{S['t1']}, s2, 0x30003
            s_add_u32 s{S['r2']}, s{S['t']}, s{S['t1']}
            s_bfe_u32 s{S['t']}, s2, 0x10002
            s_lshl_b32 s{S['t']}, s{S['t']}, 2
            s_lshr_b32 s{S['t1']}, s2, 6
            s_add_u32 s{S['c2']}, s{S['t']}, s{S['t1']}
            """)
        else:
            a(f"""
            s_and_b32 s{S['t']}, s2, 7
            s_lshl_b32 s{S['t']}, s{S['t']}, 2
            s_bfe_u32 s{S['t1']}, s2, 0x20003
            s_add_u32 s{S['r2']}, s{S['t']}, s{S['t1']}
            s_lshr_b32 s{S['c2']}, s2, 5
            """)
        NX = Cfg.nx
        a(f"""
        s_lshl_b32 s{S['t']}, s{S['rg']}, 3
        s_lshr_b32 s{S['sX']}, 0x302a231c, s{S['t']}
        s_and_b32 s{S['sX']}, s{S['sX']}, 255
        s_cmp_eq_u32 s{S['typ']}, 0
        s_cselect_b32 s{S['t3']}, {NX}, {NX if Cfg.nx_all else 0}
        s_mul_i32 s{S['t']}, s{S['w']}, 7
        s_add_u32 s{S['t1']}, s{S['sX']}, s{S['t3']}
        s_cmp_lt_u32 s{S['w']}, 6
        s_cselect_b32 s{S['t2']}, 7, 6
        s_sub_u32 s{S['t2']}, s{S['t2']}, s{S['t3']}
        s_cmp_lt_u32 s{S['w']}, 4
        s_cselect_b32 s{S['sH']}, s{S['t']}, s{S['t1']}
        s_cselect_b32 s{S['nH']}, 7, s{S['t2']}
        s_cselect_b32 s{S['nX']}, s{S['t3']}, 0
        s_and_b32 s{S['t']}, s{S['w']}, 1
        s_sub_u32 s{S['nO']}, 3, s{S['t']}
        s_mul_i32 s{S['t']}, s{S['t']}, 3
        s_lshr_b32 s{S['t1']}, s{S['w']}, 1
        s_mul_i32 s{S['t1']}, s{S['t1']}, 5
        s_add_u32 s{S['t']}, s{S['t']}, s{S['t1']}
        s_add_u32 s{S['sO']}, s{S['t']}, 54
        s_and_b32 s{S['t']}, s{S['c2']}, {3 if Cfg.map2 == 0 else 7}
        s_mul_i32 s{S['rH']}, s{S['t']}, {(2 if Cfg.map2 == 0 else 1) * Cfg.rot2}
        s_mul_i32 s{S['rO']}, s{S['t']}, {Cfg.rot2}
        s_cmp_ge_u32 s{S['rH']}, s{S['nH']}
        s_cselect_b32 s{S['t']}, s{S['nH']}, 0
        s_sub_u32 s{S['rH']}, s{S['rH']}, s{S['t']}
        s_cmp_ge_u32 s{S['rH']}, s{S['nH']}
        s_cselect_b32 s{S['t']}, s{S['nH']}, 0
        s_sub_u32 s{S['rH']}, s{S['rH']}, s{S['t']}
        s_cmp_ge_u32 s{S['rO']}, s{S['nO']}
        s_cselect_b32 s{S['t']}, s{S['nO']}, 0
        s_sub_u32 s{S['rO']}, s{S['rO']}, s{S['t']}
        s_cmp_ge_u32 s{S['rO']}, s{S['nO']}
        s_cselect_b32 s{S['t']}, s{S['nO']}, 0
        s_sub_u32 s{S['rO']}, s{S['rO']}, s{S['t']}
        s_cmp_ge_u32 s{S['rO']}, s{S['nO']}
        s_cselect_b32 s{S['t']}, s{S['nO']}, 0
        s_sub_u32 s{S['rO']}, s{S['rO']}, s{S['t']}
        s_mul_i32 s{S['p2A']}, s{S['r2']}, {A2_RB}
        s_mul_i32 s{S['p2B']}, s{S['c2']}, {B2_C}
        s_add_u32 s{S['p2B']}, s{S['p2B']}, {B2_OFF}
        """)

    def relay_params(base):
        a(f"""
        s_lshl_b32 s{S['t']}, s{S['rg']}, 8
        s_add_u32 s{S['t3']}, s{S['t']}, s2
        s_mul_i32 s{S['t2']}, s{S['t3']}, 6554
        s_lshr_b32 s{S['t2']}, s{S['t2']}, 16
        s_mul_i32 s{S['t']}, s{S['t2']}, 10
        s_sub_u32 s{S['t1']}, s{S['t3']}, s{S['t']}
        s_min_u32 s{S['so']}, s{S['rg']}, 2
        s_lshl_b32 s{S['so']}, s{S['so']}, 12
        s_add_u32 s{S['rls']}, s{S['so']}, {base}
        """)

    def bias_setup(qkv, n, st, X):
        if not qkv:
            srd(SAUX, 14, 3456)
            a(f"""
            s_lshl_b32 s{S['t']}, s{S['tp1']}, 5
            s_add_u32 s{S['t']}, s{S['t']}, s{S['col0']}
            s_lshl_b32 s{S['t']}, s{S['t']}, 1
            v_and_b32 v{X}, 15, v{l}
            v_lshlrev_b32 v{X}, 1, v{X}
            """)
            for u in range(n):
                st.emit(("vm", f"buffer_load_ushort v{BIAS+u}, v{X}, s[{SAUX}:{SAUX+3}], s{S['t']} offen offset:{u*32}", "bias"))
        else:
            a(f"v_mov_b32 v{BIAS}, 0x3586")

    def vcol(reg, tmp):
        return I(f"""
        v_mov_b32 v{tmp}, 0
        v_mov_b32 v{tmp+1}, -16
        v_cmp_le_u32 vcc, 80, v{reg}
        v_cndmask_b32 v{tmp}, v{tmp}, v{tmp+1}, vcc
        v_mov_b32 v{tmp+1}, {640-96}
        v_cmp_le_u32 vcc, 96, v{reg}
        v_cndmask_b32 v{tmp}, v{tmp}, v{tmp+1}, vcc
        v_mov_b32 v{tmp+1}, {1280-176}
        v_cmp_le_u32 vcc, 176, v{reg}
        v_cndmask_b32 v{tmp}, v{tmp}, v{tmp+1}, vcc
        v_add_u32 v{reg}, v{reg}, v{tmp}
        """)

    def job_build_ext(tiles, bias_of):
        X, n = JX, len(tiles)
        it = I(f"""
        v_and_b32 v{X}, 15, v{l}
        s_lshl_b32 s{JT}, s{S['rg']}, 5
        v_add_lshl_u32 v{X+1}, v{X}, s{JT}, 2
        v_add_u32 v{X+1}, {MISC}, v{X+1}
        s_lshl_b32 s{JT}, s{S['tp1']}, 7
        s_add_u32 s{JT}, s{JT}, {CSP}
        v_lshl_add_u32 v{X}, v{X}, 2, s{JT}
        """)
        for rt, (rs, irs) in enumerate(((RS, IRS), (RS1, IRS1))):
            for r, off in ((X + 2 + rt, ST_M), (rs, ST_RS), (irs, ST_IRS)):
                it.append(("ds", f"ds_read_b32 v{r}, v{X+1} offset:{off - MISC + 64*rt}", "bx"))
        for u in range(n):
            it.append(("ds", f"ds_read_b32 v{WE+4*u+3}, v{X} offset:{tiles[u][0]*64}", "bx"))
            if u == 6:
                it.append(("wds", ["bx"]))
        it += I(f"s_mov_b32 s{S['m1']}, 0xffff\ns_mov_b32 s{S['m1']+1}, 0") + [("wds", ["bx"])]
        for rt, irs in enumerate((IRS, IRS1)):
            m, xe = X + 2 + rt, XE + 4 * rt
            it += I(f"""
            v_sub_f32 v{m}, 0, v{m}
            v_cvt_pk_bf16_f32 v{X+4}, v{m}, v{irs}
            v_lshlrev_b32 v{X+5}, 16, v{X+4}
            v_and_b32 v{X+6}, 0xffff0000, v{X+4}
            v_sub_f32 v{X+5}, v{m}, v{X+5}
            v_sub_f32 v{X+6}, v{irs}, v{X+6}
            v_cvt_pk_bf16_f32 v{X+5}, v{m}, v{X+5}
            v_cvt_pk_bf16_f32 v{X+6}, v{X+6}, v{Z}
            v_cndmask_b32 v{xe}, 0, v{X+5}, s[{S['m1']}:{S['m1']+1}]
            v_cndmask_b32 v{xe+1}, 0, v{X+4}, s[{S['m1']}:{S['m1']+1}]
            v_cndmask_b32 v{xe+2}, 0, v{X+6}, s[{S['m1']}:{S['m1']+1}]
            v_mov_b32 v{xe+3}, 0
            """)
        for u in range(n):
            w, b = WE + 4 * u, bias_of(u)
            it += I(f"""
            v_cvt_pk_bf16_f32 v{w}, v{w+3}, v{w+3}
            v_and_b32 v{w+1}, 0xffff0000, v{w}
            v_sub_f32 v{w+1}, v{w+3}, v{w+1}
            v_cvt_pk_bf16_f32 v{w+1}, v{w+1}, v{Z}
            v_lshl_or_b32 v{w+1}, v{b}, 16, v{w+1}
            v_mov_b32 v{w+2}, v{b}
            v_mov_b32 v{w+3}, 0
            """)
        return it

    def acc(u, rt):
        return ACC + 8 * u + 4 * rt

    def ext_mfma(tiles):
        for u, (_, tr) in reversed(list(enumerate(tiles))) if Cfg.nkq else enumerate(tiles):
            for rt in range(2):
                w, xe, d = WE + 4 * u, XE + 4 * rt, acc(u, rt)
                x, y = (w, xe) if tr else (xe, w)
                a(f"v_mfma_f32_16x16x32_bf16 v[{d}:{d+3}], v[{x}:{x+3}], v[{y}:{y+3}], v[{d}:{d+3}]")

    def early_flag_jobs(V):
        NS = Cfg.shards
        sig = I(f"s_and_b32 s{JT}, s2, {NS-1}\ns_add_u32 s{JT}, s{JT}, {F_EARLY}\ns_lshl_b32 s{JT}, s{JT}, 7\nv_mov_b32 v{V}, s{JT}\nv_mov_b32 v{V+1}, 1") + [
            ("atomic", I(f"s_cmp_eq_u32 s{S['w']}, 0\ns_cselect_b32 exec_lo, 1, 0\ns_mov_b32 exec_hi, 0") +
             [("vm0", f"global_atomic_add v{V}, v{V+1}, s[{S['fl']}:{S['fl']+1}]", "sg")] + I("s_mov_b64 exec, -1"))]
        msk = hex((1 << NS) - 1) if NS < 32 else "-1"
        ldj = I(f"v_lshlrev_b32 v{V}, 7, v{l}\nv_add_u32 v{V}, {F_EARLY*128}, v{V}\nv_mov_b32 v{V+1}, {256//NS}") + [
            ("atomic", I(f"s_cmp_eq_u32 s{S['w']}, 0\ns_cselect_b32 exec_lo, {msk}, 0\ns_mov_b32 exec_hi, 0") +
             [("vm0", f"global_load_dword v{V+1}, v{V}, s[{S['fl']}:{S['fl']+1}] sc1", "fl")] + I("s_mov_b64 exec, -1"))]
        cmp_ = f"v_cmp_gt_u32 vcc, {256//NS}, v{V+1}\ns_cmp_eq_u64 vcc, 0"

        def chk():
            a(f"s_mov_b32 exec_lo, {msk}\ns_mov_b32 exec_hi, 0\nglobal_load_dword v{V+1}, v{V}, s[{S['fl']}:{S['fl']+1}] sc1\ns_mov_b64 exec, -1\ns_waitcnt vmcnt(0)\n{cmp_}")
        ck = [("wvm", ["fl"]), ("atomic", I(cmp_) + [("call", lambda: poll_slow(chk, 0x104, sleep=Cfg.esleep))])]
        return sig, ldj, ck

    def row_publish(SQ, SM, Y):
        it = I(f"""
        s_mov_b32 s{S['m1']}, 0xaaaaaaaa
        s_mov_b32 s{S['m1']+1}, 0xaaaaaaaa
        s_mov_b32 s{S['m2']}, 0xcccccccc
        s_mov_b32 s{S['m2']+1}, 0xcccccccc
        """)
        for rt in range(2):
            q = SQ + 4 * rt
            it += I(f"""
            v_cndmask_b32 v{q}, v{q}, v{q+1}, s[{S['m1']}:{S['m1']+1}]
            v_cndmask_b32 v{q+2}, v{q+2}, v{q+3}, s[{S['m1']}:{S['m1']+1}]
            v_cndmask_b32 v{q}, v{q}, v{q+2}, s[{S['m2']}:{S['m2']+1}]
            """)
        it += I(f"""
        s_lshl_b32 s{JT}, s{S['rb']}, 2
        s_add_u32 s{JT}, s{JT}, s{S['rg']}
        s_lshl_b32 s{JT}, s{JT}, 7
        s_add_u32 s{JT}, s{JT}, {RS_OFF}
        s_lshl_b32 s{JT1}, s{S['j']}, 1
        s_add_u32 s{JT1}, s{JT1}, s{S['typ']}
        s_cmp_ge_u32 s{JT1}, 10
        s_cselect_b32 s{JT}, {OOB}, s{JT}
        v_permlane32_swap_b32 v{SM}, v{SQ}
        v_permlane32_swap_b32 v{SM+4}, v{SQ+4}
        v_and_b32 v{Y+4}, 31, v{l}
        v_lshrrev_b32 v{Y+5}, 5, v{l}
        v_add_f32 v{SM}, v{SM}, v{SQ}
        v_add_f32 v{SM+4}, v{SM+4}, v{SQ+4}
        v_lshlrev_b32 v{Y+5}, 13, v{Y+5}
        v_lshl_add_u32 v{Y+4}, v{Y+4}, 2, v{Y+5}
        v_permlane16_swap_b32 v{SM}, v{SM+4}
        v_add_f32 v{SM}, v{SM}, v{SM+4}
        """)
        it.append(("vm", f"buffer_atomic_add_f32 v{SM}, v{Y+4}, s[{SWS}:{SWS+3}], s{JT} offen", "stat"))
        return it

    def job_load_stats(qkv, Y):
        it = I(f"""
        v_and_b32 v{Y}, 31, v{l}
        s_lshl_b32 s{JT}, s{S['rb']}, 2
        s_add_u32 s{JT}, s{JT}, s{S['rg']}
        s_lshl_b32 s{JT}, s{JT}, 7
        s_add_u32 s{JT}, s{JT}, {RS_OFF}
        s_add_u32 s{JT1}, s{JT}, 8192
        v_lshlrev_b32 v{Y+1}, 2, v{Y}
        """)
        it.append(("vm", f"buffer_load_dword v{Y+2}, v{Y+1}, s[{SWS}:{SWS+3}], s{JT} offen sc1", "ls"))
        it.append(("vm", f"buffer_load_dword v{Y+3}, v{Y+1}, s[{SWS}:{SWS+3}], s{JT1} offen sc1", "ls"))
        it += I(f"s_lshl_b32 s{JT}, s{S['rg']}, 6\nv_add_u32 v{Y+1}, s{JT}, v{l}")
        if qkv:
            it += vcol(Y + 1, Y + 4) + I(f"s_lshl_b32 s{JT}, s{S['col0']}, 2\ns_add_u32 s{JT}, s{JT}, {CS_OFF}")
        else:
            it += I(f"s_lshl_b32 s{JT}, s{S['col0']}, 2\ns_add_u32 s{JT}, s{JT}, {CS_OFF + 1920*4}")
        it += I(f"v_lshlrev_b32 v{Y+1}, 2, v{Y+1}")
        it.append(("vm", f"buffer_load_dword v{Y+4}, v{Y+1}, s[{SWS}:{SWS+3}], s{JT} offen sc1", "ls"))
        return it

    def job_publish_stats(qkv, Y):
        it = I(f"""
        v_and_b32 v{Y+5}, 31, v{l}
        s_lshl_b32 s{JT}, s{S['rg']}, 5
        v_add_lshl_u32 v{Y+5}, v{Y+5}, s{JT}, 2
        v_add_u32 v{Y+5}, {MISC}, v{Y+5}
        s_lshl_b32 s{JT}, s{S['rg']}, 8
        s_add_u32 s{JT}, s{JT}, {CSP}
        v_lshl_add_u32 v{Y+6}, v{l}, 2, s{JT}
        """) + [("wvm", ["ls"])] + I(f"""
        v_mul_f32 v{Y+2}, {hx(1/640)}, v{Y+2}
        v_mul_f32 v{Y+3}, {hx(1/640)}, v{Y+3}
        v_fma_f32 v{Y+3}, -v{Y+2}, v{Y+2}, v{Y+3}
        v_max_f32 v{Y+3}, 0, v{Y+3}
        """)

        def rnd(d, x):
            return I(f"v_cvt_pk_bf16_f32 v{d}, v{x}, v{x}\nv_and_b32 v{d}, 0xffff0000, v{d}")
        if Cfg.mimic:
            it += rnd(Y, Y + 3) + I(f"v_add_f32 v{Y}, {hx(1e-5)}, v{Y}") + rnd(Y, Y) + I(f"v_sqrt_f32 v{Y+1}, v{Y}") + rnd(Y + 1, Y + 1)
            if qkv:
                it += rnd(Y + 2, Y + 2)
            else:
                it += I(f"v_mul_f32 v{Y}, v{Y+1}, v{Y+1}\nv_rcp_f32 v{Y}, v{Y}\nv_mul_f32 v{Y}, v{Y}, v{Y+3}") + rnd(Y, Y)
                it += I(f"v_add_f32 v{Y}, {hx(1e-5)}, v{Y}") + rnd(Y, Y) + I(f"v_sqrt_f32 v{Y}, v{Y}") + rnd(Y, Y)
                it += I(f"v_mul_f32 v{Y+1}, v{Y+1}, v{Y}")
            it += I(f"v_rcp_f32 v{Y}, v{Y+1}")
        else:
            it += I(f"v_add_f32 v{Y}, {hx(1e-5)}, v{Y+3}")
            if not qkv:
                it += I(f"v_mov_b32 v{Y+1}, {hx(1e-5)}\nv_fma_f32 v{Y}, v{Y}, v{Y+1}, v{Y+3}")
            it += I(f"v_sqrt_f32 v{Y+1}, v{Y}\nv_rsq_f32 v{Y}, v{Y}")
        for r, off in ((Y + 2, ST_M), (Y, ST_RS), (Y + 1, ST_IRS)):
            it.append(("ds", f"ds_write_b32 v{Y+5}, v{r} offset:{off-MISC}", "pub"))
        it.append(("ds", f"ds_write_b32 v{Y+6}, v{Y+4}", "pub"))
        return it

    def job_touch(V, part=None):
        ns = 8 if Cfg.map2 == 0 else 4
        per = 2960 // ns
        pw = -(-per // 128) * 32
        it = I(f"""
        s_and_b32 s{JT}, s{S['r2']}, {ns-1}
        s_mul_i32 s{JT}, s{JT}, {per*128}
        s_mul_i32 s{JT1}, s{S['rg']}, {pw*128}
        s_add_u32 s{JT}, s{JT}, s{JT1}
        s_add_u32 s{JT}, s{JT}, s{S['p2B']}
        v_lshlrev_b32 v{V+1}, 7, v{l}
        """)
        ks_ = list(range(0, pw, 64))
        if part is not None:
            h = (len(ks_) + 1) // 2
            if part == 1:
                it += I(f"s_add_u32 s{JT}, s{JT}, {8192*h}")
            ks_ = ks_[:h] if part == 0 else ks_[h:]
        for k in ks_:
            ld_ = [("vm", f"buffer_load_dword v{V}, v{V+1}, s[{SWS}:{SWS+3}], s{JT} offen sc1", "tc")]
            if pw - k < 64:
                ld_ = I("s_mov_b32 exec_hi, 0") + ld_ + I("s_mov_b32 exec_hi, -1")
            it.append(("atomic", ld_ + I(f"s_add_u32 s{JT}, s{JT}, 8192")))
        return it

    def code_prefetch():
        if not Cfg.prefetch_code:
            return
        here = a.newlabel("PC")
        a(f"""
        s_getpc_b64 s[26:27]
        {here}:
        s_sub_u32 s26, s26, {here}-{KN}
        s_subb_u32 s27, s27, 0
        s_bfe_u32 s{S['t']}, s2, 0x20003
        s_lshl_b32 s{S['t']}, s{S['t']}, 14
        v_lshlrev_b32 v{T+2}, 6, v0
        v_add_u32 v{T+2}, s{S['t']}, v{T+2}
        v_min_u32 v{T+2}, CODE_END-{KN}-4, v{T+2}
        v_mov_b32 v{T+3}, s27
        v_add_co_u32 v{T+2}, vcc, s26, v{T+2}
        v_addc_co_u32 v{T+3}, vcc, 0, v{T+3}, vcc
        s_mov_b32 exec_lo, 0x55555555
        s_mov_b32 exec_hi, 0x55555555
        global_load_dword v{RS}, v[{T+2}:{T+3}], off
        s_mov_b64 exec, -1
        """)

    def zero_init():
        a(f"v_mov_b32 v{T+13}, {SYN}\nds_write_b128 v{T+13}, v[{T+8}:{T+11}]\nds_write_b128 v{T+13}, v[{T+8}:{T+11}] offset:16".replace("v_mov_b32", f"v_mov_b32 v{T+8}, 0\nv_mov_b32 v{T+9}, 0\nv_mov_b32 v{T+10}, 0\nv_mov_b32 v{T+11}, 0\nv_mov_b32", 1))
        lab = a.newlabel("NI")
        a(f"""
        s_cmp_lg_u32 s{S['rg']}, 3
        s_cbranch_scc1 {lab}
        s_and_b32 s{S['t']}, s2, {0xc4 if Cfg.ini_early else 0xe0}
        s_cbranch_scc1 {lab}
        v_mov_b32 v{T+8}, 0
        v_mov_b32 v{T+9}, 0
        v_mov_b32 v{T+10}, 0
        v_mov_b32 v{T+11}, 0
        s_lshr_b32 s{S['t']}, s2, 3
        s_lshl_b32 s{S['t']}, s{S['t']}, 2
        s_and_b32 s{S['t1']}, s2, 3
        s_add_u32 s{S['t']}, s{S['t']}, s{S['t1']}
        s_mul_i32 s{S['t']}, {f"s{S['t']}" if Cfg.ini_early else "s2"}, 4256
        s_add_u32 s{S['t']}, s{S['t']}, {KV_OFF}
        buffer_store_dwordx4 v[{T+8}:{T+11}], v{L16}, s[{SWS}:{SWS+3}], s{S['t']} offen sc1
        buffer_store_dwordx4 v[{T+8}:{T+11}], v{L16}, s[{SWS}:{SWS+3}], s{S['t']} offen offset:1024 sc1
        buffer_store_dwordx4 v[{T+8}:{T+11}], v{L16}, s[{SWS}:{SWS+3}], s{S['t']} offen offset:2048 sc1
        buffer_store_dwordx4 v[{T+8}:{T+11}], v{L16}, s[{SWS}:{SWS+3}], s{S['t']} offen offset:3072 sc1
        buffer_store_dwordx4 v[{T+8}:{T+11}], v{L16}, s[{SWS}:{SWS+3}], s{S['t']} offen offset:3232 sc1
        v_mov_b32 v{T+12}, 1
        s_waitcnt vmcnt(0)
        s_mov_b64 exec, 1
        global_atomic_add v{Z}, v{T+12}, s[22:23]
        s_mov_b64 exec, -1
        {lab}:
        """)

    def relay_issue(st, X, base):
        relay_params(base)
        a(f"""
        s_cmp_lt_u32 s{S['t2']}, 54
        s_cselect_b32 s{SR}, s16, s8
        s_cselect_b32 s{SR+1}, s17, s9
        s_mov_b32 s{SR+2}, {640*1280}
        s_cselect_b32 s{SR+2}, {1728*1280}, s{SR+2}
        s_mov_b32 s{SR+3}, 0x20000
        s_cselect_b32 s{S['t']}, 0, 54
        s_sub_u32 s{S['t']}, s{S['t2']}, s{S['t']}
        s_mul_i32 s{S['t']}, s{S['t']}, {32*1280}
        s_lshl_b32 s{S['so']}, s{S['t1']}, 7
        s_add_u32 s{S['rlo']}, s{S['t']}, s{S['so']}
        v_lshrrev_b32 v{X}, 3, v{l}
        v_mul_u32_u24 v{X}, 1280, v{X}
        v_and_b32 v{X+1}, 7, v{l}
        v_lshl_add_u32 v{RLD}, v{X+1}, 4, v{X}
        s_cmp_lt_u32 s{S['t3']}, 740
        s_cselect_b32 s{S['hs']}, -1, 0
        s_barrier
        """)
        if Cfg.rl_pos == 0:
            relay_dma(st)

    def relay_dma(st):
        a(f"s_mov_b32 exec_lo, s{S['hs']}\ns_mov_b32 exec_hi, s{S['hs']}")
        for i in range(4):
            a(f"s_add_u32 m0, s{S['rls']}, {i*1024}\ns_add_u32 s{JT}, s{S['rlo']}, {i*8*1280}")
            st.emit(("vm0", f"buffer_load_dwordx4 v{RLD}, s[{SR}:{SR+3}], s{JT} offen{' nt' if Cfg.rnt else ''} lds", "rl"))
        a("s_mov_b64 exec, -1")

    def job_init_load():
        return [("atomic", I(f"v_mov_b32 v{T+44}, 32\ns_cmp_eq_u32 s{S['rg']}, 3\ns_cselect_b32 exec_lo, 1, 0\ns_mov_b32 exec_hi, 0") +
                 [("vm0", f"global_load_dword v{T+44}, v{Z}, s[22:23] sc1", "il")] + I("s_mov_b64 exec, -1"))]

    def job_init_check():
        def chk():
            a(f"global_load_dword v{T+44}, v{Z}, s[22:23] sc1\ns_waitcnt vmcnt(0)\nv_readfirstlane_b32 s{JT}, v{T+44}\ns_cmp_ge_u32 s{JT}, 32")
        return [("wvm", ["il"]), ("atomic", I(f"v_readfirstlane_b32 s{JT}, v{T+44}\ns_cmp_ge_u32 s{JT}, 32") + [("call", lambda: poll_slow(chk, 0x101, sleep=Cfg.isleep))])]

    def kloop(ld, qkv):
        st = Stream(a)
        NT, stride = (8, 3840) if qkv else (7, 3456)
        PITCH = NT * 256
        t0 = 0 if qkv else (4 if ld else 0)
        if qkv:
            tiles = [(u, True) for u in range(5)] + [(6 + u, False) for u in range(Cfg.nkq)] if ld else [(u, False) for u in range(6 + Cfg.nkq, 16)]
        else:
            tiles = [(u, True) for u in range(6 if ld else 8)]
        n = len(tiles)
        hv = RegAlloc(JX + 10, BB + 100)
        HDA, HDB, HRCS = hv.alloc("da"), hv.alloc("db", 7), hv.alloc("rcs", 2)
        HRLY = HDA
        X = T + 36
        SQ, SM, ONE, CSA, CF = T + 16, T + 24, T + 32, JX, T
        a(f"s_mov_b32 s{S['tp1']}, {t0}")

        def dma(s_):
            if Cfg.x_nodma:
                return []
            slot = (s_ % 3) * SLOT
            NTM = " nt" if (Cfg.wnt == 1 and s_ == 0) else ""
            A, B = [], []
            for m in range(4):
                A.append(I(f"s_add_u32 m0, s{S['ofA']}, {slot + m*4096}\ns_add_u32 s{S['so']}, s{S['soA']}, {m*32*1280}") +
                         [("vm", f"buffer_load_dwordx4 v{HDA}, s[{SX}:{SX+3}], s{S['so']} offen lds", ("S", s_))])
            for i in range(NT):
                if qkv:
                    B.append(I(f"s_add_u32 m0, s{S['ofB']}, {slot + i*4096}\ns_add_u32 s{S['so']}, s{S['soB']}, {i*8*3840}") +
                             [("vm", f"buffer_load_dwordx4 v{HDB + (i & 1)}, s[{SW}:{SW+3}], s{S['so']} offen{NTM} lds", ("S", s_))])
                else:
                    B.append(I(f"s_add_u32 m0, s{S['ofB']}, {slot + i*1024}") +
                             [("vm", f"buffer_load_dwordx4 v{HDB+i}, s[{SW}:{SW+3}], s{S['soB']} offen{NTM} lds", ("S", s_))])
            res = []
            while A or B:
                if B: res.append(B.pop(0))
                if A: res.append(A.pop(0))
                if B: res.append(B.pop(0))
            if s_ > 0:
                res[0] = I(f"""
                s_add_u32 s{S['soA']}, s{S['soA']}, 128
                s_add_u32 s{S['soB']}, s{S['soB']}, {64*stride}
                s_cmp_eq_u32 s{S['soA']}, 1280
                s_cselect_b32 s{S['soA']}, 0, s{S['soA']}
                s_cselect_b32 s{S['soB']}, 0, s{S['soB']}
                """) + res[0]
            return [("atomic", p) for p in res]

        def setup():
            a(f"""
            v_and_b32 v{X}, 15, v{l}
            s_lshl_b32 s{S['t']}, s{S['rg']}, 5
            v_add_u32 v{X}, s{S['t']}, v{X}
            v_bfe_u32 v{X+1}, v{X}, 1, 3
            v_lshrrev_b32 v{X+2}, 4, v{l}
            v_xor_b32 v{X+1}, v{X+1}, v{X+2}
            v_lshlrev_b32 v{X+1}, 4, v{X+1}
            v_lshl_add_u32 v{RA0}, v{X}, 7, v{X+1}
            v_mul_u32_u24 v{X}, {2*PITCH}, v{X+2}
            v_and_b32 v{X+2}, 1, v{X+2}
            v_lshl_add_u32 v{X}, v{X+2}, 5, v{X}
            v_bfe_u32 v{X+1}, v{l}, 2, 2
            v_lshl_add_u32 v{X}, v{X+1}, 6, v{X}
            v_and_b32 v{X+1}, 3, v{l}
            v_lshl_add_u32 v{X}, v{X+1}, 3, v{X}
            v_add_u32 v{RB0}, {16384 + t0*256}, v{X}
            s_min_u32 s{S['t']}, s{S['w']}, {NT-1}
            s_lshl_b32 s{S['t']}, s{S['t']}, 8
            s_add_u32 s{S['t']}, s{S['t']}, 16384
            v_add_u32 v{HRCS}, s{S['t']}, v{X}
            v_xor_b32 v{HRCS+1}, 32, v{HRCS}
            """)
            for k in range(4):
                a(f"v_mov_b32 v{ONE+k}, 0x3f803f80")
            p2_params()
            bias_setup(qkv, n, st, X)
            if qkv:
                kv_addr_setup(X)
                if ld:
                    scatter_setup(X)

        if ld:
            a(f"""
            v_lshrrev_b32 v{T}, 3, v{l}
            s_lshl_b32 s{S['t']}, s{S['rg']}, 3
            s_lshl_b32 s{S['t1']}, s{S['rb']}, 7
            s_add_u32 s{S['t']}, s{S['t']}, s{S['t1']}
            v_add_u32 v{T}, s{S['t']}, v{T}
            v_mul_u32_u24 v{HDA}, 1280, v{T}
            v_lshrrev_b32 v{T}, 1, v{T}
            v_xor_b32 v{T}, v{T}, v{l}
            v_and_b32 v{T}, 7, v{T}
            v_lshl_add_u32 v{HDA}, v{T}, 4, v{HDA}
            s_lshl_b32 s{S['ofA']}, s{S['rg']}, 10
            v_bfe_u32 v{T}, v{l}, 2, 2
            v_lshrrev_b32 v{T+1}, 4, v{l}
            v_and_b32 v{T+5}, 3, v{l}
            s_lshl_b32 s{S['t']}, s{S['j']}, 1
            s_add_u32 s{S['t']}, s{S['t']}, s{S['typ']}
            s_add_u32 s{S['t']}, s{S['t']}, s{S['rb']}
            s_mul_i32 s{S['t1']}, s{S['t']}, 26
            s_lshr_b32 s{S['t1']}, s{S['t1']}, 8
            s_mul_i32 s{S['t1']}, s{S['t1']}, 10
            s_sub_u32 s{S['t']}, s{S['t']}, s{S['t1']}
            s_lshl_b32 s{S['soA']}, s{S['t']}, 7
            s_mul_i32 s{S['soB']}, s{S['t']}, {64*stride}
            """)
            if qkv:
                a(f"""
                s_add_u32 s{S['ofB']}, s{S['ofA']}, 16384
                s_lshr_b32 s{S['t']}, s{S['rg']}, 1
                s_lshl_b32 s{S['t']}, s{S['t']}, 2
                v_add_u32 v{T}, s{S['t']}, v{T}
                v_mul_u32_u24 v{T}, 3840, v{T}
                s_and_b32 s{S['t']}, s{S['rg']}, 1
                s_lshl_b32 s{S['t']}, s{S['t']}, 4
                v_lshl_add_u32 v{T+5}, v{T+1}, 2, v{T+5}
                v_add_u32 v{T+8}, s{S['t']}, v{T+5}
                s_lshl_b32 s{S['t']}, s{S['col0']}, 1
                """)
                for par in range(2):
                    a(f"""
                    v_xor_b32 v{T+5}, {2*par}, v{T+8}
                    v_mov_b32 v{T+6}, 0
                    v_mov_b32 v{T+7}, {OOB}
                    v_cmp_le_u32 vcc, 10, v{T+5}
                    v_cndmask_b32 v{T+6}, v{T+6}, v{T+7}, vcc
                    v_mov_b32 v{T+7}, {1280 - 192}
                    v_cmp_le_u32 vcc, 12, v{T+5}
                    v_cndmask_b32 v{T+6}, v{T+6}, v{T+7}, vcc
                    v_mov_b32 v{T+7}, {2560 - 352}
                    v_cmp_le_u32 vcc, 22, v{T+5}
                    v_cndmask_b32 v{T+6}, v{T+6}, v{T+7}, vcc
                    v_lshl_add_u32 v{T+5}, v{T+5}, 4, v{T+6}
                    v_add3_u32 v{HDB+par}, v{T}, v{T+5}, s{S['t']}
                    """)
            else:
                a(f"""
                s_mul_i32 s{S['ofB']}, s{S['rg']}, 7168
                s_add_u32 s{S['ofB']}, s{S['ofB']}, 16384
                s_lshl_b32 s{S['t']}, s{S['rg']}, 4
                v_add_u32 v{T}, s{S['t']}, v{T}
                v_mul_u32_u24 v{T}, 3456, v{T}
                v_mov_b32 v{T+8}, v{T+5}
                s_lshl_b32 s{S['t']}, s{S['col0']}, 1
                v_add_u32 v{T}, s{S['t']}, v{T}
                s_mov_b32 s{S['t']}, {4*3456 - 448}
                """)
                for i in range(7):
                    a(f"""
                    v_add_u32 v{T+5}, {4*i}, v{T+1}
                    v_mul_u32_u24 v{T+6}, 37, v{T+5}
                    v_lshrrev_b32 v{T+6}, 8, v{T+6}
                    v_and_b32 v{T+7}, 2, v{T+6}
                    v_xor_b32 v{T+7}, v{T+7}, v{T+8}
                    v_mad_u32_u24 v{T+6}, v{T+6}, s{S['t']}, v{T}
                    v_lshl_add_u32 v{T+6}, v{T+7}, 4, v{T+6}
                    v_lshl_add_u32 v{HDB+i}, v{T+5}, 6, v{T+6}
                    """)
            after_kernarg()
            srd(SW, 6 if qkv else 12, 640 * stride)
            d0 = dma(0)
            emit_all(st, d0[:5])
            setup()
            emit_all(st, d0[5:])
            stamp(1)
            a("s_barrier")
            d1 = dma(1)
            emit_all(st, d1[:Cfg.k1])
            stamp(2)
        else:
            after_kernarg()
            zero_init()
            code_prefetch()
            relay_issue(st, X, RELAY)
            for ct in range(4):
                a(f"""
                s_lshl_b32 s{S['t']}, s{S['t1']}, 2
                s_add_u32 s{S['t']}, s{S['t']}, {ct}
                s_mul_i32 s{JT}, s{S['t']}, 52
                s_lshr_b32 s{JT}, s{JT}, 8
                s_mul_i32 s{JT}, s{JT}, {B2_C - 5*1024}
                s_lshl_b32 s{S['t']}, s{S['t']}, 10
                s_add_u32 s{S['t']}, s{S['t']}, s{JT}
                s_mul_i32 s{JT}, s{S['t2']}, 5120
                s_add_u32 s{S['t']}, s{S['t']}, s{JT}
                s_add_u32 s{S['t']}, s{S['t']}, {B2_OFF}
                s_cmp_lt_u32 s{S['t3']}, 740
                s_cselect_b32 s{S['uo']+ct}, s{S['t']}, {OOB}
                """)
            a(f"""
            v_lshrrev_b32 v{X}, 2, v{l}
            v_lshlrev_b32 v{X}, 7, v{X}
            v_and_b32 v{X+1}, 3, v{l}
            v_lshl_add_u32 v{X}, v{X+1}, 3, v{X}
            v_add_u32 v{HRLY}, s{S['rls']}, v{X}
            """)
            setup()
            if Cfg.tlb:
                a(f"""
                s_mul_i32 s{S['t']}, s{S['rb']}, {2*A2_RB}
                v_mov_b32 v{X}, {FLAG_OFF}
                v_writelane_b32 v{X}, s{S['t']}, 1
                s_add_u32 s{S['t']}, s{S['t']}, {2*A2_RB - 128}
                v_writelane_b32 v{X}, s{S['t']}, 2
                v_writelane_b32 v{X}, s{S['p2A']}, 3
                s_add_u32 s{S['t']}, s{S['p2A']}, {A2_RB - 128}
                v_writelane_b32 v{X}, s{S['t']}, 4
                v_writelane_b32 v{X}, s{S['p2B']}, 5
                s_add_u32 s{S['t']}, s{S['p2B']}, {B2_C - 128}
                v_writelane_b32 v{X}, s{S['t']}, 6
                s_mul_i32 s{S['t']}, s{S['r2']}, {64*1280}
                v_mov_b32 v{X+1}, s{S['t']}
                s_cmp_eq_u32 s{S['rg']}, 2
                s_cselect_b32 exec_lo, 0x7f, 0
                s_mov_b32 exec_hi, 0
                buffer_load_dword v{RS1}, v{X}, s[{SWS}:{SWS+3}], 0 offen
                s_cselect_b32 exec_lo, 1, 0
                global_load_dword v{IRS1}, v{X+1}, s[20:21]
                s_mov_b64 exec, -1
                """)

        def job_colsum():
            it = []
            for h in range(2):
                for kk in range(2):
                    for i in range(2):
                        r = CF + 8 * h + 4 * kk + 2 * i
                        it.append(("ds", f"ds_read_b64_tr_b16 v[{r}:{r+1}], v{HRCS+h} offset:{(8*kk+i)*PITCH}", ("cs", h, kk)))
            for h in range(2):
                for kk in range(2):
                    it.append(("wds", [("cs", h, kk)]))
                    d, r = CSA + 4 * h, CF + 8 * h + 4 * kk
                    c = "0" if kk == 0 else f"v[{d}:{d+3}]"
                    it += I(f"v_mfma_f32_16x16x32_bf16 v[{d}:{d+3}], v[{ONE}:{ONE+3}], v[{r}:{r+3}], {c}")
            return it

        def job_publish():
            it = I(f"""
            s_lshl_b32 s{JT}, s{S['w']}, 5
            v_add_u32 v{X}, s{JT}, v{l}
            s_mov_b32 s{S['m2']}, 0xffff0000
            s_mov_b32 s{S['m2']+1}, 0
            v_cndmask_b32 v{CSA}, v{CSA}, v{CSA+4}, s[{S['m2']}:{S['m2']+1}]
            s_mov_b32 s{S['m2']}, -1
            """)
            if qkv:
                it += I(f"s_cmp_eq_u32 s{S['w']}, 2\ns_cselect_b32 s{S['m2']}, 0xffff, s{S['m2']}") + vcol(X, X + 1)
                it += I(f"s_lshl_b32 s{JT}, s{S['col0']}, 2\ns_add_u32 s{JT}, s{JT}, {CS_OFF}")
            else:
                it += I(f"""
                s_lshl_b32 s{JT}, s{S['col0']}, 2
                s_add_u32 s{JT}, s{JT}, {CS_OFF + 1920*4}
                s_lshl_b32 s{JT1}, s{S['j']}, 3
                s_add_u32 s{JT1}, s{JT1}, s{S['w']}
                s_sub_u32 s{JT1}, s{JT1}, 56
                s_cmp_lt_u32 s{JT1}, 2
                s_cselect_b32 s{JT}, {OOB}, s{JT}
                s_cmp_eq_u32 s{S['w']}, 7
                s_cselect_b32 s{JT}, {OOB}, s{JT}
                """)
            it += I(f"""
            s_cmp_ge_u32 s{S['rb']}, 10
            s_cselect_b32 s{JT}, {OOB}, s{JT}
            v_lshlrev_b32 v{X}, 2, v{X}
            v_mov_b32 v{X+1}, {OOB}
            v_cndmask_b32 v{X}, v{X+1}, v{X}, s[{S['m2']}:{S['m2']+1}]
            """)
            it.append(("vm", f"buffer_atomic_add_f32 v{CSA}, v{X}, s[{SWS}:{SWS+3}], s{JT} offen", "stat"))
            if not ld:
                it += row_publish(SQ, SM, X)
            return it

        def job_relay_store():
            it = [("wvm", ["rl"])]
            for ct in range(4):
                it.append(("ds", f"ds_read_b64_tr_b16 v[{T+4*ct}:{T+4*ct+1}], v{HRLY} offset:{ct*32}", ("rl", ct)))
                it.append(("ds", f"ds_read_b64_tr_b16 v[{T+4*ct+2}:{T+4*ct+3}], v{HRLY} offset:{ct*32 + 2048}", ("rl", ct)))
            for ct in range(4):
                it.append(("wds", [("rl", ct)]))
                it.append(("vm", f"buffer_store_dwordx4 v[{T+4*ct}:{T+4*ct+3}], v{L16}, s[{SWS}:{SWS+3}], s{S['uo']+ct} offen sc1", "rs"))
            return it

        e_sig, e_ld, e_ck = early_flag_jobs(JX + 8)
        pi = Cfg.hpoll
        J = [(0, 0, 0, job_colsum()), (Cfg.pub_it, 0, Cfg.pub_it, job_publish())]
        if not ld:
            if Cfg.ini_pro:
                emit_all(st, job_init_load())
            else:
                J.append((0, Cfg.ini_q, 0, job_init_load()))
            J.append((Cfg.pub_it - 1, 3, Cfg.pub_it - 1, job_init_check()))
            J.append((Cfg.rs_it, 2 if Cfg.rs_it == 0 else 1, Cfg.rs_it, job_relay_store()))
            J.append((Cfg.hsig - 1, 3, Cfg.hsig - 1, [("wvm", None)]))
            J.append((Cfg.hsig, 0, Cfg.hsig, e_sig))
            J.append((pi - Cfg.plead, 0 if Cfg.plead == 0 else 2, pi, e_ld))
            J.append((pi, 3, pi, e_ck))
            J.append((pi + 1, 0, pi + 1, job_load_stats(qkv, T + 38)))
            J.append((8, 3 if pi == 7 else 0, 8, job_publish_stats(qkv, T + 38)))
            if Cfg.touch:
                J.append((Cfg.touch_it, 1, 10, job_touch(JX + 8, 0 if Cfg.touch == 2 else None)))
                if Cfg.touch == 2:
                    J.append((9, Cfg.touch_q, 10, job_touch(JX + 8, 1)))
        J.append((9, 0, 10, job_build_ext(tiles, (lambda u: BIAS + u) if not qkv else (lambda u: BIAS if tiles[u][0] < 11 else Z))))
        J.sort(key=lambda x: (x[0], x[1]))
        pend = []

        def drain(n=None, deadline=None):
            k = 0
            while pend and (n is None or k < n):
                if deadline is not None and not any(p[0] <= deadline for p in pend):
                    break
                emit_item(st, pend.pop(0)[1])
                k += 1

        def addrs(s_):
            sl = (s_ % 3) * SLOT
            return I(f"""
            v_add_u32 v{RA}, {sl}, v{RA0}
            v_add_u32 v{RB}, {sl}, v{RB0}
            v_xor_b32 v{RA+1}, 64, v{RA}
            v_xor_b32 v{RB+1}, 32, v{RB}
            """)

        def rdA(s_, kk):
            return [("ds", f"ds_read_b128 v[{FA+8*kk+4*rt}:{FA+8*kk+4*rt+3}], v{RA+kk} offset:{rt*2048}", ("A", s_, kk)) for rt in range(2)]

        def rdB(g):
            s_, kk, u = g // (2 * n), (g // n) & 1, g % n
            f = FB + 4 * (g % NRING)
            u = tiles[u][0]
            return [("ds", f"ds_read_b64_tr_b16 v[{f+2*i}:{f+2*i+1}], v{RB+(u&1)} offset:{(8*kk+i)*PITCH + (u>>1)*256}", ("B", g)) for i in range(2)]

        emit_all(st, addrs(0))
        if ld:
            st.wait("vm", [("S", 0)])
            if Cfg.hprio:
                a("s_setprio 1")
        a("s_barrier")
        stamp(3)
        LA = NRING - 1
        emit_all(st, rdA(0, 0))
        nxt = 0
        while nxt < LA:
            emit_all(st, rdB(nxt))
            nxt += 1
        if not ld and Cfg.rl_pos == 1:
            relay_dma(st)
        dq = [(1, p) for p in d1[Cfg.k1:]] + [(2, p) for p in dma(2)] if ld else []
        BP = Cfg.bleft
        gaps_left = 2 * n - BP
        cur = 0
        for g in range(20 * n):
            s_, kk, u = g // (2 * n), (g // n) & 1, g % n
            pos = g - s_ * 2 * n
            quarter = (4 * pos) // (2 * n)
            while J and (J[0][0], J[0][1]) <= (s_, quarter):
                jb = J.pop(0)
                pend.extend([jb[2], x] for x in group_scc(jb[3]))
            if pos == 2 * n - BP:
                assert nxt == (s_ + 1) * 2 * n
                drain(deadline=s_)
                assert not any(x[0] <= s_ + 1 for x in dq)
                st.wait2(None, [("S", s_ + 1)] + (["stat"] if s_ == Cfg.hsig - 1 else []) if ld else [])
                a("s_barrier")
                crossed = True
                if s_ < 9:
                    emit_all(st, rdA(s_ + 1, 0))
                    while nxt < g + LA:
                        emit_all(st, rdB(nxt))
                        nxt += 1
                if ld:
                    dq += [(s_ + 3, p) for p in dma(s_ + 3)] if s_ + 3 <= 9 else []
                    gaps_left = 2 * n
                    cur = s_ + 1
                    if Cfg.hprio and s_ == 7:
                        a("s_setprio 0")
            W = Cfg.wgrp
            st.wait("ds", [("A", s_, kk)] + [("B", g + k) for k in range(W if (g % W == 0) else 1)])
            f = FB + 4 * (g % NRING)
            lim = (s_ + 1) * 2 * n if pos < 2 * n - BP else min(20 * n, (s_ + 2) * 2 * n)
            rds = []
            if nxt < min(lim, g + LA + (0 if Cfg.ilv else 1)):
                rds = rdB(nxt)
                nxt += 1
                if nxt == (s_ + 1) * 2 * n and s_ < 9:
                    rds = rds + addrs(s_ + 1)
            if kk == 0 and u == 0:
                rds = rdA(s_, 1) + rds
            for rt in range(2):
                fa, d = FA + 8 * kk + 4 * rt, acc(u, rt)
                c = "0" if g < n else f"v[{d}:{d+3}]"
                x, y = (f, fa) if tiles[u][1] else (fa, f)
                a(f"v_mfma_f32_16x16x32_bf16 v[{d}:{d+3}], v[{x}:{x+3}], v[{y}:{y+3}], {c}")
                if rt == 0 and Cfg.ilv and rds:
                    emit_item(st, rds.pop(0))
            if s_ == 0 and not ld and u < 4:
                rt, h = u >> 1, u & 1
                fa = FA + 8 * kk + 4 * rt + 2 * h
                c1 = "0" if (kk == 0 and h == 0) else f"v[{SQ+4*rt}:{SQ+4*rt+3}]"
                c2 = "0" if (kk == 0 and h == 0) else f"v[{SM+4*rt}:{SM+4*rt+3}]"
                a(f"v_mfma_f32_4x4x4_16b_bf16 v[{SQ+4*rt}:{SQ+4*rt+3}], v[{fa}:{fa+1}], v[{fa}:{fa+1}], {c1}")
                a(f"v_mfma_f32_4x4x4_16b_bf16 v[{SM+4*rt}:{SM+4*rt+3}], v[{ONE}:{ONE+1}], v[{fa}:{fa+1}], {c2}")
            emit_all(st, rds)
            if dq:
                must = sum(1 for x in dq if x[0] <= cur + 1)
                k = -(-len(dq) // max(1, gaps_left - 1))
                if cur < Cfg.lazy:
                    k = max(-(-must // max(1, (gaps_left - 1) // 2)) if must else 0, 1)
                for _ in range(min(k, len(dq))):
                    emit_item(st, dq.pop(0)[1])
            gaps_left -= 1
            drain(Cfg.hfill)
            if pos == 2 * n - 1:
                stamp(4 + s_)
        drain()
        ext_mfma(tiles)
        st.wait2(None, ["tc", "bias"])
        return st

    def kv_addr_setup(X):
        a(f"""
        v_mov_b32 v{X+8}, {CDUM}
        v_and_b32 v{X}, 15, v{l}
        v_lshrrev_b32 v{X+1}, 4, v{l}
        v_lshlrev_b32 v{X+1}, 2, v{X+1}
        v_cmp_eq_u32 s[{S['ex']}:{S['ex']+1}], 0, v{X}
        s_movk_i32 s{S['t3']}, 84
        """)
        for p in range(3):
            a(f"""
            s_lshl_b32 s{S['t']}, s{S['w']}, 1
            s_add_u32 s{S['t']}, s{S['t']}, {p - 10}
            s_cmp_lt_u32 s{S['w']}, 5
            s_cselect_b32 s{S['t1']}, s{S['w']}, s{S['t']}
            s_add_u32 s{S['t2']}, s{S['w']}, {p - 1}
            s_lshl_b32 s{S['t']}, s{S['t1']}, 4
            v_add_u32 v{X+2}, s{S['t']}, v{X+1}
            s_lshl_b32 s{S['t']}, s{S['t2']}, 4
            v_add_u32 v{X+3}, s{S['t']}, v{X}
            v_mul_u32_u24 v{X+4}, 3277, v{X+2}
            v_lshrrev_b32 v{X+4}, 16, v{X+4}
            v_mul_u32_u24 v{X+5}, 3277, v{X+3}
            v_lshrrev_b32 v{X+5}, 16, v{X+5}
            v_mul_u32_u24 v{X+6}, 20, v{X+5}
            v_sub_u32 v{X+6}, v{X+3}, v{X+6}
            v_cmp_eq_u32 vcc, v{X+4}, v{X+5}
            s_mov_b64 s[{S['m1']}:{S['m1']+1}], vcc
            v_cmp_gt_u32 vcc, 80, v{X+3}
            s_and_b64 s[{S['m1']}:{S['m1']+1}], s[{S['m1']}:{S['m1']+1}], vcc
            s_cmp_lt_u32 s{S['w']}, 5
            s_cselect_b64 s[{S['m1']}:{S['m1']+1}], s[{S['m1']}:{S['m1']+1}], {"0" if p == 2 else f"s[{S['ex']}:{S['ex']+1}]"}
            s_cselect_b64 s[{S['m2']}:{S['m2']+1}], 0, -1
            v_cndmask_b32 v{X+6}, v{X+6}, 20, s[{S['m2']}:{S['m2']+1}]
            v_cmp_gt_u32 vcc, 80, v{X+2}
            s_and_b64 vcc, vcc, s[{S['m1']}:{S['m1']+1}]
            v_lshlrev_b32 v{X+6}, 2, v{X+6}
            v_mad_u32_u24 v{X+6}, v{X+2}, s{S['t3']}, v{X+6}
            v_add_u32 v{X+6}, {CMP}, v{X+6}
            v_cndmask_b32 v{CMPA+p}, v{X+8}, v{X+6}, vcc
            """)

    def scatter_setup(X):
        for i in range(7):
            a(f"""
            v_add_u32 v{X}, {256*i - 256}, v0
            v_mul_u32_u24 v{X+1}, 3121, v{X}
            v_lshrrev_b32 v{X+1}, 16, v{X+1}
            v_mul_u32_u24 v{X+2}, 21, v{X+1}
            v_sub_u32 v{X+2}, v{X}, v{X+2}
            v_mul_u32_u24 v{X+3}, 3277, v{X+1}
            v_lshrrev_b32 v{X+3}, 16, v{X+3}
            v_mad_u32_u24 v{X+4}, v{X+3}, 20, v{X+2}
            v_lshrrev_b32 v{X+5}, 4, v{X+4}
            v_and_b32 v{X+4}, 15, v{X+4}
            v_cmp_le_u32 vcc, 3, v{X+5}
            v_cndmask_b32 v{X+6}, 1, 2, vcc
            v_lshlrev_b32 v{X+5}, 1, v{X+5}
            v_sub_u32 v{X+5}, v{X+5}, v{X+6}
            v_max_i32 v{X+5}, 0, v{X+5}
            v_cmp_eq_u32 vcc, 20, v{X+2}
            v_cndmask_b32 v{X+5}, v{X+5}, 9, vcc
            v_cndmask_b32 v{X+4}, v{X+4}, v{X+3}, vcc
            v_lshrrev_b32 v{X+6}, 5, v{X+1}
            v_add_u32 v{X+5}, v{X+5}, v{X+6}
            v_mul_u32_u24 v{X+6}, 52, v{X+5}
            v_lshrrev_b32 v{X+6}, 8, v{X+6}
            v_mad_u32_u24 v{X+5}, v{X+6}, 15, v{X+5}
            v_lshlrev_b32 v{X+5}, 10, v{X+5}
            v_bfe_u32 v{X+6}, v{X+1}, 2, 2
            v_lshl_add_u32 v{X+4}, v{X+6}, 4, v{X+4}
            v_lshl_add_u32 v{X+5}, v{X+4}, 4, v{X+5}
            v_bfe_u32 v{X+6}, v{X+1}, 4, 1
            v_and_b32 v{X+4}, 3, v{X+1}
            v_lshl_add_u32 v{X+4}, v{X+6}, 2, v{X+4}
            v_lshl_add_u32 v{X+5}, v{X+4}, 1, v{X+5}
            v_add_u32 v{X+5}, {FRG}, v{X+5}
            v_mov_b32 v{X+6}, {GAP}
            v_cmp_gt_u32 vcc, 1680, v{X}
            v_cndmask_b32 v{QSCA+i}, v{X+6}, v{X+5}, vcc
            """)

    NH = 7 + Cfg.nx
    O0 = NH
    NMIN = 6 - Cfg.nx

    def present(i):
        if i < NMIN or i in (O0, O0 + 1):
            return None
        if i < 7:
            return f"s_cmp_gt_u32 s{S['nH']}, {i}"
        if i < NH:
            return f"s_cmp_gt_u32 s{S['nX']}, {i - 7}"
        return f"s_cmp_gt_u32 s{S['nO']}, 2"

    def step_off(i, dst, base, mul):
        if 7 <= i < NH:
            it = f"s_add_u32 s{dst}, s{S['sX']}, {i - 7}\n"
        else:
            n, r, s0, k = (S["nH"], S["rH"], S["sH"], i) if i < 7 else (S["nO"], S["rO"], S["sO"], i - O0)
            it = f"""
            s_add_u32 s{dst}, s{r}, {k}
            s_cmp_ge_u32 s{dst}, s{n}
            s_cselect_b32 s{S['pc']}, s{n}, 0
            s_sub_u32 s{dst}, s{dst}, s{S['pc']}
            s_add_u32 s{dst}, s{dst}, s{s0}
            """
        it += f"s_mul_i32 s{dst}, s{dst}, {mul}\ns_add_u32 s{dst}, s{dst}, s{base}\n"
        if present(i):
            it += f"{present(i)}\ns_cselect_b32 s{dst}, s{dst}, {OOB}"
        return I(it)

    def b_load(i, reg):
        pcs = []
        for ct in range(5):
            pre = step_off(i, JT, S["p2B"], 5120) if ct == 0 else (I(f"s_add_u32 s{JT}, s{JT}, 4096") if ct == 4 else [])
            pcs.append(pre + [("vm", f"buffer_load_dwordx4 v[{reg+4*ct}:{reg+4*ct+3}], v{L16}, s[{SWS}:{SWS+3}], s{JT} offen offset:{(ct&3)*1024} sc1", ("B", i))])
        return pcs

    def b_prefetch_regs(first=0):
        pcs = []
        for i in range(first, 5):
            pcs += b_load(i, BB + 20 * i)
        return pcs

    def b_prefetch_lds():
        pcs = []
        for i in (O0, O0 + 1, O0 + 2):
            for ct in range(5):
                pre = step_off(i, JT, S["p2B"], 5120) + I(f"s_mul_i32 s{JT1}, s{S['w']}, {PW}") if ct == 0 else I(f"s_add_u32 s{JT}, s{JT}, 1024")
                pcs.append(pre + I(f"s_add_u32 m0, s{JT1}, {(i-O0)*5120 + ct*1024}") +
                           [("vm", f"buffer_load_dwordx4 v{L16}, s[{SWS}:{SWS+3}], s{JT} offen sc1 lds", ("B", i))])
        return pcs

    P2S = S["so"]

    def areg(i):
        return T + 16 * (i % 3) if i < NH else BB + 20 * ((NH - 5 + i - O0) % 5)

    def breg(i):
        return BB + 20 * (i % 5) if i < NH else BB + 20 * ((NH - 2 + ((i - O0) & 1)) % 5)

    def a_load(i):
        f = areg(i)
        it = [("atomic", step_off(i, P2S, S["p2A"], 4096))]
        if Cfg.p2prio == 1:
            it += I(f"s_setprio {(3, 2, 1, 2, 2, 1, 1, 0, 0, 0)[i]}")
        if Cfg.p2prio == 2 and i < 3:
            it += I(f"s_setprio {3 - i}")
        for tt in range(4):
            it.append(("vm", f"buffer_load_dwordx4 v[{f+4*tt}:{f+4*tt+3}], v{L16}, s[{SWS}:{SWS+3}], s{P2S} offen offset:{tt*1024}{' sc1' if Cfg.p2sc else ''}", ("A", i)))
        return it

    def a2_addr(dst):
        a(f"""
        s_lshl_b32 s{S['t']}, s{S['rb']}, 1
        s_lshr_b32 s{S['t1']}, s{S['rg']}, 1
        s_add_u32 s{S['t']}, s{S['t']}, s{S['t1']}
        s_mul_i32 s{S['t']}, s{S['t']}, {A2_RB}
        s_and_b32 s{S['t1']}, s{S['rg']}, 1
        s_lshl_b32 s{S['t1']}, s{S['t1']}, 11
        s_add_u32 s{S['t']}, s{S['t']}, s{S['t1']}
        v_add_u32 v{dst}, s{S['t']}, v{L16}
        """)

    def signal(flag, idx_reg):
        a(f"""
        s_add_u32 s{S['t']}, s{idx_reg}, {flag}
        s_lshl_b32 s{S['t']}, s{S['t']}, 7
        v_mov_b32 v{T+46}, s{S['t']}
        v_mov_b32 v{T+47}, 1
        s_cmp_eq_u32 s{S['w']}, 0
        s_cselect_b32 exec_lo, 1, 0
        s_mov_b32 exec_hi, 0
        global_atomic_add v{T+46}, v{T+47}, s[{S['fl']}:{S['fl']+1}]
        s_mov_b64 exec, -1
        """)

    def lds_add(off):
        a(f"v_mov_b32 v{RS}, {SYN}\nv_mov_b32 v{IRS}, 1\ns_mov_b64 exec, 1\nds_add_u32 v{RS}, v{IRS} offset:{off}\ns_mov_b64 exec, -1")

    def lds_wait(off, target, err, tmp):
        def chk():
            a(f"ds_read_b32 v{tmp+1}, v{tmp} offset:{off}\ns_waitcnt lgkmcnt(0)\nv_readfirstlane_b32 s{S['t']}, v{tmp+1}\ns_cmp_ge_u32 s{S['t']}, {target}")
        a(f"v_mov_b32 v{tmp}, {SYN}")
        chk()
        poll_slow(chk, err, sleep=1)

    def own_flag(flag, target, err, two, blocking=True, fail=None):
        def chk():
            a(f"""
            global_load_dword v{IRS}, v{RS}, s[{S['fl']}:{S['fl']+1}] sc1
            s_waitcnt vmcnt(0)
            v_cmp_gt_u32 vcc, {target}, v{IRS}
            s_cmp_eq_u64 vcc, 0
            """)
        a(f"""
        s_lshr_b32 s{S['t']}, s{S['r2']}, 1
        s_lshl_b32 s{S['t']}, s{S['t']}, 3
        s_add_u32 s{S['t']}, s{S['t']}, s{S['w']}
        s_add_u32 s{S['t']}, s{S['t']}, {flag}
        {f"v_or_b32 v{RS}, s{S['t']}, v{l}" if two else f"v_lshlrev_b32 v{RS}, 2, v{l}"}
        {"" if two else f"v_or_b32 v{RS}, s{S['w']}, v{RS}"}
        {"" if two else f"s_sub_u32 s{S['t']}, s{S['t']}, s{S['w']}"}
        {"" if two else f"v_add_u32 v{RS}, s{S['t']}, v{RS}"}
        v_lshlrev_b32 v{RS}, 7, v{RS}
        s_mov_b64 exec, 3
        """)
        chk()
        if blocking:
            poll_slow(chk, err, sleep=Cfg.psleep)
            a("s_mov_b64 exec, -1")
        else:
            a(f"s_mov_b64 exec, -1\ns_cbranch_scc0 {fail}")

    def wait_flag(st, flag, target, err, line_expr, who=0, then=None):
        skip = a.newlabel("WF")

        def chk():
            a(f"""
            global_load_dword v{IRS}, v{RS}, s[{S['fl']}:{S['fl']+1}] sc1
            s_waitcnt vmcnt(0)
            v_readfirstlane_b32 s{S['t']}, v{IRS}
            s_cmp_ge_u32 s{S['t']}, {target}
            """)
        a(f"""
        s_cmp_lg_u32 s{S['w']}, {who}
        s_cbranch_scc1 {skip}
        {line_expr}
        s_add_u32 s{S['t']}, s{S['t']}, {flag}
        s_lshl_b32 s{S['t']}, s{S['t']}, 7
        v_mov_b32 v{RS}, s{S['t']}
        s_mov_b64 exec, 1
        """)
        chk()
        poll_slow(chk, err, sleep=4)
        a("s_mov_b64 exec, -1")
        if then is not None:
            lds_add(then)
        a.label(skip)

    def emit_pcs(st, pcs):
        for p in pcs:
            emit_all(st, p)

    def h_epilogue(nt, st):
        C = T
        AD = T + 18
        a2_addr(AD)
        for rt, (rs, irs) in enumerate(((RS, IRS), (RS1, IRS1))):
            c = C + 6 * rt
            a(f"""
            v_mul_f32 v{c}, {hx(GC1)}, v{rs}
            v_mul_f32 v{c+2}, v{rs}, v{rs}
            v_mul_f32 v{c+2}, v{c+2}, v{rs}
            v_mul_f32 v{c+2}, {hx(GC2)}, v{c+2}
            v_mov_b32 v{c+4}, v{irs}
            """)
        a(f"s_lshl_b32 s{S['t']}, s{S['col0']}, 7\ns_lshl_b32 s{S['t1']}, s{S['tp1']}, 12\ns_add_u32 s{S['t']}, s{S['t']}, s{S['t1']}")
        pf = b_prefetch_regs()
        W0 = T + 20
        if Cfg.eprio:
            a(f"s_setprio {Cfg.eprio if nt == 3 else 1}")
        for t in range(nt):
            for rt in range(2):
                c = C + 6 * rt
                o = T + 32 + 4 * ((2 * t + rt) % 3)
                ps = [acc(2 * t + (k >> 1), rt) + 2 * (k & 1) for k in range(4)]
                ws = [W0 + 2 * k for k in range(4)]
                seq = []
                seq.append([f"v_pk_mul_f32 v[{w}:{w+1}], v[{p}:{p+1}], v[{p}:{p+1}]" for p, w in zip(ps, ws)])
                seq.append([f"v_pk_fma_f32 v[{w}:{w+1}], v[{w}:{w+1}], v[{c+2}:{c+3}], v[{c}:{c+1}] op_sel_hi:[1,0,0]" for w in ws])
                seq.append([f"v_pk_mul_f32 v[{w}:{w+1}], v[{w}:{w+1}], v[{p}:{p+1}]" for p, w in zip(ps, ws)])
                seq.append([f"v_exp_f32 v{w+k}, v{w+k}" for w in ws for k in range(2)])
                seq.append([f"v_pk_fma_f32 v[{w}:{w+1}], v[{w}:{w+1}], v[{c+4}:{c+5}], v[{c+4}:{c+5}] op_sel_hi:[1,0,0]" for w in ws])
                seq.append([f"v_rcp_f32 v{w+k}, v{w+k}" for w in ws for k in range(2)])
                seq.append([f"v_pk_mul_f32 v[{w}:{w+1}], v[{w}:{w+1}], v[{p}:{p+1}]" for p, w in zip(ps, ws)])
                seq.append([f"v_cvt_pk_bf16_f32 v{o+k}, v{w}, v{w+1}" for k, w in enumerate(ws)])
                for gi, grp in enumerate(seq):
                    for x in grp:
                        a(x)
                    if gi in (1, 3, 5, 2, 4)[:Cfg.pf_h] and pf:
                        emit_all(st, pf.pop(0))
                st.emit(("vm", f"buffer_store_dwordx4 v[{o}:{o+3}], v{AD}, s[{SWS}:{SWS+3}], s{S['t']} offen offset:{rt*1024} sc1", "hst"))
            a(f"s_add_u32 s{S['t']}, s{S['t']}, 4096")
        stamp(14)
        pf = pf + (b_prefetch_lds() if Cfg.lds_pre else [])
        if nt == 3 and Cfg.pf_mid:
            a("s_setprio 0")
            emit_pcs(st, pf[:Cfg.pf_mid])
            pf = pf[Cfg.pf_mid:]
        st.wait("vm", ["hst"])
        stamp(15)
        a("s_setprio 0\ns_barrier")
        a(f"s_lshl_b32 s{S['t1']}, s{S['rb']}, 3\ns_add_u32 s{S['t1']}, s{S['t1']}, s{S['j']}")
        signal(F_H, S["t1"])
        emit_pcs(st, pf)

    def kv_epilogue(lst, st, weave):
        RT, RL2, E, X = T, T + 8, T + 16, T + 24
        a(f"""
        v_lshrrev_b32 v{X}, 4, v{l}
        v_lshlrev_b32 v{X}, 4, v{X}
        s_lshl_b32 s{S['t']}, s{S['rg']}, 7
        s_add_u32 s{S['t']}, s{S['t']}, {ST_RS}
        v_add_u32 v{X}, s{S['t']}, v{X}
        ds_read_b128 v[{RT}:{RT+3}], v{X}
        ds_read_b128 v[{RT+4}:{RT+7}], v{X} offset:64
        s_mul_i32 s{S['t']}, s{S['rg']}, 10240
        v_add_u32 v{X+1}, s{S['t']}, v{L16}
        v_mov_b32 v{X+2}, {hx(LOG2E)}
        v_mov_b32 v{X+3}, {hx(EPS6)}
        s_waitcnt lgkmcnt(0)
        """)
        for k in range(4):
            a(f"v_pk_mul_f32 v[{RL2+2*k}:{RL2+2*k+1}], v[{RT+2*k}:{RT+2*k+1}], v[{X+2}:{X+3}] op_sel_hi:[1,0]")
        for u, kt in reversed(lst):
            base = acc(u, 0)
            if kt < 5:
                for k in range(4):
                    a(f"v_pk_mul_f32 v[{E+2*k}:{E+2*k+1}], v[{base+2*k}:{base+2*k+1}], v[{RL2+2*k}:{RL2+2*k+1}]")
            for k in range(4):
                a(f"v_pk_mul_f32 v[{base+2*k}:{base+2*k+1}], v[{base+2*k}:{base+2*k+1}], v[{RT+2*k}:{RT+2*k+1}]")
            if kt < 5:
                for k in range(8):
                    a(f"v_exp_f32 v{E+k}, v{E+k} clamp")
                for k in range(8):
                    a(f"v_max_f32 v{base+k}, v{X+3}, v{base+k}")
                for k in range(4):
                    a(f"v_pk_add_f32 v[{base+2*k}:{base+2*k+1}], v[{base+2*k}:{base+2*k+1}], v[{E+2*k}:{E+2*k+1}]")
            for k in range(4):
                a(f"v_cvt_pk_bf16_f32 v{base+k}, v{base+2*k}, v{base+2*k+1}")
            a(f"ds_write_b128 v{X+1}, v[{base}:{base+3}] offset:{kt*1024}")

    def products_and_atomics(q, st, pf):
        D = ACC + 40 if q else ACC
        PA, X = T, T + 40
        PB = [ACC + 52 + 4 * (k % 7) if q else ACC + 16 + 4 * k for k in range(12)]
        a(f"""
        s_lshl_b32 s{S['t']}, s{S['w']}, 1
        s_sub_u32 s{S['t']}, s{S['t']}, 10
        s_cmp_lt_u32 s{S['w']}, 5
        s_cselect_b32 s{S['t']}, s{S['w']}, s{S['t']}
        s_lshl_b32 s{S['t']}, s{S['t']}, 10
        v_add_u32 v{X}, s{S['t']}, v{L16}
        s_max_u32 s{S['t1']}, s{S['w']}, 1
        s_add_u32 s{S['t1']}, s{S['t1']}, 4
        s_lshl_b32 s{S['t1']}, s{S['t1']}, 10
        v_add_u32 v{X+1}, s{S['t1']}, v{L16}
        s_min_u32 s{S['t1']}, s{S['w']}, 3
        s_add_u32 s{S['t1']}, s{S['t1']}, 6
        s_lshl_b32 s{S['t1']}, s{S['t1']}, 10
        v_add_u32 v{X+3}, s{S['t1']}, v{L16}
        v_add_u32 v{X+2}, {5*1024}, v{X}
        s_waitcnt lgkmcnt(0)
        s_barrier
        """)
        st.q["ds"].clear()
        stamp(14)
        for _ in range(min(Cfg.pf_a, len(pf))):
            emit_all(st, pf.pop(0))
        lz, ld_ = a.newlabel("PZ"), a.newlabel("PD")

        def band():
            s2 = Stream(a)
            for rg in range(4):
                s2.emit(("ds", f"ds_read_b128 v[{PA+4*rg}:{PA+4*rg+3}], v{X} offset:{rg*10240}", ("a", rg)))
            order = [(p, rg) for rg in range(4) for p in range(3)]
            ah = 7 if q else 11

            def rb(k):
                p, rg = order[k]
                s2.emit(("ds", f"ds_read_b128 v[{PB[k]}:{PB[k]+3}], v{X+1+p} offset:{rg*10240}", ("b", k)))
            for k in range(ah):
                rb(k)
            for k, (p, rg) in enumerate(order):
                s2.wait("ds", [("a", rg), ("b", k)])
                d = D + 4 * p
                c = "0" if rg == 0 else f"v[{d}:{d+3}]"
                a(f"v_mfma_f32_16x16x32_bf16 v[{d}:{d+3}], v[{PA+4*rg}:{PA+4*rg+3}], v[{PB[k]}:{PB[k]+3}], {c}")
                if k + ah < 12:
                    rb(k + ah)

        def zsum():
            s2 = Stream(a)
            for k in range(8):
                s2.emit(("ds", f"ds_read_b128 v[{PA+4*k}:{PA+4*k+3}], v{X} offset:{(k>>1)*10240 + (k&1)*1024}", k))
            for k in range(4):
                a(f"v_mov_b32 v{PB[0]+k}, 0x3f803f80")
            for k in range(8):
                s2.wait("ds", [k])
                d = D + 4 * (k & 1)
                c = "0" if k < 2 else f"v[{d}:{d+3}]"
                a(f"v_mfma_f32_16x16x32_bf16 v[{d}:{d+3}], v[{PA+4*k}:{PA+4*k+3}], v[{PB[0]}:{PB[0]+3}], {c}")
        if q:
            a(f"s_cmp_ge_u32 s{S['w']}, 5\ns_cbranch_scc1 {lz}")
            band()
            a(f"s_branch {ld_}\n{lz}:")
            zsum()
            a.label(ld_)
        else:
            band()
        a(f"""
        s_lshl_b32 s{S['t']}, s{S['j']}, 13
        s_add_u32 s96, s24, s{S['t']}
        s_addc_u32 s97, s25, 0
        s_add_u32 s96, s96, {KV_OFF}
        s_addc_u32 s97, s97, 0
        v_lshlrev_b32 v{X}, 2, v0
        v_add_u32 v{X+1}, 4096, v{X}
        v_add_u32 v{X+2}, {CMP}, v{X}
        v_cmp_gt_u32 vcc, 144, v0
        """)
        for r in range(12):
            a(f"ds_write_b32 v{CMPA + (r >> 2)}, v{D+r} offset:{(r & 3)*84}")
        a("s_waitcnt lgkmcnt(0)\ns_barrier")
        stamp(25)
        for i in range(4):
            a(f"ds_read_b32 v{T+32+i}, v{X+2} offset:{i*2048}")
        for i in range(4):
            a(f"s_waitcnt lgkmcnt({3-i})")
            if i == 3:
                a("s_mov_b64 exec, vcc")
            st.emit(("vm0" if i == 3 else "vm", f"global_atomic_add_f32 v{X+(i>>1)}, v{T+32+i}, s[96:97] offset:{(i&1)*2048}", "kva"))
        a("s_mov_b64 exec, -1")
        for _ in range(min(Cfg.pf_b, len(pf))):
            emit_all(st, pf.pop(0))

    st = kloop(True, True)
    a(f"s_mov_b32 s{S['rls']}, 1")
    if Cfg.nkq:
        kv_epilogue([(5 + u, u) for u in range(Cfg.nkq)], st, [])
    a(f"""
    v_mov_b32 v{T+8}, 0
    v_mov_b32 v{T+9}, 0
    v_mov_b32 v{T+10}, 0
    v_mov_b32 v{T+11}, 0
    v_lshlrev_b32 v{T+7}, 4, v0
    v_add_u32 v{T+6}, {FRG - 4096}, v{T+7}
    ds_write_b128 v{T+6}, v[{T+8}:{T+11}]
    ds_write_b128 v{T+6}, v[{T+8}:{T+11}] offset:1024
    ds_write_b128 v{T+6}, v[{T+8}:{T+11}] offset:{PW}
    ds_write_b128 v{T+6}, v[{T+8}:{T+11}] offset:{PW + 1024}
    ds_write_b128 v{T+6}, v[{T+8}:{T+11}] offset:{2*PW}
    """)
    pfq = b_prefetch_regs() + (b_prefetch_lds() if Cfg.lds_pre and not Cfg.qfast else [])
    emit_pcs(st, pfq[:Cfg.pf_q1])
    pfq = pfq[Cfg.pf_q1:]
    if Cfg.cprio:
        a("s_setprio 3")
    stamp(19)
    products_and_atomics(True, st, pfq)
    PQ = ACC + 40
    KC = T + 8
    for rt, (rs, irs) in enumerate(((RS, IRS), (RS1, IRS1))):
        c = KC + 4 * rt
        a(f"v_mul_f32 v{c}, {hx(LOG2E)}, v{rs}\nv_mul_f32 v{c+1}, {hx(EPS6)}, v{irs}\nv_mov_b32 v{c+2}, v{rs}")
    if Cfg.phi_n == 0:
        st.wait("vm", ["kva"])
        stamp(26)
        a("s_barrier")
        stamp(15)
    blocks = [(0, 0), (0, 1), (1, 0), (1, 1), (2, None)]
    for bi, (ks, rt_) in enumerate(blocks):
        if ks < 2:
            prs = [(acc(2 * ks + (k >> 1), rt_) + 2 * (k & 1), rt_, PQ + 12 * rt_ + 4 * ks + k) for k in range(4)]
        else:
            prs = [(acc(4, k >> 1) + 2 * (k & 1), k >> 1, PQ + 12 * (k >> 1) + 8 + (k & 1)) for k in range(4)]
        for k, (p, rt, o) in enumerate(prs):
            a(f"v_pk_mul_f32 v[{T+2*k}:{T+2*k+1}], v[{p}:{p+1}], v[{KC+4*rt}:{KC+4*rt+1}] op_sel_hi:[1,0]")
        for k in range(8):
            a(f"v_exp_f32 v{T+k}, v{T+k} clamp")
        for k, (p, rt, o) in enumerate(prs):
            a(f"v_max_f32 v{p}, v{p}, v{KC+4*rt+1}\nv_max_f32 v{p+1}, v{p+1}, v{KC+4*rt+1}")
        for k, (p, rt, o) in enumerate(prs):
            a(f"v_pk_fma_f32 v[{T+2*k}:{T+2*k+1}], v[{p}:{p+1}], v[{KC+4*rt+2}:{KC+4*rt+3}], v[{T+2*k}:{T+2*k+1}] op_sel_hi:[1,0,1]")
        for k, (p, rt, o) in enumerate(prs):
            a(f"v_cvt_pk_bf16_f32 v{o}, v{T+2*k}, v{T+2*k+1}")
        if bi == Cfg.phi_n - 1:
            st.wait("vm", ["kva"])
            stamp(26)
            a("s_barrier")
            stamp(15)
    for rt in range(2):
        a(f"v_mov_b32 v{PQ+12*rt+10}, 0\nv_mov_b32 v{PQ+12*rt+11}, 0")
    AD = T + 44
    a2_addr(AD)
    a(f"""
    v_add_u32 v{T+46}, {FRG}, v{L16}
    v_lshlrev_b32 v{T+8}, 2, v0
    v_subrev_u32 v{T+8}, 1024, v{T+8}
    v_add_u32 v{T+9}, 4096, v{T+8}
    """)
    if Cfg.pf_q2:
        a("s_setprio 0")
        emit_pcs(st, pfq[:Cfg.pf_q2])
        pfq = pfq[Cfg.pf_q2:]
        if Cfg.cprio:
            a("s_setprio 3")
    wait_flag(st, F_KV, 16, 0x102, f"s_mov_b32 s{S['t']}, s{S['j']}", who=4, then=0)
    lds_wait(0, 1, 0x109, RS)
    stamp(16)
    for i in range(7):
        st.emit(("vm", f"global_load_dword v{T+i}, v{T+8+(i>>2)}, s[96:97] offset:{(i&3)*1024} sc1", ("g", i)))
    if Cfg.qfast:
        a(f"""
        s_lshr_b32 s{S['t']}, s{S['r2']}, 1
        s_lshl_b32 s{S['t']}, s{S['t']}, 3
        s_add_u32 s{S['t']}, s{S['t']}, s{S['w']}
        s_add_u32 s{S['t']}, s{S['t']}, {F_H}
        s_lshl_b32 s{S['t']}, s{S['t']}, 7
        v_mov_b32 v{T+10}, s{S['t']}
        s_mov_b64 exec, 1
        """)
        st.emit(("vm", f"global_load_dword v{T+11}, v{T+10}, s[{S['fl']}:{S['fl']+1}] sc1", "hp"))
        a("s_mov_b64 exec, -1")
    for i in range(7):
        a(f"v_cmp_le_u32 vcc, {frg(9)}, v{QSCA+i}")
        st.wait("vm", [("g", i)])
        a(f"""
        v_cvt_pk_bf16_f32 v{T+i}, v{T+i}, v{T+i}
        ds_write_b16 v{QSCA+i}, v{T+i}
        s_mov_b64 exec, vcc
        ds_write_b16 v{QSCA+i}, v{T+i} offset:64
        ds_write_b16 v{QSCA+i}, v{T+i} offset:128
        ds_write_b16 v{QSCA+i}, v{T+i} offset:192
        s_mov_b64 exec, -1
        """)
    a("s_waitcnt lgkmcnt(0)")
    lds_add(4)
    if Cfg.qfast:
        st.wait("vm", ["hp"])
        a(f"v_readfirstlane_b32 s{S['rlo']}, v{T+11}")
    lds_wait(4, 4, 0x10a, RS)
    stamp(17)
    DEN = ACC + 64
    prods = [(9 + ks, ks, None) for ks in range(3)] + [(fi, ks, et) for fi, (et, ks) in enumerate(((0, 0), (1, 0), (1, 1), (2, 0), (2, 1), (3, 1), (3, 2), (4, 1), (4, 2)))]
    FRS = [T + 4 * i for i in range(11)]

    def frd(i):
        r = FRS[i % 11]
        st.emit(("ds", f"ds_read_b128 v[{r}:{r+3}], v{T+46} offset:{frg(prods[i][0])-FRG}", ("f", i)))
    for i in range(11):
        frd(i)
    seen = set()
    for i, (fi, ks, et) in enumerate(prods):
        st.wait("ds", [("f", i)])
        r = FRS[i % 11]
        for rt in range(2):
            D = DEN + 4 * rt if et is None else acc(et, rt)
            c = f"v[{D}:{D+3}]" if D in seen else "0"
            seen.add(D)
            a(f"v_mfma_f32_16x16x32_bf16 v[{D}:{D+3}], v[{r}:{r+3}], v[{PQ+12*rt+4*ks}:{PQ+12*rt+4*ks+3}], {c}")
        if i == 0:
            frd(11)
        if i == 6:
            for h in range(8):
                a(f"v_add_f32 v{DEN+h}, {hx(1e-6)}, v{DEN+h}")
            for h in range(8):
                a(f"v_rcp_f32 v{DEN+h}, v{DEN+h}")
    a(f"""
    s_mov_b32 s{S['m1']}, 0xffff0000
    s_mov_b32 s{S['m1']+1}, -1
    s_mov_b32 s{S['m2']}, 0
    s_mov_b32 s{S['m2']+1}, -1
    s_mov_b32 s{S['ex']}, 0
    s_mov_b32 s{S['ex']+1}, 0xffff0000
    """)
    for rt in range(2):
        for k, m in enumerate(("m1", "m2", "ex")):
            a(f"v_cndmask_b32 v{DEN+8+3*rt+k}, v{DEN+4*rt+k}, v{DEN+4*rt+k+1}, s[{S[m]}:{S[m]+1}]")
    OO = ACC + 40
    for rt in range(2):
        for et in range(5):
            dr = (DEN + 4 * rt, DEN + 8 + 3 * rt, DEN + 9 + 3 * rt, DEN + 10 + 3 * rt, DEN + 4 * rt + 3)[et]
            p = acc(et, rt)
            for k in range(4):
                a(f"v_mul_f32 v{p+k}, v{p+k}, v{dr}")
            for k in range(2):
                a(f"v_cvt_pk_bf16_f32 v{OO+10*rt+2*et+k}, v{p+2*k}, v{p+2*k+1}")
    a(f"""
    s_mul_i32 s{S['t']}, s{S['j']}, 5
    s_lshr_b32 s{S['t']}, s{S['t']}, 1
    s_add_u32 s{S['t']}, s{S['t']}, 54
    s_lshl_b32 s{S['t']}, s{S['t']}, 12
    s_add_u32 s{S['t1']}, s{S['t']}, 4096
    s_add_u32 s{S['t2']}, s{S['t']}, 8192
    s_bitcmp1_b32 s{S['j']}, 0
    s_cbranch_scc1 O_ODD
    """)
    for odd in range(2):
        if odd:
            a("s_branch O_DONE\nO_ODD:")
        for rt in range(2):
            o = OO + 10 * rt
            lst = ((o, 4, "t", 0), (o + 4, 4, "t1", 0), (o + 8, 2, "t2", 0)) if not odd else ((o, 2, "t", 8), (o + 2, 4, "t1", 0), (o + 6, 4, "t2", 0))
            for r, nd, so, off in lst:
                a(f"buffer_store_dwordx{nd} v[{r}:{r+nd-1}], v{AD}, s[{SWS}:{SWS+3}], s{S[so]} offen offset:{rt*1024 + off} sc1")
    a("O_DONE:")
    stamp(18)
    a(f"""
    s_lshl_b32 s{S['t']}, s{S['rb']}, 3
    s_add_u32 s{S['t']}, s{S['t']}, s{S['j']}
    s_add_u32 s{S['t']}, s{S['t']}, {F_O}
    s_lshl_b32 s{S['t']}, s{S['t']}, 7
    v_mov_b32 v{RS1}, s{S['t']}
    v_mov_b32 v{IRS1}, 1
    """)
    sig_o = f"s_mov_b64 exec, 1\nglobal_atomic_add v{RS1}, v{IRS1}, s[{S['fl']}:{S['fl']+1}]\ns_mov_b64 exec, -1"
    if Cfg.qfast:
        a(f"s_cmp_eq_u32 s{S['rlo']}, 0\ns_cbranch_scc1 Q_SLOW")
        emit_pcs(st, pfq)
        nq = sum(1 for p in pfq for x in p if x[0] == "vm")
        for i in range(3):
            emit_all(st, a_load(i))
        a(f"s_waitcnt vmcnt({12 + nq})\n{sig_o}\ns_setprio {Cfg.qprio}\ns_branch PHASE2C\nQ_SLOW:")
    a(f"s_waitcnt vmcnt(0)\n{sig_o}")
    own_flag(F_H, 1, 0x10b, False)
    emit_pcs(st, pfq)
    for i in range(3):
        emit_all(st, a_load(i))
    a(f"s_setprio {Cfg.qprio}\ns_branch PHASE2C")

    a.label("ROLE_KV")
    st = kloop(False, True)
    if Cfg.cprio:
        a("s_setprio 3")
    kv_epilogue([(u, Cfg.nkq + u) for u in range(10 - Cfg.nkq)], st, [])
    pfk = b_prefetch_regs()
    stamp(17)
    products_and_atomics(False, st, pfk)
    st.wait("vm", ["kva"])
    stamp(26)
    a("s_barrier")
    stamp(15)
    signal(F_KV, S["j"])
    a("s_setprio 0")
    emit_pcs(st, pfk + (b_prefetch_lds() if Cfg.lds_pre else []))
    stamp(16)
    a("s_branch PHASE2")

    a.label("ROLE_H0")
    st = kloop(False, False)
    h_epilogue(4, st)
    a("s_branch PHASE2")
    a.label("ROLE_H1")
    st = kloop(True, False)
    h_epilogue(3, st)

    a.label("PHASE2")
    a(f"s_mov_b32 s{S['rls']}, 0")
    stamp(19)
    st = Stream(a)
    own_flag(F_H, 1, 0x105, False)
    stamp(20)

    OA, RAD, WA, CB = SMALL, SMALL + 3, SMALL + 6, SMALL + 14
    XAT = max(k for k in range(NH) if k % 3 == 1)
    XR = [T + 16 + 2 * k for k in range(3)]
    BR = [T + 22 + 2 * k for k in range(3)]

    def epi_setup():
        X = RS
        it = I(f"""
        s_mov_b32 s{SR}, s20
        s_mov_b32 s{SR+1}, s21
        s_mov_b32 s{SR+2}, {2048*1280}
        s_mov_b32 s{SR+3}, 0x20000
        s_mov_b32 s{SAUX}, s18
        s_mov_b32 s{SAUX+1}, s19
        s_mov_b32 s{SAUX+2}, 1280
        s_mov_b32 s{SAUX+3}, 0x20000
        s_mul_i32 s{JT}, s{S['r2']}, {64*1280}
        s_mul_i32 s{JT1}, s{S['c2']}, 160
        s_add_u32 s{JT}, s{JT}, s{JT1}
        """)
        Y = SMALL + 7
        for i in range(3):
            it += I(f"""
            v_add_u32 v{Y}, {512*i}, v0
            v_mul_u32_u24 v{Y+1}, 3277, v{Y}
            v_lshrrev_b32 v{Y+1}, 16, v{Y+1}
            v_mul_u32_u24 v{Y+2}, 20, v{Y+1}
            v_sub_u32 v{Y+2}, v{Y}, v{Y+2}
            v_mul_u32_u24 v{Y+3}, 1280, v{Y+1}
            v_lshl_add_u32 v{Y+3}, v{Y+2}, 3, v{Y+3}
            v_add_u32 v{Y+3}, s{JT}, v{Y+3}
            v_cmp_gt_u32 vcc, 1280, v{Y}
            v_mov_b32 v{Y+4}, {OOB}
            v_cndmask_b32 v{OA+i}, v{Y+4}, v{Y+3}, vcc
            v_bfe_u32 v{Y+4}, v{Y+1}, 1, 2
            v_xor_b32 v{Y+4}, v{Y+4}, v{Y+2}
            v_mul_u32_u24 v{Y+5}, 320, v{Y+1}
            v_lshl_add_u32 v{Y+5}, v{Y+4}, 4, v{Y+5}
            v_cndmask_b32 v{RAD+i}, 0, v{Y+5}, vcc
            v_lshlrev_b32 v{CB+i}, 3, v{Y+2}
            """)
        it += I(f"""
        v_and_b32 v{Y}, 15, v{l}
        v_mul_u32_u24 v{Y}, 320, v{Y}
        v_lshrrev_b32 v{Y+1}, 4, v{l}
        v_bfe_u32 v{Y+2}, v{l}, 1, 2
        v_xor_b32 v{Y+1}, v{Y+1}, v{Y+2}
        v_lshl_add_u32 v{Y}, v{Y+1}, 4, v{Y}
        s_mul_i32 s{JT}, s{S['w']}, {PW}
        v_add_u32 v{WA}, s{JT}, v{Y}
        v_add_u32 v{Y+6}, s{JT}, v{L16}
        """)
        return it

    def epi_loads():
        it = I(f"s_mul_i32 s{JT1}, s{S['c2']}, 160")
        for i in range(3):
            it.append(("vm", f"buffer_load_dwordx2 v[{XR[i]}:{XR[i]+1}], v{OA+i}, s[{SX}:{SX+3}], 0 offen", "x"))
            it.append(("vm", f"buffer_load_dwordx2 v[{BR[i]}:{BR[i]+1}], v{CB+i}, s[{SAUX}:{SAUX+3}], s{JT1} offen", "x"))
        return it

    LB = SMALL + 13

    def p2_step(i, fill, dump=False, force=False):
        st.wait("vm", [("A", i), ("B", i)])
        st.wait("ds", [("B", i)])
        f, b = areg(i), breg(i)
        opt = present(i) is not None and not force
        if opt:
            emit_all(st, fill)
            fill = []
            lab = a.newlabel("OPT")
            a(f"{present(i)}\ns_cbranch_scc0 {lab}")
        k = 0
        for tt in range(4):
            for ct in range(5):
                acc = ACC + 4 * (tt * 5 + ct)
                c = "0" if i == 0 else f"v[{acc}:{acc+3}]"
                if not Cfg.x_p2n or (tt == 0 and ct == 0):
                    a(f"v_mfma_f32_16x16x32_bf16 v[{acc}:{acc+3}], v[{b+4*ct}:{b+4*ct+3}], v[{f+4*tt}:{f+4*tt+3}], {c}")
                k += 1
                n = -(-len(fill) // max(1, Cfg.p2span + 1 - k)) if fill else 0
                for _ in range(min(n, len(fill))):
                    emit_item(st, fill.pop(0))
                if dump and tt > 0 and (tt * 5 + ct) >= 8:
                    dump_tile(tt * 5 + ct - 8)
        if dump:
            for t_ in range(12, 20):
                dump_tile(t_)
        if opt:
            a.label(lab)

    def dump_tile(t_):
        r = ACC + 4 * t_
        a(f"ds_write_b128 v{WA}, v[{r}:{r+3}] offset:{(t_ // 5)*5120 + (t_ % 5)*64}")

    def lds_b(i):
        r = breg(i)
        return [("wvm", [("B", i)])] + [("ds", f"ds_read_b128 v[{r+4*ct}:{r+4*ct+3}], v{LB} offset:{(i-O0)*5120 + ct*1024}", ("B", i)) for ct in range(5)]

    def o_loads(s2):
        for k in (O0, O0 + 1, O0 + 2):
            emit_all(s2, a_load(k))

    def o_peek():
        a(f"""
        s_lshr_b32 s{S['t']}, s{S['r2']}, 1
        s_lshl_b32 s{S['t']}, s{S['t']}, 3
        s_add_u32 s{S['t']}, s{S['t']}, s{S['w']}
        s_add_u32 s{S['t']}, s{S['t']}, {F_O}
        v_or_b32 v{RS}, s{S['t']}, v{l}
        v_lshlrev_b32 v{RS}, 7, v{RS}
        s_mov_b64 exec, 3
        """)
        st.emit(("vm", f"global_load_dword v{IRS}, v{RS}, s[{S['fl']}:{S['fl']+1}] sc1", "of"))
        a("s_mov_b64 exec, -1")

    def o_try():
        l1 = a.newlabel("OT")
        st.wait("vm", ["of"])
        a(f"""
        s_mov_b32 s{S['hs']}, 0
        v_cmp_gt_u32 vcc, 4, v{IRS}
        s_and_b32 s{S['t']}, vcc_lo, 3
        s_cbranch_scc1 {l1}
        s_mov_b32 s{S['hs']}, 1
        """)
        o_loads(Stream(a))
        a.label(l1)

    def o_wait():
        done = a.newlabel("OW")
        if Cfg.o_try >= 0:
            a(f"s_cmp_eq_u32 s{S['hs']}, 1\ns_cbranch_scc1 {done}")
        own_flag(F_O, 4, 0x106, True)
        o_loads(st)
        a.label(done)
        stamp(21)

    def after_step(i):
        it = []
        if i + 3 < NH:
            it += a_load(i + 3)
        if i + 5 < NH:
            for p in b_load(i + 5, breg(i)):
                it.append(("atomic", p))
        if i in (0, 1, 2) and not Cfg.lds_pre:
            it += [("atomic", p) for p in b_prefetch_lds()[5 * i:5 * i + 5]]
        elif i in (0, 1, 2) and Cfg.qfast:
            lab = a.newlabel("EL")
            flat = [(("vm0",) + x[1:]) if x[0] == "vm" else x for p in b_prefetch_lds()[5 * i:5 * i + 5] for x in p]
            it.append(("atomic", I(f"s_cmp_eq_u32 s{S['rls']}, 0\ns_cbranch_scc1 {lab}") + flat + I(f"{lab}:")))
        if i == NH - 4 and Cfg.o_try >= 0:
            it.append(("call", o_peek))
        if i == NH - 2 and Cfg.o_try >= 0:
            it.append(("call", o_try))
        if i == NH - 1:
            it.append(("call", o_wait))
        if i == XAT:
            it += epi_loads()
        if i in (NH - 2, NH - 1, NH):
            it = lds_b(i + 2) + it
        return it

    for i in range(3):
        emit_all(st, a_load(i))
    a("s_setprio 0")
    a.label("PHASE2C")
    carry = group_scc(epi_setup())
    for i in range(NH + 3):
        if i == NH:
            emit_all(st, carry)
            carry = []
        if Cfg.tdump and i == O0 + 1:
            break
        p2_step(i, carry)
        if i == Cfg.qtill:
            a("s_setprio 0")
        stamp(27 + i)
        carry = after_step(i)
    if Cfg.tdump:
        import copy
        emit_all(st, carry)
        q0 = copy.deepcopy(st.q)
        a(f"{present(O0 + 2)}\ns_cbranch_scc1 P2_THREE")
        st.wait("ds", None)
        p2_step(O0 + 1, [], dump=True)
        a("s_branch P2_RED\nP2_THREE:")
        st.q = q0
        p2_step(O0 + 1, [])
        st.wait("ds", None)
        p2_step(O0 + 2, [], dump=True, force=True)
        a.label("P2_RED")
        stamp(22)
        a("s_waitcnt vmcnt(0)")
    else:
        st.wait2(None, None)
        a.label("P2_RED")
        stamp(22)
        for t_ in range(20):
            dump_tile(t_)
    a("s_waitcnt lgkmcnt(0)\ns_barrier")
    stamp(23)
    FIN = [ACC, ACC + 32, BB]
    for i in range(2):
        a(f"v_add_u32 v{T+8}, {4*PW}, v{RAD+i}")
        for w in range(8):
            src, off = (RAD + i, w * PW) if w < 4 else (T + 8, (w - 4) * PW)
            st.emit(("ds", f"ds_read_b128 v[{FIN[i]+4*w}:{FIN[i]+4*w+3}], v{src} offset:{off}", ("r", i, w)))
            if i > 0 and w == 6:
                st.wait("ds", [("r", i - 1, 7)])
    for i in range(3):
        if i == 2:
            a(f"s_cmp_ge_u32 s{S['w']}, 4\ns_cbranch_scc1 FIN")
        f = FIN[i]
        if i == 0:
            lab = a.newlabel("R2")
            a(f"s_cmp_ge_u32 s{S['w']}, 4\ns_cbranch_scc1 {lab}\ns_waitcnt lgkmcnt(7)\nv_add_u32 v{T+9}, {4*PW}, v{RAD+2}")
            for w in range(8):
                src, off = (RAD + 2, w * PW) if w < 4 else (T + 9, (w - 4) * PW)
                a(f"ds_read_b128 v[{FIN[2]+4*w}:{FIN[2]+4*w+3}], v{src} offset:{off}")
            a.label(lab)
        if i == 2:
            a("s_waitcnt lgkmcnt(0)")
        x, b = XR[i], BR[i]
        a(f"""
        v_lshlrev_b32 v{T}, 16, v{x}
        v_and_b32 v{T+1}, 0xffff0000, v{x}
        v_lshlrev_b32 v{T+2}, 16, v{x+1}
        v_and_b32 v{T+3}, 0xffff0000, v{x+1}
        v_lshlrev_b32 v{T+4}, 16, v{b}
        v_and_b32 v{T+5}, 0xffff0000, v{b}
        v_lshlrev_b32 v{T+6}, 16, v{b+1}
        v_and_b32 v{T+7}, 0xffff0000, v{b+1}
        v_pk_add_f32 v[{T}:{T+1}], v[{T}:{T+1}], v[{T+4}:{T+5}]
        v_pk_add_f32 v[{T+2}:{T+3}], v[{T+2}:{T+3}], v[{T+6}:{T+7}]
        """)
        for w in range(8):
            st.wait("ds", [("r", i, w)])
            a(f"""
            v_pk_add_f32 v[{T}:{T+1}], v[{T}:{T+1}], v[{f+4*w}:{f+4*w+1}]
            v_pk_add_f32 v[{T+2}:{T+3}], v[{T+2}:{T+3}], v[{f+4*w+2}:{f+4*w+3}]
            """)
        a(f"""
        v_cvt_pk_bf16_f32 v{T+10+2*i}, v{T}, v{T+1}
        v_cvt_pk_bf16_f32 v{T+11+2*i}, v{T+2}, v{T+3}
        buffer_store_dwordx2 v[{T+10+2*i}:{T+11+2*i}], v{OA+i}, s[{SR}:{SR+3}], 0 offen
        """)
    a.label("FIN")
    stamp(24)
    if Cfg.stamps == 5:
        a(f"""
        s_cmp_lg_u32 s2, {Cfg.probe_wg}
        s_cbranch_scc1 END
        s_cmp_lg_u32 s{S['w']}, {Cfg.probe_w}
        s_cbranch_scc1 END
        v_readlane_b32 s{S['t']}, v{ITS}, {Cfg.probe}
        v_readlane_b32 s{S['t1']}, v{ITS}, {0 if Cfg.probe_cyc else 62}
        s_sub_u32 s{S['t']}, s{S['t']}, s{S['t1']}
        s_{'lshr' if Cfg.probe_cyc else 'lshl'}_b32 s{S['t']}, s{S['t']}, {3 if Cfg.probe_cyc else 2}
        s_min_u32 s{S['t']}, s{S['t']}, 100000
        v_mov_b32 v{T}, s{S['t']}
        global_store_dword v{Z}, v{T}, s[22:23] offset:4
        s_memrealtime s[{S['t0']}:{S['t0']+1}]
        s_waitcnt lgkmcnt(0)
        s_mov_b32 s{S['t1']}, s{S['t0']}
        SPIN:
        s_memrealtime s[{S['t0']}:{S['t0']+1}]
        s_waitcnt lgkmcnt(0)
        s_sub_u32 s{S['t2']}, s{S['t0']}, s{S['t1']}
        s_cmp_lt_u32 s{S['t2']}, s{S['t']}
        s_cbranch_scc1 SPIN
        """)
    elif Cfg.stamps and Cfg.stamps != 4:
        a(f"""
        s_memrealtime s[{S['t0']}:{S['t0']+1}]
        s_waitcnt lgkmcnt(0)
        v_writelane_b32 v{ITS}, s{S['t0']}, 63
        s_lshl_b32 s{S['t']}, s2, 3
        s_add_u32 s{S['t']}, s{S['t']}, s{S['w']}
        s_lshl_b32 s{S['t']}, s{S['t']}, 8
        s_add_u32 s{S['t']}, s{S['t']}, {STAMP_OFF}
        v_lshlrev_b32 v{T+20}, 2, v{l}
        v_add_u32 v{T+20}, s{S['t']}, v{T+20}
        global_store_dword v{T+20}, v{ITS}, s[24:25]
        """)
    a.label("END")
    a("s_endpgm")
    for f in ool:
        f()
    a.label("CODE_END")
    a("s_endpgm")
    return a.L


def sizes(L):
    import subprocess, re
    src = '.amdgcn_target "amdgcn-amd-amdhsa--gfx950"\n.text\n' + "\n".join(L) + "\n"
    r = subprocess.run(["llvm-mc", "-triple=amdgcn-amd-amdhsa", "-mcpu=gfx950", "-show-encoding"], input=src, capture_output=True, text=True)
    enc = re.findall(r"encoding: \[(.*?)\]", r.stdout)
    out, k = [], 0
    for x in L:
        if x.endswith(":") or x.startswith("."):
            out.append(0)
        else:
            out.append(len(enc[k].split(",")))
            k += 1
    assert k == len(enc)
    return out


def align_pass(L):
    import re
    sz = sizes(L)
    out, addr, last4 = [], 0, None
    nw = npad = 0
    for x, n_ in zip(L, sz):
        if n_ == 8 and addr % 8 == 4:
            if last4 is not None:
                op, rest = out[last4].split(None, 1)
                out[last4] = f"{op}_e64 {rest}"
                addr += 4
                nw += 1
            elif Cfg.align == 2:
                out.append("s_nop 0")
                addr += 4
                npad += 1
        if n_ == 4:
            wid = re.match(r"v_(mov|add|sub|subrev|mul|max|min|and|or|xor|lshlrev|lshrrev|exp|rcp|rsq|sqrt)_(b32|u32|f32|u32_u24)\b", x) and "_e64" not in x
            last4 = len(out) if (wid and addr % 8 == 0) else (last4 if addr % 8 == 4 and False else None)
        elif n_ == 8:
            last4 = None
        out.append(x)
        addr += n_
    print("align: widened", nw, "padded", npad, file=sys.stderr)
    return out


def build():
    head = open("cdna_kernels/%s.s.ref" % NAME).read().split("; Override launch")[0]
    out = head + "; @launch grid=(256,1,1) block=(512,1,1) lds=163840\n"
    out += '.amdgcn_target "amdgcn-amd-amdhsa--gfx950"\n.text\n'
    L, n = fix_hazards(gen())
    if Cfg.align:
        L = align_pass(L)
    out += f".globl {KN}\n.p2align 8\n.type {KN},@function\n"
    out += "\n".join(x if x.endswith(":") else "    " + x for x in L) + "\n"
    print("instrs", len(L), "nops inserted", n, file=sys.stderr)
    out += f""".section .rodata,"a"
.p2align 6
.amdhsa_kernel {KN}
  .amdhsa_next_free_vgpr 256
  .amdhsa_next_free_sgpr 102
  .amdhsa_accum_offset 256
  .amdhsa_group_segment_fixed_size 0
  .amdhsa_kernarg_size 88
  .amdhsa_user_sgpr_count 2
  .amdhsa_user_sgpr_kernarg_segment_ptr 1
  .amdhsa_system_sgpr_workgroup_id_x 1
  .amdhsa_float_denorm_mode_32 3
.end_amdhsa_kernel
"""
    return out


if __name__ == "__main__":
    for arg in sys.argv[2:]:
        k, v = arg.split("=")
        assert hasattr(Cfg, k), k
        setattr(Cfg, k, int(v))
    open(sys.argv[1], "w").write(build())
```
